```python
import torch

def _softmax(x, axis=-1):
    return torch.softmax(x, dim=axis)
def _gelu(x):
    return torch.nn.functional.gelu(x, approximate="tanh")
def _silu(x):
    return torch.nn.functional.silu(x)
def _sigmoid(x):
    return torch.sigmoid(x)
def _layernorm(x, axis=-1, eps=1e-5):
    m = x.mean(dim=axis, keepdim=True)
    v = x.var(dim=axis, keepdim=True, unbiased=False)
    return (x - m) / torch.sqrt(v + eps)
def _scatter_add(tgt, idx, src, axis=0):
    return tgt.clone().index_add_(axis, idx, src)
def _segment_sum(src, seg, n):
    out = torch.zeros((n,) + src.shape[1:], dtype=src.dtype)
    return out.index_add_(0, seg, src)
def _pad(x, pw):
    flat = tuple(v for pair in reversed(pw) for v in pair)
    return torch.nn.functional.pad(x, flat)

kernel_name = 'standalone__sliding_block_cached__sampling'

def setup_inputs():

    _w = (lambda a: (lambda t: t.to(torch.bfloat16) if t.is_floating_point() else t)(torch.as_tensor(a)))
    B, Sq, D = 8, 32, 1024
    Hq, Hkv, Sk, Dh = 32, 4, 8192, 128
    assert Hq % Hkv == 0, (Hq, Hkv)
    return {
        "x": _w((lambda *s: torch.randn(*s, dtype=torch.bfloat16) * 0.8)(B, Sq, D)),
        "k_cache": _w((lambda *s: torch.randn(*s, dtype=torch.bfloat16) * 0.8)(B, Hkv, Sk, Dh)),
        "v_cache": _w((lambda *s: torch.randn(*s, dtype=torch.bfloat16) * 0.05)(B, Hkv, Sk, Dh)),
        "wq": _w((lambda *s: torch.randn(*s, dtype=torch.bfloat16) * 0.8)(D, Hq * Dh) * (D ** -0.5)),
        "wo": _w((lambda *s: torch.randn(*s, dtype=torch.bfloat16) * 0.05)(Hq * Dh, D) * ((Hq * Dh) ** -0.5)),
    }

def reference(x, k_cache, v_cache, wq, wo):
    B, Sq, D = x.shape
    Hq, Dh = 32, 128
    Hkv, Sk = k_cache.shape[1], k_cache.shape[2]
    W = min(4096, max(256, Sk // 4))
    rep = Hq // Hkv
    q = (lambda x, *d: x.permute(*d))((x @ wq).reshape(B, Sq, Hq, Dh), 0, 2, 1, 3)
    k = (lambda x, n, axis: torch.repeat_interleave(x, n, dim=axis))(k_cache[:, :, Sk - W:, :], rep, axis=1)
    v = (lambda x, n, axis: torch.repeat_interleave(x, n, dim=axis))(v_cache[:, :, Sk - W:, :], rep, axis=1)
    scores = torch.einsum("bhqd,bhkd->bhqk", q, k) * (Dh ** -0.5)
    p = _softmax(scores, axis=-1)
    o = torch.einsum("bhqk,bhkd->bhqd", p, v)
    return (lambda x, *d: x.permute(*d))(o, 0, 2, 1, 3).reshape(B, Sq, Hq * Dh) @ wo
```

```python
import struct, math, sys

NAME = "standalone__sliding_block_cached__sampling_kernel"
C_SCALE = math.log2(math.e) / math.sqrt(128.0)
def f2u(x): return struct.unpack("<I", struct.pack("<f", x))[0]

QF   = 0x0000000
OF   = 0x0200000
PO   = 0x0400000
LSE  = 0x1400000
F1   = 0x1440000
F2   = 0x1450000
F3   = 0x1460000
F4   = 0x1468000
OP   = 0x1480000
TSB  = 0x1600000
WS_BYTES = 268435456

sXCD, sI, sWAVE, sW4, sROLE = 3, 4, 5, 6, 7
sX, sK, sV, sWQ, sWO, sOUT, sDBG, sWS = 32, 36, 40, 44, 48, 52, 56, 60
sT0, sT1, sT2, sT3 = 8, 9, 10, 11
sCNT = 12
sLW1K = 13
sG, sJ = 14, 15
sBASE0, sBASE1 = 64, 65
sCT, sRT = 66, 67
sC = 68
sN = 70
sBO, sP, sN0, sH0 = 72, 73, 74, 75
sEX = 76
sTS = 80

vLANE16 = 1
vKA = 2
vVA = 10
vT0, vT1 = 14, 15
vFR = 16
vO = 48
vS = 112
vM, vMN, vL0, vL1 = 240, 241, 242, 243
vA0, vA1, vA2, vA3 = 244, 245, 246, 247
vNON = 248
vPL = 250
vJ = 252

class G:
    def __init__(self, debug=False, prio=0, limit=1 << 20):
        self.L = []; self.debug = debug; self.nlab = 0; self.prio = prio; self.limit = limit
    def __call__(self, s): self.L.append("  " + s)
    def lab(self, s): self.L.append(s + ":")
    def newlab(self, p="L"):
        self.nlab += 1; return f"{p}_{self.nlab}"
    def ts(self, n):
        if self.debug:
            self(f"s_memrealtime s[100:101]")
            self("s_waitcnt lgkmcnt(0)")
            self(f"s_mov_b32 s{sTS+n}, s100")
    def srd(self, d, p, nbytes):
        self(f"s_mov_b32 s{d}, s{p}")
        self(f"s_and_b32 s{d+1}, s{p+1}, 0xffff")
        self(f"s_mov_b32 s{d+2}, {nbytes:#x}")
        self(f"s_mov_b32 s{d+3}, 0x20000")
    def dma(self, voff, srd, sbase, soff_const, m0base, m0_const, flags=""):
        self(f"s_add_u32 m0, s{m0base}, {m0_const:#x}")
        self(f"s_add_u32 s{sT0}, s{sbase}, {soff_const:#x}")
        self(f"buffer_load_dwordx4 v{voff}, s[{srd}:{srd+3}], s{sT0} offen {flags} lds".replace("  ", " "))
    def poll(self, vaddr):
        l = self.newlab("POLL"); d = self.newlab("POLLD")
        self(f"s_mov_b32 s{sCNT}, 0")
        self.lab(l)
        self(f"buffer_load_dwordx2 v[{vPL}:{vPL+1}], v{vaddr}, s[{sWS}:{sWS+3}], 0 offen sc1")
        self("s_waitcnt vmcnt(0)")
        self(f"v_cmp_ne_u64 vcc, s[{sN}:{sN+1}], v[{vPL}:{vPL+1}]")
        self(f"s_add_u32 s{sCNT}, s{sCNT}, 1")
        self(f"s_cbranch_vccz {d}")
        self(f"s_cmp_lt_u32 s{sCNT}, {self.limit:#x}")
        self(f"s_cbranch_scc1 {l}")
        self.lab(d)
    def flag(self, saddr):
        self(f"v_mov_b32 v{vA3}, s{saddr}")
        self(f"s_mov_b64 s[{sEX}:{sEX+1}], exec")
        self("s_mov_b64 exec, 1")
        self(f"buffer_store_dwordx2 v[{vNON}:{vNON+1}], v{vA3}, s[{sWS}:{sWS+3}], 0 offen sc1")
        self(f"s_mov_b64 exec, s[{sEX}:{sEX+1}]")
    def nonce_finish(self):
        l = self.newlab("NON"); d = self.newlab("NOND")
        self(f"s_mov_b32 s{sCNT}, 0")
        self.lab(l)
        self(f"v_readfirstlane_b32 s{sN}, v{vPL}")
        self(f"v_readfirstlane_b32 s{sN+1}, v{vPL+1}")
        self(f"s_add_u32 s{sCNT}, s{sCNT}, 1")
        self("s_nop 1")
        self(f"s_cmp_lg_u32 s{sN}, 0")
        self(f"s_cbranch_scc1 {d}")
        self(f"s_cmp_ge_u32 s{sCNT}, {self.limit:#x}")
        self(f"s_cbranch_scc1 {d}")
        self(f"v_mov_b32 v{vA3}, 0")
        self(f"buffer_load_dwordx2 v[{vPL}:{vPL+1}], v{vA3}, s[{sDBG}:{sDBG+3}], 0 offen sc1")
        self("s_waitcnt vmcnt(0)")
        self(f"s_branch {l}")
        self.lab(d)
        self(f"v_mov_b32 v{vNON}, s{sN}")
        self(f"v_mov_b32 v{vNON+1}, s{sN+1}")

def mfma(g, d, a, b, c):
    cs = "0" if c is None else f"v[{c}:{c+15}]"
    g(f"v_mfma_f32_32x32x16_bf16 v[{d}:{d+15}], v[{a}:{a+3}], v[{b}:{b+3}], {cs}")

def gen(debug=False, prio=0):
    g = G(debug=debug, prio=prio)
    g("s_cmp_ge_u32 s2, 256")
    g("s_cbranch_scc1 L_END")
    g("s_load_dwordx16 s[16:31], s[0:1], 0")
    g(f"s_and_b32 s{sXCD}, s2, 7")
    g(f"s_lshr_b32 s{sI}, s2, 3")
    g("v_lshrrev_b32 v1, 6, v0")
    g("v_and_b32 v0, 63, v0")
    g(f"v_readfirstlane_b32 s{sWAVE}, v1")
    g(f"v_lshlrev_b32 v{vLANE16}, 4, v0")
    g(f"s_and_b32 s{sT0}, s{sI}, 7")
    g(f"s_lshl_b32 s{sCT}, s{sXCD}, 3")
    g(f"s_add_u32 s{sCT}, s{sCT}, s{sT0}")
    g(f"s_lshr_b32 s{sRT}, s{sI}, 3")
    g(f"s_lshl_b32 s{sG}, s{sXCD}, 2")
    g(f"s_add_u32 s{sG}, s{sG}, s{sRT}")
    g(f"s_and_b32 s{sJ}, s{sI}, 7")
    g(f"s_and_b32 s{sW4}, s{sWAVE}, 3")
    g(f"s_lshr_b32 s{sROLE}, s{sWAVE}, 2")
    g(f"s_lshl_b32 s{sLW1K}, s{sW4}, 10")
    g(f"s_mov_b32 s{sC}, {f2u(C_SCALE):#x}")
    g("s_waitcnt lgkmcnt(0)")
    g.srd(sX, 16, 8*32*1024*2)
    g.srd(sWQ, 22, 1024*4096*2)
    g.srd(sK, 18, 8*4*8192*128*2)
    g.srd(sV, 20, 8*4*8192*128*2)
    g.srd(sWO, 24, 4096*1024*2)
    g.srd(sOUT, 26, 8*32*1024*2)
    g.srd(sDBG, 28, 256)
    g.srd(sWS, 30, WS_BYTES)
    g.ts(0)
    g(f"s_cmp_eq_u32 s{sROLE}, 0")
    g("s_cbranch_scc1 L_CWAVE")

    vXO, vWO_, vKO, vVO = 16, 17, 18, 19
    g("v_lshrrev_b32 v20, 4, v0")
    g(f"s_lshl_b32 s{sT1}, s{sW4}, 2")
    g(f"v_add_u32 v21, s{sT1}, v20")
    g("v_and_b32 v22, 15, v0")
    g("v_xor_b32 v23, v22, v21")
    g("v_lshlrev_b32 v23, 4, v23")
    g(f"v_lshl_add_u32 v{vXO}, v21, 11, v23")
    g(f"v_lshl_add_u32 v{vKO}, v21, 8, v23")
    g("v_lshlrev_b32 v24, 2, v20")
    g("v_xor_b32 v24, v22, v24")
    g("v_lshlrev_b32 v24, 4, v24")
    g(f"v_lshl_add_u32 v{vVO}, v21, 8, v24")
    g("v_lshrrev_b32 v25, 3, v0")
    g("v_and_b32 v26, 7, v0")
    g("v_lshlrev_b32 v27, 1, v25")
    g("v_and_b32 v27, 4, v27")
    g("v_xor_b32 v26, v26, v27")
    g("v_lshlrev_b32 v26, 4, v26")
    g(f"v_lshl_add_u32 v{vWO_}, v25, 13, v26")
    g(f"s_lshl_b32 s{sBASE0}, s{sRT}, 17")
    g(f"s_lshl_b32 s{sBASE1}, s{sCT}, 7")
    g(f"s_lshl_b32 s{sT1}, s{sW4}, 16")
    g(f"s_add_u32 s{sBASE1}, s{sBASE1}, s{sT1}")
    def stage(k):
        slot = (k % 5) * 32768
        for m in range(4):
            g.dma(vWO_, sWQ, sBASE1, (128*k + 32*m) * 8192, sLW1K, slot + 16384 + 4096*m, "nt")
            g.dma(vXO, sX, sBASE0, m*16*2048 + k*256, sLW1K, slot + 4096*m)
    for k in range(5): stage(k)
    sKV = 69
    g(f"s_lshl_b32 s{sKV}, s{sG}, 21")
    g(f"s_lshl_b32 s{sT1}, s{sJ}, 16")
    g(f"s_add_u32 s{sKV}, s{sKV}, s{sT1}")
    g(f"s_add_u32 s{sKV}, s{sKV}, {6144*256:#x}")
    def kv(srd, voff, half, slot):
        for m in range(8):
            g.dma(voff, srd, sKV, (128*half + 16*m) * 256, sLW1K, slot*32768 + 4096*m, "nt")
    waits = [32, 24, 24, 24, 25, 25, 25, 24]
    for k in range(8):
        g(f"s_waitcnt vmcnt({waits[k]})")
        g("s_barrier")
        if k == 0: g.ts(1)
        if k == 1: stage(5)
        if k == 2: stage(6)
        if k == 3:
            g(f"v_mov_b32 v{vA3}, 0")
            g(f"buffer_load_dwordx2 v[{vPL}:{vPL+1}], v{vA3}, s[{sDBG}:{sDBG+3}], 0 offen sc1")
            stage(7)
        if k == 4: kv(sK, vKO, 0, 3)
        if k == 5: kv(sK, vKO, 1, 4)
        if k == 6: kv(sV, vVO, 0, 0)
        if k == 7: kv(sV, vVO, 1, 1)
    g.ts(2)
    g.nonce_finish()
    g("s_barrier")
    g("s_waitcnt vmcnt(16)")
    g.ts(3)
    g("s_barrier")
    g(f"s_lshl_b32 s{sT0}, s{sW4}, 13")
    g(f"s_add_u32 s{sT0}, s{sT0}, 65536")
    g(f"v_add_u32 v{vA0}, s{sT0}, v{vLANE16}")
    for s in range(8):
        g(f"ds_read_b128 v[{vO+4*s}:{vO+4*s+3}], v{vA0} offset:{1024*s}")
    if prio: g(f"s_setprio {prio}")
    g("s_branch L_ATT")

    g.lab("L_CWAVE")
    g(f"s_or_b32 s{sT0}, s2, s{sWAVE}")
    g(f"s_cmp_lg_u32 s{sT0}, 0")
    g("s_cbranch_scc1 L_NOPUB")
    g(f"s_memrealtime s[{sN}:{sN+1}]")
    g("s_waitcnt lgkmcnt(0)")
    g(f"s_or_b32 s{sN}, s{sN}, 1")
    g(f"s_xor_b32 s{sN+1}, s{sN+1}, 0x5bd1e995")
    g(f"v_mov_b32 v{vNON}, s{sN}")
    g(f"v_mov_b32 v{vNON+1}, s{sN+1}")
    g(f"v_mov_b32 v{vA3}, 0")
    g(f"buffer_store_dwordx2 v[{vNON}:{vNON+1}], v{vA3}, s[{sDBG}:{sDBG+3}], 0 offen sc1")
    g.lab("L_NOPUB")
    g(f"s_lshl_b32 s{sT1}, s{sW4}, 5")
    g(f"s_add_u32 s{sT1}, s{sT1}, s{sI}")
    g(f"s_lshl_b32 s{sT1}, s{sT1}, 13")
    g(f"s_lshl_b32 s{sT2}, s{sXCD}, 10")
    g(f"s_add_u32 s{sT1}, s{sT1}, s{sT2}")
    g(f"s_lshl_b32 s{sT2}, s{sI}, 14")
    g(f"s_lshl_b32 s{sT3}, s{sW4}, 12")
    g(f"s_add_u32 s{sT2}, s{sT2}, s{sT3}")
    for m in range(8):
        g(f"s_add_u32 s{sT0}, s{sT1}, {m*128*8192:#x}")
        g(f"buffer_load_dwordx4 v[{vJ}:{vJ+3}], v{vLANE16}, s[{sWQ}:{sWQ+3}], s{sT0} offen nt")
        if m < 4:
            g(f"buffer_load_dwordx4 v[{vJ}:{vJ+3}], v{vLANE16}, s[{sX}:{sX+3}], s{sT2} offen offset:{1024*m}")
    g(f"s_and_b32 s{sT0}, s{sW4}, 1")
    g(f"s_lshl_b32 s{sT0}, s{sT0}, 13")
    g("v_and_b32 v20, 31, v0")
    g("v_lshrrev_b32 v21, 5, v0")
    g("v_and_b32 v22, 15, v0")
    g("v_xor_b32 v22, v22, v21")
    g(f"v_lshlrev_b32 v23, 8, v20")
    g(f"v_add_u32 v23, s{sT0}, v23")
    for s in range(8):
        g(f"v_xor_b32 v24, {2*s}, v22")
        g(f"v_lshl_add_u32 v{vKA+s}, v24, 4, v23")
    g("v_and_b32 v20, 15, v0")
    g("v_lshrrev_b32 v22, 2, v20")
    g("v_lshl_add_u32 v23, v21, 3, v22")
    g("v_lshlrev_b32 v23, 7, v23")
    g("v_and_b32 v24, 1, v0")
    g("v_bfe_u32 v25, v0, 4, 1")
    g("v_lshl_add_u32 v24, v25, 1, v24")
    g(f"s_lshr_b32 s{sT0}, s{sW4}, 1")
    g(f"s_lshl_b32 s{sT0}, s{sT0}, 2")
    g(f"v_add_u32 v24, s{sT0}, v24")
    g("v_lshlrev_b32 v26, 1, v22")
    g("v_and_b32 v26, 4, v26")
    g("v_xor_b32 v24, v24, v26")
    g("v_lshl_add_u32 v23, v24, 4, v23")
    g("v_bfe_u32 v25, v0, 1, 1")
    g(f"v_lshl_add_u32 v{vVA}, v25, 3, v23")
    g(f"v_add_u32 v{vVA}, 16384, v{vVA}")
    acc = vS
    fr = 128
    def bump(delta):
        g(f"s_mov_b32 s{sT0}, {delta & 0xffffffff:#x}")
        for r in list(range(vKA, vKA+8)) + [vVA]:
            g(f"v_add_u32 v{r}, s{sT0}, v{r}")
    for k in range(8):
        slot = k % 5
        if k == 2 or k == 4 or k == 7: bump(65536)
        if k == 5: bump(-131072)
        io = (slot & 1) * 32768
        g("s_barrier")
        if k == 0: g.ts(1)
        if k == 3:
            g(f"v_mov_b32 v{vA3}, 0")
            g(f"buffer_load_dwordx2 v[{vPL}:{vPL+1}], v{vA3}, s[{sDBG}:{sDBG+3}], 0 offen sc1")
        def rd(s):
            b = fr + 8*s
            g(f"ds_read_b64_tr_b16 v[{b}:{b+1}], v{vVA} offset:{io + 2048*s}")
            g(f"ds_read_b64_tr_b16 v[{b+2}:{b+3}], v{vVA} offset:{io + 2048*s + 512}")
            g(f"ds_read_b128 v[{b+4}:{b+7}], v{vKA+s} offset:{io}")
        for s in range(5): rd(s)
        for s in range(8):
            outstanding_after = min(4, 7 - s) * 3
            g(f"s_waitcnt lgkmcnt({outstanding_after})")
            mfma(g, acc, fr + 8*s, fr + 8*s + 4, None if (k == 0 and s == 0) else acc)
            if s + 5 < 8: rd(s + 5)
    g.ts(2)
    g(f"s_and_b32 s{sT0}, s{sW4}, 1")
    g(f"s_lshl_b32 s{sT1}, s{sRT}, 1")
    g(f"s_add_u32 s{sT1}, s{sT1}, s{sT0}")
    g(f"s_lshl_b32 s{sT1}, s{sT1}, 5")
    g(f"s_lshr_b32 s{sT2}, s{sCT}, 1")
    g(f"s_add_u32 s{sT1}, s{sT1}, s{sT2}")
    g(f"s_and_b32 s{sT2}, s{sCT}, 1")
    g(f"s_lshl_b32 s{sT2}, s{sT2}, 1")
    g(f"s_lshr_b32 s{sT3}, s{sW4}, 1")
    g(f"s_add_u32 s{sT2}, s{sT2}, s{sT3}")
    g(f"s_lshl_b32 s{sBASE0}, s{sT1}, 13")
    g(f"s_lshl_b32 s{sT3}, s{sT2}, 11")
    g(f"s_add_u32 s{sBASE0}, s{sBASE0}, s{sT3}")
    g(f"s_lshl_b32 s{sBASE1}, s{sT1}, 7")
    g(f"s_lshl_b32 s{sT3}, s{sT2}, 3")
    g(f"s_add_u32 s{sBASE1}, s{sBASE1}, s{sT3}")
    g(f"s_add_u32 s{sBASE1}, s{sBASE1}, {F1:#x}")
    for u in range(8):
        g(f"v_cvt_pk_bf16_f32 v{16+u}, v{acc+2*u}, v{acc+2*u+1}")
    g(f"buffer_store_dwordx4 v[16:19], v{vLANE16}, s[{sWS}:{sWS+3}], s{sBASE0} offen sc1")
    g(f"buffer_store_dwordx4 v[20:23], v{vLANE16}, s[{sWS}:{sWS+3}], s{sBASE0} offen offset:1024 sc1")
    g("s_barrier")
    g(f"s_lshl_b32 s{sT0}, s{sG}, 3")
    g(f"s_add_u32 s{sT0}, s{sT0}, s{sW4}")
    g(f"s_lshl_b32 s{sT1}, s{sT0}, 7")
    g(f"s_add_u32 s{sT1}, s{sT1}, {F1:#x}")
    g("v_and_b32 v24, 3, v0")
    g("v_lshlrev_b32 v24, 3, v24")
    g("v_bfe_u32 v25, v0, 2, 1")
    g("v_lshl_add_u32 v24, v25, 9, v24")
    g(f"v_add_u32 v{vA0}, s{sT1}, v24")
    g(f"s_lshl_b32 s{sBASE0}, s{sT0}, 13")
    g("s_waitcnt vmcnt(0)")
    g.nonce_finish()
    g.flag(sBASE1)
    g.ts(3)
    g.poll(vA0)
    g.ts(4)
    g(f"s_add_u32 s{sT1}, s{sBASE0}, {4*8192}")
    for s in range(8):
        o = 1024*(s & 3)
        if s == 4:
            g(f"s_add_u32 s{sT1}, s{sT1}, 4096")
        g(f"buffer_load_dwordx4 v[{vS+4*s}:{vS+4*s+3}], v{vLANE16}, s[{sWS}:{sWS+3}], s{sT1} offen offset:{o} sc1")
    for s in range(8):
        o = 1024*(s & 3)
        if s == 4:
            g(f"s_add_u32 s{sBASE0}, s{sBASE0}, 4096")
        g(f"buffer_load_dwordx4 v[{vO+4*s}:{vO+4*s+3}], v{vLANE16}, s[{sWS}:{sWS+3}], s{sBASE0} offen offset:{o} sc1")
    g(f"s_lshl_b32 s{sT0}, s{sW4}, 13")
    g(f"s_add_u32 s{sT0}, s{sT0}, 65536")
    g(f"v_add_u32 v{vA0}, s{sT0}, v{vLANE16}")
    for s in range(8):
        g(f"s_waitcnt vmcnt({15-s})")
        g(f"ds_write_b128 v{vA0}, v[{vS+4*s}:{vS+4*s+3}] offset:{1024*s}")
    g("s_waitcnt lgkmcnt(0)")
    g("s_barrier")
    g("v_lshrrev_b32 v24, 4, v0")
    g("v_and_b32 v25, 15, v0")
    g("v_lshlrev_b32 v25, 4, v25")
    g(f"v_lshl_add_u32 v{vA1}, v24, 11, v25")
    g(f"s_lshl_b32 s{sT1}, s{sI}, 18")
    g(f"s_lshl_b32 s{sT2}, s{sW4}, 16")
    g(f"s_add_u32 s{sT1}, s{sT1}, s{sT2}")
    g(f"s_lshl_b32 s{sT2}, s{sXCD}, 8")
    g(f"s_add_u32 s{sT1}, s{sT1}, s{sT2}")
    g("s_waitcnt vmcnt(0)")
    for m in range(8):
        g(f"s_add_u32 s{sT0}, s{sT1}, {m*4*2048:#x}")
        g(f"buffer_load_dwordx4 v[{vJ}:{vJ+3}], v{vA1}, s[{sWO}:{sWO+3}], s{sT0} offen nt")

    g.lab("L_ATT")
    g.ts(5)
    g("v_and_b32 v20, 31, v0")
    g("v_lshrrev_b32 v21, 5, v0")
    g("v_and_b32 v22, 15, v0")
    g("v_xor_b32 v23, v22, v21")
    g("v_lshlrev_b32 v20, 8, v20")
    g("v_add_u32 v20, 98304, v20")
    for s in range(8):
        g(f"v_xor_b32 v24, {2*s}, v23")
        g(f"v_lshl_add_u32 v{vKA+s}, v24, 4, v20")
    g("v_lshrrev_b32 v24, 2, v22")
    g("v_lshl_add_u32 v25, v21, 2, v24")
    g("v_lshlrev_b32 v25, 8, v25")
    g("v_and_b32 v26, 1, v0")
    g("v_lshl_add_u32 v25, v26, 3, v25")
    g("v_bfe_u32 v26, v0, 1, 1")
    g("v_bfe_u32 v27, v0, 4, 1")
    g("v_lshl_add_u32 v26, v27, 1, v26")
    g("v_lshlrev_b32 v24, 2, v24")
    g("v_xor_b32 v26, v26, v24")
    for dt in range(4):
        g(f"v_xor_b32 v27, {4*dt}, v26")
        g(f"v_lshl_add_u32 v{vVA+dt}, v27, 4, v25")
    g("s_waitcnt lgkmcnt(0)")
    def krd(T, s):
        g(f"ds_read_b128 v[{vFR+4*s}:{vFR+4*s+3}], v{vKA+s} offset:{8192*T}")
    for s in range(8): krd(0, s)
    g(f"v_mov_b32 v{vM}, 0xff800000")
    for T in range(8):
        for s in range(8):
            out = 7 if T < 7 else 7 - s
            g(f"s_waitcnt lgkmcnt({out})")
            mfma(g, vS+16*T, vFR+4*s, vO+4*s, None if s == 0 else vS+16*T)
            if T < 7: krd(T+1, s)
            if T > 0 and s >= 4:
                for u in range(2):
                    r = vS + 16*(T-1) + 4*(s-4) + 2*u
                    g(f"v_max3_f32 v{vM}, v{r}, v{r+1}, v{vM}")
    g.ts(6)
    g(f"s_cmp_eq_u32 s{sROLE}, 0")
    g("s_cbranch_scc1 L_VOK")
    g("s_waitcnt vmcnt(0)")
    g.lab("L_VOK")
    g("s_barrier")
    g.ts(7)
    seq = [(T, t, dt) for T in range(8) for t in range(2) for dt in range(4)]
    def vrd(n):
        T, t, dt = seq[n]
        b = vFR + 4*(n % 8)
        o = (32*T + 16*t) * 256
        g(f"ds_read_b64_tr_b16 v[{b}:{b+1}], v{vVA+dt} offset:{o}")
        g(f"ds_read_b64_tr_b16 v[{b+2}:{b+3}], v{vVA+dt} offset:{o + 2048}")
    AH = 6
    for n in range(AH): vrd(n)
    g("s_nop 3")
    for u in range(8):
        r = vS + 16*7 + 2*u
        g(f"v_max3_f32 v{vM}, v{r}, v{r+1}, v{vM}")
    g(f"v_mov_b32 v{vT0}, v{vM}")
    g("s_nop 1")
    g(f"v_permlane32_swap_b32 v{vM}, v{vT0}")
    g("s_nop 1")
    g(f"v_max_f32 v{vM}, v{vM}, v{vT0}")
    g(f"v_mul_f32 v{vM}, s{sC}, v{vM}")
    g(f"v_sub_f32 v{vMN}, 0, v{vM}")
    g(f"v_mov_b32 v{vL0}, 0")
    g(f"v_mov_b32 v{vL1}, 0")
    def sm_pair(T, u, mid=None):
        a = vS + 16*T + 2*u; b = a + 1
        g(f"v_fma_f32 v{a}, v{a}, s{sC}, v{vMN}")
        g(f"v_fma_f32 v{b}, v{b}, s{sC}, v{vMN}")
        g(f"v_exp_f32 v{a}, v{a}")
        g(f"v_exp_f32 v{b}, v{b}")
        if mid: mid()
        else: g("s_nop 0")
        g(f"v_add_f32 v{vL0}, v{vL0}, v{a}")
        g(f"v_add_f32 v{vL1}, v{vL1}, v{b}")
        g(f"v_cvt_pk_bf16_f32 v{vS+16*T+u}, v{a}, v{b}")
    for u in range(8): sm_pair(0, u)
    g("s_nop 1")
    for n, (T, t, dt) in enumerate(seq):
        rem = min(AH - 1, 63 - n)
        g(f"s_waitcnt lgkmcnt({2*rem})")
        mfma(g, vO+16*dt, vFR+4*(n % 8), vS+16*T+4*t, None if (T == 0 and t == 0) else vO+16*dt)
        nxt = (lambda n=n: vrd(n + AH)) if n + AH < 64 else None
        if T < 7:
            sm_pair(T+1, n % 8, nxt)
        elif nxt:
            nxt()
    g.ts(8)
    g(f"v_add_f32 v{vL0}, v{vL0}, v{vL1}")
    g(f"v_mov_b32 v{vT0}, v{vL0}")
    g("s_nop 1")
    g(f"v_permlane32_swap_b32 v{vL0}, v{vT0}")
    g("s_nop 1")
    g(f"v_add_f32 v{vL0}, v{vL0}, v{vT0}")
    g(f"v_rcp_f32 v{vL1}, v{vL0}")
    g(f"v_log_f32 v{vT0}, v{vL0}")
    g(f"s_lshl_b32 s{sBASE0}, s{sG}, 19")
    g(f"s_lshl_b32 s{sT0}, s{sWAVE}, 13")
    g(f"s_add_u32 s{sBASE0}, s{sBASE0}, s{sT0}")
    g(f"s_lshl_b32 s{sT0}, s{sJ}, 10")
    g(f"s_add_u32 s{sBASE0}, s{sBASE0}, s{sT0}")
    g(f"s_add_u32 s{sBASE0}, s{sBASE0}, {PO:#x}")
    g(f"s_lshl_b32 s{sT1}, s{sG}, 3")
    g(f"s_add_u32 s{sT1}, s{sT1}, s{sWAVE}")
    g(f"s_lshl_b32 s{sT2}, s{sT1}, 10")
    g(f"s_add_u32 s{sBASE1}, s{sT2}, {LSE:#x}")
    g(f"s_lshl_b32 s{sT2}, s{sJ}, 7")
    g(f"s_add_u32 s{sT2}, s{sT2}, s{sBASE1}")
    g(f"v_add_f32 v{vT0}, v{vT0}, v{vM}")
    g(f"v_and_b32 v{vA0}, 31, v0")
    g(f"v_lshlrev_b32 v{vA0}, 2, v{vA0}")
    g(f"buffer_store_dword v{vT0}, v{vA0}, s[{sWS}:{sWS+3}], s{sT2} offen sc1")
    for f in range(8):
        src = vO + 8*f; dst = vS + 4*f
        for u in range(8):
            g(f"v_mul_f32 v{src+u}, v{src+u}, v{vL1}")
        for u in range(4):
            g(f"v_cvt_pk_bf16_f32 v{dst+u}, v{src+2*u}, v{src+2*u+1}")
        g(f"s_add_u32 s{sT0}, s{sBASE0}, {f*65536:#x}")
        g(f"buffer_store_dwordx4 v[{dst}:{dst+3}], v{vLANE16}, s[{sWS}:{sWS+3}], s{sT0} offen sc1")
    g("s_barrier")
    g(f"s_lshr_b32 s{sBO}, s{sI}, 2")
    g(f"s_bfe_u32 s{sP}, s{sI}, 0x10001")
    g(f"s_and_b32 s{sT0}, s{sI}, 1")
    g(f"s_lshl_b32 s{sT0}, s{sT0}, 6")
    g(f"s_lshl_b32 s{sN0}, s{sXCD}, 7")
    g(f"s_add_u32 s{sN0}, s{sN0}, s{sT0}")
    g(f"s_lshr_b32 s{sH0}, s{sWAVE}, 1")
    g(f"s_lshl_b32 s{sH0}, s{sH0}, 3")
    g(f"s_and_b32 s{sT0}, s{sWAVE}, 1")
    g(f"s_lshl_b32 s{sT0}, s{sT0}, 1")
    g(f"s_add_u32 s{sH0}, s{sH0}, s{sT0}")
    g(f"s_xor_b32 s{sT0}, s{sP}, 1")
    g(f"s_lshl_b32 s{sT0}, s{sT0}, 2")
    g(f"s_add_u32 s{sH0}, s{sH0}, s{sT0}")
    sWB, sREG = 78, 79
    g(f"s_lshl_b32 s{sWB}, s{sH0}, 18")
    g(f"s_lshl_b32 s{sT0}, s{sN0}, 1")
    g(f"s_add_u32 s{sWB}, s{sWB}, s{sT0}")
    g(f"s_lshl_b32 s{sREG}, s{sWAVE}, 14")
    g("v_lshrrev_b32 v25, 3, v0")
    g("v_and_b32 v26, 7, v0")
    g("v_lshlrev_b32 v27, 1, v25")
    g("v_and_b32 v27, 4, v27")
    g("v_xor_b32 v26, v26, v27")
    g("v_lshlrev_b32 v26, 4, v26")
    g(f"v_lshl_add_u32 v{vA1}, v25, 11, v26")
    def wo_round(r):
        for n in range(16):
            g.dma(vA1, sWO, sWB, (128*r + 8*n) * 2048, sREG, 1024*n)
    wo_round(0)
    g("v_lshrrev_b32 v21, 5, v0")
    g("v_bfe_u32 v24, v0, 2, 2")
    g("v_lshl_add_u32 v25, v21, 2, v24")
    g("v_lshlrev_b32 v25, 7, v25")
    g("v_and_b32 v26, 1, v0")
    g("v_lshl_add_u32 v25, v26, 3, v25")
    g(f"v_add_u32 v25, s{sREG}, v25")
    g("v_bfe_u32 v26, v0, 1, 1")
    g("v_bfe_u32 v27, v0, 4, 1")
    g("v_lshl_add_u32 v26, v27, 1, v26")
    g("v_lshlrev_b32 v24, 1, v24")
    g("v_and_b32 v24, 4, v24")
    g("v_xor_b32 v26, v26, v24")
    g(f"v_lshl_add_u32 v{vKA}, v26, 4, v25")
    g("v_xor_b32 v26, 4, v26")
    g(f"v_lshl_add_u32 v{vKA+1}, v26, 4, v25")
    g(f"s_lshl_b32 s{sT2}, s{sT1}, 7")
    g(f"s_add_u32 s{sT2}, s{sT2}, {F2:#x}")
    g("v_and_b32 v24, 7, v0")
    g("v_lshlrev_b32 v24, 3, v24")
    g(f"v_add_u32 v{vA2}, s{sT2}, v24")
    g(f"s_lshl_b32 s{sT3}, s{sJ}, 3")
    g(f"s_add_u32 s{sT2}, s{sT2}, s{sT3}")
    g("s_waitcnt vmcnt(16)")
    g.flag(sT2)
    g.ts(9)
    g.poll(vA2)
    g.ts(10)
    for s in range(8):
        g(f"buffer_load_dword v{16+s}, v{vA0}, s[{sWS}:{sWS+3}], s{sBASE1} offen offset:{128*s} sc1")
    g(f"s_lshl_b32 s{sT0}, s{sG}, 19")
    g(f"s_lshl_b32 s{sT2}, s{sJ}, 16")
    g(f"s_add_u32 s{sT0}, s{sT0}, s{sT2}")
    g(f"s_lshl_b32 s{sT2}, s{sWAVE}, 13")
    g(f"s_add_u32 s{sT0}, s{sT0}, s{sT2}")
    g(f"s_add_u32 s{sT0}, s{sT0}, {PO:#x}")
    for s in range(8):
        if s == 4: g(f"s_add_u32 s{sT0}, s{sT0}, 4096")
        g(f"buffer_load_dwordx4 v[{vO+4*s}:{vO+4*s+3}], v{vLANE16}, s[{sWS}:{sWS+3}], s{sT0} offen offset:{1024*(s&3)} sc1")
    vB = 112
    def wo_read(r):
        cnt = 0
        for f in range(8):
            for nt in range(2):
                b = vB + 64*r + (f*2+nt)*4
                g(f"ds_read_b64_tr_b16 v[{b}:{b+1}], v{vKA+nt} offset:{2048*f}")
                g(f"ds_read_b64_tr_b16 v[{b+2}:{b+3}], v{vKA+nt} offset:{2048*f+1024}")
                cnt += 2
                if cnt % 8 == 0 and cnt >= 8: g("s_waitcnt lgkmcnt(6)")
        g("s_waitcnt lgkmcnt(0)")
    wo_read(0)
    wo_round(1)
    g("s_waitcnt vmcnt(24)")
    g("v_max3_f32 v24, v16, v17, v18")
    g("v_max3_f32 v24, v19, v20, v24")
    g("v_max3_f32 v24, v21, v22, v24")
    g("v_max_f32 v24, v23, v24")
    for s in range(8): g(f"v_sub_f32 v{16+s}, v{16+s}, v24")
    for s in range(8): g(f"v_exp_f32 v{16+s}, v{16+s}")
    g("s_nop 0")
    g("v_add_f32 v24, v16, v17")
    g("v_add_f32 v25, v18, v19")
    g("v_add_f32 v26, v20, v21")
    g("v_add_f32 v27, v22, v23")
    g("v_add_f32 v24, v24, v25")
    g("v_add_f32 v26, v26, v27")
    g("v_add_f32 v24, v24, v26")
    g("v_rcp_f32 v24, v24")
    g("s_nop 0")
    for s in range(8): g(f"v_mul_f32 v{16+s}, v{16+s}, v24")
    for s in range(8):
        g(f"s_waitcnt vmcnt({16 + 7 - s})")
        for u in range(4):
            src = vO + 4*s + u
            g(f"v_lshlrev_b32 v28, 16, v{src}")
            g(f"v_and_b32 v29, 0xffff0000, v{src}")
            if s == 0:
                g(f"v_mul_f32 v{32+2*u}, v28, v16")
                g(f"v_mul_f32 v{33+2*u}, v29, v16")
            else:
                g(f"v_fmac_f32 v{32+2*u}, v28, v{16+s}")
                g(f"v_fmac_f32 v{33+2*u}, v29, v{16+s}")
    for u in range(4):
        g(f"v_cvt_pk_bf16_f32 v{40+u}, v{32+2*u}, v{33+2*u}")
    g(f"s_lshl_b32 s{sT0}, s{sT1}, 13")
    g(f"s_lshl_b32 s{sT2}, s{sJ}, 10")
    g(f"s_add_u32 s{sT0}, s{sT0}, s{sT2}")
    g(f"s_add_u32 s{sT0}, s{sT0}, {OF:#x}")
    g(f"buffer_store_dwordx4 v[40:43], v{vLANE16}, s[{sWS}:{sWS+3}], s{sT0} offen sc1")
    g(f"s_lshl_b32 s{sT2}, s{sT1}, 7")
    g(f"s_lshl_b32 s{sT3}, s{sJ}, 3")
    g(f"s_add_u32 s{sT2}, s{sT2}, s{sT3}")
    g(f"s_add_u32 s{sT2}, s{sT2}, {F3:#x}")
    g(f"s_lshl_b32 s{sT0}, s{sBO}, 5")
    g(f"s_add_u32 s{sT0}, s{sT0}, s{sH0}")
    g(f"s_lshl_b32 s{sT3}, s{sT0}, 7")
    g(f"s_add_u32 s{sT3}, s{sT3}, {F3:#x}")
    g("v_and_b32 v24, 7, v0")
    g("v_lshlrev_b32 v24, 3, v24")
    g("v_bfe_u32 v25, v0, 3, 1")
    g("v_lshl_add_u32 v24, v25, 7, v24")
    g(f"v_add_u32 v{vA2}, s{sT3}, v24")
    g(f"s_lshl_b32 s{sBASE0}, s{sT0}, 13")
    g(f"s_add_u32 s{sBASE0}, s{sBASE0}, {OF:#x}")
    g("s_waitcnt vmcnt(0)")
    g.flag(sT2)
    g.ts(11)
    wo_read(1)
    g.poll(vA2)
    g.ts(12)
    vA = 16
    for n in range(16):
        if n and n % 4 == 0: g(f"s_add_u32 s{sBASE0}, s{sBASE0}, 4096")
        g(f"buffer_load_dwordx4 v[{vA+4*n}:{vA+4*n+3}], v{vLANE16}, s[{sWS}:{sWS+3}], s{sBASE0} offen offset:{1024*(n&3)} sc1")
    vD = 80
    for n in range(16):
        g(f"s_waitcnt vmcnt({15-n})")
        for nt in range(2):
            mfma(g, vD+16*nt, vB + (n*2+nt)*4, vA+4*n, None if n == 0 else vD+16*nt)
    g.ts(13)
    g(f"v_add_u32 v{vA0}, s{sREG}, v{vLANE16}")
    g(f"s_lshl_b32 s{sT0}, s{sWAVE}, 10")
    g(f"v_add_u32 v{vA1}, s{sT0}, v{vLANE16}")
    g("s_nop 7")
    g("s_nop 1")
    for q in range(8):
        g(f"ds_write_b128 v{vA0}, v[{vD+4*q}:{vD+4*q+3}] offset:{1024*q}")
    g("s_waitcnt lgkmcnt(0)")
    g("s_barrier")
    g(f"v_add_u32 v{vA2}, 65536, v{vA1}")
    for w in range(8):
        va = vA1 if w < 4 else vA2
        g(f"ds_read_b128 v[{16+4*w}:{16+4*w+3}], v{va} offset:{16384*(w&3)}")
    g(f"s_lshl_b32 s{sT0}, s{sBO}, 4")
    g(f"s_lshr_b32 s{sT1}, s{sN0}, 6")
    g(f"s_add_u32 s{sT0}, s{sT0}, s{sT1}")
    g(f"s_lshl_b32 s{sT0}, s{sT0}, 3")
    g(f"s_add_u32 s{sT0}, s{sT0}, s{sWAVE}")
    g(f"s_lshl_b32 s{sT1}, s{sT0}, 10")
    g(f"s_add_u32 s{sT1}, s{sT1}, {OP:#x}")
    g(f"s_lshl_b32 s{sT2}, s{sT0}, 3")
    g(f"s_add_u32 s{sT2}, s{sT2}, {F4:#x}")
    for w in range(1, 8):
        g(f"s_waitcnt lgkmcnt({7-w})")
        for c in range(4):
            g(f"v_add_f32 v{16+c}, v{16+c}, v{16+4*w+c}")
    g(f"s_cmp_eq_u32 s{sP}, 1")
    g("s_cbranch_scc1 L_P1")
    g(f"buffer_store_dwordx4 v[16:19], v{vLANE16}, s[{sWS}:{sWS+3}], s{sT1} offen sc1")
    g("s_waitcnt vmcnt(0)")
    g.flag(sT2)
    g("s_branch L_FIN")
    g.lab("L_P1")
    g(f"v_mov_b32 v{vA2}, s{sT2}")
    g.poll(vA2)
    g(f"buffer_load_dwordx4 v[20:23], v{vLANE16}, s[{sWS}:{sWS+3}], s{sT1} offen sc1")
    g("v_and_b32 v24, 31, v0")
    g("v_lshrrev_b32 v25, 5, v0")
    g("v_lshlrev_b32 v24, 11, v24")
    g("v_lshl_add_u32 v24, v25, 3, v24")
    g(f"s_lshl_b32 s{sT0}, s{sBO}, 16")
    g(f"s_lshl_b32 s{sT1}, s{sN0}, 1")
    g(f"s_add_u32 s{sT0}, s{sT0}, s{sT1}")
    g(f"s_lshl_b32 s{sT1}, s{sWAVE}, 4")
    g(f"s_add_u32 s{sT0}, s{sT0}, s{sT1}")
    g("s_waitcnt vmcnt(0)")
    for c in range(4):
        g(f"v_add_f32 v{16+c}, v{16+c}, v{20+c}")
    g("v_cvt_pk_bf16_f32 v20, v16, v17")
    g("v_cvt_pk_bf16_f32 v21, v18, v19")
    g(f"buffer_store_dwordx2 v[20:21], v24, s[{sOUT}:{sOUT+3}], s{sT0} offen")
    g.lab("L_FIN")
    if debug:
        g("s_waitcnt vmcnt(0)")
        g.ts(14)
        g(f"s_lshl_b32 s{sT0}, s2, 3")
        g(f"s_add_u32 s{sT0}, s{sT0}, s{sWAVE}")
        g(f"s_lshl_b32 s{sT0}, s{sT0}, 6")
        g(f"s_add_u32 s{sT0}, s{sT0}, {TSB:#x}")
        g(f"v_mov_b32 v{vA3}, s{sT0}")
        g("s_mov_b64 exec, 1")
        for n in range(15):
            g(f"v_mov_b32 v{16+n}, s{sTS+n}")
            g(f"buffer_store_dword v{16+n}, v{vA3}, s[{sWS}:{sWS+3}], 0 offen offset:{4*n}")
    g.lab("L_END")
    g("s_endpgm")
    hdr = f"""; Fused Q-projection + sliding-window GQA attention + output projection (generated by gen/gen1.py)
; @launch grid=(256,1,1) block=(512,1,1) lds=163840
.amdgcn_target "amdgcn-amd-amdhsa--gfx950"
.text
.globl {NAME}
.p2align 8
.type {NAME},@function
{NAME}:
"""
    ftr = f"""
.section .rodata,"a"
.p2align 6
.amdhsa_kernel {NAME}
  .amdhsa_next_free_vgpr 256
  .amdhsa_next_free_sgpr 102
  .amdhsa_accum_offset 256
  .amdhsa_group_segment_fixed_size 0
  .amdhsa_kernarg_size 64
  .amdhsa_user_sgpr_count 2
  .amdhsa_user_sgpr_kernarg_segment_ptr 1
  .amdhsa_system_sgpr_workgroup_id_x 1
.end_amdhsa_kernel
"""
    return hdr + "\n".join(g.L) + ftr

if __name__ == "__main__":
    import argparse
    ap = argparse.ArgumentParser()
    ap.add_argument("-o", default="standalone__sliding_block_cached__sampling.s")
    ap.add_argument("--debug", action="store_true")
    ap.add_argument("--prio", type=int, default=0)
    a = ap.parse_args()
    open(a.o, "w").write(gen(debug=a.debug, prio=a.prio))
```

```python
import struct, math, sys

NAME = "standalone__sliding_block_cached__sampling_kernel"
C_SCALE = math.log2(math.e) / math.sqrt(128.0)
def f2u(x): return struct.unpack("<I", struct.pack("<f", x))[0]
THR = 10.0

QF   = 0x0000000
OF   = 0x0200000
PO   = 0x0400000
ST   = 0x0C00000
F1   = 0x0C40000
F2   = 0x0C50000
F3   = 0x0D00000
F4   = 0x0C68000
OP   = 0x0E00000
TSB  = 0x1600000
WS_BYTES = 268435456

sXCD, sI, sWAVE, sW4, sROLE = 3, 4, 5, 6, 7
sT0, sT1, sT2, sT3 = 8, 9, 10, 11
sCNT, sLW1K, sG, sKQ = 12, 13, 14, 15
sX, sK, sV, sWQ, sWO, sOUT, sDBG, sWS = 32, 36, 40, 44, 48, 52, 56, 60
sBASE0, sBASE1, sCT, sRT = 64, 65, 66, 67
sHQ, sKV = 68, 69
sN = 70
sPA = 72
sK0 = 74
sGH = 75
sEX = 76
sRET = 78
sPD = 16
sTS = 80
sN0, sOH, sRP = 96, 97, 98
sTHR = 99

vLANE16 = 1
vKA, vVA = 2, 10
vT0, vT1 = 14, 15
vKR, vVR, vQ, vO, vS, vP, vNEG, vLS, vONE = 16, 48, 80, 112, 176, 208, 224, 240, 244
vTM, vT2 = 248, 249
vNON = 250
vA0, vA1, vA2, vA3 = 252, 253, 254, 255

class G:
    def __init__(self, debug=False, limit=1 << 21):
        self.L = []; self.debug = debug; self.nlab = 0; self.limit = limit
    def __call__(self, s): self.L.append("  " + s)
    def lab(self, s): self.L.append(s + ":")
    def newlab(self, p="L"):
        self.nlab += 1; return f"{p}_{self.nlab}"
    def ts(self, n, lvl=1):
        if self.debug >= 2 and lvl == 1 and 7 <= n <= 13: return
        if lvl >= 2 and self.debug != lvl: return
        if self.debug:
            self(f"s_memrealtime s[100:101]")
            self("s_waitcnt lgkmcnt(0)")
            self(f"s_mov_b32 s{sTS+n}, s100")
    def srd(self, d, p, nbytes):
        self(f"s_mov_b32 s{d}, s{p}")
        self(f"s_and_b32 s{d+1}, s{p+1}, 0xffff")
        self(f"s_mov_b32 s{d+2}, {nbytes:#x}")
        self(f"s_mov_b32 s{d+3}, 0x20000")
    def dma(self, voff, srd, sbase, soff_const, m0base, m0_const, flags=""):
        self(f"s_add_u32 m0, s{m0base}, {m0_const:#x}")
        self(f"s_add_u32 s{sT0}, s{sbase}, {soff_const:#x}")
        self(f"buffer_load_dwordx4 v{voff}, s[{srd}:{srd+3}], s{sT0} offen {flags} lds".replace("  ", " "))
    def spoll4(self, soff):
        l = self.newlab("POLL"); d = self.newlab("POLLD")
        self(f"s_add_u32 s{sPA}, s30, s{soff}")
        self(f"s_addc_u32 s{sPA+1}, s31, 0")
        self(f"s_mov_b32 s{sCNT}, 0")
        self.lab(l)
        self(f"s_load_dwordx8 s[{sPD}:{sPD+7}], s[{sPA}:{sPA+1}], 0 glc")
        self(f"s_add_u32 s{sCNT}, s{sCNT}, 1")
        self(f"s_cmp_ge_u32 s{sCNT}, {self.limit:#x}")
        self("s_waitcnt lgkmcnt(0)")
        self(f"s_cbranch_scc1 {d}")
        for q in range(4):
            self(f"s_cmp_eq_u64 s[{sPD+2*q}:{sPD+2*q+1}], s[{sN}:{sN+1}]")
            self(f"s_cbranch_scc0 {l}")
        self.lab(d)
    def flag(self, saddr):
        self(f"v_mov_b32 v{vA3}, s{saddr}")
        self(f"s_mov_b64 s[{sEX}:{sEX+1}], exec")
        self("s_mov_b64 exec, 1")
        self(f"buffer_store_dwordx2 v[{vNON}:{vNON+1}], v{vA3}, s[{sWS}:{sWS+3}], 0 offen sc1")
        self(f"s_mov_b64 exec, s[{sEX}:{sEX+1}]")
    def nonce_issue(self, glc=""):
        self(f"s_load_dwordx2 s[{sN}:{sN+1}], s[28:29], 0{glc}")
    def nonce_finish(self):
        l = self.newlab("NON"); d = self.newlab("NOND")
        self(f"s_mov_b32 s{sCNT}, 0")
        self.lab(l)
        self("s_waitcnt lgkmcnt(0)")
        self(f"s_cmp_lg_u32 s{sN}, 0")
        self(f"s_cbranch_scc1 {d}")
        self(f"s_add_u32 s{sCNT}, s{sCNT}, 1")
        self(f"s_cmp_ge_u32 s{sCNT}, {self.limit:#x}")
        self(f"s_cbranch_scc1 {d}")
        self("s_sleep 8")
        self.nonce_issue(" glc")
        self(f"s_branch {l}")
        self.lab(d)
        self(f"v_mov_b32 v{vNON}, s{sN}")
        self(f"v_mov_b32 v{vNON+1}, s{sN+1}")

def mfma(g, d, a, b, c):
    cs = "0" if c is None else f"v[{c}:{c+15}]"
    g(f"v_mfma_f32_32x32x16_bf16 v[{d}:{d+15}], v[{a}:{a+3}], v[{b}:{b+3}], {cs}")
def mfma16(g, d, a, b, c):
    cs = "0" if c is None else f"v[{c}:{c+3}]"
    g(f"v_mfma_f32_16x16x32_bf16 v[{d}:{d+3}], v[{a}:{a+3}], v[{b}:{b+3}], {cs}")

def att_setup(g):
    g("v_and_b32 v24, 31, v0")
    g("v_lshrrev_b32 v25, 5, v0")
    g("v_and_b32 v26, 15, v0")
    g("v_xor_b32 v27, v26, v25")
    g("v_lshlrev_b32 v24, 8, v24")
    for s in range(8):
        g(f"v_xor_b32 v28, {2*s}, v27")
        g(f"v_lshl_add_u32 v{vKA+s}, v28, 4, v24")
    g("v_lshrrev_b32 v28, 2, v26")
    g("v_lshl_add_u32 v29, v25, 2, v28")
    g("v_lshlrev_b32 v29, 8, v29")
    g("v_and_b32 v30, 1, v0")
    g("v_lshl_add_u32 v29, v30, 3, v29")
    g("v_add_u32 v29, 16384, v29")
    g("v_bfe_u32 v30, v0, 1, 1")
    g("v_bfe_u32 v31, v0, 4, 1")
    g("v_lshl_add_u32 v30, v31, 1, v30")
    g("v_lshlrev_b32 v28, 2, v28")
    g("v_xor_b32 v30, v30, v28")
    for dt in range(4):
        g(f"v_xor_b32 v31, {4*dt}, v30")
        g(f"v_lshl_add_u32 v{vVA+dt}, v31, 4, v29")
    mask = sum(1 << l for l in (0, 8, 32, 40, 20, 28, 52, 60))
    g(f"s_mov_b32 s{sEX}, {mask & 0xffffffff:#x}")
    g(f"s_mov_b32 s{sEX+1}, {mask >> 32:#x}")
    g(f"v_mov_b32 v28, 0x3f803f80")
    g(f"v_cndmask_b32 v{vONE}, 0, v28, s[{sEX}:{sEX+1}]")
    for u in range(1, 4): g(f"v_mov_b32 v{vONE+u}, v{vONE}")
    g(f"s_mov_b32 s{sTHR}, {f2u(THR):#x}")

BIAS = 9.0
vOR = 252
def att_loop(g, O=None):
    O = {**dict(sum="m16", e2=(10, 12), barwait=False, m16s=(9, 13)), **(O or {})}
    g.stubs = []
    kcur = [0]; vcur = [0]
    def kbase(t):
        slot = (t // 2) % 4
        want = (slot >> 1) * 65536
        r = []
        if want != kcur[0]:
            r.append(f"s_mov_b32 s{sT0}, {(want - kcur[0]) & 0xffffffff:#x}")
            for x in range(vKA, vKA+8): r.append(f"v_add_u32 v{x}, s{sT0}, v{x}")
            kcur[0] = want
        return (slot & 1) * 32768 + (t & 1) * 8192, r
    def vbase(t):
        slot = (t // 2) % 4
        want = (slot >> 1) * 65536
        r = []
        if want != vcur[0]:
            r.append(f"s_mov_b32 s{sT1}, {(want - vcur[0]) & 0xffffffff:#x}")
            for x in range(vVA, vVA+4): r.append(f"v_add_u32 v{x}, s{sT1}, v{x}")
            vcur[0] = want
        return (slot & 1) * 32768 + (t & 1) * 8192, r
    def krd(off, s, base=vKR):
        return [f"ds_read_b128 v[{base+4*s}:{base+4*s+3}], v{vKA+s} offset:{off}"]
    def vrd(off, n):
        t2, dt = n >> 2, n & 3
        b = vVR + 4*n
        return [f"ds_read_b64_tr_b16 v[{b}:{b+1}], v{vVA+dt} offset:{off + 4096*t2}",
                f"ds_read_b64_tr_b16 v[{b+2}:{b+3}], v{vVA+dt} offset:{off + 4096*t2 + 2048}"]
    def em(l):
        for x in l: g(x)
    mf = lambda d, a, b, c: f"v_mfma_f32_32x32x16_bf16 v[{d}:{d+15}], v[{a}:{a+3}], v[{b}:{b+3}], " + ("0" if c is None else f"v[{c}:{c+15}]")
    m16 = lambda d, a, b, c: f"v_mfma_f32_16x16x32_bf16 v[{d}:{d+3}], v[{a}:{a+3}], v[{b}:{b+3}], " + ("0" if c is None else f"v[{c}:{c+3}]")
    o, _ = kbase(0)
    for s in range(8): em(krd(o, s, vVR))
    o1, _ = kbase(1)
    for s in range(7): em(krd(o1, s))
    g("s_waitcnt vmcnt(0)")
    g.ts(5)
    if g.debug:
        g("s_memtime s[100:101]")
        g("s_waitcnt lgkmcnt(0)")
        g(f"s_mov_b32 s{sTS+15}, s100")
    g(f"s_waitcnt lgkmcnt(7)")
    for s in range(8):
        g(mf(vS, vVR+4*s, vQ+4*s, None if s == 0 else vS))
        if s == 0: em(krd(o1, 7))
    g(f"s_mov_b32 s{sT0}, {f2u(BIAS):#x}")
    if O["sum"] != "m16":
        g(f"v_mov_b32 v{vLS}, 0"); g(f"v_mov_b32 v{vLS+1}, 0")
    NT = 16
    tmp = [(vT0, vT1), (vTM, vT2)]
    for t in range(0, NT + 1):
        Sc = vS + 16*(t & 1); Sn = vS + 16*((t+1) & 1)
        Pc = vP + 8*(t & 1); Pp = vP + 8*((t-1) & 1)
        doS = t + 1 < NT; doPV = t >= 1; doSM = t < NT; doK = t + 2 < NT
        pre = [[] for _ in range(16)]; M = [[] for _ in range(16)]; D = [[] for _ in range(16)]; V = [[] for _ in range(16)]
        if t == 16: break
        if t == 15:
            vo, bump = vbase(15)
            assert not bump
            pre[0].append("s_waitcnt lgkmcnt(8)")
            pre[4].append("s_waitcnt lgkmcnt(6)")
            pre[8].append("s_waitcnt lgkmcnt(8)")
            pre[12].append("s_waitcnt lgkmcnt(0)")
            for n in range(8):
                dt = n & 3; t2 = n >> 2
                M[n].append(mf(vO+16*dt, vVR+4*n, Pp+4*t2, vO+16*dt))
                D[n] += vrd(vo, n)
                M[8+n].append(mf(vO+16*dt, vVR+4*n, Pc+4*t2, vO+16*dt))
            if O["sum"] == "m16":
                M[1].append(m16(vLS, vONE, Pp, vLS)); M[5].append(m16(vLS, vONE, Pp+4, vLS))
                M[9].append(m16(vLS, vONE, Pc, vLS)); M[13].append(m16(vLS, vONE, Pc+4, vLS))
        elif doPV:
            vo, bump = vbase(t-1)
            pre[0] += bump
            for n in range(8): D[n] += vrd(vo, n)
            for n in range(8):
                dt = n & 3; t2 = n >> 2
                M[8+n].append(mf(vO+16*dt, vVR+4*n, Pp+4*t2, None if (t == 1 and t2 == 0) else vO+16*dt))
            if O["sum"] == "m16":
                M[O["m16s"][0]].append(m16(vLS, vONE, Pp, None if t == 1 else vLS))
                M[O["m16s"][1]].append(m16(vLS, vONE, Pp+4, vLS))
            pre[8].append("s_waitcnt lgkmcnt(8)")
            pre[12].append(f"s_waitcnt lgkmcnt({4 if doK else 6})")
        if t < 15: pre[4].append(f"s_waitcnt lgkmcnt({6 if doPV else 0})")
        if doS:
            pre[0].append("s_waitcnt lgkmcnt(4)")
            for s in range(8): M[s].append(mf(Sn, vKR+4*s, vQ+4*s, (None if t == 0 else vNEG) if s == 0 else Sn))
        if t % 2 == 0 and t <= 14:
            if O["barwait"] or t == 14: D[8].append("s_waitcnt lgkmcnt(0)")
            if t >= 2 and g.debug == 2:
                D[8] += ["s_memrealtime s[100:101]", "s_waitcnt lgkmcnt(0)", f"s_mov_b32 s{sTS+6+t//2}, s100"]
            D[8].append("s_barrier")
        if t == 14:
            vo, bump = vbase(14)
            D[8] += bump
            for n in range(8): D[8+n] += vrd(vo, n)
        if doK:
            ko, bump = kbase(t+2)
            D[8] += bump
            for n in range(8): D[8+n] += krd(ko, n)
        if doSM:
            if t == 0:
                V[2] += ["s_nop 7"]
                V[3] += [f"v_max3_f32 v{vTM}, v{vS}, v{vS+1}, v{vS+2}", f"v_max3_f32 v{vT2}, v{vS+3}, v{vS+4}, v{vS+5}",
                         f"v_max3_f32 v{vTM}, v{vS+6}, v{vS+7}, v{vTM}", f"v_max3_f32 v{vT2}, v{vS+8}, v{vS+9}, v{vT2}"]
                V[4] += [f"v_max3_f32 v{vTM}, v{vS+10}, v{vS+11}, v{vTM}", f"v_max3_f32 v{vT2}, v{vS+12}, v{vS+13}, v{vT2}",
                         f"v_max3_f32 v{vTM}, v{vS+14}, v{vS+15}, v{vTM}", f"v_max_f32 v{vTM}, v{vT2}, v{vTM}",
                         f"v_add_f32 v{vTM}, s{sT0}, v{vTM}", f"v_mov_b32 v{vT2}, v{vTM}"]
                V[5] += ["s_nop 0", f"v_permlane32_swap_b32 v{vTM}, v{vT2}", "s_nop 1", f"v_max_f32 v{vTM}, v{vTM}, v{vT2}",
                         f"v_sub_f32 v{vNEG}, 0, v{vTM}"]
                slots = [6, 6, 7, 7] + [8 + k//2 for k in range(12)]
                for u in range(1, 16): V[8 + min(6, (u-1)//2)].append(f"v_mov_b32 v{vNEG+u}, v{vNEG}")
            elif t == 15:
                slots = [0, 0, 0, 1, 1, 2, 2, 2, 3, 3, 4, 4, 4, 5, 5, 6]
            else:
                slots = []
                for sl in range(14):
                    slots.append(sl)
                    if sl in O["e2"]: slots.append(sl)
            assert len(slots) == 16
            for e in range(16):
                T = tmp[(e >> 1) & 1][e & 1]
                if t <= 1:
                    V[slots[e]].append(f"v_add_f32 v{Sc+e}, v{Sc+e}, v{vNEG}")
                V[slots[e]].append(f"v_exp_f32 v{T}, v{Sc+e}")
            for u in range(8):
                sl = slots[2*u+1] + 1
                a, b = tmp[u & 1]
                ins = []
                if O["sum"] == "add":
                    ins += [f"v_add_f32 v{vLS}, v{vLS}, v{a}", f"v_add_f32 v{vLS+1}, v{vLS+1}, v{b}"]
                if O["sum"] == "pk":
                    ins += [f"v_pk_add_f32 v[{vLS}:{vLS+1}], v[{vLS}:{vLS+1}], v[{a}:{b}]"]
                ins.append(f"v_cvt_pk_bf16_f32 v{Pc+u}, v{a}, v{b}")
                V[sl] = ins + V[sl]
                if O["sum"] == "dot":
                    V[sl].append(f"v_dot2c_f32_bf16 v{vLS + (u & 1)}, v{Pc+u}, v{vONE}")
                if u & 1 and t > 0:
                    orr = f"v_or_b32 v{vOR}, v{Pc}, v{Pc+1}" if u == 1 else f"v_or3_b32 v{vOR}, v{Pc+u-1}, v{Pc+u}, v{vOR}"
                    V[sl].append(orr)
            if t > 0:
                cs = 7 if t == 15 else 14
                V[cs].append(f"v_and_b32 v{vOR}, 0x40004000, v{vOR}")
                V[cs].append(f"v_cmp_ne_u32 vcc, 0, v{vOR}")
        for sl in range(16):
            em(pre[sl]); em(M[sl]); em(D[sl])
            if not M[sl] and not D[sl] and V[sl]: g("s_nop 0")
            em(V[sl])
            if doSM and t > 0 and sl == (7 if t == 15 else 15):
                st = g.newlab("RS"); bk = g.newlab("RB")
                g(f"s_cbranch_vccnz {st}")
                g.lab(bk)
                g.stubs.append((st, bk, t & 1))
    if O["sum"] != "m16":
        g(f"v_add_f32 v{vLS}, v{vLS}, v{vLS+1}")
        g(f"v_mov_b32 v{vT2}, v{vLS}")
        g("s_nop 1")
        g(f"v_permlane32_swap_b32 v{vLS}, v{vT2}")
        g("s_nop 1")
        g(f"v_add_f32 v{vLS}, v{vLS}, v{vT2}")

def rare_path(g, O=None):
    for st, bk, par in g.stubs:
        g.lab(st)
        g(f"s_call_b64 s[{sRET}:{sRET+1}], L_RARE{par}")
        g(f"s_branch {bk}")
    for par in range(2):
        g.lab(f"L_RARE{par}")
        Sc = vS + 16*par; Sn = vS + 16*(par ^ 1); Pc = vP + 8*par
        g("s_nop 15")
        g(f"v_max3_f32 v{vTM}, v{Sc}, v{Sc+1}, v{Sc+2}")
        for u in range(6): g(f"v_max3_f32 v{vTM}, v{Sc+3+2*u}, v{Sc+4+2*u}, v{vTM}")
        g(f"v_max_f32 v{vTM}, v{Sc+15}, v{vTM}")
        g(f"v_add_f32 v{vTM}, {f2u(BIAS):#x}, v{vTM}")
        g(f"v_mov_b32 v{vT2}, v{vTM}")
        g("s_nop 1")
        g(f"v_permlane32_swap_b32 v{vTM}, v{vT2}")
        g("s_nop 1")
        g(f"v_max3_f32 v{vTM}, v{vTM}, v{vT2}, 0")
        g(f"v_ceil_f32 v{vTM}, v{vTM}")
        g(f"v_sub_f32 v{vT2}, 0, v{vTM}")
        g(f"v_exp_f32 v{vT2}, v{vT2}")
        for u in range(16): g(f"v_sub_f32 v{Sc+u}, v{Sc+u}, v{vTM}")
        for u in range(16): g(f"v_sub_f32 v{Sn+u}, v{Sn+u}, v{vTM}")
        for u in range(16): g(f"v_sub_f32 v{vNEG+u}, v{vNEG+u}, v{vTM}")
        for u in range(64): g(f"v_mul_f32 v{vO+u}, v{vO+u}, v{vT2}")
        g(f"v_mul_f32 v{vLS}, v{vLS}, v{vT2}")
        for u in range(8):
            g(f"v_exp_f32 v{vT0}, v{Sc+2*u}")
            g(f"v_exp_f32 v{vT1}, v{Sc+2*u+1}")
            g("s_nop 0")
            g(f"v_cvt_pk_bf16_f32 v{Pc+u}, v{vT0}, v{vT1}")
        g("s_nop 1")
        g(f"s_setpc_b64 s[{sRET}:{sRET+1}]")

def gen(debug=False, LA=2, cprio=1, rot=True, xnt=False, codepf=True, early={5: 1, 6: 2}, nq1=2, bflag='', pfflag='', kvflag='nt', wqflag='nt', pfplan={0: 1, 1: 2, 2: 2, 3: 1, 4: 1, 5: 1}):
    g = G(debug=debug)
    qslot = lambda k: 1 + k % 4
    g("s_cmp_ge_u32 s2, 256")
    g("s_cbranch_scc1 L_END")
    g("s_load_dwordx16 s[16:31], s[0:1], 0")
    g(f"s_and_b32 s{sXCD}, s2, 7")
    g(f"s_lshr_b32 s{sI}, s2, 3")
    g("v_lshrrev_b32 v1, 6, v0")
    g("v_and_b32 v0, 63, v0")
    g(f"v_readfirstlane_b32 s{sWAVE}, v1")
    g(f"v_lshlrev_b32 v{vLANE16}, 4, v0")
    g(f"s_and_b32 s{sT0}, s{sI}, 7")
    g(f"s_lshl_b32 s{sCT}, s{sXCD}, 3")
    g(f"s_add_u32 s{sCT}, s{sCT}, s{sT0}")
    g(f"s_lshr_b32 s{sRT}, s{sI}, 3")
    g(f"s_lshl_b32 s{sK0}, s{sRT}, 1")
    g(f"s_add_u32 s{sK0}, s{sK0}, s{sT0}")
    if not rot: g(f"s_mov_b32 s{sK0}, 0")
    g(f"s_lshl_b32 s{sG}, s{sXCD}, 2")
    g(f"s_add_u32 s{sG}, s{sG}, s{sRT}")
    g(f"s_and_b32 s{sKQ}, s{sI}, 3")
    g(f"s_bfe_u32 s{sHQ}, s{sI}, 0x10002")
    g(f"s_lshl_b32 s{sGH}, s{sG}, 1")
    g(f"s_add_u32 s{sGH}, s{sGH}, s{sHQ}")
    g(f"s_and_b32 s{sW4}, s{sWAVE}, 3")
    g(f"s_lshr_b32 s{sROLE}, s{sWAVE}, 2")
    g(f"s_lshl_b32 s{sLW1K}, s{sW4}, 10")
    g(f"s_lshr_b32 s{sOH}, s{sXCD}, 1")
    g(f"s_and_b32 s{sN0}, s{sXCD}, 1")
    g(f"s_lshl_b32 s{sN0}, s{sN0}, 3")
    g(f"s_add_u32 s{sN0}, s{sN0}, s{sT0}")
    g("s_waitcnt lgkmcnt(0)")
    g.srd(sWQ, 22, 1024*4096*2)
    g.srd(sX, 16, 8*32*1024*2)
    g(f"s_cmp_eq_u32 s{sROLE}, 0")
    g("s_cbranch_scc1 L_CWAVE")

    vXO, vWQO, vKO, vVO, vWOO = 16, 17, 18, 19, 20
    g("v_lshrrev_b32 v21, 4, v0")
    g(f"s_lshl_b32 s{sT1}, s{sW4}, 2")
    g(f"v_add_u32 v22, s{sT1}, v21")
    g("v_and_b32 v23, 15, v0")
    g("v_xor_b32 v24, v23, v22")
    g("v_lshlrev_b32 v24, 4, v24")
    g(f"v_lshl_add_u32 v{vXO}, v22, 11, v24")
    g("v_lshrrev_b32 v25, 3, v0")
    g("v_and_b32 v26, 7, v0")
    g("v_lshlrev_b32 v27, 1, v25")
    g("v_and_b32 v27, 4, v27")
    g("v_xor_b32 v26, v26, v27")
    g("v_lshlrev_b32 v26, 4, v26")
    g(f"v_lshl_add_u32 v{vWQO}, v25, 13, v26")
    g(f"s_lshl_b32 s{sBASE0}, s{sRT}, 17")
    g(f"s_lshl_b32 s{sBASE1}, s{sCT}, 7")
    g(f"s_lshl_b32 s{sT1}, s{sW4}, 16")
    g(f"s_add_u32 s{sBASE1}, s{sBASE1}, s{sT1}")
    Q = []
    def need(*tags):
        last = max(i for i, x in enumerate(Q) if x in tags)
        g(f"s_waitcnt vmcnt({len(Q) - 1 - last})")
    def stage(k):
        slot = qslot(k) * 32768
        g(f"s_add_u32 s{sT1}, s{sK0}, {k}")
        g(f"s_and_b32 s{sT1}, s{sT1}, 7")
        g(f"s_lshl_b32 s{sT2}, s{sT1}, 20")
        g(f"s_add_u32 s{sT2}, s{sT2}, s{sBASE1}")
        g(f"s_lshl_b32 s{sT3}, s{sT1}, 8")
        g(f"s_add_u32 s{sT3}, s{sT3}, s{sBASE0}")
        for m in range(4):
            g.dma(vWQO, sWQ, sT2, 32*m*8192, sLW1K, slot + 16384 + 4096*m, wqflag)
            g.dma(vXO, sX, sT3, m*16*2048, sLW1K, slot + 4096*m, "nt" if xnt else "")
            Q.extend([f"S{k}"] * 2)
    def kpart(s):
        for m in range(4):
            g.dma(vKO, sK, sKV, (64*s + 16*m) * 256, sLW1K, (s % 4)*32768 + 4096*m, kvflag)
            Q.append(f"K{s}")
    def vpart(s):
        for m in range(4):
            g.dma(vVO, sV, sKV, (64*s + 16*m) * 256, sLW1K, (s % 4)*32768 + 16384 + 4096*m, kvflag)
            Q.append(f"V{s}")
    def part(tag):
        (kpart if tag[0] == "K" else vpart)(int(tag[1]))
    for k in range(LA): stage(k)
    g.ts(0)
    g.srd(sK, 18, 8*4*8192*128*2)
    g.srd(sV, 20, 8*4*8192*128*2)
    g.srd(sWO, 24, 4096*1024*2)
    g.srd(sOUT, 26, 8*32*1024*2)
    g.srd(sWS, 30, WS_BYTES)
    g(f"v_lshl_add_u32 v{vKO}, v22, 8, v24")
    g("v_lshlrev_b32 v28, 2, v21")
    g("v_xor_b32 v28, v23, v28")
    g("v_lshlrev_b32 v28, 4, v28")
    g(f"v_lshl_add_u32 v{vVO}, v22, 8, v28")
    g(f"v_lshl_add_u32 v{vWOO}, v25, 11, v26")
    g(f"s_lshl_b32 s{sKV}, s{sG}, 21")
    g(f"s_lshl_b32 s{sT1}, s{sKQ}, 17")
    g(f"s_add_u32 s{sKV}, s{sKV}, s{sT1}")
    g(f"s_add_u32 s{sKV}, s{sKV}, {6144*256:#x}")
    order = ["K0", "K1", "V0"] + [x for s_ in range(1, 8) for x in ([f"K{s_+1}"] if s_ < 7 else []) + [f"V{s_}"]]
    todo = list(order)
    def issue(n):
        for _ in range(n):
            if todo: part(todo.pop(0))
    for k in range(8):
        need(f"S{k}")
        g("s_barrier")
        if k == 0: g.ts(1)
        if k + LA < 8: stage(k + LA)
        issue(early.get(k, 0))
    g.ts(2)
    g.nonce_issue()
    sPF = sCT
    g(f"s_lshl_b32 s{sBASE0}, s{sOH}, 21")
    g(f"s_lshl_b32 s{sT1}, s{sW4}, 14")
    g(f"s_add_u32 s{sBASE0}, s{sBASE0}, s{sT1}")
    g(f"s_lshl_b32 s{sPF}, s{sI}, 16")
    g(f"s_add_u32 s{sPF}, s{sPF}, s{sBASE0}")
    g(f"s_and_b32 s{sT1}, s{sXCD}, 1")
    g(f"s_lshl_b32 s{sT1}, s{sT1}, 10")
    g(f"s_add_u32 s{sPF}, s{sPF}, s{sT1}")
    g(f"s_lshl_b32 s{sT1}, s{sN0}, 7")
    g(f"s_add_u32 s{sBASE0}, s{sBASE0}, s{sT1}")
    npf = [0]
    def wopf(n):
        for _ in range(n):
            g(f"s_add_u32 s{sT0}, s{sPF}, {npf[0]*2048:#x}")
            g(f"buffer_load_dwordx4 v[32:35], v{vLANE16}, s[{sWO}:{sWO+3}], s{sT0} offen {pfflag}")
            Q.append("PF"); npf[0] += 1
    def bpart(pos):
        slot = [4, 0, 1, 2][pos]
        g(f"s_add_u32 s{sT1}, s{sRT}, {pos}")
        g(f"s_and_b32 s{sT1}, s{sT1}, 3")
        g(f"s_lshl_b32 s{sT1}, s{sT1}, 19")
        g(f"s_add_u32 s{sT1}, s{sT1}, s{sBASE0}")
        for m in range(8):
            g.dma(vWOO, sWO, sT1, 32*m*2048, sLW1K, slot*32768 + 4096*m, bflag)
            Q.append(f"B{pos}")
    g.nonce_finish()
    g("s_barrier")
    g.ts(3)
    issue(nq1)
    g("s_barrier")
    g.ts(4)
    while len(order) - len(todo) < 3: issue(1)
    need("K0")
    g("s_barrier")
    g.ts(5)
    for s in range(0, 8):
        lim = order.index(f"V{s+1}") + 1 if s + 1 <= 7 else len(order)
        while len(order) - len(todo) < lim: issue(1)
        wopf(pfplan.get(s, 0))
        if s == 6:
            g.ts(7, 3); bpart(0); g.ts(8, 3)
        if s == 7:
            g.ts(9, 3); bpart(1); g.ts(10, 3)
        if s < 7: need(f"K{s+1}", f"V{s}")
        else: need("V7")
        if s >= 1: g.ts(6 + s, 2)
        g("s_barrier")
    assert npf[0] in (0, 8)
    g.ts(11, 3)
    bpart(2); bpart(3)
    g.ts(6)
    if g.debug == 3:
        g("s_waitcnt vmcnt(16)"); g.ts(12, 3)
        g("s_waitcnt vmcnt(0)"); g.ts(13, 3)
    g("s_branch L_BACK")

    g.lab("L_CWAVE")
    g.srd(sWS, 30, WS_BYTES)
    g.srd(sDBG, 28, 256)
    g(f"s_or_b32 s{sT0}, s2, s{sWAVE}")
    g(f"s_cmp_lg_u32 s{sT0}, 0")
    g("s_cbranch_scc1 L_NOPUB")
    g(f"s_memrealtime s[{sN}:{sN+1}]")
    g("s_waitcnt lgkmcnt(0)")
    g(f"s_or_b32 s{sN}, s{sN}, 1")
    g(f"s_xor_b32 s{sN+1}, s{sN+1}, 0x5bd1e995")
    g(f"v_mov_b32 v{vNON}, s{sN}")
    g(f"v_mov_b32 v{vNON+1}, s{sN+1}")
    g(f"v_mov_b32 v{vA3}, 0")
    g(f"buffer_store_dwordx2 v[{vNON}:{vNON+1}], v{vA3}, s[{sDBG}:{sDBG+3}], 0 offen sc1")
    g.lab("L_NOPUB")
    if codepf:
        g(f"s_cmp_lg_u32 s{sWAVE}, 1")
        g("s_cbranch_scc1 L_NOPF")
        g(f"s_getpc_b64 s[{sPA}:{sPA+1}]")
        g.lab("L_PC")
        g(f"s_lshl_b32 s{sT0}, s{sI}, 10")
        g(f"s_min_u32 s{sT0}, s{sT0}, L_CODE_END-L_PC-1024")
        g(f"v_add_u32 v{vA0}, s{sT0}, v{vLANE16}")
        g(f"global_load_dwordx4 v[{vS}:{vS+3}], v{vA0}, s[{sPA}:{sPA+1}]")
        g.lab("L_NOPF")
    g.ts(0)
    g.srd(sOUT, 26, 8*32*1024*2)
    g(f"s_and_b32 s{sT0}, s{sW4}, 1")
    g(f"s_lshl_b32 s{sT0}, s{sT0}, 13")
    g("v_and_b32 v20, 31, v0")
    g("v_lshrrev_b32 v21, 5, v0")
    g("v_and_b32 v22, 15, v0")
    g("v_xor_b32 v22, v22, v21")
    g(f"v_lshlrev_b32 v23, 8, v20")
    g(f"v_add_u32 v23, s{sT0}, v23")
    for s in range(8):
        g(f"v_xor_b32 v24, {2*s}, v22")
        g(f"v_lshl_add_u32 v{vKA+s}, v24, 4, v23")
    g("v_and_b32 v20, 15, v0")
    g("v_lshrrev_b32 v22, 2, v20")
    g("v_lshl_add_u32 v23, v21, 3, v22")
    g("v_lshlrev_b32 v23, 7, v23")
    g("v_and_b32 v24, 1, v0")
    g("v_bfe_u32 v25, v0, 4, 1")
    g("v_lshl_add_u32 v24, v25, 1, v24")
    g(f"s_lshr_b32 s{sT0}, s{sW4}, 1")
    g(f"s_lshl_b32 s{sT0}, s{sT0}, 2")
    g(f"v_add_u32 v24, s{sT0}, v24")
    g("v_lshlrev_b32 v26, 1, v22")
    g("v_and_b32 v26, 4, v26")
    g("v_xor_b32 v24, v24, v26")
    g("v_lshl_add_u32 v23, v24, 4, v23")
    g("v_bfe_u32 v25, v0, 1, 1")
    g(f"v_lshl_add_u32 v{vVA}, v25, 3, v23")
    g(f"v_add_u32 v{vVA}, 16384, v{vVA}")
    acc = vO
    fr = 16
    cur = [0]
    def setbase(regs, want):
        if want != cur[0]:
            g(f"s_mov_b32 s{sT0}, {(want - cur[0]) & 0xffffffff:#x}")
            for r in regs: g(f"v_add_u32 v{r}, s{sT0}, v{r}")
            cur[0] = want
    for k in range(8):
        slot = qslot(k)
        setbase(list(range(vKA, vKA+8)) + [vVA], (slot >> 1) * 65536)
        io = (slot & 1) * 32768
        g("s_barrier")
        if k == 0: g.ts(1)
        def rd(s):
            b = fr + 8*s
            g(f"ds_read_b64_tr_b16 v[{b}:{b+1}], v{vVA} offset:{io + 2048*s}")
            g(f"ds_read_b64_tr_b16 v[{b+2}:{b+3}], v{vVA} offset:{io + 2048*s + 512}")
            g(f"ds_read_b128 v[{b+4}:{b+7}], v{vKA+s} offset:{io}")
        for s in range(5): rd(s)
        for s in range(8):
            g(f"s_waitcnt lgkmcnt({min(4, 7 - s) * 3})")
            mfma(g, acc, fr + 8*s, fr + 8*s + 4, None if (k == 0 and s == 0) else acc)
            if s + 5 < 8: rd(s + 5)
    g.ts(2)
    g.nonce_issue()
    g(f"s_and_b32 s{sT0}, s{sW4}, 1")
    g(f"s_lshl_b32 s{sT1}, s{sRT}, 1")
    g(f"s_add_u32 s{sT1}, s{sT1}, s{sT0}")
    g(f"s_lshl_b32 s{sT1}, s{sT1}, 5")
    g(f"s_lshr_b32 s{sT2}, s{sCT}, 1")
    g(f"s_add_u32 s{sT1}, s{sT1}, s{sT2}")
    g(f"s_and_b32 s{sT2}, s{sCT}, 1")
    g(f"s_lshl_b32 s{sT2}, s{sT2}, 1")
    g(f"s_lshr_b32 s{sT3}, s{sW4}, 1")
    g(f"s_add_u32 s{sT2}, s{sT2}, s{sT3}")
    g(f"s_lshl_b32 s{sBASE0}, s{sT1}, 13")
    g(f"s_lshl_b32 s{sT3}, s{sT2}, 11")
    g(f"s_add_u32 s{sBASE0}, s{sBASE0}, s{sT3}")
    g(f"s_lshl_b32 s{sBASE1}, s{sT1}, 7")
    g(f"s_lshl_b32 s{sT3}, s{sT2}, 3")
    g(f"s_add_u32 s{sBASE1}, s{sBASE1}, s{sT3}")
    g(f"s_add_u32 s{sBASE1}, s{sBASE1}, {F1:#x}")
    g(f"s_mov_b32 s{sT0}, {f2u(C_SCALE):#x}")
    for u in range(16):
        g(f"v_mul_f32 v{acc+u}, s{sT0}, v{acc+u}")
    for u in range(8):
        g(f"v_cvt_pk_bf16_f32 v{16+u}, v{acc+2*u}, v{acc+2*u+1}")
    g(f"buffer_store_dwordx4 v[16:19], v{vLANE16}, s[{sWS}:{sWS+3}], s{sBASE0} offen sc1")
    g(f"buffer_store_dwordx4 v[20:23], v{vLANE16}, s[{sWS}:{sWS+3}], s{sBASE0} offen offset:1024 sc1")
    att_setup(g)
    g(f"s_lshl_b32 s{sT2}, s{sGH}, 2")
    g(f"s_add_u32 s{sT2}, s{sT2}, s{sW4}")
    g(f"s_lshl_b32 s{sBASE0}, s{sT2}, 13")
    g(f"s_lshl_b32 s{sT2}, s{sT2}, 7")
    g(f"s_add_u32 s{sT2}, s{sT2}, {F1:#x}")
    g.nonce_finish()
    g("s_waitcnt vmcnt(0)")
    g.flag(sBASE1)
    g("s_barrier")
    g.ts(3)
    g.spoll4(sT2)
    g.ts(4)
    for s in range(8):
        if s == 4: g(f"s_add_u32 s{sBASE0}, s{sBASE0}, 4096")
        g(f"buffer_load_dwordx4 v[{vQ+4*s}:{vQ+4*s+3}], v{vLANE16}, s[{sWS}:{sWS+3}], s{sBASE0} offen offset:{1024*(s&3)} sc1")
    g("s_barrier")
    if cprio: g(f"s_setprio {cprio}")
    g("s_barrier")
    att_loop(g)
    g.ts(6)
    if g.debug:
        g("s_memtime s[100:101]")
        g("s_waitcnt lgkmcnt(0)")
        g(f"s_sub_u32 s{sTS+15}, s100, s{sTS+15}")
    if cprio: g("s_setprio 0")
    g(f"s_lshl_b32 s{sBASE0}, s{sGH}, 17")
    g(f"s_lshl_b32 s{sT0}, s{sW4}, 13")
    g(f"s_add_u32 s{sBASE0}, s{sBASE0}, s{sT0}")
    g(f"s_lshl_b32 s{sT0}, s{sKQ}, 10")
    g(f"s_add_u32 s{sBASE0}, s{sBASE0}, s{sT0}")
    g(f"s_add_u32 s{sBASE0}, s{sBASE0}, {PO:#x}")
    g(f"s_lshl_b32 s{sT1}, s{sGH}, 2")
    g(f"s_add_u32 s{sT1}, s{sT1}, s{sW4}")
    g(f"s_lshl_b32 s{sT2}, s{sT1}, 10")
    g(f"s_lshl_b32 s{sT3}, s{sKQ}, 8")
    g(f"s_add_u32 s{sT2}, s{sT2}, s{sT3}")
    g(f"s_add_u32 s{sT2}, s{sT2}, {ST:#x}")
    g(f"v_and_b32 v{vA0}, 31, v0")
    g(f"v_lshlrev_b32 v{vA0}, 3, v{vA0}")
    g(f"v_sub_f32 v{vT0}, 0, v{vNEG}")
    for f in range(8):
        src = vO + 8*f; dst = vKR + 4*f
        for u in range(4):
            g(f"v_cvt_pk_bf16_f32 v{dst+u}, v{src+2*u}, v{src+2*u+1}")
        g(f"s_add_u32 s{sT0}, s{sBASE0}, {(f >> 1)*32768 + (f & 1)*4096:#x}")
        g(f"buffer_store_dwordx4 v[{dst}:{dst+3}], v{vLANE16}, s[{sWS}:{sWS+3}], s{sT0} offen sc1")
        if f == 0:
            g(f"v_mov_b32 v{vT1}, v{vLS}")
            g(f"buffer_store_dwordx2 v[{vT0}:{vT1}], v{vA0}, s[{sWS}:{sWS+3}], s{sT2} offen sc1")
    g(f"s_lshl_b32 s{sT2}, s{sT1}, 7")
    g(f"s_lshl_b32 s{sT3}, s{sKQ}, 3")
    g(f"s_add_u32 s{sT2}, s{sT2}, s{sT3}")
    g(f"s_add_u32 s{sT2}, s{sT2}, {F2:#x}")
    g("s_waitcnt vmcnt(0)")
    g.flag(sT2)
    g.ts(7)

    g.lab("L_BACK")
    g("s_barrier")
    g(f"s_lshl_b32 s{sT1}, s{sGH}, 2")
    g(f"s_add_u32 s{sT1}, s{sT1}, s{sW4}")
    g(f"s_lshl_b32 s{sT2}, s{sT1}, 7")
    g(f"s_add_u32 s{sT2}, s{sT2}, {F2:#x}")
    g(f"s_lshl_b32 s{sBASE1}, s{sT1}, 10")
    g(f"s_add_u32 s{sBASE1}, s{sBASE1}, {ST:#x}")
    g(f"s_lshl_b32 s{sBASE0}, s{sGH}, 17")
    g(f"s_lshl_b32 s{sT0}, s{sKQ}, 15")
    g(f"s_add_u32 s{sBASE0}, s{sBASE0}, s{sT0}")
    g(f"s_lshl_b32 s{sT0}, s{sW4}, 13")
    g(f"s_add_u32 s{sBASE0}, s{sBASE0}, s{sT0}")
    g(f"s_lshl_b32 s{sT0}, s{sROLE}, 12")
    g(f"s_add_u32 s{sBASE0}, s{sBASE0}, s{sT0}")
    g(f"s_add_u32 s{sBASE0}, s{sBASE0}, {PO:#x}")
    g(f"v_and_b32 v{vA0}, 31, v0")
    g(f"v_lshlrev_b32 v{vA0}, 3, v{vA0}")
    g.spoll4(sT2)
    g.ts(8)
    for s in range(4):
        g(f"buffer_load_dwordx2 v[{16+2*s}:{17+2*s}], v{vA0}, s[{sWS}:{sWS+3}], s{sBASE1} offen offset:{256*s} sc1")
    for s in range(4):
        g(f"buffer_load_dwordx4 v[{48+4*s}:{51+4*s}], v{vLANE16}, s[{sWS}:{sWS+3}], s{sBASE0} offen offset:{1024*s} sc1")
    g(f"s_lshl_b32 s{sT0}, s{sT1}, 13")
    g(f"s_lshl_b32 s{sT2}, s{sKQ}, 11")
    g(f"s_add_u32 s{sT0}, s{sT0}, s{sT2}")
    g(f"s_lshl_b32 s{sT2}, s{sROLE}, 10")
    g(f"s_add_u32 s{sT0}, s{sT0}, s{sT2}")
    g(f"s_add_u32 s{sBASE0}, s{sT0}, {OF:#x}")
    g("s_waitcnt vmcnt(4)")
    g("v_max3_f32 v24, v16, v18, v20")
    g("v_max_f32 v24, v22, v24")
    for s in range(4): g(f"v_sub_f32 v{16+2*s}, v{16+2*s}, v24")
    for s in range(4): g(f"v_exp_f32 v{16+2*s}, v{16+2*s}")
    g("s_nop 0")
    g("v_mul_f32 v24, v16, v17")
    g("v_fmac_f32 v24, v18, v19")
    g("v_fmac_f32 v24, v20, v21")
    g("v_fmac_f32 v24, v22, v23")
    g("v_rcp_f32 v24, v24")
    g("s_nop 0")
    for s in range(4): g(f"v_mul_f32 v{16+2*s}, v{16+2*s}, v24")
    for s in range(4):
        g(f"s_waitcnt vmcnt({3 - s})")
        for u in range(4):
            src = 48 + 4*s + u
            g(f"v_lshlrev_b32 v28, 16, v{src}")
            g(f"v_and_b32 v29, 0xffff0000, v{src}")
            if s == 0:
                g(f"v_mul_f32 v{32+2*u}, v28, v16")
                g(f"v_mul_f32 v{33+2*u}, v29, v16")
            else:
                g(f"v_fmac_f32 v{32+2*u}, v28, v{16+2*s}")
                g(f"v_fmac_f32 v{33+2*u}, v29, v{16+2*s}")
    for u in range(4):
        g(f"v_cvt_pk_bf16_f32 v{40+u}, v{32+2*u}, v{33+2*u}")
    g(f"buffer_store_dwordx4 v[40:43], v{vLANE16}, s[{sWS}:{sWS+3}], s{sBASE0} offen sc1")
    sBB, sHP = sCT, sK0
    g(f"s_and_b32 s{sBB}, s{sWAVE}, 1")
    g(f"s_lshr_b32 s{sHP}, s{sWAVE}, 1")
    g(f"s_lshl_b32 s{sT0}, s{sRT}, 1")
    g(f"s_add_u32 s{sT0}, s{sT0}, s{sBB}")
    g(f"s_lshl_b32 s{sT0}, s{sT0}, 2")
    g(f"s_add_u32 s{sT0}, s{sT0}, s{sOH}")
    g(f"s_lshl_b32 s{sBASE0}, s{sT0}, 16")
    g(f"s_lshl_b32 s{sT2}, s{sHP}, 14")
    g(f"s_add_u32 s{sBASE0}, s{sBASE0}, s{sT2}")
    g(f"s_add_u32 s{sBASE0}, s{sBASE0}, {OF:#x}")
    g(f"s_lshl_b32 s{sT0}, s{sT0}, 1")
    g(f"s_lshr_b32 s{sT2}, s{sHP}, 1")
    g(f"s_add_u32 s{sT0}, s{sT0}, s{sT2}")
    g(f"s_lshl_b32 s{sT0}, s{sT0}, 4")
    g(f"s_add_u32 s{sT0}, s{sT0}, s{sN0}")
    g(f"s_lshl_b32 s{sBASE1}, s{sT0}, 7")
    g(f"s_add_u32 s{sBASE1}, s{sBASE1}, {F3:#x}")
    g(f"s_sub_u32 s{sT0}, s{sHP}, s{sRT}")
    g(f"s_and_b32 s{sT0}, s{sT0}, 3")
    g(f"s_sub_u32 s{sT2}, s{sT0}, 1")
    g(f"s_cmp_eq_u32 s{sT0}, 0")
    g(f"s_cselect_b32 s{sT2}, 4, s{sT2}")
    g(f"s_lshl_b32 s{sT2}, s{sT2}, 15")
    g("v_lshrrev_b32 v21, 5, v0")
    g("v_bfe_u32 v24, v0, 2, 2")
    g("v_lshl_add_u32 v25, v21, 2, v24")
    g("v_lshlrev_b32 v25, 7, v25")
    g("v_and_b32 v26, 1, v0")
    g("v_lshl_add_u32 v25, v26, 3, v25")
    g(f"v_add_u32 v25, s{sT2}, v25")
    g("v_bfe_u32 v26, v0, 1, 1")
    g("v_bfe_u32 v27, v0, 4, 1")
    g("v_lshl_add_u32 v26, v27, 1, v26")
    g("v_lshlrev_b32 v24, 1, v24")
    g("v_and_b32 v24, 4, v24")
    g("v_xor_b32 v26, v26, v24")
    g(f"v_lshl_add_u32 v{vKA}, v26, 4, v25")
    g("v_xor_b32 v26, 4, v26")
    g(f"v_lshl_add_u32 v{vKA+1}, v26, 4, v25")
    g(f"s_lshl_b32 s{sT2}, s{sGH}, 11")
    g(f"s_lshl_b32 s{sT3}, s{sKQ}, 3")
    g(f"s_add_u32 s{sT2}, s{sT2}, s{sT3}")
    g(f"s_add_u32 s{sT2}, s{sT2}, {F3:#x}")
    g(f"v_lshlrev_b32 v{vA3}, 7, v0")
    g(f"v_add_u32 v{vA3}, s{sT2}, v{vA3}")
    g("s_waitcnt vmcnt(0)")
    g("s_barrier")
    g(f"s_cmp_lg_u32 s{sWAVE}, 0")
    g("s_cbranch_scc1 L_NOF3")
    g("s_mov_b64 exec, 0xffff")
    g(f"buffer_store_dwordx2 v[{vNON}:{vNON+1}], v{vA3}, s[{sWS}:{sWS+3}], 0 offen sc1")
    g("s_mov_b64 exec, -1")
    g.lab("L_NOF3")
    g.ts(9)
    vB = 112
    cnt = 0
    for n in range(16):
        for nt in range(2):
            b = vB + (n*2+nt)*4
            g(f"ds_read_b64_tr_b16 v[{b}:{b+1}], v{vKA+nt} offset:{2048*n}")
            g(f"ds_read_b64_tr_b16 v[{b+2}:{b+3}], v{vKA+nt} offset:{2048*n+1024}")
            cnt += 2
            if cnt % 8 == 0: g("s_waitcnt lgkmcnt(6)")
    g("s_waitcnt lgkmcnt(0)")
    g.spoll4(sBASE1)
    g.ts(10)
    vA = 16
    for n in range(16):
        if n and n % 4 == 0: g(f"s_add_u32 s{sBASE0}, s{sBASE0}, 4096")
        g(f"buffer_load_dwordx4 v[{vA+4*n}:{vA+4*n+3}], v{vLANE16}, s[{sWS}:{sWS+3}], s{sBASE0} offen offset:{1024*(n&3)} sc1")
    g("s_barrier")
    vD = 80
    for n in range(16):
        g(f"s_waitcnt vmcnt({15-n})")
        for nt in range(2):
            mfma(g, vD+16*nt, vB + (n*2+nt)*4, vA+4*n, None if n == 0 else vD+16*nt)
    g.ts(11)
    g(f"s_lshl_b32 s{sT0}, s{sWAVE}, 13")
    g(f"v_add_u32 v{vA0}, s{sT0}, v{vLANE16}")
    g(f"s_lshl_b32 s{sT0}, s{sBB}, 13")
    g(f"s_lshl_b32 s{sT1}, s{sHP}, 11")
    g(f"s_add_u32 s{sT0}, s{sT0}, s{sT1}")
    g(f"v_add_u32 v{vA1}, s{sT0}, v{vLANE16}")
    g(f"s_lshl_b32 s{sT2}, s{sBB}, 1")
    g(f"s_lshr_b32 s{sT3}, s{sHP}, 1")
    g(f"s_add_u32 s{sT2}, s{sT2}, s{sT3}")
    g(f"s_lshl_b32 s{sT0}, s{sRT}, 4")
    g(f"s_add_u32 s{sT0}, s{sT0}, s{sN0}")
    g(f"s_lshl_b32 s{sT0}, s{sT0}, 2")
    g(f"s_add_u32 s{sT0}, s{sT0}, s{sT2}")
    for q in range(8):
        g(f"ds_write_b128 v{vA0}, v[{vD+4*q}:{vD+4*q+3}] offset:{1024*q}")
    g(f"s_lshl_b32 s{sT0}, s{sT0}, 1")
    g(f"s_and_b32 s{sT1}, s{sHP}, 1")
    g(f"s_add_u32 s{sT0}, s{sT0}, s{sT1}")
    g(f"s_lshl_b32 s{sBASE0}, s{sT0}, 13")
    g(f"s_add_u32 s{sBASE0}, s{sBASE0}, {OP:#x}")
    g(f"s_lshl_b32 s{sBASE1}, s{sT0}, 7")
    g(f"s_add_u32 s{sBASE1}, s{sBASE1}, {F4:#x}")
    g(f"s_lshl_b32 s{sT3}, s{sOH}, 3")
    g(f"s_add_u32 s{sT3}, s{sT3}, s{sBASE1}")
    g("s_waitcnt lgkmcnt(0)")
    g("s_barrier")
    for hp2 in range(4):
        for e in range(2):
            g(f"ds_read_b128 v[{16+8*hp2+4*e}:{19+8*hp2+4*e}], v{vA1} offset:{16384*hp2 + 1024*e}")
    for hp2 in range(1, 4):
        g(f"s_waitcnt lgkmcnt({6-2*hp2})")
        for c in range(8):
            g(f"v_add_f32 v{16+c}, v{16+c}, v{16+8*hp2+c}")
    g.ts(12)
    g(f"s_cmp_eq_u32 s{sT2}, s{sOH}")
    g("s_cbranch_scc1 L_OWN")
    g(f"s_lshl_b32 s{sT0}, s{sOH}, 11")
    g(f"s_add_u32 s{sT0}, s{sT0}, s{sBASE0}")
    g(f"buffer_store_dwordx4 v[16:19], v{vLANE16}, s[{sWS}:{sWS+3}], s{sT0} offen sc1")
    g(f"buffer_store_dwordx4 v[20:23], v{vLANE16}, s[{sWS}:{sWS+3}], s{sT0} offen offset:1024 sc1")
    g("s_waitcnt vmcnt(0)")
    g.flag(sT3)
    g("s_branch L_FIN")
    g.lab("L_OWN")
    g.flag(sT3)
    g("v_and_b32 v24, 31, v0")
    g("v_lshrrev_b32 v25, 5, v0")
    g("v_lshlrev_b32 v24, 11, v24")
    g(f"v_lshl_add_u32 v{vA2}, v25, 3, v24")
    g.spoll4(sBASE1)
    g.ts(13)
    for e in range(1, 4):
        g(f"s_add_u32 s{sT0}, s{sOH}, {e}")
        g(f"s_and_b32 s{sT0}, s{sT0}, 3")
        g(f"s_lshl_b32 s{sT0}, s{sT0}, 11")
        g(f"s_add_u32 s{sT0}, s{sT0}, s{sBASE0}")
        g(f"buffer_load_dwordx4 v[{16+8*e}:{19+8*e}], v{vLANE16}, s[{sWS}:{sWS+3}], s{sT0} offen sc1")
        g(f"buffer_load_dwordx4 v[{20+8*e}:{23+8*e}], v{vLANE16}, s[{sWS}:{sWS+3}], s{sT0} offen offset:1024 sc1")
    g(f"s_lshl_b32 s{sT0}, s{sRT}, 1")
    g(f"s_add_u32 s{sT0}, s{sT0}, s{sBB}")
    g(f"s_lshl_b32 s{sT0}, s{sT0}, 16")
    g(f"s_lshl_b32 s{sT1}, s{sN0}, 7")
    g(f"s_add_u32 s{sT0}, s{sT0}, s{sT1}")
    g(f"s_lshl_b32 s{sT1}, s{sHP}, 5")
    g(f"s_add_u32 s{sT0}, s{sT0}, s{sT1}")
    for e in range(1, 4):
        g(f"s_waitcnt vmcnt({6-2*e})")
        for c in range(8):
            g(f"v_add_f32 v{16+c}, v{16+c}, v{16+8*e+c}")
    for u in range(4):
        g(f"v_cvt_pk_bf16_f32 v{48+u}, v{16+2*u}, v{17+2*u}")
    g(f"buffer_store_dwordx2 v[48:49], v{vA2}, s[{sOUT}:{sOUT+3}], s{sT0} offen")
    g(f"buffer_store_dwordx2 v[50:51], v{vA2}, s[{sOUT}:{sOUT+3}], s{sT0} offen offset:16")
    g.lab("L_FIN")
    if debug:
        g("s_waitcnt vmcnt(0)")
        g.ts(14)
        g(f"s_lshl_b32 s{sT0}, s2, 3")
        g(f"s_add_u32 s{sT0}, s{sT0}, s{sWAVE}")
        g(f"s_lshl_b32 s{sT0}, s{sT0}, 6")
        g(f"s_add_u32 s{sT0}, s{sT0}, {TSB:#x}")
        g(f"v_mov_b32 v{vA3}, s{sT0}")
        g("s_mov_b64 exec, 1")
        for n in range(16):
            g(f"v_mov_b32 v{16+n}, s{sTS+n}")
            g(f"buffer_store_dword v{16+n}, v{vA3}, s[{sWS}:{sWS+3}], 0 offen offset:{4*n}")
    g.lab("L_END")
    g("s_endpgm")
    rare_path(g)
    g.lab("L_CODE_END")
    hdr = f"""; Fused Q-projection + sliding-window GQA attention + output projection (generated by gen/gen2.py)
; @launch grid=(256,1,1) block=(512,1,1) lds=163840
.amdgcn_target "amdgcn-amd-amdhsa--gfx950"
.text
.globl {NAME}
.p2align 8
.type {NAME},@function
{NAME}:
"""
    ftr = f"""
.section .rodata,"a"
.p2align 6
.amdhsa_kernel {NAME}
  .amdhsa_next_free_vgpr 256
  .amdhsa_next_free_sgpr 102
  .amdhsa_accum_offset 256
  .amdhsa_group_segment_fixed_size 0
  .amdhsa_kernarg_size 64
  .amdhsa_user_sgpr_count 2
  .amdhsa_user_sgpr_kernarg_segment_ptr 1
  .amdhsa_system_sgpr_workgroup_id_x 1
.end_amdhsa_kernel
"""
    return hdr + "\n".join(g.L) + ftr

if __name__ == "__main__":
    import argparse
    ap = argparse.ArgumentParser()
    ap.add_argument("-o", default="standalone__sliding_block_cached__sampling.s")
    ap.add_argument("--debug", type=int, default=0)
    ap.add_argument("--la", type=int, default=2)
    ap.add_argument("--cprio", type=int, default=1)
    ap.add_argument("--norot", action="store_true")
    ap.add_argument("--xnt", action="store_true")
    ap.add_argument("--nocodepf", action="store_true")
    ap.add_argument("--kw", default="")
    a = ap.parse_args()
    kw = eval("dict(" + a.kw + ")")
    open(a.o, "w").write(gen(debug=a.debug, LA=a.la, cprio=a.cprio, rot=not a.norot, xnt=a.xnt, codepf=not a.nocodepf, **kw))
```

```python
import struct, math, sys

NAME = "standalone__sliding_block_cached__sampling_kernel"
C_SCALE = math.log2(math.e) / math.sqrt(128.0)
def f2u(x): return struct.unpack("<I", struct.pack("<f", x))[0]
THR = 10.0

QF   = 0x0000000
OF   = 0x0200000
PO   = 0x0400000
ST   = 0x0C00000
F1   = 0x0C40000
F2   = 0x0C50000
F3   = 0x0D00000
F4   = 0x0C68000
OP   = 0x0E00000
TSB  = 0x1600000
WS_BYTES = 268435456

sXCD, sI, sWAVE, sW4, sROLE = 3, 4, 5, 6, 7
sT0, sT1, sT2, sT3 = 8, 9, 10, 11
sCNT, sLW1K, sG, sKQ = 12, 13, 14, 15
sX, sK, sV, sWQ, sWO, sOUT, sDBG, sWS = 32, 36, 40, 44, 48, 52, 56, 60
sBASE0, sBASE1, sCT, sRT = 64, 65, 66, 67
sHQ, sKV = 68, 69
sN = 70
sPA = 72
sK0 = 74
sGH = 75
sEX = 76
sRET = 78
sPD = 16
sTS = 80
sN0, sOH, sRP = 96, 97, 98
sTHR = 99

vLANE16 = 1
vKA, vVA = 2, 10
vT0, vT1 = 14, 15
vKR, vVR, vQ, vO, vS, vP, vNEG, vLS, vONE = 16, 48, 80, 112, 176, 208, 224, 240, 244
vTM, vT2 = 248, 249
vNON = 250
vA0, vA1, vA2, vA3 = 252, 253, 254, 255

class G:
    def __init__(self, debug=False, limit=1 << 21):
        self.L = []; self.debug = debug; self.nlab = 0; self.limit = limit
    def __call__(self, s): self.L.append("  " + s)
    def lab(self, s): self.L.append(s + ":")
    def newlab(self, p="L"):
        self.nlab += 1; return f"{p}_{self.nlab}"
    def ts(self, n, lvl=1):
        if self.debug >= 2 and lvl == 1 and 7 <= n <= 13: return
        if lvl >= 2 and self.debug != lvl: return
        if self.debug:
            self(f"s_memrealtime s[100:101]")
            self("s_waitcnt lgkmcnt(0)")
            self(f"s_mov_b32 s{sTS+n}, s100")
    def srd(self, d, p, nbytes):
        self(f"s_mov_b32 s{d}, s{p}")
        self(f"s_and_b32 s{d+1}, s{p+1}, 0xffff")
        self(f"s_mov_b32 s{d+2}, {nbytes:#x}")
        self(f"s_mov_b32 s{d+3}, 0x20000")
    def dma(self, voff, srd, sbase, soff_const, m0base, m0_const, flags=""):
        self(f"s_add_u32 m0, s{m0base}, {m0_const:#x}")
        self(f"s_add_u32 s{sT0}, s{sbase}, {soff_const:#x}")
        self(f"buffer_load_dwordx4 v{voff}, s[{srd}:{srd+3}], s{sT0} offen {flags} lds".replace("  ", " "))
    def spoll4(self, soff):
        l = self.newlab("POLL"); d = self.newlab("POLLD")
        self(f"s_add_u32 s{sPA}, s30, s{soff}")
        self(f"s_addc_u32 s{sPA+1}, s31, 0")
        self(f"s_mov_b32 s{sCNT}, 0")
        self.lab(l)
        self(f"s_load_dwordx8 s[{sPD}:{sPD+7}], s[{sPA}:{sPA+1}], 0 glc")
        self(f"s_add_u32 s{sCNT}, s{sCNT}, 1")
        self(f"s_cmp_ge_u32 s{sCNT}, {self.limit:#x}")
        self("s_waitcnt lgkmcnt(0)")
        self(f"s_cbranch_scc1 {d}")
        for q in range(4):
            self(f"s_cmp_eq_u64 s[{sPD+2*q}:{sPD+2*q+1}], s[{sN}:{sN+1}]")
            self(f"s_cbranch_scc0 {l}")
        self.lab(d)
    def flag(self, saddr):
        self(f"v_mov_b32 v{vA3}, s{saddr}")
        self(f"s_mov_b64 s[{sEX}:{sEX+1}], exec")
        self("s_mov_b64 exec, 1")
        self(f"buffer_store_dwordx2 v[{vNON}:{vNON+1}], v{vA3}, s[{sWS}:{sWS+3}], 0 offen sc1")
        self(f"s_mov_b64 exec, s[{sEX}:{sEX+1}]")
    def nonce_issue(self, glc=""):
        self(f"s_load_dwordx2 s[{sN}:{sN+1}], s[28:29], 0{glc}")
    def nonce_finish(self):
        l = self.newlab("NON"); d = self.newlab("NOND")
        self(f"s_mov_b32 s{sCNT}, 0")
        self.lab(l)
        self("s_waitcnt lgkmcnt(0)")
        self(f"s_cmp_lg_u32 s{sN}, 0")
        self(f"s_cbranch_scc1 {d}")
        self(f"s_add_u32 s{sCNT}, s{sCNT}, 1")
        self(f"s_cmp_ge_u32 s{sCNT}, {self.limit:#x}")
        self(f"s_cbranch_scc1 {d}")
        self("s_sleep 8")
        self.nonce_issue(" glc")
        self(f"s_branch {l}")
        self.lab(d)
        self(f"v_mov_b32 v{vNON}, s{sN}")
        self(f"v_mov_b32 v{vNON+1}, s{sN+1}")

def mfma(g, d, a, b, c):
    cs = "0" if c is None else f"v[{c}:{c+15}]"
    g(f"v_mfma_f32_32x32x16_bf16 v[{d}:{d+15}], v[{a}:{a+3}], v[{b}:{b+3}], {cs}")
def mfma16(g, d, a, b, c):
    cs = "0" if c is None else f"v[{c}:{c+3}]"
    g(f"v_mfma_f32_16x16x32_bf16 v[{d}:{d+3}], v[{a}:{a+3}], v[{b}:{b+3}], {cs}")

def att_setup(g):
    g("v_and_b32 v24, 31, v0")
    g("v_lshrrev_b32 v25, 5, v0")
    g("v_and_b32 v26, 15, v0")
    g("v_xor_b32 v27, v26, v25")
    g("v_lshlrev_b32 v24, 8, v24")
    for s in range(8):
        g(f"v_xor_b32 v28, {2*s}, v27")
        g(f"v_lshl_add_u32 v{vKA+s}, v28, 4, v24")
    g("v_lshrrev_b32 v28, 2, v26")
    g("v_lshl_add_u32 v29, v25, 2, v28")
    g("v_lshlrev_b32 v29, 8, v29")
    g("v_and_b32 v30, 1, v0")
    g("v_lshl_add_u32 v29, v30, 3, v29")
    g("v_add_u32 v29, 16384, v29")
    g("v_bfe_u32 v30, v0, 1, 1")
    g("v_bfe_u32 v31, v0, 4, 1")
    g("v_lshl_add_u32 v30, v31, 1, v30")
    g("v_lshlrev_b32 v28, 2, v28")
    g("v_xor_b32 v30, v30, v28")
    for dt in range(4):
        g(f"v_xor_b32 v31, {4*dt}, v30")
        g(f"v_lshl_add_u32 v{vVA+dt}, v31, 4, v29")
    mask = sum(1 << l for l in (0, 8, 32, 40, 20, 28, 52, 60))
    g(f"s_mov_b32 s{sEX}, {mask & 0xffffffff:#x}")
    g(f"s_mov_b32 s{sEX+1}, {mask >> 32:#x}")
    g(f"v_mov_b32 v28, 0x3f803f80")
    g(f"v_cndmask_b32 v{vONE}, 0, v28, s[{sEX}:{sEX+1}]")
    for u in range(1, 4): g(f"v_mov_b32 v{vONE+u}, v{vONE}")
    g(f"s_mov_b32 s{sTHR}, {f2u(THR):#x}")

BIAS = 9.0
vOR = 252
def att_loop(g, O=None):
    O = {**dict(sum="m16", e2=(10, 12), barwait=False, m16s=(9, 13)), **(O or {})}
    g.stubs = []
    kcur = [0]; vcur = [0]
    def kbase(t):
        slot = (t // 2) % 4
        want = (slot >> 1) * 65536
        r = []
        if want != kcur[0]:
            r.append(f"s_mov_b32 s{sT0}, {(want - kcur[0]) & 0xffffffff:#x}")
            for x in range(vKA, vKA+8): r.append(f"v_add_u32 v{x}, s{sT0}, v{x}")
            kcur[0] = want
        return (slot & 1) * 32768 + (t & 1) * 8192, r
    def vbase(t):
        slot = (t // 2) % 4
        want = (slot >> 1) * 65536
        r = []
        if want != vcur[0]:
            r.append(f"s_mov_b32 s{sT1}, {(want - vcur[0]) & 0xffffffff:#x}")
            for x in range(vVA, vVA+4): r.append(f"v_add_u32 v{x}, s{sT1}, v{x}")
            vcur[0] = want
        return (slot & 1) * 32768 + (t & 1) * 8192, r
    def krd(off, s, base=vKR):
        return [f"ds_read_b128 v[{base+4*s}:{base+4*s+3}], v{vKA+s} offset:{off}"]
    def vrd(off, n):
        t2, dt = n >> 2, n & 3
        b = vVR + 4*n
        return [f"ds_read_b64_tr_b16 v[{b}:{b+1}], v{vVA+dt} offset:{off + 4096*t2}",
                f"ds_read_b64_tr_b16 v[{b+2}:{b+3}], v{vVA+dt} offset:{off + 4096*t2 + 2048}"]
    def em(l):
        for x in l: g(x)
    mf = lambda d, a, b, c: f"v_mfma_f32_32x32x16_bf16 v[{d}:{d+15}], v[{a}:{a+3}], v[{b}:{b+3}], " + ("0" if c is None else f"v[{c}:{c+15}]")
    m16 = lambda d, a, b, c: f"v_mfma_f32_16x16x32_bf16 v[{d}:{d+3}], v[{a}:{a+3}], v[{b}:{b+3}], " + ("0" if c is None else f"v[{c}:{c+3}]")
    o, _ = kbase(0)
    for s in range(8): em(krd(o, s, vVR))
    o1, _ = kbase(1)
    for s in range(7): em(krd(o1, s))
    g("s_waitcnt vmcnt(0)")
    g.ts(5)
    if g.debug:
        g("s_memtime s[100:101]")
        g("s_waitcnt lgkmcnt(0)")
        g(f"s_mov_b32 s{sTS+15}, s100")
    g(f"s_waitcnt lgkmcnt(7)")
    for s in range(8):
        g(mf(vS, vVR+4*s, vQ+4*s, None if s == 0 else vS))
        if s == 0: em(krd(o1, 7))
    g(f"s_mov_b32 s{sT0}, {f2u(BIAS):#x}")
    if O["sum"] != "m16":
        g(f"v_mov_b32 v{vLS}, 0"); g(f"v_mov_b32 v{vLS+1}, 0")
    NT = 16
    tmp = [(vT0, vT1), (vTM, vT2)]
    for t in range(0, NT + 1):
        Sc = vS + 16*(t & 1); Sn = vS + 16*((t+1) & 1)
        Pc = vP + 8*(t & 1); Pp = vP + 8*((t-1) & 1)
        doS = t + 1 < NT; doPV = t >= 1; doSM = t < NT; doK = t + 2 < NT
        pre = [[] for _ in range(16)]; M = [[] for _ in range(16)]; D = [[] for _ in range(16)]; V = [[] for _ in range(16)]
        if t == 16: break
        if t == 15:
            vo, bump = vbase(15)
            assert not bump
            pre[0].append("s_waitcnt lgkmcnt(8)")
            pre[4].append("s_waitcnt lgkmcnt(6)")
            pre[8].append("s_waitcnt lgkmcnt(8)")
            pre[12].append("s_waitcnt lgkmcnt(0)")
            for n in range(8):
                dt = n & 3; t2 = n >> 2
                M[n].append(mf(vO+16*dt, vVR+4*n, Pp+4*t2, vO+16*dt))
                D[n] += vrd(vo, n)
                M[8+n].append(mf(vO+16*dt, vVR+4*n, Pc+4*t2, vO+16*dt))
            if O["sum"] == "m16":
                M[1].append(m16(vLS, vONE, Pp, vLS)); M[5].append(m16(vLS, vONE, Pp+4, vLS))
                M[9].append(m16(vLS, vONE, Pc, vLS)); M[13].append(m16(vLS, vONE, Pc+4, vLS))
        elif doPV:
            vo, bump = vbase(t-1)
            pre[0] += bump
            for n in range(8): D[n] += vrd(vo, n)
            for n in range(8):
                dt = n & 3; t2 = n >> 2
                M[8+n].append(mf(vO+16*dt, vVR+4*n, Pp+4*t2, None if (t == 1 and t2 == 0) else vO+16*dt))
            if O["sum"] == "m16":
                M[O["m16s"][0]].append(m16(vLS, vONE, Pp, None if t == 1 else vLS))
                M[O["m16s"][1]].append(m16(vLS, vONE, Pp+4, vLS))
            pre[8].append("s_waitcnt lgkmcnt(8)")
            pre[12].append(f"s_waitcnt lgkmcnt({4 if doK else 6})")
        if t < 15: pre[4].append(f"s_waitcnt lgkmcnt({6 if doPV else 0})")
        if doS:
            pre[0].append("s_waitcnt lgkmcnt(4)")
            for s in range(8): M[s].append(mf(Sn, vKR+4*s, vQ+4*s, (None if t == 0 else vNEG) if s == 0 else Sn))
        if t % 2 == 0 and t <= 14:
            if O["barwait"] or t == 14: D[8].append("s_waitcnt lgkmcnt(0)")
            if t >= 2 and g.debug == 2:
                D[8] += ["s_memrealtime s[100:101]", "s_waitcnt lgkmcnt(0)", f"s_mov_b32 s{sTS+6+t//2}, s100"]
            D[8].append("s_barrier")
        if t == 14:
            vo, bump = vbase(14)
            D[8] += bump
            for n in range(8): D[8+n] += vrd(vo, n)
        if doK:
            ko, bump = kbase(t+2)
            D[8] += bump
            for n in range(8): D[8+n] += krd(ko, n)
        if doSM:
            if t == 0:
                V[2] += ["s_nop 7"]
                V[3] += [f"v_max3_f32 v{vTM}, v{vS}, v{vS+1}, v{vS+2}", f"v_max3_f32 v{vT2}, v{vS+3}, v{vS+4}, v{vS+5}",
                         f"v_max3_f32 v{vTM}, v{vS+6}, v{vS+7}, v{vTM}", f"v_max3_f32 v{vT2}, v{vS+8}, v{vS+9}, v{vT2}"]
                V[4] += [f"v_max3_f32 v{vTM}, v{vS+10}, v{vS+11}, v{vTM}", f"v_max3_f32 v{vT2}, v{vS+12}, v{vS+13}, v{vT2}",
                         f"v_max3_f32 v{vTM}, v{vS+14}, v{vS+15}, v{vTM}", f"v_max_f32 v{vTM}, v{vT2}, v{vTM}",
                         f"v_add_f32 v{vTM}, s{sT0}, v{vTM}", f"v_mov_b32 v{vT2}, v{vTM}"]
                V[5] += ["s_nop 0", f"v_permlane32_swap_b32 v{vTM}, v{vT2}", "s_nop 1", f"v_max_f32 v{vTM}, v{vTM}, v{vT2}",
                         f"v_sub_f32 v{vNEG}, 0, v{vTM}"]
                slots = [6, 6, 7, 7] + [8 + k//2 for k in range(12)]
                for u in range(1, 16): V[8 + min(6, (u-1)//2)].append(f"v_mov_b32 v{vNEG+u}, v{vNEG}")
            elif t == 15:
                slots = [0, 0, 0, 1, 1, 2, 2, 2, 3, 3, 4, 4, 4, 5, 5, 6]
            else:
                slots = []
                for sl in range(14):
                    slots.append(sl)
                    if sl in O["e2"]: slots.append(sl)
            assert len(slots) == 16
            for e in range(16):
                T = tmp[(e >> 1) & 1][e & 1]
                if t <= 1:
                    V[slots[e]].append(f"v_add_f32 v{Sc+e}, v{Sc+e}, v{vNEG}")
                V[slots[e]].append(f"v_exp_f32 v{T}, v{Sc+e}")
            for u in range(8):
                sl = slots[2*u+1] + 1
                a, b = tmp[u & 1]
                ins = []
                if O["sum"] == "add":
                    ins += [f"v_add_f32 v{vLS}, v{vLS}, v{a}", f"v_add_f32 v{vLS+1}, v{vLS+1}, v{b}"]
                if O["sum"] == "pk":
                    ins += [f"v_pk_add_f32 v[{vLS}:{vLS+1}], v[{vLS}:{vLS+1}], v[{a}:{b}]"]
                ins.append(f"v_cvt_pk_bf16_f32 v{Pc+u}, v{a}, v{b}")
                V[sl] = ins + V[sl]
                if O["sum"] == "dot":
                    V[sl].append(f"v_dot2c_f32_bf16 v{vLS + (u & 1)}, v{Pc+u}, v{vONE}")
                if u & 1 and t > 0:
                    orr = f"v_or_b32 v{vOR}, v{Pc}, v{Pc+1}" if u == 1 else f"v_or3_b32 v{vOR}, v{Pc+u-1}, v{Pc+u}, v{vOR}"
                    V[sl].append(orr)
            if t > 0:
                cs = 7 if t == 15 else 14
                V[cs].append(f"v_and_b32 v{vOR}, 0x40004000, v{vOR}")
                V[cs].append(f"v_cmp_ne_u32 vcc, 0, v{vOR}")
        for sl in range(16):
            em(pre[sl]); em(M[sl]); em(D[sl])
            if not M[sl] and not D[sl] and V[sl]: g("s_nop 0")
            em(V[sl])
            if doSM and t > 0 and sl == (7 if t == 15 else 15):
                st = g.newlab("RS"); bk = g.newlab("RB")
                g(f"s_cbranch_vccnz {st}")
                g.lab(bk)
                g.stubs.append((st, bk, t & 1))
    if O["sum"] != "m16":
        g(f"v_add_f32 v{vLS}, v{vLS}, v{vLS+1}")
        g(f"v_mov_b32 v{vT2}, v{vLS}")
        g("s_nop 1")
        g(f"v_permlane32_swap_b32 v{vLS}, v{vT2}")
        g("s_nop 1")
        g(f"v_add_f32 v{vLS}, v{vLS}, v{vT2}")

def rare_path(g, O=None):
    for st, bk, par in g.stubs:
        g.lab(st)
        g(f"s_call_b64 s[{sRET}:{sRET+1}], L_RARE{par}")
        g(f"s_branch {bk}")
    for par in range(2):
        g.lab(f"L_RARE{par}")
        Sc = vS + 16*par; Sn = vS + 16*(par ^ 1); Pc = vP + 8*par
        g("s_nop 15")
        g(f"v_max3_f32 v{vTM}, v{Sc}, v{Sc+1}, v{Sc+2}")
        for u in range(6): g(f"v_max3_f32 v{vTM}, v{Sc+3+2*u}, v{Sc+4+2*u}, v{vTM}")
        g(f"v_max_f32 v{vTM}, v{Sc+15}, v{vTM}")
        g(f"v_add_f32 v{vTM}, {f2u(BIAS):#x}, v{vTM}")
        g(f"v_mov_b32 v{vT2}, v{vTM}")
        g("s_nop 1")
        g(f"v_permlane32_swap_b32 v{vTM}, v{vT2}")
        g("s_nop 1")
        g(f"v_max3_f32 v{vTM}, v{vTM}, v{vT2}, 0")
        g(f"v_ceil_f32 v{vTM}, v{vTM}")
        g(f"v_sub_f32 v{vT2}, 0, v{vTM}")
        g(f"v_exp_f32 v{vT2}, v{vT2}")
        for u in range(16): g(f"v_sub_f32 v{Sc+u}, v{Sc+u}, v{vTM}")
        for u in range(16): g(f"v_sub_f32 v{Sn+u}, v{Sn+u}, v{vTM}")
        for u in range(16): g(f"v_sub_f32 v{vNEG+u}, v{vNEG+u}, v{vTM}")
        for u in range(64): g(f"v_mul_f32 v{vO+u}, v{vO+u}, v{vT2}")
        g(f"v_mul_f32 v{vLS}, v{vLS}, v{vT2}")
        for u in range(8):
            g(f"v_exp_f32 v{vT0}, v{Sc+2*u}")
            g(f"v_exp_f32 v{vT1}, v{Sc+2*u+1}")
            g("s_nop 0")
            g(f"v_cvt_pk_bf16_f32 v{Pc+u}, v{vT0}, v{vT1}")
        g("s_nop 1")
        g(f"s_setpc_b64 s[{sRET}:{sRET+1}]")

def gen(debug=False, LA=2, cprio=1, rot=True, xnt=False, codepf=True, early={5: 1, 6: 2}, nq1=2, bflag='', pfflag='', kvflag='nt', wqflag='', span=False, pfplan={0: 1, 1: 2, 2: 2, 3: 1, 4: 1, 5: 1}):
    g = G(debug=debug)
    qslot = lambda k: 1 + k % 4
    g("s_cmp_ge_u32 s2, 256")
    g("s_cbranch_scc1 L_END")
    g("s_load_dwordx16 s[16:31], s[0:1], 0")
    g(f"s_and_b32 s{sXCD}, s2, 7")
    g(f"s_lshr_b32 s{sI}, s2, 3")
    g("v_lshrrev_b32 v1, 6, v0")
    g("v_and_b32 v0, 63, v0")
    g(f"v_readfirstlane_b32 s{sWAVE}, v1")
    g(f"v_lshlrev_b32 v{vLANE16}, 4, v0")
    g(f"s_and_b32 s{sT0}, s{sI}, 7")
    g(f"s_lshl_b32 s{sCT}, s{sXCD}, 3")
    g(f"s_add_u32 s{sCT}, s{sCT}, s{sT0}")
    g(f"s_lshr_b32 s{sRT}, s{sI}, 3")
    g(f"s_lshl_b32 s{sK0}, s{sRT}, 1")
    g(f"s_add_u32 s{sK0}, s{sK0}, s{sT0}")
    if not rot: g(f"s_mov_b32 s{sK0}, 0")
    g(f"s_lshl_b32 s{sG}, s{sXCD}, 2")
    g(f"s_add_u32 s{sG}, s{sG}, s{sRT}")
    g(f"s_and_b32 s{sKQ}, s{sI}, 3")
    g(f"s_bfe_u32 s{sHQ}, s{sI}, 0x10002")
    g(f"s_lshl_b32 s{sGH}, s{sG}, 1")
    g(f"s_add_u32 s{sGH}, s{sGH}, s{sHQ}")
    g(f"s_and_b32 s{sW4}, s{sWAVE}, 3")
    g(f"s_lshr_b32 s{sROLE}, s{sWAVE}, 2")
    g(f"s_lshl_b32 s{sLW1K}, s{sW4}, 10")
    g(f"s_lshr_b32 s{sOH}, s{sXCD}, 1")
    g(f"s_and_b32 s{sN0}, s{sXCD}, 1")
    g(f"s_lshl_b32 s{sN0}, s{sN0}, 3")
    g(f"s_add_u32 s{sN0}, s{sN0}, s{sT0}")
    g("s_waitcnt lgkmcnt(0)")
    g.srd(sWQ, 22, 1024*4096*2)
    g.srd(sX, 16, 8*32*1024*2)
    g(f"s_cmp_eq_u32 s{sROLE}, 0")
    g("s_cbranch_scc1 L_CWAVE")

    vXO, vWQO, vKO, vVO, vWOO = 16, 17, 18, 19, 20
    g("v_lshrrev_b32 v21, 4, v0")
    g(f"s_lshl_b32 s{sT1}, s{sW4}, 2")
    g(f"v_add_u32 v22, s{sT1}, v21")
    g("v_and_b32 v23, 15, v0")
    g("v_xor_b32 v24, v23, v22")
    g("v_lshlrev_b32 v24, 4, v24")
    g(f"v_lshl_add_u32 v{vXO}, v22, 11, v24")
    g("v_lshrrev_b32 v25, 3, v0")
    g("v_and_b32 v26, 7, v0")
    g("v_lshlrev_b32 v27, 1, v25")
    g("v_and_b32 v27, 4, v27")
    g("v_xor_b32 v26, v26, v27")
    g("v_lshlrev_b32 v26, 4, v26")
    g(f"v_lshl_add_u32 v{vWQO}, v25, 13, v26")
    g(f"s_lshl_b32 s{sBASE0}, s{sRT}, 17")
    g(f"s_lshl_b32 s{sBASE1}, s{sCT}, 7")
    g(f"s_lshl_b32 s{sT1}, s{sW4}, 16")
    g(f"s_add_u32 s{sBASE1}, s{sBASE1}, s{sT1}")
    Q = []
    def need(*tags):
        last = max(i for i, x in enumerate(Q) if x in tags)
        g(f"s_waitcnt vmcnt({len(Q) - 1 - last})")
    def stage(k):
        slot = qslot(k) * 32768
        g(f"s_add_u32 s{sT1}, s{sK0}, {k}")
        g(f"s_and_b32 s{sT1}, s{sT1}, 7")
        g(f"s_lshl_b32 s{sT2}, s{sT1}, 20")
        g(f"s_add_u32 s{sT2}, s{sT2}, s{sBASE1}")
        g(f"s_lshl_b32 s{sT3}, s{sT1}, 8")
        g(f"s_add_u32 s{sT3}, s{sT3}, s{sBASE0}")
        for m in range(4):
            g.dma(vWQO, sWQ, sT2, 32*m*8192, sLW1K, slot + 16384 + 4096*m, wqflag)
            g.dma(vXO, sX, sT3, m*16*2048, sLW1K, slot + 4096*m, "nt" if xnt else "")
            Q.extend([f"S{k}"] * 2)
    def kpart(s):
        for m in range(4):
            g.dma(vKO, sK, sKV, (64*s + 16*m) * 256, sLW1K, (s % 4)*32768 + 4096*m, kvflag)
            Q.append(f"K{s}")
    def vpart(s):
        for m in range(4):
            g.dma(vVO, sV, sKV, (64*s + 16*m) * 256, sLW1K, (s % 4)*32768 + 16384 + 4096*m, kvflag)
            Q.append(f"V{s}")
    def part(tag):
        (kpart if tag[0] == "K" else vpart)(int(tag[1]))
    for k in range(LA): stage(k)
    g.ts(0)
    g.srd(sK, 18, 8*4*8192*128*2)
    g.srd(sV, 20, 8*4*8192*128*2)
    g.srd(sWO, 24, 4096*1024*2)
    g.srd(sOUT, 26, 8*32*1024*2)
    g.srd(sWS, 30, WS_BYTES)
    g(f"v_lshl_add_u32 v{vKO}, v22, 8, v24")
    g("v_lshlrev_b32 v28, 2, v21")
    g("v_xor_b32 v28, v23, v28")
    g("v_lshlrev_b32 v28, 4, v28")
    g(f"v_lshl_add_u32 v{vVO}, v22, 8, v28")
    g(f"v_lshl_add_u32 v{vWOO}, v25, 11, v26")
    g(f"s_lshl_b32 s{sKV}, s{sG}, 21")
    g(f"s_lshl_b32 s{sT1}, s{sKQ}, 17")
    g(f"s_add_u32 s{sKV}, s{sKV}, s{sT1}")
    g(f"s_add_u32 s{sKV}, s{sKV}, {6144*256:#x}")
    order = ["K0", "K1", "V0"] + [x for s_ in range(1, 8) for x in ([f"K{s_+1}"] if s_ < 7 else []) + [f"V{s_}"]]
    todo = list(order)
    def issue(n):
        for _ in range(n):
            if todo: part(todo.pop(0))
    for k in range(8):
        need(f"S{k}")
        g("s_barrier")
        if k == 0: g.ts(1)
        if k + LA < 8: stage(k + LA)
        issue(early.get(k, 0))
    g.ts(2)
    g.nonce_issue()
    sPF = sCT
    g(f"s_lshl_b32 s{sBASE0}, s{sOH}, 21")
    g(f"s_lshl_b32 s{sT1}, s{sW4}, 14")
    g(f"s_add_u32 s{sBASE0}, s{sBASE0}, s{sT1}")
    g(f"s_lshl_b32 s{sPF}, s{sI}, 16")
    g(f"s_add_u32 s{sPF}, s{sPF}, s{sBASE0}")
    g(f"s_and_b32 s{sT1}, s{sXCD}, 1")
    g(f"s_lshl_b32 s{sT1}, s{sT1}, 10")
    g(f"s_add_u32 s{sPF}, s{sPF}, s{sT1}")
    g(f"s_lshl_b32 s{sT1}, s{sN0}, 7")
    g(f"s_add_u32 s{sBASE0}, s{sBASE0}, s{sT1}")
    npf = [0]
    def wopf(n):
        for _ in range(n):
            g(f"s_add_u32 s{sT0}, s{sPF}, {npf[0]*2048:#x}")
            g(f"buffer_load_dwordx4 v[32:35], v{vLANE16}, s[{sWO}:{sWO+3}], s{sT0} offen {pfflag}")
            Q.append("PF"); npf[0] += 1
    def bpart(pos):
        slot = [4, 0, 1, 2][pos]
        g(f"s_add_u32 s{sT1}, s{sRT}, {pos}")
        g(f"s_and_b32 s{sT1}, s{sT1}, 3")
        g(f"s_lshl_b32 s{sT1}, s{sT1}, 19")
        g(f"s_add_u32 s{sT1}, s{sT1}, s{sBASE0}")
        for m in range(8):
            g.dma(vWOO, sWO, sT1, 32*m*2048, sLW1K, slot*32768 + 4096*m, bflag)
            Q.append(f"B{pos}")
    g.nonce_finish()
    g("s_barrier")
    g.ts(3)
    issue(nq1)
    g("s_barrier")
    g.ts(4)
    while len(order) - len(todo) < 3: issue(1)
    need("K0")
    g("s_barrier")
    g.ts(5)
    for s in range(0, 8):
        lim = order.index(f"V{s+1}") + 1 if s + 1 <= 7 else len(order)
        while len(order) - len(todo) < lim: issue(1)
        wopf(pfplan.get(s, 0))
        if s == 6:
            g.ts(7, 3); bpart(0); g.ts(8, 3)
        if s == 7:
            g.ts(9, 3); bpart(1); g.ts(10, 3)
        if s < 7: need(f"K{s+1}", f"V{s}")
        else: need("V7")
        if s >= 1: g.ts(6 + s, 2)
        g("s_barrier")
    assert npf[0] in (0, 8)
    g.ts(11, 3)
    bpart(2); bpart(3)
    g.ts(6)
    if g.debug == 3:
        g("s_waitcnt vmcnt(16)"); g.ts(12, 3)
        g("s_waitcnt vmcnt(0)"); g.ts(13, 3)
    g("s_branch L_BACK")

    g.lab("L_CWAVE")
    g.srd(sWS, 30, WS_BYTES)
    g.srd(sDBG, 28, 256)
    g(f"s_or_b32 s{sT0}, s2, s{sWAVE}")
    g(f"s_cmp_lg_u32 s{sT0}, 0")
    g("s_cbranch_scc1 L_NOPUB")
    g(f"s_memrealtime s[{sN}:{sN+1}]")
    g("s_waitcnt lgkmcnt(0)")
    g(f"s_or_b32 s{sN}, s{sN}, 1")
    g(f"s_xor_b32 s{sN+1}, s{sN+1}, 0x5bd1e995")
    g(f"v_mov_b32 v{vNON}, s{sN}")
    g(f"v_mov_b32 v{vNON+1}, s{sN+1}")
    g(f"v_mov_b32 v{vA3}, 0")
    g(f"buffer_store_dwordx2 v[{vNON}:{vNON+1}], v{vA3}, s[{sDBG}:{sDBG+3}], 0 offen sc1")
    g.lab("L_NOPUB")
    if codepf:
        g(f"s_cmp_lg_u32 s{sWAVE}, 1")
        g("s_cbranch_scc1 L_NOPF")
        g(f"s_getpc_b64 s[{sPA}:{sPA+1}]")
        g.lab("L_PC")
        g(f"s_lshl_b32 s{sT0}, s{sI}, 10")
        g(f"s_min_u32 s{sT0}, s{sT0}, L_CODE_END-L_PC-1024")
        g(f"v_add_u32 v{vA0}, s{sT0}, v{vLANE16}")
        g(f"global_load_dwordx4 v[{vS}:{vS+3}], v{vA0}, s[{sPA}:{sPA+1}]")
        g.lab("L_NOPF")
    g.ts(0)
    g.srd(sOUT, 26, 8*32*1024*2)
    g(f"s_and_b32 s{sT0}, s{sW4}, 1")
    g(f"s_lshl_b32 s{sT0}, s{sT0}, 13")
    g("v_and_b32 v20, 31, v0")
    g("v_lshrrev_b32 v21, 5, v0")
    g("v_and_b32 v22, 15, v0")
    g("v_xor_b32 v22, v22, v21")
    g(f"v_lshlrev_b32 v23, 8, v20")
    g(f"v_add_u32 v23, s{sT0}, v23")
    for s in range(8):
        g(f"v_xor_b32 v24, {2*s}, v22")
        g(f"v_lshl_add_u32 v{vKA+s}, v24, 4, v23")
    g("v_and_b32 v20, 15, v0")
    g("v_lshrrev_b32 v22, 2, v20")
    g("v_lshl_add_u32 v23, v21, 3, v22")
    g("v_lshlrev_b32 v23, 7, v23")
    g("v_and_b32 v24, 1, v0")
    g("v_bfe_u32 v25, v0, 4, 1")
    g("v_lshl_add_u32 v24, v25, 1, v24")
    g(f"s_lshr_b32 s{sT0}, s{sW4}, 1")
    g(f"s_lshl_b32 s{sT0}, s{sT0}, 2")
    g(f"v_add_u32 v24, s{sT0}, v24")
    g("v_lshlrev_b32 v26, 1, v22")
    g("v_and_b32 v26, 4, v26")
    g("v_xor_b32 v24, v24, v26")
    g("v_lshl_add_u32 v23, v24, 4, v23")
    g("v_bfe_u32 v25, v0, 1, 1")
    g(f"v_lshl_add_u32 v{vVA}, v25, 3, v23")
    g(f"v_add_u32 v{vVA}, 16384, v{vVA}")
    acc = vO
    fr = 16
    cur = [0]
    def setbase(regs, want):
        if want != cur[0]:
            g(f"s_mov_b32 s{sT0}, {(want - cur[0]) & 0xffffffff:#x}")
            for r in regs: g(f"v_add_u32 v{r}, s{sT0}, v{r}")
            cur[0] = want
    for k in range(8):
        slot = qslot(k)
        setbase(list(range(vKA, vKA+8)) + [vVA], (slot >> 1) * 65536)
        io = (slot & 1) * 32768
        g("s_barrier")
        if k == 0: g.ts(1)
        def rd(s):
            b = fr + 8*s
            g(f"ds_read_b64_tr_b16 v[{b}:{b+1}], v{vVA} offset:{io + 2048*s}")
            g(f"ds_read_b64_tr_b16 v[{b+2}:{b+3}], v{vVA} offset:{io + 2048*s + 512}")
            g(f"ds_read_b128 v[{b+4}:{b+7}], v{vKA+s} offset:{io}")
        for s in range(5): rd(s)
        for s in range(8):
            g(f"s_waitcnt lgkmcnt({min(4, 7 - s) * 3})")
            mfma(g, acc, fr + 8*s, fr + 8*s + 4, None if (k == 0 and s == 0) else acc)
            if s + 5 < 8: rd(s + 5)
    g.ts(2)
    g.nonce_issue()
    g(f"s_and_b32 s{sT0}, s{sW4}, 1")
    g(f"s_lshl_b32 s{sT1}, s{sRT}, 1")
    g(f"s_add_u32 s{sT1}, s{sT1}, s{sT0}")
    g(f"s_lshl_b32 s{sT1}, s{sT1}, 5")
    g(f"s_lshr_b32 s{sT2}, s{sCT}, 1")
    g(f"s_add_u32 s{sT1}, s{sT1}, s{sT2}")
    g(f"s_and_b32 s{sT2}, s{sCT}, 1")
    g(f"s_lshl_b32 s{sT2}, s{sT2}, 1")
    g(f"s_lshr_b32 s{sT3}, s{sW4}, 1")
    g(f"s_add_u32 s{sT2}, s{sT2}, s{sT3}")
    g(f"s_lshl_b32 s{sBASE0}, s{sT1}, 13")
    g(f"s_lshl_b32 s{sT3}, s{sT2}, 11")
    g(f"s_add_u32 s{sBASE0}, s{sBASE0}, s{sT3}")
    g(f"s_lshl_b32 s{sBASE1}, s{sT1}, 7")
    g(f"s_lshl_b32 s{sT3}, s{sT2}, 3")
    g(f"s_add_u32 s{sBASE1}, s{sBASE1}, s{sT3}")
    g(f"s_add_u32 s{sBASE1}, s{sBASE1}, {F1:#x}")
    g(f"s_mov_b32 s{sT0}, {f2u(C_SCALE):#x}")
    for u in range(16):
        g(f"v_mul_f32 v{acc+u}, s{sT0}, v{acc+u}")
    for u in range(8):
        g(f"v_cvt_pk_bf16_f32 v{16+u}, v{acc+2*u}, v{acc+2*u+1}")
    g(f"buffer_store_dwordx4 v[16:19], v{vLANE16}, s[{sWS}:{sWS+3}], s{sBASE0} offen sc1")
    g(f"buffer_store_dwordx4 v[20:23], v{vLANE16}, s[{sWS}:{sWS+3}], s{sBASE0} offen offset:1024 sc1")
    att_setup(g)
    g(f"s_lshl_b32 s{sT2}, s{sGH}, 2")
    g(f"s_add_u32 s{sT2}, s{sT2}, s{sW4}")
    g(f"s_lshl_b32 s{sBASE0}, s{sT2}, 13")
    g(f"s_lshl_b32 s{sT2}, s{sT2}, 7")
    g(f"s_add_u32 s{sT2}, s{sT2}, {F1:#x}")
    g.nonce_finish()
    g("s_waitcnt vmcnt(0)")
    g.flag(sBASE1)
    g("s_barrier")
    g.ts(3)
    g.spoll4(sT2)
    g.ts(4)
    for s in range(8):
        if s == 4: g(f"s_add_u32 s{sBASE0}, s{sBASE0}, 4096")
        g(f"buffer_load_dwordx4 v[{vQ+4*s}:{vQ+4*s+3}], v{vLANE16}, s[{sWS}:{sWS+3}], s{sBASE0} offen offset:{1024*(s&3)} sc1")
    g("s_barrier")
    if cprio: g(f"s_setprio {cprio}")
    g("s_barrier")
    att_loop(g)
    g.ts(6)
    if g.debug:
        g("s_memtime s[100:101]")
        g("s_waitcnt lgkmcnt(0)")
        g(f"s_sub_u32 s{sTS+15}, s100, s{sTS+15}")
    if cprio: g("s_setprio 0")
    g(f"s_lshl_b32 s{sBASE0}, s{sGH}, 17")
    g(f"s_lshl_b32 s{sT0}, s{sW4}, 13")
    g(f"s_add_u32 s{sBASE0}, s{sBASE0}, s{sT0}")
    g(f"s_lshl_b32 s{sT0}, s{sKQ}, 10")
    g(f"s_add_u32 s{sBASE0}, s{sBASE0}, s{sT0}")
    g(f"s_add_u32 s{sBASE0}, s{sBASE0}, {PO:#x}")
    g(f"s_lshl_b32 s{sT1}, s{sGH}, 2")
    g(f"s_add_u32 s{sT1}, s{sT1}, s{sW4}")
    g(f"s_lshl_b32 s{sT2}, s{sT1}, 10")
    g(f"s_lshl_b32 s{sT3}, s{sKQ}, 8")
    g(f"s_add_u32 s{sT2}, s{sT2}, s{sT3}")
    g(f"s_add_u32 s{sT2}, s{sT2}, {ST:#x}")
    g(f"v_and_b32 v{vA0}, 31, v0")
    g(f"v_lshlrev_b32 v{vA0}, 3, v{vA0}")
    g(f"v_sub_f32 v{vT0}, 0, v{vNEG}")
    for f in range(8):
        src = vO + 8*f; dst = vKR + 4*f
        for u in range(4):
            g(f"v_cvt_pk_bf16_f32 v{dst+u}, v{src+2*u}, v{src+2*u+1}")
        g(f"s_add_u32 s{sT0}, s{sBASE0}, {(f >> 1)*32768 + (f & 1)*4096:#x}")
        g(f"buffer_store_dwordx4 v[{dst}:{dst+3}], v{vLANE16}, s[{sWS}:{sWS+3}], s{sT0} offen sc1")
        if f == 0:
            g(f"v_mov_b32 v{vT1}, v{vLS}")
            g(f"buffer_store_dwordx2 v[{vT0}:{vT1}], v{vA0}, s[{sWS}:{sWS+3}], s{sT2} offen sc1")
    g(f"s_lshl_b32 s{sT2}, s{sT1}, 7")
    g(f"s_lshl_b32 s{sT3}, s{sKQ}, 3")
    g(f"s_add_u32 s{sT2}, s{sT2}, s{sT3}")
    g(f"s_add_u32 s{sT2}, s{sT2}, {F2:#x}")
    g("s_waitcnt vmcnt(0)")
    g.flag(sT2)
    g.ts(7)

    g.lab("L_BACK")
    g("s_barrier")
    g(f"s_lshl_b32 s{sT1}, s{sGH}, 2")
    g(f"s_add_u32 s{sT1}, s{sT1}, s{sW4}")
    g(f"s_lshl_b32 s{sT2}, s{sT1}, 7")
    g(f"s_add_u32 s{sT2}, s{sT2}, {F2:#x}")
    g(f"s_lshl_b32 s{sBASE1}, s{sT1}, 10")
    g(f"s_add_u32 s{sBASE1}, s{sBASE1}, {ST:#x}")
    g(f"s_lshl_b32 s{sBASE0}, s{sGH}, 17")
    g(f"s_lshl_b32 s{sT0}, s{sKQ}, 15")
    g(f"s_add_u32 s{sBASE0}, s{sBASE0}, s{sT0}")
    g(f"s_lshl_b32 s{sT0}, s{sW4}, 13")
    g(f"s_add_u32 s{sBASE0}, s{sBASE0}, s{sT0}")
    g(f"s_lshl_b32 s{sT0}, s{sROLE}, 12")
    g(f"s_add_u32 s{sBASE0}, s{sBASE0}, s{sT0}")
    g(f"s_add_u32 s{sBASE0}, s{sBASE0}, {PO:#x}")
    g(f"v_and_b32 v{vA0}, 31, v0")
    g(f"v_lshlrev_b32 v{vA0}, 3, v{vA0}")
    g.spoll4(sT2)
    g.ts(8)
    for s in range(4):
        g(f"buffer_load_dwordx2 v[{16+2*s}:{17+2*s}], v{vA0}, s[{sWS}:{sWS+3}], s{sBASE1} offen offset:{256*s} sc1")
    for s in range(4):
        g(f"buffer_load_dwordx4 v[{48+4*s}:{51+4*s}], v{vLANE16}, s[{sWS}:{sWS+3}], s{sBASE0} offen offset:{1024*s} sc1")
    g(f"s_lshl_b32 s{sT0}, s{sT1}, 13")
    g(f"s_lshl_b32 s{sT2}, s{sKQ}, 11")
    g(f"s_add_u32 s{sT0}, s{sT0}, s{sT2}")
    g(f"s_lshl_b32 s{sT2}, s{sROLE}, 10")
    g(f"s_add_u32 s{sT0}, s{sT0}, s{sT2}")
    g(f"s_add_u32 s{sBASE0}, s{sT0}, {OF:#x}")
    g("s_waitcnt vmcnt(4)")
    g("v_max3_f32 v24, v16, v18, v20")
    g("v_max_f32 v24, v22, v24")
    for s in range(4): g(f"v_sub_f32 v{16+2*s}, v{16+2*s}, v24")
    for s in range(4): g(f"v_exp_f32 v{16+2*s}, v{16+2*s}")
    g("s_nop 0")
    g("v_mul_f32 v24, v16, v17")
    g("v_fmac_f32 v24, v18, v19")
    g("v_fmac_f32 v24, v20, v21")
    g("v_fmac_f32 v24, v22, v23")
    g("v_rcp_f32 v24, v24")
    g("s_nop 0")
    for s in range(4): g(f"v_mul_f32 v{16+2*s}, v{16+2*s}, v24")
    for s in range(4):
        g(f"s_waitcnt vmcnt({3 - s})")
        for u in range(4):
            src = 48 + 4*s + u
            g(f"v_lshlrev_b32 v28, 16, v{src}")
            g(f"v_and_b32 v29, 0xffff0000, v{src}")
            if s == 0:
                g(f"v_mul_f32 v{32+2*u}, v28, v16")
                g(f"v_mul_f32 v{33+2*u}, v29, v16")
            else:
                g(f"v_fmac_f32 v{32+2*u}, v28, v{16+2*s}")
                g(f"v_fmac_f32 v{33+2*u}, v29, v{16+2*s}")
    for u in range(4):
        g(f"v_cvt_pk_bf16_f32 v{40+u}, v{32+2*u}, v{33+2*u}")
    g(f"buffer_store_dwordx4 v[40:43], v{vLANE16}, s[{sWS}:{sWS+3}], s{sBASE0} offen sc1")
    sBB, sHP = sCT, sK0
    g(f"s_and_b32 s{sBB}, s{sWAVE}, 1")
    g(f"s_lshr_b32 s{sHP}, s{sWAVE}, 1")
    g(f"s_lshl_b32 s{sT0}, s{sRT}, 1")
    g(f"s_add_u32 s{sT0}, s{sT0}, s{sBB}")
    g(f"s_lshl_b32 s{sT0}, s{sT0}, 2")
    g(f"s_add_u32 s{sT0}, s{sT0}, s{sOH}")
    g(f"s_lshl_b32 s{sBASE0}, s{sT0}, 16")
    g(f"s_lshl_b32 s{sT2}, s{sHP}, 14")
    g(f"s_add_u32 s{sBASE0}, s{sBASE0}, s{sT2}")
    g(f"s_add_u32 s{sBASE0}, s{sBASE0}, {OF:#x}")
    g(f"s_lshl_b32 s{sT0}, s{sT0}, 1")
    g(f"s_lshr_b32 s{sT2}, s{sHP}, 1")
    g(f"s_add_u32 s{sT0}, s{sT0}, s{sT2}")
    g(f"s_lshl_b32 s{sT0}, s{sT0}, 4")
    g(f"s_add_u32 s{sT0}, s{sT0}, s{sN0}")
    g(f"s_lshl_b32 s{sBASE1}, s{sT0}, 7")
    g(f"s_add_u32 s{sBASE1}, s{sBASE1}, {F3:#x}")
    g(f"s_sub_u32 s{sT0}, s{sHP}, s{sRT}")
    g(f"s_and_b32 s{sT0}, s{sT0}, 3")
    g(f"s_sub_u32 s{sT2}, s{sT0}, 1")
    g(f"s_cmp_eq_u32 s{sT0}, 0")
    g(f"s_cselect_b32 s{sT2}, 4, s{sT2}")
    g(f"s_lshl_b32 s{sT2}, s{sT2}, 15")
    g("v_lshrrev_b32 v21, 5, v0")
    g("v_bfe_u32 v24, v0, 2, 2")
    g("v_lshl_add_u32 v25, v21, 2, v24")
    g("v_lshlrev_b32 v25, 7, v25")
    g("v_and_b32 v26, 1, v0")
    g("v_lshl_add_u32 v25, v26, 3, v25")
    g(f"v_add_u32 v25, s{sT2}, v25")
    g("v_bfe_u32 v26, v0, 1, 1")
    g("v_bfe_u32 v27, v0, 4, 1")
    g("v_lshl_add_u32 v26, v27, 1, v26")
    g("v_lshlrev_b32 v24, 1, v24")
    g("v_and_b32 v24, 4, v24")
    g("v_xor_b32 v26, v26, v24")
    g(f"v_lshl_add_u32 v{vKA}, v26, 4, v25")
    g("v_xor_b32 v26, 4, v26")
    g(f"v_lshl_add_u32 v{vKA+1}, v26, 4, v25")
    g(f"s_lshl_b32 s{sT2}, s{sGH}, 11")
    g(f"s_lshl_b32 s{sT3}, s{sKQ}, 3")
    g(f"s_add_u32 s{sT2}, s{sT2}, s{sT3}")
    g(f"s_add_u32 s{sT2}, s{sT2}, {F3:#x}")
    g(f"v_lshlrev_b32 v{vA3}, 7, v0")
    g(f"v_add_u32 v{vA3}, s{sT2}, v{vA3}")
    g("s_waitcnt vmcnt(0)")
    g("s_barrier")
    g(f"s_cmp_lg_u32 s{sWAVE}, 0")
    g("s_cbranch_scc1 L_NOF3")
    g("s_mov_b64 exec, 0xffff")
    g(f"buffer_store_dwordx2 v[{vNON}:{vNON+1}], v{vA3}, s[{sWS}:{sWS+3}], 0 offen sc1")
    g("s_mov_b64 exec, -1")
    g.lab("L_NOF3")
    g.ts(9)
    vB = 112
    cnt = 0
    for n in range(16):
        for nt in range(2):
            b = vB + (n*2+nt)*4
            g(f"ds_read_b64_tr_b16 v[{b}:{b+1}], v{vKA+nt} offset:{2048*n}")
            g(f"ds_read_b64_tr_b16 v[{b+2}:{b+3}], v{vKA+nt} offset:{2048*n+1024}")
            cnt += 2
            if cnt % 8 == 0: g("s_waitcnt lgkmcnt(6)")
    g("s_waitcnt lgkmcnt(0)")
    g.spoll4(sBASE1)
    g.ts(10)
    vA = 16
    for n in range(16):
        if n and n % 4 == 0: g(f"s_add_u32 s{sBASE0}, s{sBASE0}, 4096")
        g(f"buffer_load_dwordx4 v[{vA+4*n}:{vA+4*n+3}], v{vLANE16}, s[{sWS}:{sWS+3}], s{sBASE0} offen offset:{1024*(n&3)} sc1")
    g("s_barrier")
    vD = 80
    for n in range(16):
        g(f"s_waitcnt vmcnt({15-n})")
        for nt in range(2):
            mfma(g, vD+16*nt, vB + (n*2+nt)*4, vA+4*n, None if n == 0 else vD+16*nt)
    g.ts(11)
    g(f"s_lshl_b32 s{sT0}, s{sWAVE}, 13")
    g(f"v_add_u32 v{vA0}, s{sT0}, v{vLANE16}")
    g(f"s_lshl_b32 s{sT0}, s{sBB}, 13")
    g(f"s_lshl_b32 s{sT1}, s{sHP}, 11")
    g(f"s_add_u32 s{sT0}, s{sT0}, s{sT1}")
    g(f"v_add_u32 v{vA1}, s{sT0}, v{vLANE16}")
    g(f"s_lshl_b32 s{sT2}, s{sBB}, 1")
    g(f"s_lshr_b32 s{sT3}, s{sHP}, 1")
    g(f"s_add_u32 s{sT2}, s{sT2}, s{sT3}")
    g(f"s_lshl_b32 s{sT0}, s{sRT}, 4")
    g(f"s_add_u32 s{sT0}, s{sT0}, s{sN0}")
    g(f"s_lshl_b32 s{sT0}, s{sT0}, 2")
    g(f"s_add_u32 s{sT0}, s{sT0}, s{sT2}")
    for q in range(8):
        g(f"ds_write_b128 v{vA0}, v[{vD+4*q}:{vD+4*q+3}] offset:{1024*q}")
    g(f"s_lshl_b32 s{sT0}, s{sT0}, 1")
    g(f"s_and_b32 s{sT1}, s{sHP}, 1")
    g(f"s_add_u32 s{sT0}, s{sT0}, s{sT1}")
    g(f"s_lshl_b32 s{sBASE0}, s{sT0}, 13")
    g(f"s_add_u32 s{sBASE0}, s{sBASE0}, {OP:#x}")
    g(f"s_lshl_b32 s{sBASE1}, s{sT0}, 7")
    g(f"s_add_u32 s{sBASE1}, s{sBASE1}, {F4:#x}")
    g(f"s_lshl_b32 s{sT3}, s{sOH}, 3")
    g(f"s_add_u32 s{sT3}, s{sT3}, s{sBASE1}")
    g("s_waitcnt lgkmcnt(0)")
    g("s_barrier")
    for hp2 in range(4):
        for e in range(2):
            g(f"ds_read_b128 v[{16+8*hp2+4*e}:{19+8*hp2+4*e}], v{vA1} offset:{16384*hp2 + 1024*e}")
    for hp2 in range(1, 4):
        g(f"s_waitcnt lgkmcnt({6-2*hp2})")
        for c in range(8):
            g(f"v_add_f32 v{16+c}, v{16+c}, v{16+8*hp2+c}")
    g.ts(12)
    g(f"s_cmp_eq_u32 s{sT2}, s{sOH}")
    g("s_cbranch_scc1 L_OWN")
    g(f"s_lshl_b32 s{sT0}, s{sOH}, 11")
    g(f"s_add_u32 s{sT0}, s{sT0}, s{sBASE0}")
    g(f"buffer_store_dwordx4 v[16:19], v{vLANE16}, s[{sWS}:{sWS+3}], s{sT0} offen sc1")
    g(f"buffer_store_dwordx4 v[20:23], v{vLANE16}, s[{sWS}:{sWS+3}], s{sT0} offen offset:1024 sc1")
    g("s_waitcnt vmcnt(0)")
    g.flag(sT3)
    g("s_branch L_FIN")
    g.lab("L_OWN")
    g.flag(sT3)
    g("v_and_b32 v24, 31, v0")
    g("v_lshrrev_b32 v25, 5, v0")
    g("v_lshlrev_b32 v24, 11, v24")
    g(f"v_lshl_add_u32 v{vA2}, v25, 3, v24")
    g.spoll4(sBASE1)
    g.ts(13)
    for e in range(1, 4):
        g(f"s_add_u32 s{sT0}, s{sOH}, {e}")
        g(f"s_and_b32 s{sT0}, s{sT0}, 3")
        g(f"s_lshl_b32 s{sT0}, s{sT0}, 11")
        g(f"s_add_u32 s{sT0}, s{sT0}, s{sBASE0}")
        g(f"buffer_load_dwordx4 v[{16+8*e}:{19+8*e}], v{vLANE16}, s[{sWS}:{sWS+3}], s{sT0} offen sc1")
        g(f"buffer_load_dwordx4 v[{20+8*e}:{23+8*e}], v{vLANE16}, s[{sWS}:{sWS+3}], s{sT0} offen offset:1024 sc1")
    g(f"s_lshl_b32 s{sT0}, s{sRT}, 1")
    g(f"s_add_u32 s{sT0}, s{sT0}, s{sBB}")
    g(f"s_lshl_b32 s{sT0}, s{sT0}, 16")
    g(f"s_lshl_b32 s{sT1}, s{sN0}, 7")
    g(f"s_add_u32 s{sT0}, s{sT0}, s{sT1}")
    g(f"s_lshl_b32 s{sT1}, s{sHP}, 5")
    g(f"s_add_u32 s{sT0}, s{sT0}, s{sT1}")
    for e in range(1, 4):
        g(f"s_waitcnt vmcnt({6-2*e})")
        for c in range(8):
            g(f"v_add_f32 v{16+c}, v{16+c}, v{16+8*e+c}")
    for u in range(4):
        g(f"v_cvt_pk_bf16_f32 v{48+u}, v{16+2*u}, v{17+2*u}")
    g(f"buffer_store_dwordx2 v[48:49], v{vA2}, s[{sOUT}:{sOUT+3}], s{sT0} offen")
    g(f"buffer_store_dwordx2 v[50:51], v{vA2}, s[{sOUT}:{sOUT+3}], s{sT0} offen offset:16")
    g.lab("L_FIN")
    if span:
        g("s_waitcnt vmcnt(0)")
        g("s_memrealtime s[100:101]")
        g.srd(sDBG, 28, 256)
        g("s_waitcnt lgkmcnt(0)")
        g(f"s_sub_u32 s100, s100, s{sN}")
        g("v_mov_b32 v16, s100")
        g(f"s_lshl_b32 s{sT0}, s{sXCD}, 2")
        g(f"s_add_u32 s{sT0}, s{sT0}, 8")
        g(f"v_mov_b32 v17, s{sT0}")
        g("s_mov_b64 exec, 1")
        g(f"buffer_atomic_umax v16, v17, s[{sDBG}:{sDBG+3}], 0 offen")
    if debug:
        g("s_waitcnt vmcnt(0)")
        g.ts(14)
        g(f"s_lshl_b32 s{sT0}, s2, 3")
        g(f"s_add_u32 s{sT0}, s{sT0}, s{sWAVE}")
        g(f"s_lshl_b32 s{sT0}, s{sT0}, 6")
        g(f"s_add_u32 s{sT0}, s{sT0}, {TSB:#x}")
        g(f"v_mov_b32 v{vA3}, s{sT0}")
        g("s_mov_b64 exec, 1")
        for n in range(16):
            g(f"v_mov_b32 v{16+n}, s{sTS+n}")
            g(f"buffer_store_dword v{16+n}, v{vA3}, s[{sWS}:{sWS+3}], 0 offen offset:{4*n}")
    g.lab("L_END")
    g("s_endpgm")
    rare_path(g)
    g.lab("L_CODE_END")
    hdr = f"""; Fused Q-projection + sliding-window GQA attention + output projection (generated by gen/gen2.py)
; @launch grid=(256,1,1) block=(512,1,1) lds=163840
.amdgcn_target "amdgcn-amd-amdhsa--gfx950"
.text
.globl {NAME}
.p2align 8
.type {NAME},@function
{NAME}:
"""
    ftr = f"""
.section .rodata,"a"
.p2align 6
.amdhsa_kernel {NAME}
  .amdhsa_next_free_vgpr 256
  .amdhsa_next_free_sgpr 102
  .amdhsa_accum_offset 256
  .amdhsa_group_segment_fixed_size 0
  .amdhsa_kernarg_size 64
  .amdhsa_user_sgpr_count 2
  .amdhsa_user_sgpr_kernarg_segment_ptr 1
  .amdhsa_system_sgpr_workgroup_id_x 1
.end_amdhsa_kernel
"""
    return hdr + "\n".join(g.L) + ftr

if __name__ == "__main__":
    import argparse
    ap = argparse.ArgumentParser()
    ap.add_argument("-o", default="standalone__sliding_block_cached__sampling.s")
    ap.add_argument("--debug", type=int, default=0)
    ap.add_argument("--la", type=int, default=2)
    ap.add_argument("--cprio", type=int, default=1)
    ap.add_argument("--norot", action="store_true")
    ap.add_argument("--xnt", action="store_true")
    ap.add_argument("--nocodepf", action="store_true")
    ap.add_argument("--kw", default="")
    a = ap.parse_args()
    kw = eval("dict(" + a.kw + ")")
    open(a.o, "w").write(gen(debug=a.debug, LA=a.la, cprio=a.cprio, rot=not a.norot, xnt=a.xnt, codepf=not a.nocodepf, **kw))
```

```python
import struct, math, sys

NAME = "standalone__sliding_block_cached__sampling_kernel"
C_SCALE = math.log2(math.e) / math.sqrt(128.0)
def f2u(x): return struct.unpack("<I", struct.pack("<f", x))[0]
THR = 10.0

QF   = 0x0000000
OF   = 0x0200000
PO   = 0x0400000
ST   = 0x0C00000
FS   = 1152
F1   = 0x2000000
F2   = 0x2200000
F3   = 0x2300000
F4   = 0x2800000
OP   = 0x0E00000
TSB  = 0x1600000
WS_BYTES = 268435456

sXCD, sI, sWAVE, sW4, sROLE = 3, 4, 5, 6, 7
sT0, sT1, sT2, sT3 = 8, 9, 10, 11
sCNT, sLW1K, sG, sKQ = 12, 13, 14, 15
sX, sK, sV, sWQ, sWO, sOUT, sDBG, sWS = 32, 36, 40, 44, 48, 52, 56, 60
sBASE0, sBASE1, sCT, sRT = 64, 65, 66, 67
sHQ, sKV = 68, 69
sN = 70
sPA = 72
sK0 = 74
sGH = 75
sEX = 76
sRET = 78
sPD = 16
sTS = 80
sN0, sOH, sRP = 96, 97, 98
sTHR = 99

vLANE16 = 1
vKA, vVA = 2, 10
vT0, vT1 = 14, 15
vKR, vVR, vQ, vO, vS, vP, vNEG, vLS, vONE = 16, 48, 80, 112, 176, 208, 224, 240, 244
vTM, vT2 = 248, 249
vNON = 250
vA0, vA1, vA2, vA3 = 252, 253, 254, 255

class G:
    def __init__(self, debug=False, limit=1 << 21):
        self.L = []; self.debug = debug; self.nlab = 0; self.limit = limit
    def __call__(self, s): self.L.append("  " + s)
    def lab(self, s): self.L.append(s + ":")
    def newlab(self, p="L"):
        self.nlab += 1; return f"{p}_{self.nlab}"
    def ts(self, n, lvl=1):
        if self.debug == 9 and n not in (0, 14): return
        if self.debug >= 2 and lvl == 1 and 7 <= n <= 13: return
        if lvl >= 2 and self.debug != lvl: return
        if self.debug:
            self(f"s_memrealtime s[100:101]")
            self("s_waitcnt lgkmcnt(0)")
            self(f"s_mov_b32 s{sTS+n}, s100")
    def srd(self, d, p, nbytes):
        self(f"s_mov_b32 s{d}, s{p}")
        self(f"s_and_b32 s{d+1}, s{p+1}, 0xffff")
        self(f"s_mov_b32 s{d+2}, {nbytes:#x}")
        self(f"s_mov_b32 s{d+3}, 0x20000")
    def dma(self, voff, srd, sbase, soff_const, m0base, m0_const, flags=""):
        self(f"s_add_u32 m0, s{m0base}, {m0_const:#x}")
        self(f"s_add_u32 s{sT0}, s{sbase}, {soff_const:#x}")
        self(f"buffer_load_dwordx4 v{voff}, s[{srd}:{srd+3}], s{sT0} offen {flags} lds".replace("  ", " "))
    def spoll4(self, soff):
        l = self.newlab("POLL"); d = self.newlab("POLLD")
        self(f"s_add_u32 s{sPA}, s{sWS}, s{soff}")
        self(f"s_addc_u32 s{sPA+1}, s{sWS+1}, 0")
        self(f"s_mov_b32 s{sCNT}, 0")
        self.lab(l)
        self(f"s_load_dwordx8 s[{sPD}:{sPD+7}], s[{sPA}:{sPA+1}], 0 glc")
        self(f"s_add_u32 s{sCNT}, s{sCNT}, 1")
        self(f"s_cmp_ge_u32 s{sCNT}, {self.limit:#x}")
        self("s_waitcnt lgkmcnt(0)")
        self(f"s_cbranch_scc1 {d}")
        for q in range(4):
            self(f"s_cmp_eq_u64 s[{sPD+2*q}:{sPD+2*q+1}], s[{sN}:{sN+1}]")
            self(f"s_cbranch_scc0 {l}")
        self.lab(d)
    def spollN(self, soff, deltas):
        l = self.newlab("POLL"); d = self.newlab("POLLD")
        regs = [16, 24, 32, 40][:len(deltas)]
        self(f"s_add_u32 s{sPA}, s{sWS}, s{soff}")
        self(f"s_addc_u32 s{sPA+1}, s{sWS+1}, 0")
        self(f"s_mov_b32 s{sCNT}, 0")
        self.lab(l)
        for r, dl in zip(regs, deltas):
            self(f"s_load_dwordx8 s[{r}:{r+7}], s[{sPA}:{sPA+1}], {dl:#x} glc")
        self(f"s_add_u32 s{sCNT}, s{sCNT}, 1")
        self(f"s_cmp_ge_u32 s{sCNT}, {self.limit:#x}")
        self("s_waitcnt lgkmcnt(0)")
        self(f"s_cbranch_scc1 {d}")
        for r in regs:
            for q in range(4):
                self(f"s_cmp_eq_u64 s[{r+2*q}:{r+2*q+1}], s[{sN}:{sN+1}]")
                self(f"s_cbranch_scc0 {l}")
        self.lab(d)
    def flag(self, saddr):
        self(f"v_mov_b32 v{vA3}, s{saddr}")
        self(f"s_mov_b64 s[{sEX}:{sEX+1}], exec")
        self("s_mov_b64 exec, 1")
        self(f"buffer_store_dwordx2 v[{vNON}:{vNON+1}], v{vA3}, s[{sWS}:{sWS+3}], 0 offen sc1")
        self(f"s_mov_b64 exec, s[{sEX}:{sEX+1}]")
    def nonce_issue(self, glc=""):
        self(f"s_load_dwordx2 s[{sN}:{sN+1}], s[28:29], 0{glc}")
    def nonce_finish(self):
        l = self.newlab("NON"); d = self.newlab("NOND")
        self(f"s_mov_b32 s{sCNT}, 0")
        self.lab(l)
        self("s_waitcnt lgkmcnt(0)")
        self(f"s_cmp_lg_u32 s{sN}, 0")
        self(f"s_cbranch_scc1 {d}")
        self(f"s_add_u32 s{sCNT}, s{sCNT}, 1")
        self(f"s_cmp_ge_u32 s{sCNT}, {self.limit:#x}")
        self(f"s_cbranch_scc1 {d}")
        self("s_sleep 8")
        self.nonce_issue(" glc")
        self(f"s_branch {l}")
        self.lab(d)
        self(f"v_mov_b32 v{vNON}, s{sN}")
        self(f"v_mov_b32 v{vNON+1}, s{sN+1}")

def mfma(g, d, a, b, c):
    cs = "0" if c is None else f"v[{c}:{c+15}]"
    g(f"v_mfma_f32_32x32x16_bf16 v[{d}:{d+15}], v[{a}:{a+3}], v[{b}:{b+3}], {cs}")
def mfma16(g, d, a, b, c):
    cs = "0" if c is None else f"v[{c}:{c+3}]"
    g(f"v_mfma_f32_16x16x32_bf16 v[{d}:{d+3}], v[{a}:{a+3}], v[{b}:{b+3}], {cs}")

def att_setup(g):
    g("v_and_b32 v24, 31, v0")
    g("v_lshrrev_b32 v25, 5, v0")
    g("v_and_b32 v26, 15, v0")
    g("v_xor_b32 v27, v26, v25")
    g("v_lshlrev_b32 v24, 8, v24")
    for s in range(8):
        g(f"v_xor_b32 v28, {2*s}, v27")
        g(f"v_lshl_add_u32 v{vKA+s}, v28, 4, v24")
    g("v_lshrrev_b32 v28, 2, v26")
    g("v_lshl_add_u32 v29, v25, 2, v28")
    g("v_lshlrev_b32 v29, 8, v29")
    g("v_and_b32 v30, 1, v0")
    g("v_lshl_add_u32 v29, v30, 3, v29")
    g("v_add_u32 v29, 16384, v29")
    g("v_bfe_u32 v30, v0, 1, 1")
    g("v_bfe_u32 v31, v0, 4, 1")
    g("v_lshl_add_u32 v30, v31, 1, v30")
    g("v_lshlrev_b32 v28, 2, v28")
    g("v_xor_b32 v30, v30, v28")
    for dt in range(4):
        g(f"v_xor_b32 v31, {4*dt}, v30")
        g(f"v_lshl_add_u32 v{vVA+dt}, v31, 4, v29")
    mask = sum(1 << l for l in (0, 8, 32, 40, 20, 28, 52, 60))
    g(f"s_mov_b32 s{sEX}, {mask & 0xffffffff:#x}")
    g(f"s_mov_b32 s{sEX+1}, {mask >> 32:#x}")
    g(f"v_mov_b32 v28, 0x3f803f80")
    g(f"v_cndmask_b32 v{vONE}, 0, v28, s[{sEX}:{sEX+1}]")
    for u in range(1, 4): g(f"v_mov_b32 v{vONE+u}, v{vONE}")
    g(f"s_mov_b32 s{sTHR}, {f2u(THR):#x}")

BIAS = 9.0
vOR = 252
def att_loop(g, O=None):
    O = {**dict(sum="m16", e2=(10, 12), barwait=False, m16s=(9, 13)), **(O or {})}
    g.stubs = []
    kcur = [0]; vcur = [0]
    def kbase(t):
        slot = (t // 2) % 4
        want = (slot >> 1) * 65536
        r = []
        if want != kcur[0]:
            r.append(f"s_mov_b32 s{sT0}, {(want - kcur[0]) & 0xffffffff:#x}")
            for x in range(vKA, vKA+8): r.append(f"v_add_u32 v{x}, s{sT0}, v{x}")
            kcur[0] = want
        return (slot & 1) * 32768 + (t & 1) * 8192, r
    def vbase(t):
        slot = (t // 2) % 4
        want = (slot >> 1) * 65536
        r = []
        if want != vcur[0]:
            r.append(f"s_mov_b32 s{sT1}, {(want - vcur[0]) & 0xffffffff:#x}")
            for x in range(vVA, vVA+4): r.append(f"v_add_u32 v{x}, s{sT1}, v{x}")
            vcur[0] = want
        return (slot & 1) * 32768 + (t & 1) * 8192, r
    def krd(off, s, base=vKR):
        return [f"ds_read_b128 v[{base+4*s}:{base+4*s+3}], v{vKA+s} offset:{off}"]
    def vrd(off, n):
        t2, dt = n >> 2, n & 3
        b = vVR + 4*n
        return [f"ds_read_b64_tr_b16 v[{b}:{b+1}], v{vVA+dt} offset:{off + 4096*t2}",
                f"ds_read_b64_tr_b16 v[{b+2}:{b+3}], v{vVA+dt} offset:{off + 4096*t2 + 2048}"]
    def em(l):
        for x in l: g(x)
    mf = lambda d, a, b, c: f"v_mfma_f32_32x32x16_bf16 v[{d}:{d+15}], v[{a}:{a+3}], v[{b}:{b+3}], " + ("0" if c is None else f"v[{c}:{c+15}]")
    m16 = lambda d, a, b, c: f"v_mfma_f32_16x16x32_bf16 v[{d}:{d+3}], v[{a}:{a+3}], v[{b}:{b+3}], " + ("0" if c is None else f"v[{c}:{c+3}]")
    o, _ = kbase(0)
    for s in range(8): em(krd(o, s, vVR))
    o1, _ = kbase(1)
    for s in range(7): em(krd(o1, s))
    g("s_waitcnt vmcnt(0)")
    g.ts(5)
    if g.debug and g.debug != 9:
        g("s_memtime s[100:101]")
        g("s_waitcnt lgkmcnt(0)")
        g(f"s_mov_b32 s{sTS+15}, s100")
    g(f"s_waitcnt lgkmcnt(7)")
    for s in range(8):
        g(mf(vS, vVR+4*s, vQ+4*s, None if s == 0 else vS))
        if s == 0: em(krd(o1, 7))
    g(f"s_mov_b32 s{sT0}, {f2u(BIAS):#x}")
    if O["sum"] != "m16":
        g(f"v_mov_b32 v{vLS}, 0"); g(f"v_mov_b32 v{vLS+1}, 0")
    NT = 16
    tmp = [(vT0, vT1), (vTM, vT2)]
    for t in range(0, NT + 1):
        Sc = vS + 16*(t & 1); Sn = vS + 16*((t+1) & 1)
        Pc = vP + 8*(t & 1); Pp = vP + 8*((t-1) & 1)
        doS = t + 1 < NT; doPV = t >= 1; doSM = t < NT; doK = t + 2 < NT
        pre = [[] for _ in range(16)]; M = [[] for _ in range(16)]; D = [[] for _ in range(16)]; V = [[] for _ in range(16)]
        if t == 16: break
        if t == 15:
            vo, bump = vbase(15)
            assert not bump
            pre[0].append("s_waitcnt lgkmcnt(8)")
            pre[4].append("s_waitcnt lgkmcnt(6)")
            pre[8].append("s_waitcnt lgkmcnt(8)")
            pre[12].append("s_waitcnt lgkmcnt(0)")
            for n in range(8):
                dt = n & 3; t2 = n >> 2
                M[n].append(mf(vO+16*dt, vVR+4*n, Pp+4*t2, vO+16*dt))
                D[n] += vrd(vo, n)
                M[8+n].append(mf(vO+16*dt, vVR+4*n, Pc+4*t2, vO+16*dt))
            if O["sum"] == "m16":
                M[1].append(m16(vLS, vONE, Pp, vLS)); M[5].append(m16(vLS, vONE, Pp+4, vLS))
                M[9].append(m16(vLS, vONE, Pc, vLS)); M[13].append(m16(vLS, vONE, Pc+4, vLS))
        elif doPV:
            vo, bump = vbase(t-1)
            pre[0] += bump
            for n in range(8): D[n] += vrd(vo, n)
            for n in range(8):
                dt = n & 3; t2 = n >> 2
                M[8+n].append(mf(vO+16*dt, vVR+4*n, Pp+4*t2, None if (t == 1 and t2 == 0) else vO+16*dt))
            if O["sum"] == "m16":
                M[O["m16s"][0]].append(m16(vLS, vONE, Pp, None if t == 1 else vLS))
                M[O["m16s"][1]].append(m16(vLS, vONE, Pp+4, vLS))
            pre[8].append("s_waitcnt lgkmcnt(8)")
            pre[12].append(f"s_waitcnt lgkmcnt({4 if doK else 6})")
        if t < 15: pre[4].append(f"s_waitcnt lgkmcnt({6 if doPV else 0})")
        if doS:
            pre[0].append("s_waitcnt lgkmcnt(4)")
            for s in range(8): M[s].append(mf(Sn, vKR+4*s, vQ+4*s, (None if t == 0 else vNEG) if s == 0 else Sn))
        if t % 2 == 0 and t <= 14:
            if O["barwait"] or t == 14: D[8].append("s_waitcnt lgkmcnt(0)")
            if t >= 2 and g.debug == 2:
                D[8] += ["s_memrealtime s[100:101]", "s_waitcnt lgkmcnt(0)", f"s_mov_b32 s{sTS+6+t//2}, s100"]
            D[8].append("s_barrier")
        if t == 14:
            vo, bump = vbase(14)
            D[8] += bump
            for n in range(8): D[8+n] += vrd(vo, n)
        if doK:
            ko, bump = kbase(t+2)
            D[8] += bump
            for n in range(8): D[8+n] += krd(ko, n)
        if doSM:
            if t == 0:
                V[2] += ["s_nop 7"]
                V[3] += [f"v_max3_f32 v{vTM}, v{vS}, v{vS+1}, v{vS+2}", f"v_max3_f32 v{vT2}, v{vS+3}, v{vS+4}, v{vS+5}",
                         f"v_max3_f32 v{vTM}, v{vS+6}, v{vS+7}, v{vTM}", f"v_max3_f32 v{vT2}, v{vS+8}, v{vS+9}, v{vT2}"]
                V[4] += [f"v_max3_f32 v{vTM}, v{vS+10}, v{vS+11}, v{vTM}", f"v_max3_f32 v{vT2}, v{vS+12}, v{vS+13}, v{vT2}",
                         f"v_max3_f32 v{vTM}, v{vS+14}, v{vS+15}, v{vTM}", f"v_max_f32 v{vTM}, v{vT2}, v{vTM}",
                         f"v_add_f32 v{vTM}, s{sT0}, v{vTM}", f"v_mov_b32 v{vT2}, v{vTM}"]
                V[5] += ["s_nop 0", f"v_permlane32_swap_b32 v{vTM}, v{vT2}", "s_nop 1", f"v_max_f32 v{vTM}, v{vTM}, v{vT2}",
                         f"v_sub_f32 v{vNEG}, 0, v{vTM}"]
                slots = [6, 6, 7, 7] + [8 + k//2 for k in range(12)]
                for u in range(1, 16): V[8 + min(6, (u-1)//2)].append(f"v_mov_b32 v{vNEG+u}, v{vNEG}")
            elif t == 15:
                slots = [0, 0, 0, 1, 1, 2, 2, 2, 3, 3, 4, 4, 4, 5, 5, 6]
            else:
                slots = []
                for sl in range(14):
                    slots.append(sl)
                    if sl in O["e2"]: slots.append(sl)
            assert len(slots) == 16
            for e in range(16):
                T = tmp[(e >> 1) & 1][e & 1]
                if t <= 1:
                    V[slots[e]].append(f"v_add_f32 v{Sc+e}, v{Sc+e}, v{vNEG}")
                V[slots[e]].append(f"v_exp_f32 v{T}, v{Sc+e}")
            for u in range(8):
                sl = slots[2*u+1] + 1
                a, b = tmp[u & 1]
                ins = []
                if O["sum"] == "add":
                    ins += [f"v_add_f32 v{vLS}, v{vLS}, v{a}", f"v_add_f32 v{vLS+1}, v{vLS+1}, v{b}"]
                if O["sum"] == "pk":
                    ins += [f"v_pk_add_f32 v[{vLS}:{vLS+1}], v[{vLS}:{vLS+1}], v[{a}:{b}]"]
                ins.append(f"v_cvt_pk_bf16_f32 v{Pc+u}, v{a}, v{b}")
                V[sl] = ins + V[sl]
                if O["sum"] == "dot":
                    V[sl].append(f"v_dot2c_f32_bf16 v{vLS + (u & 1)}, v{Pc+u}, v{vONE}")
                if u & 1 and t > 0:
                    orr = f"v_or_b32 v{vOR}, v{Pc}, v{Pc+1}" if u == 1 else f"v_or3_b32 v{vOR}, v{Pc+u-1}, v{Pc+u}, v{vOR}"
                    V[sl].append(orr)
            if t > 0:
                cs = 7 if t == 15 else 14
                V[cs].append(f"v_and_b32 v{vOR}, 0x40004000, v{vOR}")
                V[cs].append(f"v_cmp_ne_u32 vcc, 0, v{vOR}")
        for sl in range(16):
            em(pre[sl]); em(M[sl]); em(D[sl])
            if not M[sl] and not D[sl] and V[sl]: g("s_nop 0")
            em(V[sl])
            if doSM and t > 0 and sl == (7 if t == 15 else 15):
                st = g.newlab("RS"); bk = g.newlab("RB")
                g(f"s_cbranch_vccnz {st}")
                g.lab(bk)
                g.stubs.append((st, bk, t & 1))
    if O["sum"] != "m16":
        g(f"v_add_f32 v{vLS}, v{vLS}, v{vLS+1}")
        g(f"v_mov_b32 v{vT2}, v{vLS}")
        g("s_nop 1")
        g(f"v_permlane32_swap_b32 v{vLS}, v{vT2}")
        g("s_nop 1")
        g(f"v_add_f32 v{vLS}, v{vLS}, v{vT2}")

def rare_path(g, O=None):
    for st, bk, par in g.stubs:
        g.lab(st)
        g(f"s_call_b64 s[{sRET}:{sRET+1}], L_RARE{par}")
        g(f"s_branch {bk}")
    for par in range(2):
        g.lab(f"L_RARE{par}")
        Sc = vS + 16*par; Sn = vS + 16*(par ^ 1); Pc = vP + 8*par
        g("s_nop 15")
        g(f"v_max3_f32 v{vTM}, v{Sc}, v{Sc+1}, v{Sc+2}")
        for u in range(6): g(f"v_max3_f32 v{vTM}, v{Sc+3+2*u}, v{Sc+4+2*u}, v{vTM}")
        g(f"v_max_f32 v{vTM}, v{Sc+15}, v{vTM}")
        g(f"v_add_f32 v{vTM}, {f2u(BIAS):#x}, v{vTM}")
        g(f"v_mov_b32 v{vT2}, v{vTM}")
        g("s_nop 1")
        g(f"v_permlane32_swap_b32 v{vTM}, v{vT2}")
        g("s_nop 1")
        g(f"v_max3_f32 v{vTM}, v{vTM}, v{vT2}, 0")
        g(f"v_ceil_f32 v{vTM}, v{vTM}")
        g(f"v_sub_f32 v{vT2}, 0, v{vTM}")
        g(f"v_exp_f32 v{vT2}, v{vT2}")
        for u in range(16): g(f"v_sub_f32 v{Sc+u}, v{Sc+u}, v{vTM}")
        for u in range(16): g(f"v_sub_f32 v{Sn+u}, v{Sn+u}, v{vTM}")
        for u in range(16): g(f"v_sub_f32 v{vNEG+u}, v{vNEG+u}, v{vTM}")
        for u in range(64): g(f"v_mul_f32 v{vO+u}, v{vO+u}, v{vT2}")
        g(f"v_mul_f32 v{vLS}, v{vLS}, v{vT2}")
        for u in range(8):
            g(f"v_exp_f32 v{vT0}, v{Sc+2*u}")
            g(f"v_exp_f32 v{vT1}, v{Sc+2*u+1}")
            g("s_nop 0")
            g(f"v_cvt_pk_bf16_f32 v{Pc+u}, v{vT0}, v{vT1}")
        g("s_nop 1")
        g(f"s_setpc_b64 s[{sRET}:{sRET+1}]")

def gen(debug=False, LA=2, cprio=1, rot=True, xnt=False, codepf=True, early={5: 1, 6: 2}, nq1=1, bflag='', pfflag='', kvflag='nt', wqflag='', span=False, f3wave=True, aprio=False, pffront={}, outflag='', pw2=0, pfplan={6: 8}, bplan={7: (0, 1), 8: (2, 3)}):
    g = G(debug=debug)
    qslot = lambda k: 1 + k % 4
    g("s_cmp_ge_u32 s2, 256")
    g("s_cbranch_scc1 L_END")
    g("s_load_dwordx16 s[16:31], s[0:1], 0")
    g(f"s_and_b32 s{sXCD}, s2, 7")
    g(f"s_lshr_b32 s{sI}, s2, 3")
    g("v_lshrrev_b32 v1, 6, v0")
    g("v_and_b32 v0, 63, v0")
    g(f"v_readfirstlane_b32 s{sWAVE}, v1")
    g(f"v_lshlrev_b32 v{vLANE16}, 4, v0")
    g(f"s_and_b32 s{sT0}, s{sI}, 7")
    g(f"s_lshl_b32 s{sCT}, s{sXCD}, 3")
    g(f"s_add_u32 s{sCT}, s{sCT}, s{sT0}")
    g(f"s_lshr_b32 s{sRT}, s{sI}, 3")
    g(f"s_lshl_b32 s{sK0}, s{sRT}, 1")
    g(f"s_add_u32 s{sK0}, s{sK0}, s{sT0}")
    if not rot: g(f"s_mov_b32 s{sK0}, 0")
    g(f"s_lshl_b32 s{sG}, s{sXCD}, 2")
    g(f"s_add_u32 s{sG}, s{sG}, s{sRT}")
    g(f"s_and_b32 s{sKQ}, s{sI}, 3")
    g(f"s_bfe_u32 s{sHQ}, s{sI}, 0x10002")
    g(f"s_lshl_b32 s{sGH}, s{sG}, 1")
    g(f"s_add_u32 s{sGH}, s{sGH}, s{sHQ}")
    g(f"s_and_b32 s{sW4}, s{sWAVE}, 3")
    g(f"s_lshr_b32 s{sROLE}, s{sWAVE}, 2")
    g(f"s_lshl_b32 s{sLW1K}, s{sW4}, 10")
    g(f"s_lshr_b32 s{sOH}, s{sXCD}, 1")
    g(f"s_and_b32 s{sN0}, s{sXCD}, 1")
    g(f"s_lshl_b32 s{sN0}, s{sN0}, 3")
    g(f"s_add_u32 s{sN0}, s{sN0}, s{sT0}")
    g("s_waitcnt lgkmcnt(0)")
    g.srd(sWQ, 22, 1024*4096*2)
    g.srd(sX, 16, 8*32*1024*2)
    g(f"s_cmp_eq_u32 s{sROLE}, 0")
    g("s_cbranch_scc1 L_CWAVE")

    vXO, vWQO, vKO, vVO, vWOO = 16, 17, 18, 19, 20
    g("v_lshrrev_b32 v21, 4, v0")
    g(f"s_lshl_b32 s{sT1}, s{sW4}, 2")
    g(f"v_add_u32 v22, s{sT1}, v21")
    g("v_and_b32 v23, 15, v0")
    g("v_xor_b32 v24, v23, v22")
    g("v_lshlrev_b32 v24, 4, v24")
    g(f"v_lshl_add_u32 v{vXO}, v22, 11, v24")
    g("v_lshrrev_b32 v25, 3, v0")
    g("v_and_b32 v26, 7, v0")
    g("v_lshlrev_b32 v27, 1, v25")
    g("v_and_b32 v27, 4, v27")
    g("v_xor_b32 v26, v26, v27")
    g("v_lshlrev_b32 v26, 4, v26")
    g(f"v_lshl_add_u32 v{vWQO}, v25, 13, v26")
    g(f"s_lshl_b32 s{sBASE0}, s{sRT}, 17")
    g(f"s_lshl_b32 s{sBASE1}, s{sCT}, 7")
    g(f"s_lshl_b32 s{sT1}, s{sW4}, 16")
    g(f"s_add_u32 s{sBASE1}, s{sBASE1}, s{sT1}")
    Q = []
    def need(*tags):
        last = max(i for i, x in enumerate(Q) if x in tags)
        g(f"s_waitcnt vmcnt({len(Q) - 1 - last})")
    def stage(k):
        slot = qslot(k) * 32768
        g(f"s_add_u32 s{sT1}, s{sK0}, {k}")
        g(f"s_and_b32 s{sT1}, s{sT1}, 7")
        g(f"s_lshl_b32 s{sT2}, s{sT1}, 20")
        g(f"s_add_u32 s{sT2}, s{sT2}, s{sBASE1}")
        g(f"s_lshl_b32 s{sT3}, s{sT1}, 8")
        g(f"s_add_u32 s{sT3}, s{sT3}, s{sBASE0}")
        for m in range(4):
            g.dma(vWQO, sWQ, sT2, 32*m*8192, sLW1K, slot + 16384 + 4096*m, wqflag)
            g.dma(vXO, sX, sT3, m*16*2048, sLW1K, slot + 4096*m, "nt" if xnt else "")
            Q.extend([f"S{k}"] * 2)
    def kpart(s):
        for m in range(4):
            g.dma(vKO, sK, sKV, (64*s + 16*m) * 256, sLW1K, (s % 4)*32768 + 4096*m, kvflag)
            Q.append(f"K{s}")
    def vpart(s):
        for m in range(4):
            g.dma(vVO, sV, sKV, (64*s + 16*m) * 256, sLW1K, (s % 4)*32768 + 16384 + 4096*m, kvflag)
            Q.append(f"V{s}")
    def part(tag):
        (kpart if tag[0] == "K" else vpart)(int(tag[1]))
    for k in range(LA): stage(k)
    g.ts(0)
    g.srd(sK, 18, 8*4*8192*128*2)
    g.srd(sV, 20, 8*4*8192*128*2)
    g.srd(sWO, 24, 4096*1024*2)
    g.srd(sOUT, 26, 8*32*1024*2)
    g.srd(sWS, 30, WS_BYTES)
    g(f"v_lshl_add_u32 v{vKO}, v22, 8, v24")
    g("v_lshlrev_b32 v28, 2, v21")
    g("v_xor_b32 v28, v23, v28")
    g("v_lshlrev_b32 v28, 4, v28")
    g(f"v_lshl_add_u32 v{vVO}, v22, 8, v28")
    g(f"v_lshl_add_u32 v{vWOO}, v25, 11, v26")
    g(f"s_lshl_b32 s{sKV}, s{sG}, 21")
    g(f"s_lshl_b32 s{sT1}, s{sKQ}, 17")
    g(f"s_add_u32 s{sKV}, s{sKV}, s{sT1}")
    g(f"s_add_u32 s{sKV}, s{sKV}, {6144*256:#x}")
    sPF = sCT
    g(f"s_lshl_b32 s{sPF}, s{sOH}, 21")
    g(f"s_lshl_b32 s{sT1}, s{sW4}, 14")
    g(f"s_add_u32 s{sPF}, s{sPF}, s{sT1}")
    g(f"s_lshl_b32 s{sT1}, s{sI}, 16")
    g(f"s_add_u32 s{sPF}, s{sPF}, s{sT1}")
    g(f"s_and_b32 s{sT1}, s{sXCD}, 1")
    g(f"s_lshl_b32 s{sT1}, s{sT1}, 10")
    g(f"s_add_u32 s{sPF}, s{sPF}, s{sT1}")
    npf = [0]
    def wopf(n):
        for _ in range(n):
            g(f"s_add_u32 s{sT0}, s{sPF}, {npf[0]*2048:#x}")
            g(f"buffer_load_dwordx4 v[32:35], v{vLANE16}, s[{sWO}:{sWO+3}], s{sT0} offen {pfflag}")
            Q.append("PF"); npf[0] += 1
    order = ["K0", "K1", "V0"] + [x for s_ in range(1, 8) for x in ([f"K{s_+1}"] if s_ < 7 else []) + [f"V{s_}"]]
    todo = list(order)
    def issue(n):
        for _ in range(n):
            if todo: part(todo.pop(0))
    for k in range(8):
        need(f"S{k}")
        if k >= 1: g.ts(6 + k, 5)
        g("s_barrier")
        if k == 0: g.ts(1)
        if k + LA < 8: stage(k + LA)
        wopf(pffront.get(k, 0))
        issue(early.get(k, 0))
    g.ts(2)
    g.nonce_issue()
    g(f"s_lshl_b32 s{sBASE0}, s{sOH}, 21")
    g(f"s_lshl_b32 s{sT1}, s{sW4}, 14")
    g(f"s_add_u32 s{sBASE0}, s{sBASE0}, s{sT1}")
    g(f"s_lshl_b32 s{sT1}, s{sN0}, 7")
    g(f"s_add_u32 s{sBASE0}, s{sBASE0}, s{sT1}")
    def bpart(pos):
        slot = [4, 0, 1, 2][pos]
        g(f"s_add_u32 s{sT1}, s{sRT}, {pos}")
        g(f"s_and_b32 s{sT1}, s{sT1}, 3")
        g(f"s_lshl_b32 s{sT1}, s{sT1}, 19")
        g(f"s_add_u32 s{sT1}, s{sT1}, s{sBASE0}")
        for m in range(8):
            g.dma(vWOO, sWO, sT1, 32*m*2048, sLW1K, slot*32768 + 4096*m, bflag)
            Q.append(f"B{pos}")
    g.nonce_finish()
    g("s_barrier")
    g.ts(3)
    issue(nq1)
    g("s_barrier")
    g.ts(4)
    while len(order) - len(todo) < 3: issue(1)
    need("K0")
    g("s_barrier")
    g.ts(5)
    for s in range(0, 8):
        lim = order.index(f"V{s+1}") + 1 if s + 1 <= 7 else len(order)
        while len(order) - len(todo) < lim: issue(1)
        wopf(pfplan.get(s, 0))
        for pos in bplan.get(s, ()): bpart(pos)
        if s < 7: need(f"K{s+1}", f"V{s}")
        else: need("V7")
        if s >= 1: g.ts(6 + s, 2)
        g("s_barrier")
    g.ts(11, 3)
    for pos in bplan.get(8, ()): bpart(pos)
    if 9 in bplan:
        g("s_barrier")
        wopf(pfplan.get(9, 0))
        for pos in bplan[9]: bpart(pos)
    g.ts(6)
    if g.debug == 3:
        g("s_waitcnt vmcnt(16)"); g.ts(12, 3)
        g("s_waitcnt vmcnt(0)"); g.ts(13, 3)
    g("s_branch L_BACK")

    g.lab("L_CWAVE")
    g.srd(sWS, 30, WS_BYTES)
    g.srd(sDBG, 28, 256)
    g(f"s_or_b32 s{sT0}, s2, s{sWAVE}")
    g(f"s_cmp_lg_u32 s{sT0}, 0")
    g("s_cbranch_scc1 L_NOPUB")
    g(f"s_memrealtime s[{sN}:{sN+1}]")
    g("s_waitcnt lgkmcnt(0)")
    g(f"s_or_b32 s{sN}, s{sN}, 1")
    g(f"s_xor_b32 s{sN+1}, s{sN+1}, 0x5bd1e995")
    g(f"v_mov_b32 v{vNON}, s{sN}")
    g(f"v_mov_b32 v{vNON+1}, s{sN+1}")
    g(f"v_mov_b32 v{vA3}, 0")
    g(f"buffer_store_dwordx2 v[{vNON}:{vNON+1}], v{vA3}, s[{sDBG}:{sDBG+3}], 0 offen sc1")
    g.lab("L_NOPUB")
    if codepf:
        g(f"s_cmp_lg_u32 s{sWAVE}, 1")
        g("s_cbranch_scc1 L_NOPF")
        g(f"s_getpc_b64 s[{sPA}:{sPA+1}]")
        g.lab("L_PC")
        g(f"s_lshl_b32 s{sT0}, s{sI}, 10")
        g(f"s_min_u32 s{sT0}, s{sT0}, L_CODE_END-L_PC-1024")
        g(f"v_add_u32 v{vA0}, s{sT0}, v{vLANE16}")
        g(f"global_load_dwordx4 v[{vS}:{vS+3}], v{vA0}, s[{sPA}:{sPA+1}]")
        g.lab("L_NOPF")
    g.ts(0)
    g.srd(sOUT, 26, 8*32*1024*2)
    g(f"s_and_b32 s{sT0}, s{sW4}, 1")
    g(f"s_lshl_b32 s{sT0}, s{sT0}, 13")
    g("v_and_b32 v20, 31, v0")
    g("v_lshrrev_b32 v21, 5, v0")
    g("v_and_b32 v22, 15, v0")
    g("v_xor_b32 v22, v22, v21")
    g(f"v_lshlrev_b32 v23, 8, v20")
    g(f"v_add_u32 v23, s{sT0}, v23")
    for s in range(8):
        g(f"v_xor_b32 v24, {2*s}, v22")
        g(f"v_lshl_add_u32 v{vKA+s}, v24, 4, v23")
    g("v_and_b32 v20, 15, v0")
    g("v_lshrrev_b32 v22, 2, v20")
    g("v_lshl_add_u32 v23, v21, 3, v22")
    g("v_lshlrev_b32 v23, 7, v23")
    g("v_and_b32 v24, 1, v0")
    g("v_bfe_u32 v25, v0, 4, 1")
    g("v_lshl_add_u32 v24, v25, 1, v24")
    g(f"s_lshr_b32 s{sT0}, s{sW4}, 1")
    g(f"s_lshl_b32 s{sT0}, s{sT0}, 2")
    g(f"v_add_u32 v24, s{sT0}, v24")
    g("v_lshlrev_b32 v26, 1, v22")
    g("v_and_b32 v26, 4, v26")
    g("v_xor_b32 v24, v24, v26")
    g("v_lshl_add_u32 v23, v24, 4, v23")
    g("v_bfe_u32 v25, v0, 1, 1")
    g(f"v_lshl_add_u32 v{vVA}, v25, 3, v23")
    g(f"v_add_u32 v{vVA}, 16384, v{vVA}")
    acc = vO
    fr = 16
    cur = [0]
    def setbase(regs, want):
        if want != cur[0]:
            g(f"s_mov_b32 s{sT0}, {(want - cur[0]) & 0xffffffff:#x}")
            for r in regs: g(f"v_add_u32 v{r}, s{sT0}, v{r}")
            cur[0] = want
    for k in range(8):
        slot = qslot(k)
        setbase(list(range(vKA, vKA+8)) + [vVA], (slot >> 1) * 65536)
        io = (slot & 1) * 32768
        if k >= 1: g.ts(6 + k, 5)
        g("s_barrier")
        if k == 0: g.ts(1)
        def rd(s):
            b = fr + 8*s
            g(f"ds_read_b64_tr_b16 v[{b}:{b+1}], v{vVA} offset:{io + 2048*s}")
            g(f"ds_read_b64_tr_b16 v[{b+2}:{b+3}], v{vVA} offset:{io + 2048*s + 512}")
            g(f"ds_read_b128 v[{b+4}:{b+7}], v{vKA+s} offset:{io}")
        for s in range(5): rd(s)
        for s in range(8):
            g(f"s_waitcnt lgkmcnt({min(4, 7 - s) * 3})")
            mfma(g, acc, fr + 8*s, fr + 8*s + 4, None if (k == 0 and s == 0) else acc)
            if s + 5 < 8: rd(s + 5)
    g.ts(2)
    g.nonce_issue()
    g(f"s_and_b32 s{sT0}, s{sW4}, 1")
    g(f"s_lshl_b32 s{sT1}, s{sRT}, 1")
    g(f"s_add_u32 s{sT1}, s{sT1}, s{sT0}")
    g(f"s_lshl_b32 s{sT1}, s{sT1}, 5")
    g(f"s_lshr_b32 s{sT2}, s{sCT}, 1")
    g(f"s_add_u32 s{sT1}, s{sT1}, s{sT2}")
    g(f"s_and_b32 s{sT2}, s{sCT}, 1")
    g(f"s_lshl_b32 s{sT2}, s{sT2}, 1")
    g(f"s_lshr_b32 s{sT3}, s{sW4}, 1")
    g(f"s_add_u32 s{sT2}, s{sT2}, s{sT3}")
    g(f"s_lshl_b32 s{sBASE0}, s{sT1}, 13")
    g(f"s_lshl_b32 s{sT3}, s{sT2}, 11")
    g(f"s_add_u32 s{sBASE0}, s{sBASE0}, s{sT3}")
    g(f"s_mul_i32 s{sBASE1}, s{sT1}, {FS}")
    g(f"s_lshl_b32 s{sT3}, s{sT2}, 3")
    g(f"s_add_u32 s{sBASE1}, s{sBASE1}, s{sT3}")
    g(f"s_add_u32 s{sBASE1}, s{sBASE1}, {F1:#x}")
    g(f"s_mov_b32 s{sT0}, {f2u(C_SCALE):#x}")
    for u in range(16):
        g(f"v_mul_f32 v{acc+u}, s{sT0}, v{acc+u}")
    for u in range(8):
        g(f"v_cvt_pk_bf16_f32 v{16+u}, v{acc+2*u}, v{acc+2*u+1}")
    g(f"buffer_store_dwordx4 v[16:19], v{vLANE16}, s[{sWS}:{sWS+3}], s{sBASE0} offen sc1")
    g(f"buffer_store_dwordx4 v[20:23], v{vLANE16}, s[{sWS}:{sWS+3}], s{sBASE0} offen offset:1024 sc1")
    att_setup(g)
    g(f"s_lshl_b32 s{sT2}, s{sGH}, 2")
    g(f"s_add_u32 s{sT2}, s{sT2}, s{sW4}")
    g(f"s_lshl_b32 s{sBASE0}, s{sT2}, 13")
    g(f"s_mul_i32 s{sT2}, s{sT2}, {FS}")
    g(f"s_add_u32 s{sT2}, s{sT2}, {F1:#x}")
    g.nonce_finish()
    g("s_waitcnt vmcnt(0)")
    g.flag(sBASE1)
    g("s_barrier")
    g.ts(3)
    g.spoll4(sT2)
    g.ts(4)
    for s in range(8):
        if s == 4: g(f"s_add_u32 s{sBASE0}, s{sBASE0}, 4096")
        g(f"buffer_load_dwordx4 v[{vQ+4*s}:{vQ+4*s+3}], v{vLANE16}, s[{sWS}:{sWS+3}], s{sBASE0} offen offset:{1024*(s&3)} sc1")
    g("s_barrier")
    if cprio: g(f"s_setprio {cprio}")
    g("s_barrier")
    att_loop(g)
    g.ts(6)
    if g.debug and g.debug != 9:
        g("s_memtime s[100:101]")
        g("s_waitcnt lgkmcnt(0)")
        g(f"s_sub_u32 s{sTS+15}, s100, s{sTS+15}")
    if cprio: g("s_setprio 0")
    LSC = 98304
    g(f"s_lshl_b32 s{sBASE0}, s{sGH}, 17")
    g(f"s_lshl_b32 s{sT0}, s{sW4}, 13")
    g(f"s_add_u32 s{sBASE0}, s{sBASE0}, s{sT0}")
    g(f"s_lshl_b32 s{sT0}, s{sKQ}, 10")
    g(f"s_add_u32 s{sBASE0}, s{sBASE0}, s{sT0}")
    g(f"s_add_u32 s{sBASE0}, s{sBASE0}, {PO:#x}")
    g(f"s_lshl_b32 s{sT1}, s{sGH}, 2")
    g(f"s_add_u32 s{sT1}, s{sT1}, s{sW4}")
    g(f"s_lshl_b32 s{sT2}, s{sT1}, 10")
    g(f"s_lshl_b32 s{sT3}, s{sKQ}, 8")
    g(f"s_add_u32 s{sT2}, s{sT2}, s{sT3}")
    g(f"s_add_u32 s{sT2}, s{sT2}, {ST:#x}")
    g(f"v_and_b32 v{vA0}, 31, v0")
    g(f"v_lshlrev_b32 v{vA0}, 3, v{vA0}")
    g(f"s_lshl_b32 s{sT3}, s{sW4}, 11")
    g(f"s_add_u32 s{sT3}, s{sT3}, {LSC}")
    g(f"v_add_u32 v{vA1}, s{sT3}, v{vLANE16}")
    g(f"s_lshl_b32 s{sT3}, s{sW4}, 8")
    g(f"s_add_u32 s{sT3}, s{sT3}, {LSC + 8192}")
    g(f"v_add_u32 v{vA2}, s{sT3}, v{vA0}")
    g(f"v_sub_f32 v{vT0}, 0, v{vNEG}")
    for o in range(4):
        for fi in range(2):
            f = 2*o + fi; src = vO + 8*f; dst = vKR + 4*f
            for u in range(4):
                g(f"v_cvt_pk_bf16_f32 v{dst+u}, v{src+2*u}, v{src+2*u+1}")
        lo = g.newlab("LOC"); nx = g.newlab("NXT")
        dst = vKR + 8*o
        g(f"s_cmp_eq_u32 s{sKQ}, {o}")
        g(f"s_cbranch_scc1 {lo}")
        g(f"s_add_u32 s{sT0}, s{sBASE0}, {o*32768:#x}")
        g(f"s_add_u32 s{sT3}, s{sBASE0}, {o*32768 + 4096:#x}")
        g(f"buffer_store_dwordx4 v[{dst}:{dst+3}], v{vLANE16}, s[{sWS}:{sWS+3}], s{sT0} offen sc1")
        g(f"buffer_store_dwordx4 v[{dst+4}:{dst+7}], v{vLANE16}, s[{sWS}:{sWS+3}], s{sT3} offen sc1")
        g(f"s_branch {nx}")
        g.lab(lo)
        g(f"ds_write_b128 v{vA1}, v[{dst}:{dst+3}]")
        g(f"ds_write_b128 v{vA1}, v[{dst+4}:{dst+7}] offset:1024")
        g.lab(nx)
        if o == 0:
            g(f"v_mov_b32 v{vT1}, v{vLS}")
            g(f"buffer_store_dwordx2 v[{vT0}:{vT1}], v{vA0}, s[{sWS}:{sWS+3}], s{sT2} offen sc1")
            g(f"ds_write_b64 v{vA2}, v[{vT0}:{vT1}]")
    if 9 in bplan: g("s_barrier")

    g.lab("L_BACK")
    sBB, sHP = sCT, sK0
    g(f"s_and_b32 s{sBB}, s{sWAVE}, 1")
    g(f"s_lshr_b32 s{sHP}, s{sWAVE}, 1")
    g(f"s_sub_u32 s{sT0}, s{sHP}, s{sRT}")
    g(f"s_and_b32 s{sT0}, s{sT0}, 3")
    g(f"s_sub_u32 s{sT2}, s{sT0}, 1")
    g(f"s_cmp_eq_u32 s{sT0}, 0")
    g(f"s_cselect_b32 s{sT2}, 4, s{sT2}")
    g(f"s_lshl_b32 s{sT2}, s{sT2}, 15")
    g("v_lshrrev_b32 v4, 5, v0")
    g("v_bfe_u32 v5, v0, 2, 2")
    g("v_lshl_add_u32 v6, v4, 2, v5")
    g("v_lshlrev_b32 v6, 7, v6")
    g("v_and_b32 v7, 1, v0")
    g("v_lshl_add_u32 v6, v7, 3, v6")
    g(f"v_add_u32 v6, s{sT2}, v6")
    g("v_bfe_u32 v7, v0, 1, 1")
    g("v_bfe_u32 v8, v0, 4, 1")
    g("v_lshl_add_u32 v7, v8, 1, v7")
    g("v_lshlrev_b32 v5, 1, v5")
    g("v_and_b32 v5, 4, v5")
    g("v_xor_b32 v7, v7, v5")
    g(f"v_lshl_add_u32 v{vKA}, v7, 4, v6")
    g("v_xor_b32 v7, 4, v7")
    g(f"v_lshl_add_u32 v{vKA+1}, v7, 4, v6")
    g(f"s_lshl_b32 s{sT1}, s{sGH}, 2")
    g(f"s_add_u32 s{sT1}, s{sT1}, s{sW4}")
    g(f"s_lshl_b32 s{sBASE1}, s{sT1}, 10")
    g(f"s_add_u32 s{sBASE1}, s{sBASE1}, {ST:#x}")
    g(f"s_lshl_b32 s{sBASE0}, s{sGH}, 17")
    g(f"s_lshl_b32 s{sT0}, s{sKQ}, 15")
    g(f"s_add_u32 s{sBASE0}, s{sBASE0}, s{sT0}")
    g(f"s_lshl_b32 s{sT0}, s{sW4}, 13")
    g(f"s_add_u32 s{sBASE0}, s{sBASE0}, s{sT0}")
    g(f"s_lshl_b32 s{sT0}, s{sROLE}, 12")
    g(f"s_add_u32 s{sBASE0}, s{sBASE0}, s{sT0}")
    g(f"s_add_u32 s{sBASE0}, s{sBASE0}, {PO:#x}")
    g(f"v_and_b32 v{vA0}, 31, v0")
    g(f"v_lshlrev_b32 v{vA0}, 3, v{vA0}")
    g(f"s_lshl_b32 s{sT0}, s{sW4}, 11")
    g(f"s_lshl_b32 s{sT2}, s{sROLE}, 10")
    g(f"s_add_u32 s{sT0}, s{sT0}, s{sT2}")
    g(f"s_add_u32 s{sT0}, s{sT0}, {LSC}")
    g(f"v_add_u32 v{vA1}, s{sT0}, v{vLANE16}")
    g(f"s_lshl_b32 s{sT0}, s{sW4}, 8")
    g(f"s_add_u32 s{sT0}, s{sT0}, {LSC + 8192}")
    g(f"v_add_u32 v{vA2}, s{sT0}, v{vA0}")
    g(f"s_mul_i32 s{sT2}, s{sGH}, {FS}")
    g(f"s_add_u32 s{sT2}, s{sT2}, {F2:#x}")
    g(f"s_lshl_b32 s{sT3}, s{sKQ}, 3")
    g(f"s_add_u32 s{sT3}, s{sT3}, s{sT2}")
    g("s_waitcnt vmcnt(0) lgkmcnt(0)")
    g.ts(7)
    g("s_barrier")
    g.ts(7, 4)
    g(f"s_cmp_lg_u32 s{sWAVE}, {pw2}")
    g("s_cbranch_scc1 L_NOF2")
    g.flag(sT3)
    g.lab("L_NOF2")
    g(f"ds_read_b64 v[16:17], v{vA2}")
    g(f"ds_read_b128 v[48:51], v{vA1}")
    vB = 112
    cnt = 0
    for n in range(16):
        for nt in range(2):
            b = vB + (n*2+nt)*4
            g(f"ds_read_b64_tr_b16 v[{b}:{b+1}], v{vKA+nt} offset:{2048*n}")
            g(f"ds_read_b64_tr_b16 v[{b+2}:{b+3}], v{vKA+nt} offset:{2048*n+1024}")
            cnt += 2
            if cnt % 8 == 0: g("s_waitcnt lgkmcnt(5)")
    g("s_waitcnt lgkmcnt(0)")
    g(f"s_cmp_lg_u32 s{sWAVE}, {pw2}")
    g("s_cbranch_scc1 L_NOP2")
    g.spoll4(sT2)
    g.lab("L_NOP2")
    g("s_barrier")
    g.ts(8); g.ts(8, 4)
    for e in range(1, 4):
        g(f"s_add_u32 s{sT0}, s{sKQ}, {e}")
        g(f"s_and_b32 s{sT0}, s{sT0}, 3")
        g(f"s_lshl_b32 s{sT2}, s{sT0}, 8")
        g(f"s_add_u32 s{sT2}, s{sT2}, s{sBASE1}")
        g(f"buffer_load_dwordx2 v[{16+2*e}:{17+2*e}], v{vA0}, s[{sWS}:{sWS+3}], s{sT2} offen sc1")
    for e in range(1, 4):
        g(f"s_add_u32 s{sT0}, s{sKQ}, {e}")
        g(f"s_and_b32 s{sT0}, s{sT0}, 3")
        g(f"s_lshl_b32 s{sT2}, s{sT0}, 10")
        g(f"s_add_u32 s{sT2}, s{sT2}, s{sBASE0}")
        g(f"buffer_load_dwordx4 v[{48+4*e}:{51+4*e}], v{vLANE16}, s[{sWS}:{sWS+3}], s{sT2} offen sc1")
    g(f"s_lshl_b32 s{sT0}, s{sT1}, 13")
    g(f"s_lshl_b32 s{sT2}, s{sKQ}, 11")
    g(f"s_add_u32 s{sT0}, s{sT0}, s{sT2}")
    g(f"s_lshl_b32 s{sT2}, s{sROLE}, 10")
    g(f"s_add_u32 s{sT0}, s{sT0}, s{sT2}")
    g(f"s_add_u32 s{sT1}, s{sT0}, {OF:#x}")
    g(f"s_lshl_b32 s{sT0}, s{sRT}, 1")
    g(f"s_add_u32 s{sT0}, s{sT0}, s{sBB}")
    g(f"s_lshl_b32 s{sT0}, s{sT0}, 2")
    g(f"s_add_u32 s{sT0}, s{sT0}, s{sOH}")
    g(f"s_lshl_b32 s{sBASE0}, s{sT0}, 16")
    g(f"s_lshl_b32 s{sT2}, s{sHP}, 14")
    g(f"s_add_u32 s{sBASE0}, s{sBASE0}, s{sT2}")
    g(f"s_add_u32 s{sBASE0}, s{sBASE0}, {OF:#x}")
    g(f"s_mul_i32 s{sT2}, s{sGH}, {16*FS}")
    g(f"s_lshl_b32 s{sT3}, s{sKQ}, 3")
    g(f"s_add_u32 s{sT2}, s{sT2}, s{sT3}")
    g(f"s_add_u32 s{sT2}, s{sT2}, {F3:#x}")
    g(f"v_mul_u32_u24 v{vA3}, {FS}, v0")
    g(f"v_add_u32 v{vA3}, s{sT2}, v{vA3}")
    g(f"s_lshl_b32 s{sT0}, s{sRT}, 3")
    g(f"s_add_u32 s{sT0}, s{sT0}, s{sOH}")
    g(f"s_lshl_b32 s{sT0}, s{sT0}, 5")
    g(f"s_add_u32 s{sT0}, s{sT0}, s{sN0}")
    g(f"s_mul_i32 s{sBASE1}, s{sT0}, {FS}")
    g(f"s_add_u32 s{sBASE1}, s{sBASE1}, {F3:#x}")
    for u in range(4):
        g(f"v_lshlrev_b32 v{32+2*u}, 16, v{48+u}")
        g(f"v_and_b32 v{33+2*u}, 0xffff0000, v{48+u}")
    g("s_waitcnt vmcnt(3)")
    g.ts(9, 4)
    g("v_max3_f32 v24, v16, v18, v20")
    g("v_max_f32 v24, v22, v24")
    for s in range(4): g(f"v_sub_f32 v{16+2*s}, v{16+2*s}, v24")
    for s in range(4): g(f"v_exp_f32 v{16+2*s}, v{16+2*s}")
    g("s_nop 0")
    g("v_mul_f32 v24, v16, v17")
    g("v_fmac_f32 v24, v18, v19")
    g("v_fmac_f32 v24, v20, v21")
    g("v_fmac_f32 v24, v22, v23")
    g("v_rcp_f32 v24, v24")
    g("s_nop 0")
    for s in range(4): g(f"v_mul_f32 v{16+2*s}, v{16+2*s}, v24")
    for c in range(8): g(f"v_mul_f32 v{32+c}, v{32+c}, v16")
    if debug == 4:
        g("s_waitcnt vmcnt(0)"); g.ts(10, 4)
    for s in range(1, 4):
        g(f"s_waitcnt vmcnt({3 - s})")
        for u in range(4):
            src = 48 + 4*s + u
            g(f"v_lshlrev_b32 v28, 16, v{src}")
            g(f"v_and_b32 v29, 0xffff0000, v{src}")
            g(f"v_fmac_f32 v{32+2*u}, v28, v{16+2*s}")
            g(f"v_fmac_f32 v{33+2*u}, v29, v{16+2*s}")
    for u in range(4):
        g(f"v_cvt_pk_bf16_f32 v{40+u}, v{32+2*u}, v{33+2*u}")
    g.ts(11, 4)
    g(f"buffer_store_dwordx4 v[40:43], v{vLANE16}, s[{sWS}:{sWS+3}], s{sT1} offen sc1")
    g("s_waitcnt vmcnt(0)")
    g.ts(12, 4)
    g("s_barrier")
    g.ts(13, 4)
    g.ts(9)
    g(f"s_cmp_lg_u32 s{sWAVE}, 4")
    g("s_cbranch_scc1 L_NOP3")
    g("s_mov_b64 exec, 0xffff")
    g(f"buffer_store_dwordx2 v[{vNON}:{vNON+1}], v{vA3}, s[{sWS}:{sWS+3}], 0 offen sc1")
    g("s_mov_b64 exec, -1")
    if not f3wave: g.spollN(sBASE1, (0, 16*FS, 128*FS, 144*FS))
    g.lab("L_NOP3")
    g(f"s_lshl_b32 s{sT0}, s{sWAVE}, 13")
    g(f"v_add_u32 v{vA0}, s{sT0}, v{vLANE16}")
    g(f"s_lshl_b32 s{sT0}, s{sBB}, 13")
    g(f"s_lshl_b32 s{sT1}, s{sHP}, 11")
    g(f"s_add_u32 s{sT0}, s{sT0}, s{sT1}")
    g(f"v_add_u32 v{vA1}, s{sT0}, v{vLANE16}")
    if aprio:
        g(f"s_xor_b32 s{sT0}, s{sN0}, s{sROLE}")
        g(f"s_bitcmp1_b32 s{sT0}, 0")
        g("s_cbranch_scc0 L_NOPRIO")
        g("s_setprio 3")
        g.lab("L_NOPRIO")
    if f3wave:
        g(f"s_mul_i32 s{sT0}, s{sBB}, {128*FS}")
        g(f"s_mul_i32 s{sT1}, s{sROLE}, {16*FS}")
        g(f"s_add_u32 s{sBASE1}, s{sBASE1}, s{sT0}")
        g(f"s_add_u32 s{sBASE1}, s{sBASE1}, s{sT1}")
        g.spoll4(sBASE1)
    else:
        g("s_barrier")
    g.ts(10)
    vA = 16
    for n in range(16):
        if n and n % 4 == 0: g(f"s_add_u32 s{sBASE0}, s{sBASE0}, 4096")
        g(f"buffer_load_dwordx4 v[{vA+4*n}:{vA+4*n+3}], v{vLANE16}, s[{sWS}:{sWS+3}], s{sBASE0} offen offset:{1024*(n&3)} sc1")
    g(f"s_lshl_b32 s{sT2}, s{sBB}, 1")
    g(f"s_lshr_b32 s{sT3}, s{sHP}, 1")
    g(f"s_add_u32 s{sT2}, s{sT2}, s{sT3}")
    g(f"s_lshl_b32 s{sT0}, s{sRT}, 4")
    g(f"s_add_u32 s{sT0}, s{sT0}, s{sN0}")
    g(f"s_lshl_b32 s{sT0}, s{sT0}, 2")
    g(f"s_add_u32 s{sT0}, s{sT0}, s{sT2}")
    g(f"s_lshl_b32 s{sT0}, s{sT0}, 1")
    g(f"s_and_b32 s{sT1}, s{sHP}, 1")
    g(f"s_add_u32 s{sT0}, s{sT0}, s{sT1}")
    g(f"s_lshl_b32 s{sBASE0}, s{sT0}, 14")
    g(f"s_add_u32 s{sBASE0}, s{sBASE0}, {OP:#x}")
    g(f"s_mul_i32 s{sBASE1}, s{sT0}, {FS}")
    g(f"s_add_u32 s{sBASE1}, s{sBASE1}, {F4:#x}")
    g(f"s_lshl_b32 s{sT3}, s{sOH}, 3")
    g(f"s_add_u32 s{sT3}, s{sT3}, s{sBASE1}")
    vD = 80
    for n in range(16):
        g(f"s_waitcnt vmcnt({15-n})")
        for nt in range(2):
            mfma(g, vD+16*nt, vB + (n*2+nt)*4, vA+4*n, None if n == 0 else vD+16*nt)
    g.ts(11)
    g(f"v_mov_b32 v51, s{sN}")
    g(f"v_mov_b32 v55, s{sN}")
    g(f"v_mov_b32 v58, 0")
    g(f"v_mov_b32 v59, s{sN}")
    g("v_and_b32 v24, 31, v0")
    g("v_lshrrev_b32 v25, 5, v0")
    g("v_lshlrev_b32 v24, 11, v24")
    g(f"v_lshl_add_u32 v{vA2}, v25, 3, v24")
    g("s_nop 2")
    for q in range(8):
        g(f"ds_write_b128 v{vA0}, v[{vD+4*q}:{vD+4*q+3}] offset:{1024*q}")
    g("s_waitcnt lgkmcnt(0)")
    g("s_barrier")
    for hp2 in range(4):
        for e in range(2):
            g(f"ds_read_b128 v[{16+8*hp2+4*e}:{19+8*hp2+4*e}], v{vA1} offset:{16384*hp2 + 1024*e}")
    res = [48, 49, 50, 52, 53, 54, 56, 57]
    g("s_waitcnt lgkmcnt(4)")
    for c in range(8): g(f"v_add_f32 v{16+c}, v{16+c}, v{24+c}")
    g("s_waitcnt lgkmcnt(0)")
    for c in range(8): g(f"v_add_f32 v{32+c}, v{32+c}, v{40+c}")
    for c in range(8): g(f"v_add_f32 v{res[c]}, v{16+c}, v{32+c}")
    g.ts(12)
    g(f"s_cmp_eq_u32 s{sT2}, s{sOH}")
    g("s_cbranch_scc1 L_OWN")
    g(f"s_lshl_b32 s{sT0}, s{sOH}, 12")
    g(f"s_add_u32 s{sT0}, s{sT0}, s{sBASE0}")
    for j in range(3):
        g(f"buffer_store_dwordx4 v[{48+4*j}:{51+4*j}], v{vLANE16}, s[{sWS}:{sWS+3}], s{sT0} offen offset:{1024*j} sc1")
    g.flag(sT3)
    g("s_branch L_FIN")
    g.lab("L_OWN")
    g.flag(sT3)
    g(f"s_lshl_b32 s{sT2}, s{sRT}, 1")
    g(f"s_add_u32 s{sT2}, s{sT2}, s{sBB}")
    g(f"s_lshl_b32 s{sT2}, s{sT2}, 16")
    g(f"s_lshl_b32 s{sT1}, s{sN0}, 7")
    g(f"s_add_u32 s{sT2}, s{sT2}, s{sT1}")
    g(f"s_lshl_b32 s{sT1}, s{sHP}, 5")
    g(f"s_add_u32 s{sT2}, s{sT2}, s{sT1}")
    g.spoll4(sBASE1)
    g.ts(13)
    g(f"s_mov_b32 s{sCNT}, 0")
    g.lab("L_OPL")
    for e in range(1, 4):
        g(f"s_add_u32 s{sT0}, s{sOH}, {e}")
        g(f"s_and_b32 s{sT0}, s{sT0}, 3")
        g(f"s_lshl_b32 s{sT0}, s{sT0}, 12")
        g(f"s_add_u32 s{sT0}, s{sT0}, s{sBASE0}")
        for j in range(3):
            r = 60 + 12*(e-1) + 4*j
            g(f"buffer_load_dwordx4 v[{r}:{r+3}], v{vLANE16}, s[{sWS}:{sWS+3}], s{sT0} offen offset:{1024*j} sc1")
    g(f"s_add_u32 s{sCNT}, s{sCNT}, 1")
    g("s_waitcnt vmcnt(0)")
    tags = [63 + 4*k for k in range(9)]
    g(f"v_min3_u32 v16, v{tags[0]}, v{tags[1]}, v{tags[2]}")
    g(f"v_max3_u32 v17, v{tags[0]}, v{tags[1]}, v{tags[2]}")
    for k in (3, 5, 7):
        g(f"v_min3_u32 v16, v{tags[k]}, v{tags[k+1]}, v16")
        g(f"v_max3_u32 v17, v{tags[k]}, v{tags[k+1]}, v17")
    g(f"v_xor_b32 v16, s{sN}, v16")
    g(f"v_xor_b32 v17, s{sN}, v17")
    g("v_or_b32 v16, v16, v17")
    g("v_cmp_ne_u32 vcc, 0, v16")
    g("s_cbranch_vccz L_OPD")
    g(f"s_cmp_lt_u32 s{sCNT}, {g.limit:#x}")
    g("s_cbranch_scc1 L_OPL")
    g.lab("L_OPD")
    for e in range(3):
        for c in range(8):
            g(f"v_add_f32 v{res[c]}, v{res[c]}, v{res[c] + 12*(e+1)}")
    for u in range(4):
        g(f"v_cvt_pk_bf16_f32 v{16+u}, v{res[2*u]}, v{res[2*u+1]}")
    g(f"buffer_store_dwordx2 v[16:17], v{vA2}, s[{sOUT}:{sOUT+3}], s{sT2} offen {outflag}")
    g(f"buffer_store_dwordx2 v[18:19], v{vA2}, s[{sOUT}:{sOUT+3}], s{sT2} offen offset:16 {outflag}")
    g.lab("L_FIN")
    if span:
        g("s_waitcnt vmcnt(0)")
        g("s_memrealtime s[100:101]")
        g.srd(sDBG, 28, 256)
        g("s_waitcnt lgkmcnt(0)")
        g(f"s_sub_u32 s100, s100, s{sN}")
        g("v_mov_b32 v16, s100")
        g(f"s_lshl_b32 s{sT0}, s{sXCD}, 2")
        g(f"s_add_u32 s{sT0}, s{sT0}, 8")
        g(f"v_mov_b32 v17, s{sT0}")
        g("s_mov_b64 exec, 1")
        g(f"buffer_atomic_umax v16, v17, s[{sDBG}:{sDBG+3}], 0 offen")
    if debug:
        g("s_waitcnt vmcnt(0)")
        g.ts(14)
        g(f"s_lshl_b32 s{sT0}, s2, 3")
        g(f"s_add_u32 s{sT0}, s{sT0}, s{sWAVE}")
        g(f"s_lshl_b32 s{sT0}, s{sT0}, 6")
        g(f"s_add_u32 s{sT0}, s{sT0}, {TSB:#x}")
        g(f"v_mov_b32 v{vA3}, s{sT0}")
        g("s_mov_b64 exec, 1")
        for n in range(16):
            g(f"v_mov_b32 v{16+n}, s{sTS+n}")
            g(f"buffer_store_dword v{16+n}, v{vA3}, s[{sWS}:{sWS+3}], 0 offen offset:{4*n}")
    g.lab("L_END")
    g("s_endpgm")
    rare_path(g)
    g.lab("L_CODE_END")
    hdr = f"""; Fused Q-projection + sliding-window GQA attention + output projection (generated by gen/gen2.py)
; @launch grid=(256,1,1) block=(512,1,1) lds=163840
.amdgcn_target "amdgcn-amd-amdhsa--gfx950"
.text
.globl {NAME}
.p2align 8
.type {NAME},@function
{NAME}:
"""
    ftr = f"""
.section .rodata,"a"
.p2align 6
.amdhsa_kernel {NAME}
  .amdhsa_next_free_vgpr 256
  .amdhsa_next_free_sgpr 102
  .amdhsa_accum_offset 256
  .amdhsa_group_segment_fixed_size 0
  .amdhsa_kernarg_size 64
  .amdhsa_user_sgpr_count 2
  .amdhsa_user_sgpr_kernarg_segment_ptr 1
  .amdhsa_system_sgpr_workgroup_id_x 1
.end_amdhsa_kernel
"""
    return hdr + "\n".join(g.L) + ftr

if __name__ == "__main__":
    import argparse
    ap = argparse.ArgumentParser()
    ap.add_argument("-o", default="standalone__sliding_block_cached__sampling.s")
    ap.add_argument("--debug", type=int, default=0)
    ap.add_argument("--la", type=int, default=2)
    ap.add_argument("--cprio", type=int, default=1)
    ap.add_argument("--norot", action="store_true")
    ap.add_argument("--xnt", action="store_true")
    ap.add_argument("--nocodepf", action="store_true")
    ap.add_argument("--kw", default="")
    a = ap.parse_args()
    kw = eval("dict(" + a.kw + ")")
    open(a.o, "w").write(gen(debug=a.debug, LA=a.la, cprio=a.cprio, rot=not a.norot, xnt=a.xnt, codepf=not a.nocodepf, **kw))
```

```python
import struct, math, sys

NAME = "standalone__sliding_block_cached__sampling_kernel"
C_SCALE = math.log2(math.e) / math.sqrt(128.0)
def f2u(x): return struct.unpack("<I", struct.pack("<f", x))[0]
THR = 10.0

QF   = 0x0000000
OF   = 0x0200000
PO   = 0x0400000
ST   = 0x0C00000
FS   = 1152
F1   = 0x2000000
F2   = 0x2200000
F3   = 0x2300000
F4   = 0x2800000
OP   = 0x0E00000
TSB  = 0x1600000
WS_BYTES = 268435456

sXCD, sI, sWAVE, sW4, sROLE = 3, 4, 5, 6, 7
sT0, sT1, sT2, sT3 = 8, 9, 10, 11
sCNT, sLW1K, sG, sKQ = 12, 13, 14, 15
sX, sK, sV, sWQ, sWO, sOUT, sDBG, sWS = 32, 36, 40, 44, 48, 52, 56, 60
sBASE0, sBASE1, sCT, sRT = 64, 65, 66, 67
sHQ, sKV = 68, 69
sN = 70
sPA = 72
sK0 = 74
sGH = 75
sEX = 76
sRET = 78
sPD = 16
sTS = 80
sN0, sOH, sRP = 96, 97, 98
sTHR = 99

vLANE16 = 1
vKA, vVA = 2, 10
vT0, vT1 = 14, 15
vKR, vVR, vQ, vO, vS, vP, vNEG, vLS, vONE = 16, 48, 80, 112, 176, 208, 224, 240, 244
vTM, vT2 = 248, 249
vNON = 250
vA0, vA1, vA2, vA3 = 252, 253, 254, 255

class G:
    def __init__(self, debug=False, limit=1 << 21):
        self.L = []; self.debug = debug; self.nlab = 0; self.limit = limit
    def __call__(self, s): self.L.append("  " + s)
    def lab(self, s): self.L.append(s + ":")
    def newlab(self, p="L"):
        self.nlab += 1; return f"{p}_{self.nlab}"
    def ts(self, n, lvl=1):
        if self.debug == 9 and n not in (0, 14): return
        if self.debug >= 2 and lvl == 1 and 7 <= n <= 13: return
        if lvl >= 2 and self.debug != lvl: return
        if self.debug:
            self(f"s_memrealtime s[100:101]")
            self("s_waitcnt lgkmcnt(0)")
            self(f"s_mov_b32 s{sTS+n}, s100")
    def srd(self, d, p, nbytes):
        self(f"s_mov_b32 s{d}, s{p}")
        self(f"s_and_b32 s{d+1}, s{p+1}, 0xffff")
        self(f"s_mov_b32 s{d+2}, {nbytes:#x}")
        self(f"s_mov_b32 s{d+3}, 0x20000")
    def dma(self, voff, srd, sbase, soff_const, m0base, m0_const, flags=""):
        self(f"s_add_u32 m0, s{m0base}, {m0_const:#x}")
        self(f"s_add_u32 s{sT0}, s{sbase}, {soff_const:#x}")
        self(f"buffer_load_dwordx4 v{voff}, s[{srd}:{srd+3}], s{sT0} offen {flags} lds".replace("  ", " "))
    def spoll4(self, soff):
        l = self.newlab("POLL"); d = self.newlab("POLLD")
        self(f"s_add_u32 s{sPA}, s{sWS}, s{soff}")
        self(f"s_addc_u32 s{sPA+1}, s{sWS+1}, 0")
        self(f"s_mov_b32 s{sCNT}, 0")
        self.lab(l)
        self(f"s_load_dwordx8 s[{sPD}:{sPD+7}], s[{sPA}:{sPA+1}], 0 glc")
        self(f"s_add_u32 s{sCNT}, s{sCNT}, 1")
        self(f"s_cmp_ge_u32 s{sCNT}, {self.limit:#x}")
        self("s_waitcnt lgkmcnt(0)")
        self(f"s_cbranch_scc1 {d}")
        for q in range(4):
            self(f"s_cmp_eq_u64 s[{sPD+2*q}:{sPD+2*q+1}], s[{sN}:{sN+1}]")
            self(f"s_cbranch_scc0 {l}")
        self.lab(d)
    def vpoll4(self, soff, flags):
        l = self.newlab("POLL"); d = self.newlab("POLLD")
        self("v_and_b32 v10, 3, v0")
        self("v_lshlrev_b32 v10, 3, v10")
        self(f"s_mov_b32 s{sCNT}, 0")
        self.lab(l)
        self(f"buffer_load_dwordx2 v[12:13], v10, s[{sWS}:{sWS+3}], s{soff} offen {flags}")
        self(f"s_add_u32 s{sCNT}, s{sCNT}, 1")
        self("s_waitcnt vmcnt(0)")
        self(f"v_cmp_ne_u64 vcc, s[{sN}:{sN+1}], v[12:13]")
        self(f"s_cbranch_vccz {d}")
        self(f"s_cmp_lt_u32 s{sCNT}, {self.limit:#x}")
        self(f"s_cbranch_scc1 {l}")
        self.lab(d)
    def spoll4x2(self, soff):
        l = self.newlab("POLL"); d = self.newlab("POLLD")
        self(f"s_add_u32 s{sPA}, s{sWS}, s{soff}")
        self(f"s_addc_u32 s{sPA+1}, s{sWS+1}, 0")
        self(f"s_mov_b32 s{sCNT}, 0")
        self.lab(l)
        self(f"s_load_dwordx8 s[16:23], s[{sPA}:{sPA+1}], 0x80 glc")
        self(f"s_add_u32 s{sCNT}, s{sCNT}, 1")
        self(f"s_and_b32 s32, s{sCNT}, 3")
        self(f"s_cmp_lg_u32 s32, 0")
        n = self.newlab("POLLF")
        self(f"s_cbranch_scc1 {n}")
        self("s_waitcnt lgkmcnt(0)")
        self(f"s_load_dwordx8 s[16:23], s[{sPA}:{sPA+1}], 0 glc")
        self.lab(n)
        self(f"s_cmp_ge_u32 s{sCNT}, {self.limit:#x}")
        self("s_waitcnt lgkmcnt(0)")
        self(f"s_cbranch_scc1 {d}")
        for q in range(4):
            self(f"s_cmp_eq_u64 s[{16+2*q}:{17+2*q}], s[{sN}:{sN+1}]")
            self(f"s_cbranch_scc0 {l}")
        self.lab(d)
    def flag2(self, saddr):
        self(f"v_mov_b32 v{vA3}, s{saddr}")
        self(f"s_mov_b64 s[{sEX}:{sEX+1}], exec")
        self("s_mov_b64 exec, 1")
        self(f"buffer_store_dwordx2 v[{vNON}:{vNON+1}], v{vA3}, s[{sWS}:{sWS+3}], 0 offen offset:128")
        self(f"buffer_store_dwordx2 v[{vNON}:{vNON+1}], v{vA3}, s[{sWS}:{sWS+3}], 0 offen sc1")
        self(f"s_mov_b64 exec, s[{sEX}:{sEX+1}]")
    def spollN(self, soff, deltas):
        l = self.newlab("POLL"); d = self.newlab("POLLD")
        regs = [16, 24, 32, 40][:len(deltas)]
        self(f"s_add_u32 s{sPA}, s{sWS}, s{soff}")
        self(f"s_addc_u32 s{sPA+1}, s{sWS+1}, 0")
        self(f"s_mov_b32 s{sCNT}, 0")
        self.lab(l)
        for r, dl in zip(regs, deltas):
            self(f"s_load_dwordx8 s[{r}:{r+7}], s[{sPA}:{sPA+1}], {dl:#x} glc")
        self(f"s_add_u32 s{sCNT}, s{sCNT}, 1")
        self(f"s_cmp_ge_u32 s{sCNT}, {self.limit:#x}")
        self("s_waitcnt lgkmcnt(0)")
        self(f"s_cbranch_scc1 {d}")
        for r in regs:
            for q in range(4):
                self(f"s_cmp_eq_u64 s[{r+2*q}:{r+2*q+1}], s[{sN}:{sN+1}]")
                self(f"s_cbranch_scc0 {l}")
        self.lab(d)
    def flag(self, saddr):
        self(f"v_mov_b32 v{vA3}, s{saddr}")
        self(f"s_mov_b64 s[{sEX}:{sEX+1}], exec")
        self("s_mov_b64 exec, 1")
        self(f"buffer_store_dwordx2 v[{vNON}:{vNON+1}], v{vA3}, s[{sWS}:{sWS+3}], 0 offen sc1")
        self(f"s_mov_b64 exec, s[{sEX}:{sEX+1}]")
    def nonce_issue(self, glc=""):
        self(f"s_load_dwordx2 s[{sN}:{sN+1}], s[28:29], 0{glc}")
    def nonce_finish(self):
        l = self.newlab("NON"); d = self.newlab("NOND")
        self(f"s_mov_b32 s{sCNT}, 0")
        self.lab(l)
        self("s_waitcnt lgkmcnt(0)")
        self(f"s_cmp_lg_u32 s{sN}, 0")
        self(f"s_cbranch_scc1 {d}")
        self(f"s_add_u32 s{sCNT}, s{sCNT}, 1")
        self(f"s_cmp_ge_u32 s{sCNT}, {self.limit:#x}")
        self(f"s_cbranch_scc1 {d}")
        self("s_sleep 8")
        self.nonce_issue(" glc")
        self(f"s_branch {l}")
        self.lab(d)
        self(f"v_mov_b32 v{vNON}, s{sN}")
        self(f"v_mov_b32 v{vNON+1}, s{sN+1}")

def mfma(g, d, a, b, c):
    cs = "0" if c is None else f"v[{c}:{c+15}]"
    g(f"v_mfma_f32_32x32x16_bf16 v[{d}:{d+15}], v[{a}:{a+3}], v[{b}:{b+3}], {cs}")
def mfma16(g, d, a, b, c):
    cs = "0" if c is None else f"v[{c}:{c+3}]"
    g(f"v_mfma_f32_16x16x32_bf16 v[{d}:{d+3}], v[{a}:{a+3}], v[{b}:{b+3}], {cs}")

def att_setup(g):
    g("v_and_b32 v24, 31, v0")
    g("v_lshrrev_b32 v25, 5, v0")
    g("v_and_b32 v26, 15, v0")
    g("v_xor_b32 v27, v26, v25")
    g("v_lshlrev_b32 v24, 8, v24")
    for s in range(8):
        g(f"v_xor_b32 v28, {2*s}, v27")
        g(f"v_lshl_add_u32 v{vKA+s}, v28, 4, v24")
    g("v_lshrrev_b32 v28, 2, v26")
    g("v_lshl_add_u32 v29, v25, 2, v28")
    g("v_lshlrev_b32 v29, 8, v29")
    g("v_and_b32 v30, 1, v0")
    g("v_lshl_add_u32 v29, v30, 3, v29")
    g("v_add_u32 v29, 16384, v29")
    g("v_bfe_u32 v30, v0, 1, 1")
    g("v_bfe_u32 v31, v0, 4, 1")
    g("v_lshl_add_u32 v30, v31, 1, v30")
    g("v_lshlrev_b32 v28, 2, v28")
    g("v_xor_b32 v30, v30, v28")
    for dt in range(4):
        g(f"v_xor_b32 v31, {4*dt}, v30")
        g(f"v_lshl_add_u32 v{vVA+dt}, v31, 4, v29")
    mask = sum(1 << l for l in (0, 8, 32, 40, 20, 28, 52, 60))
    g(f"s_mov_b32 s{sEX}, {mask & 0xffffffff:#x}")
    g(f"s_mov_b32 s{sEX+1}, {mask >> 32:#x}")
    g(f"v_mov_b32 v28, 0x3f803f80")
    g(f"v_cndmask_b32 v{vONE}, 0, v28, s[{sEX}:{sEX+1}]")
    for u in range(1, 4): g(f"v_mov_b32 v{vONE+u}, v{vONE}")
    g(f"s_mov_b32 s{sTHR}, {f2u(THR):#x}")

BIAS = 9.0
vOR = 252
def att_loop(g, O=None):
    O = {**dict(sum="m16", e2=(10, 12), barwait=False, m16s=(9, 13)), **(O or {})}
    g.stubs = []
    kcur = [0]; vcur = [0]
    def kbase(t):
        slot = (t // 2) % O.get('nks', 4)
        want = (slot >> 1) * 65536
        r = []
        if want != kcur[0]:
            r.append(f"s_mov_b32 s{sT0}, {(want - kcur[0]) & 0xffffffff:#x}")
            for x in range(vKA, vKA+8): r.append(f"v_add_u32 v{x}, s{sT0}, v{x}")
            kcur[0] = want
        return (slot & 1) * 32768 + (t & 1) * 8192, r
    def vbase(t):
        slot = (t // 2) % O.get('nks', 4)
        want = (slot >> 1) * 65536
        r = []
        if want != vcur[0]:
            r.append(f"s_mov_b32 s{sT1}, {(want - vcur[0]) & 0xffffffff:#x}")
            for x in range(vVA, vVA+4): r.append(f"v_add_u32 v{x}, s{sT1}, v{x}")
            vcur[0] = want
        return (slot & 1) * 32768 + (t & 1) * 8192, r
    def krd(off, s, base=vKR):
        return [f"ds_read_b128 v[{base+4*s}:{base+4*s+3}], v{vKA+s} offset:{off}"]
    def vrd(off, n):
        t2, dt = n >> 2, n & 3
        b = vVR + 4*n
        return [f"ds_read_b64_tr_b16 v[{b}:{b+1}], v{vVA+dt} offset:{off + 4096*t2}",
                f"ds_read_b64_tr_b16 v[{b+2}:{b+3}], v{vVA+dt} offset:{off + 4096*t2 + 2048}"]
    def em(l):
        for x in l: g(x)
    mf = lambda d, a, b, c: f"v_mfma_f32_32x32x16_bf16 v[{d}:{d+15}], v[{a}:{a+3}], v[{b}:{b+3}], " + ("0" if c is None else f"v[{c}:{c+15}]")
    m16 = lambda d, a, b, c: f"v_mfma_f32_16x16x32_bf16 v[{d}:{d+3}], v[{a}:{a+3}], v[{b}:{b+3}], " + ("0" if c is None else f"v[{c}:{c+3}]")
    o, _ = kbase(0)
    for s in range(8): em(krd(o, s, vVR))
    o1, _ = kbase(1)
    for s in range(7): em(krd(o1, s))
    g("s_waitcnt vmcnt(0)")
    g.ts(5)
    if g.debug and g.debug != 9:
        g("s_memtime s[100:101]")
        g("s_waitcnt lgkmcnt(0)")
        g(f"s_mov_b32 s{sTS+15}, s100")
    g(f"s_waitcnt lgkmcnt(7)")
    for s in range(8):
        g(mf(vS, vVR+4*s, vQ+4*s, None if s == 0 else vS))
        if s == 0: em(krd(o1, 7))
    g(f"s_mov_b32 s{sT0}, {f2u(BIAS):#x}")
    if O["sum"] != "m16":
        g(f"v_mov_b32 v{vLS}, 0"); g(f"v_mov_b32 v{vLS+1}, 0")
    NT = 16
    tmp = [(vT0, vT1), (vTM, vT2)]
    for t in range(0, NT + 1):
        Sc = vS + 16*(t & 1); Sn = vS + 16*((t+1) & 1)
        Pc = vP + 8*(t & 1); Pp = vP + 8*((t-1) & 1)
        doS = t + 1 < NT; doPV = t >= 1; doSM = t < NT; doK = t + 2 < NT
        pre = [[] for _ in range(16)]; M = [[] for _ in range(16)]; D = [[] for _ in range(16)]; V = [[] for _ in range(16)]
        if t == 16: break
        if t == 15:
            vo, bump = vbase(15)
            assert not bump
            pre[0].append("s_waitcnt lgkmcnt(8)")
            pre[4].append("s_waitcnt lgkmcnt(6)")
            pre[8].append("s_waitcnt lgkmcnt(8)")
            pre[12].append("s_waitcnt lgkmcnt(0)")
            for n in range(8):
                dt = n & 3; t2 = n >> 2
                M[n].append(mf(vO+16*dt, vVR+4*n, Pp+4*t2, vO+16*dt))
                D[n] += vrd(vo, n)
                M[8+n].append(mf(vO+16*dt, vVR+4*n, Pc+4*t2, vO+16*dt))
            if O["sum"] == "m16":
                M[1].append(m16(vLS, vONE, Pp, vLS)); M[5].append(m16(vLS, vONE, Pp+4, vLS))
                M[9].append(m16(vLS, vONE, Pc, vLS)); M[13].append(m16(vLS, vONE, Pc+4, vLS))
        elif doPV:
            vo, bump = vbase(t-1)
            pre[0] += bump
            for n in range(8): D[n] += vrd(vo, n)
            for n in range(8):
                dt = n & 3; t2 = n >> 2
                M[8+n].append(mf(vO+16*dt, vVR+4*n, Pp+4*t2, None if (t == 1 and t2 == 0) else vO+16*dt))
            if O["sum"] == "m16":
                M[O["m16s"][0]].append(m16(vLS, vONE, Pp, None if t == 1 else vLS))
                M[O["m16s"][1]].append(m16(vLS, vONE, Pp+4, vLS))
            pre[8].append("s_waitcnt lgkmcnt(8)")
            pre[12].append(f"s_waitcnt lgkmcnt({4 if doK else 6})")
        if t < 15: pre[4].append(f"s_waitcnt lgkmcnt({6 if doPV else 0})")
        if doS:
            pre[0].append("s_waitcnt lgkmcnt(4)")
            for s in range(8): M[s].append(mf(Sn, vKR+4*s, vQ+4*s, (None if t == 0 else vNEG) if s == 0 else Sn))
        if t % 2 == 0 and t <= 14:
            if O["barwait"] or t == 14: D[8].append("s_waitcnt lgkmcnt(0)")
            if t >= 2 and g.debug == 2:
                D[8] += ["s_memrealtime s[100:101]", "s_waitcnt lgkmcnt(0)", f"s_mov_b32 s{sTS+6+t//2}, s100"]
            D[8].append("s_barrier")
        if t == 14:
            vo, bump = vbase(14)
            D[8] += bump
            for n in range(8): D[8+n] += vrd(vo, n)
        if doK:
            ko, bump = kbase(t+2)
            D[8] += bump
            for n in range(8): D[8+n] += krd(ko, n)
        if doSM:
            if t == 0:
                V[2] += ["s_nop 7"]
                V[3] += [f"v_max3_f32 v{vTM}, v{vS}, v{vS+1}, v{vS+2}", f"v_max3_f32 v{vT2}, v{vS+3}, v{vS+4}, v{vS+5}",
                         f"v_max3_f32 v{vTM}, v{vS+6}, v{vS+7}, v{vTM}", f"v_max3_f32 v{vT2}, v{vS+8}, v{vS+9}, v{vT2}"]
                V[4] += [f"v_max3_f32 v{vTM}, v{vS+10}, v{vS+11}, v{vTM}", f"v_max3_f32 v{vT2}, v{vS+12}, v{vS+13}, v{vT2}",
                         f"v_max3_f32 v{vTM}, v{vS+14}, v{vS+15}, v{vTM}", f"v_max_f32 v{vTM}, v{vT2}, v{vTM}",
                         f"v_add_f32 v{vTM}, s{sT0}, v{vTM}", f"v_mov_b32 v{vT2}, v{vTM}"]
                V[5] += ["s_nop 0", f"v_permlane32_swap_b32 v{vTM}, v{vT2}", "s_nop 1", f"v_max_f32 v{vTM}, v{vTM}, v{vT2}",
                         f"v_sub_f32 v{vNEG}, 0, v{vTM}"]
                slots = [6, 6, 7, 7] + [8 + k//2 for k in range(12)]
                for u in range(1, 16): V[8 + min(6, (u-1)//2)].append(f"v_mov_b32 v{vNEG+u}, v{vNEG}")
            elif t == 15:
                slots = [0, 0, 0, 1, 1, 2, 2, 2, 3, 3, 4, 4, 4, 5, 5, 6]
            else:
                slots = []
                for sl in range(14):
                    slots.append(sl)
                    if sl in O["e2"]: slots.append(sl)
            assert len(slots) == 16
            for e in range(16):
                T = tmp[(e >> 1) & 1][e & 1]
                if t <= 1:
                    V[slots[e]].append(f"v_add_f32 v{Sc+e}, v{Sc+e}, v{vNEG}")
                V[slots[e]].append(f"v_exp_f32 v{T}, v{Sc+e}")
            for u in range(8):
                sl = slots[2*u+1] + 1
                a, b = tmp[u & 1]
                ins = []
                if O["sum"] == "add":
                    ins += [f"v_add_f32 v{vLS}, v{vLS}, v{a}", f"v_add_f32 v{vLS+1}, v{vLS+1}, v{b}"]
                if O["sum"] == "pk":
                    ins += [f"v_pk_add_f32 v[{vLS}:{vLS+1}], v[{vLS}:{vLS+1}], v[{a}:{b}]"]
                ins.append(f"v_cvt_pk_bf16_f32 v{Pc+u}, v{a}, v{b}")
                V[sl] = ins + V[sl]
                if O["sum"] == "dot":
                    V[sl].append(f"v_dot2c_f32_bf16 v{vLS + (u & 1)}, v{Pc+u}, v{vONE}")
                if u & 1 and t > 0:
                    orr = f"v_or_b32 v{vOR}, v{Pc}, v{Pc+1}" if u == 1 else f"v_or3_b32 v{vOR}, v{Pc+u-1}, v{Pc+u}, v{vOR}"
                    V[sl].append(orr)
            if t > 0:
                cs = 7 if t == 15 else 14
                V[cs].append(f"v_and_b32 v{vOR}, 0x40004000, v{vOR}")
                V[cs].append(f"v_cmp_ne_u32 vcc, 0, v{vOR}")
        for sl in range(16):
            em(pre[sl]); em(M[sl]); em(D[sl])
            if not M[sl] and not D[sl] and V[sl]: g("s_nop 0")
            em(V[sl])
            if doSM and t > 0 and sl == (7 if t == 15 else 15):
                st = g.newlab("RS"); bk = g.newlab("RB")
                g(f"s_cbranch_vccnz {st}")
                g.lab(bk)
                g.stubs.append((st, bk, t & 1))
    if O["sum"] != "m16":
        g(f"v_add_f32 v{vLS}, v{vLS}, v{vLS+1}")
        g(f"v_mov_b32 v{vT2}, v{vLS}")
        g("s_nop 1")
        g(f"v_permlane32_swap_b32 v{vLS}, v{vT2}")
        g("s_nop 1")
        g(f"v_add_f32 v{vLS}, v{vLS}, v{vT2}")

def rare_path(g, O=None):
    for st, bk, par in g.stubs:
        g.lab(st)
        g(f"s_call_b64 s[{sRET}:{sRET+1}], L_RARE{par}")
        g(f"s_branch {bk}")
    for par in range(2):
        g.lab(f"L_RARE{par}")
        Sc = vS + 16*par; Sn = vS + 16*(par ^ 1); Pc = vP + 8*par
        g("s_nop 15")
        g(f"v_max3_f32 v{vTM}, v{Sc}, v{Sc+1}, v{Sc+2}")
        for u in range(6): g(f"v_max3_f32 v{vTM}, v{Sc+3+2*u}, v{Sc+4+2*u}, v{vTM}")
        g(f"v_max_f32 v{vTM}, v{Sc+15}, v{vTM}")
        g(f"v_add_f32 v{vTM}, {f2u(BIAS):#x}, v{vTM}")
        g(f"v_mov_b32 v{vT2}, v{vTM}")
        g("s_nop 1")
        g(f"v_permlane32_swap_b32 v{vTM}, v{vT2}")
        g("s_nop 1")
        g(f"v_max3_f32 v{vTM}, v{vTM}, v{vT2}, 0")
        g(f"v_ceil_f32 v{vTM}, v{vTM}")
        g(f"v_sub_f32 v{vT2}, 0, v{vTM}")
        g(f"v_exp_f32 v{vT2}, v{vT2}")
        for u in range(16): g(f"v_sub_f32 v{Sc+u}, v{Sc+u}, v{vTM}")
        for u in range(16): g(f"v_sub_f32 v{Sn+u}, v{Sn+u}, v{vTM}")
        for u in range(16): g(f"v_sub_f32 v{vNEG+u}, v{vNEG+u}, v{vTM}")
        for u in range(64): g(f"v_mul_f32 v{vO+u}, v{vO+u}, v{vT2}")
        g(f"v_mul_f32 v{vLS}, v{vLS}, v{vT2}")
        for u in range(8):
            g(f"v_exp_f32 v{vT0}, v{Sc+2*u}")
            g(f"v_exp_f32 v{vT1}, v{Sc+2*u+1}")
            g("s_nop 0")
            g(f"v_cvt_pk_bf16_f32 v{Pc+u}, v{vT0}, v{vT1}")
        g("s_nop 1")
        g(f"s_setpc_b64 s[{sRET}:{sRET+1}]")

def gen(debug=False, LA=2, cprio=1, rot=True, xnt=False, codepf=True, early={5: 1, 6: 2}, nq1=1, bflag='', pfflag='', kvflag='nt', wqflag='', span=False, pretouch=True, NKS=5, vp='sc0 sc1', wf='sc1', rf='sc0 sc1', qf='sc1', ophint=True, f2fast=False, apf=False, f3wave=True, aprio=False, pffront={}, outflag='', pw2=0, pfplan={5: 8}, bplan={7: (0, 1), 8: (2, 3)}):
    g = G(debug=debug)
    qslot = lambda k: 1 + k % 4
    g("s_cmp_ge_u32 s2, 256")
    g("s_cbranch_scc1 L_END")
    g("s_load_dwordx16 s[16:31], s[0:1], 0")
    g(f"s_and_b32 s{sXCD}, s2, 7")
    g(f"s_lshr_b32 s{sI}, s2, 3")
    g("v_lshrrev_b32 v1, 6, v0")
    g("v_and_b32 v0, 63, v0")
    g(f"v_readfirstlane_b32 s{sWAVE}, v1")
    g(f"v_lshlrev_b32 v{vLANE16}, 4, v0")
    g(f"s_and_b32 s{sT0}, s{sI}, 7")
    g(f"s_lshl_b32 s{sCT}, s{sXCD}, 3")
    g(f"s_add_u32 s{sCT}, s{sCT}, s{sT0}")
    g(f"s_lshr_b32 s{sRT}, s{sI}, 3")
    g(f"s_lshl_b32 s{sK0}, s{sRT}, 1")
    g(f"s_add_u32 s{sK0}, s{sK0}, s{sT0}")
    if not rot: g(f"s_mov_b32 s{sK0}, 0")
    g(f"s_lshl_b32 s{sG}, s{sXCD}, 2")
    g(f"s_add_u32 s{sG}, s{sG}, s{sRT}")
    g(f"s_and_b32 s{sKQ}, s{sI}, 3")
    g(f"s_bfe_u32 s{sHQ}, s{sI}, 0x10002")
    g(f"s_lshl_b32 s{sGH}, s{sG}, 1")
    g(f"s_add_u32 s{sGH}, s{sGH}, s{sHQ}")
    g(f"s_and_b32 s{sW4}, s{sWAVE}, 3")
    g(f"s_lshr_b32 s{sROLE}, s{sWAVE}, 2")
    g(f"s_lshl_b32 s{sLW1K}, s{sW4}, 10")
    g(f"s_lshr_b32 s{sOH}, s{sXCD}, 1")
    g(f"s_and_b32 s{sN0}, s{sXCD}, 1")
    g(f"s_lshl_b32 s{sN0}, s{sN0}, 3")
    g(f"s_add_u32 s{sN0}, s{sN0}, s{sT0}")
    g("s_waitcnt lgkmcnt(0)")
    g.srd(sWQ, 22, 1024*4096*2)
    g.srd(sX, 16, 8*32*1024*2)
    g(f"s_cmp_eq_u32 s{sROLE}, 0")
    g("s_cbranch_scc1 L_CWAVE")

    vXO, vWQO, vKO, vVO, vWOO = 16, 17, 18, 19, 20
    g("v_lshrrev_b32 v21, 4, v0")
    g(f"s_lshl_b32 s{sT1}, s{sW4}, 2")
    g(f"v_add_u32 v22, s{sT1}, v21")
    g("v_and_b32 v23, 15, v0")
    g("v_xor_b32 v24, v23, v22")
    g("v_lshlrev_b32 v24, 4, v24")
    g(f"v_lshl_add_u32 v{vXO}, v22, 11, v24")
    g("v_lshrrev_b32 v25, 3, v0")
    g("v_and_b32 v26, 7, v0")
    g("v_lshlrev_b32 v27, 1, v25")
    g("v_and_b32 v27, 4, v27")
    g("v_xor_b32 v26, v26, v27")
    g("v_lshlrev_b32 v26, 4, v26")
    g(f"v_lshl_add_u32 v{vWQO}, v25, 13, v26")
    g(f"s_lshl_b32 s{sBASE0}, s{sRT}, 17")
    g(f"s_lshl_b32 s{sBASE1}, s{sCT}, 7")
    g(f"s_lshl_b32 s{sT1}, s{sW4}, 16")
    g(f"s_add_u32 s{sBASE1}, s{sBASE1}, s{sT1}")
    Q = []
    def need(*tags):
        last = max(i for i, x in enumerate(Q) if x in tags)
        g(f"s_waitcnt vmcnt({len(Q) - 1 - last})")
    def stage(k):
        slot = qslot(k) * 32768
        g(f"s_add_u32 s{sT1}, s{sK0}, {k}")
        g(f"s_and_b32 s{sT1}, s{sT1}, 7")
        g(f"s_lshl_b32 s{sT2}, s{sT1}, 20")
        g(f"s_add_u32 s{sT2}, s{sT2}, s{sBASE1}")
        g(f"s_lshl_b32 s{sT3}, s{sT1}, 8")
        g(f"s_add_u32 s{sT3}, s{sT3}, s{sBASE0}")
        for m in range(4):
            g.dma(vWQO, sWQ, sT2, 32*m*8192, sLW1K, slot + 16384 + 4096*m, wqflag)
            g.dma(vXO, sX, sT3, m*16*2048, sLW1K, slot + 4096*m, "nt" if xnt else "")
            Q.extend([f"S{k}"] * 2)
    def kpart(s):
        for m in range(4):
            g.dma(vKO, sK, sKV, (64*s + 16*m) * 256, sLW1K, (s % NKS)*32768 + 4096*m, kvflag)
            Q.append(f"K{s}")
    def vpart(s):
        for m in range(4):
            g.dma(vVO, sV, sKV, (64*s + 16*m) * 256, sLW1K, (s % NKS)*32768 + 16384 + 4096*m, kvflag)
            Q.append(f"V{s}")
    def part(tag):
        (kpart if tag[0] == "K" else vpart)(int(tag[1]))
    for k in range(LA): stage(k)
    g.ts(0)
    g.srd(sK, 18, 8*4*8192*128*2)
    g.srd(sV, 20, 8*4*8192*128*2)
    g.srd(sWO, 24, 4096*1024*2)
    g.srd(sOUT, 26, 8*32*1024*2)
    g.srd(sWS, 30, WS_BYTES)
    g(f"v_lshl_add_u32 v{vKO}, v22, 8, v24")
    g("v_lshlrev_b32 v28, 2, v21")
    g("v_xor_b32 v28, v23, v28")
    g("v_lshlrev_b32 v28, 4, v28")
    g(f"v_lshl_add_u32 v{vVO}, v22, 8, v28")
    g(f"v_lshl_add_u32 v{vWOO}, v25, 11, v26")
    g(f"s_lshl_b32 s{sKV}, s{sG}, 21")
    g(f"s_lshl_b32 s{sT1}, s{sKQ}, 17")
    g(f"s_add_u32 s{sKV}, s{sKV}, s{sT1}")
    g(f"s_add_u32 s{sKV}, s{sKV}, {6144*256:#x}")
    sPF = sCT
    g(f"s_lshl_b32 s{sPF}, s{sOH}, 21")
    g(f"s_lshl_b32 s{sT1}, s{sW4}, 14")
    g(f"s_add_u32 s{sPF}, s{sPF}, s{sT1}")
    g(f"s_lshl_b32 s{sT1}, s{sI}, 16")
    g(f"s_add_u32 s{sPF}, s{sPF}, s{sT1}")
    g(f"s_and_b32 s{sT1}, s{sXCD}, 1")
    g(f"s_lshl_b32 s{sT1}, s{sT1}, 10")
    g(f"s_add_u32 s{sPF}, s{sPF}, s{sT1}")
    npf = [0]
    def wopf(n):
        for _ in range(n):
            g(f"s_add_u32 s{sT0}, s{sPF}, {npf[0]*2048:#x}")
            g(f"buffer_load_dwordx4 v[32:35], v{vLANE16}, s[{sWO}:{sWO+3}], s{sT0} offen {pfflag}")
            Q.append("PF"); npf[0] += 1
    if pretouch:
        def touch(expr_lines, base):
            for l in expr_lines: g(l)
            g(f"s_mul_i32 s{sT1}, s{sT1}, {FS}")
            g(f"s_add_u32 s{sT1}, s{sT1}, {base:#x}")
            g(f"s_add_u32 s{sPA}, s{sWS}, s{sT1}")
            g(f"s_addc_u32 s{sPA+1}, s{sWS+1}, 0")
            g(f"s_load_dword s{sRET}, s[{sPA}:{sPA+1}], 0 glc")
        touch([f"s_lshl_b32 s{sT1}, s{sGH}, 2", f"s_add_u32 s{sT1}, s{sT1}, s{sW4}"], F1)
        touch([f"s_mov_b32 s{sT1}, s{sGH}"], F2)
        touch([f"s_lshl_b32 s{sT1}, s{sRT}, 3", f"s_add_u32 s{sT1}, s{sT1}, s{sOH}", f"s_lshl_b32 s{sT1}, s{sT1}, 5", f"s_add_u32 s{sT1}, s{sT1}, s{sN0}",
               f"s_and_b32 s{sT2}, s{sW4}, 1", f"s_lshl_b32 s{sT2}, s{sT2}, 7", f"s_add_u32 s{sT1}, s{sT1}, s{sT2}",
               f"s_lshr_b32 s{sT2}, s{sW4}, 1", f"s_lshl_b32 s{sT2}, s{sT2}, 4", f"s_add_u32 s{sT1}, s{sT1}, s{sT2}"], F3)
        touch([f"s_lshl_b32 s{sT1}, s{sRT}, 4", f"s_add_u32 s{sT1}, s{sT1}, s{sN0}", f"s_lshl_b32 s{sT1}, s{sT1}, 2", f"s_add_u32 s{sT1}, s{sT1}, s{sOH}",
               f"s_lshl_b32 s{sT1}, s{sT1}, 1", f"s_and_b32 s{sT2}, s{sW4}, 1", f"s_add_u32 s{sT1}, s{sT1}, s{sT2}"], F4)
    order = ["K0", "K1", "V0"] + [x for s_ in range(1, 8) for x in ([f"K{s_+1}"] if s_ < 7 else []) + [f"V{s_}"]]
    todo = list(order)
    def issue(n):
        for _ in range(n):
            if todo: part(todo.pop(0))
    for k in range(8):
        need(f"S{k}")
        if k >= 1: g.ts(6 + k, 5)
        g("s_barrier")
        if k == 0: g.ts(1)
        if k + LA < 8: stage(k + LA)
        wopf(pffront.get(k, 0))
        issue(early.get(k, 0))
    g.ts(2)
    g.nonce_issue()
    g(f"s_lshl_b32 s{sBASE0}, s{sOH}, 21")
    g(f"s_lshl_b32 s{sT1}, s{sW4}, 14")
    g(f"s_add_u32 s{sBASE0}, s{sBASE0}, s{sT1}")
    g(f"s_lshl_b32 s{sT1}, s{sN0}, 7")
    g(f"s_add_u32 s{sBASE0}, s{sBASE0}, s{sT1}")
    def bpart(pos):
        slot = ([4, 0, 1, 2] if NKS == 4 else [3, 4, 0, 1])[pos]
        g(f"s_add_u32 s{sT1}, s{sRT}, {pos}")
        g(f"s_and_b32 s{sT1}, s{sT1}, 3")
        g(f"s_lshl_b32 s{sT1}, s{sT1}, 19")
        g(f"s_add_u32 s{sT1}, s{sT1}, s{sBASE0}")
        for m in range(8):
            g.dma(vWOO, sWO, sT1, 32*m*2048, sLW1K, slot*32768 + 4096*m, bflag)
            Q.append(f"B{pos}")
    g.nonce_finish()
    g("s_barrier")
    g.ts(3)
    issue(nq1)
    g("s_barrier")
    g.ts(4)
    while len(order) - len(todo) < 3: issue(1)
    need("K0")
    g("s_barrier")
    g.ts(5)
    for s in range(0, 8):
        la = s + 1 + (NKS - 4)
        lim = order.index(f"V{la}") + 1 if la <= 7 else len(order)
        while len(order) - len(todo) < lim: issue(1)
        wopf(pfplan.get(s, 0))
        for pos in bplan.get(s, ()): bpart(pos)
        if s < 7: need(f"K{s+1}", f"V{s}")
        else: need("V7")
        if s >= 1: g.ts(6 + s, 2)
        g("s_barrier")
    g.ts(11, 3)
    for pos in bplan.get(8, ()): bpart(pos)
    if 9 in bplan:
        g("s_barrier")
        wopf(pfplan.get(9, 0))
        for pos in bplan[9]: bpart(pos)
    g.ts(6)
    if g.debug == 3:
        g("s_waitcnt vmcnt(16)"); g.ts(12, 3)
        g("s_waitcnt vmcnt(0)"); g.ts(13, 3)
    g("s_branch L_BACK")

    g.lab("L_CWAVE")
    g.srd(sWS, 30, WS_BYTES)
    g.srd(sDBG, 28, 256)
    g(f"s_or_b32 s{sT0}, s2, s{sWAVE}")
    g(f"s_cmp_lg_u32 s{sT0}, 0")
    g("s_cbranch_scc1 L_NOPUB")
    g(f"s_memrealtime s[{sN}:{sN+1}]")
    g("s_waitcnt lgkmcnt(0)")
    g(f"s_or_b32 s{sN}, s{sN}, 1")
    g(f"s_xor_b32 s{sN+1}, s{sN+1}, 0x5bd1e995")
    g(f"v_mov_b32 v{vNON}, s{sN}")
    g(f"v_mov_b32 v{vNON+1}, s{sN+1}")
    g(f"v_mov_b32 v{vA3}, 0")
    g(f"buffer_store_dwordx2 v[{vNON}:{vNON+1}], v{vA3}, s[{sDBG}:{sDBG+3}], 0 offen sc1")
    g.lab("L_NOPUB")
    if codepf:
        g(f"s_cmp_lg_u32 s{sWAVE}, 1")
        g("s_cbranch_scc1 L_NOPF")
        g(f"s_getpc_b64 s[{sPA}:{sPA+1}]")
        g.lab("L_PC")
        g(f"s_lshl_b32 s{sT0}, s{sI}, 10")
        g(f"s_min_u32 s{sT0}, s{sT0}, L_CODE_END-L_PC-1024")
        g(f"v_add_u32 v{vA0}, s{sT0}, v{vLANE16}")
        g(f"global_load_dwordx4 v[{vS}:{vS+3}], v{vA0}, s[{sPA}:{sPA+1}]")
        g.lab("L_NOPF")
    g.ts(0)
    g.srd(sOUT, 26, 8*32*1024*2)
    g(f"s_and_b32 s{sT0}, s{sW4}, 1")
    g(f"s_lshl_b32 s{sT0}, s{sT0}, 13")
    g("v_and_b32 v20, 31, v0")
    g("v_lshrrev_b32 v21, 5, v0")
    g("v_and_b32 v22, 15, v0")
    g("v_xor_b32 v22, v22, v21")
    g(f"v_lshlrev_b32 v23, 8, v20")
    g(f"v_add_u32 v23, s{sT0}, v23")
    for s in range(8):
        g(f"v_xor_b32 v24, {2*s}, v22")
        g(f"v_lshl_add_u32 v{vKA+s}, v24, 4, v23")
    g("v_and_b32 v20, 15, v0")
    g("v_lshrrev_b32 v22, 2, v20")
    g("v_lshl_add_u32 v23, v21, 3, v22")
    g("v_lshlrev_b32 v23, 7, v23")
    g("v_and_b32 v24, 1, v0")
    g("v_bfe_u32 v25, v0, 4, 1")
    g("v_lshl_add_u32 v24, v25, 1, v24")
    g(f"s_lshr_b32 s{sT0}, s{sW4}, 1")
    g(f"s_lshl_b32 s{sT0}, s{sT0}, 2")
    g(f"v_add_u32 v24, s{sT0}, v24")
    g("v_lshlrev_b32 v26, 1, v22")
    g("v_and_b32 v26, 4, v26")
    g("v_xor_b32 v24, v24, v26")
    g("v_lshl_add_u32 v23, v24, 4, v23")
    g("v_bfe_u32 v25, v0, 1, 1")
    g(f"v_lshl_add_u32 v{vVA}, v25, 3, v23")
    g(f"v_add_u32 v{vVA}, 16384, v{vVA}")
    acc = vO
    fr = 16
    cur = [0]
    def setbase(regs, want):
        if want != cur[0]:
            g(f"s_mov_b32 s{sT0}, {(want - cur[0]) & 0xffffffff:#x}")
            for r in regs: g(f"v_add_u32 v{r}, s{sT0}, v{r}")
            cur[0] = want
    for k in range(8):
        slot = qslot(k)
        setbase(list(range(vKA, vKA+8)) + [vVA], (slot >> 1) * 65536)
        io = (slot & 1) * 32768
        if k >= 1: g.ts(6 + k, 5)
        g("s_barrier")
        if k == 0: g.ts(1)
        def rd(s):
            b = fr + 8*s
            g(f"ds_read_b64_tr_b16 v[{b}:{b+1}], v{vVA} offset:{io + 2048*s}")
            g(f"ds_read_b64_tr_b16 v[{b+2}:{b+3}], v{vVA} offset:{io + 2048*s + 512}")
            g(f"ds_read_b128 v[{b+4}:{b+7}], v{vKA+s} offset:{io}")
        for s in range(5): rd(s)
        for s in range(8):
            g(f"s_waitcnt lgkmcnt({min(4, 7 - s) * 3})")
            mfma(g, acc, fr + 8*s, fr + 8*s + 4, None if (k == 0 and s == 0) else acc)
            if s + 5 < 8: rd(s + 5)
    g.ts(2)
    g.nonce_issue()
    g(f"s_and_b32 s{sT0}, s{sW4}, 1")
    g(f"s_lshl_b32 s{sT1}, s{sRT}, 1")
    g(f"s_add_u32 s{sT1}, s{sT1}, s{sT0}")
    g(f"s_lshl_b32 s{sT1}, s{sT1}, 5")
    g(f"s_lshr_b32 s{sT2}, s{sCT}, 1")
    g(f"s_add_u32 s{sT1}, s{sT1}, s{sT2}")
    g(f"s_and_b32 s{sT2}, s{sCT}, 1")
    g(f"s_lshl_b32 s{sT2}, s{sT2}, 1")
    g(f"s_lshr_b32 s{sT3}, s{sW4}, 1")
    g(f"s_add_u32 s{sT2}, s{sT2}, s{sT3}")
    g(f"s_lshl_b32 s{sBASE0}, s{sT1}, 13")
    g(f"s_lshl_b32 s{sT3}, s{sT2}, 11")
    g(f"s_add_u32 s{sBASE0}, s{sBASE0}, s{sT3}")
    g(f"s_mul_i32 s{sBASE1}, s{sT1}, {FS}")
    g(f"s_lshl_b32 s{sT3}, s{sT2}, 3")
    g(f"s_add_u32 s{sBASE1}, s{sBASE1}, s{sT3}")
    g(f"s_add_u32 s{sBASE1}, s{sBASE1}, {F1:#x}")
    g(f"s_mov_b32 s{sT0}, {f2u(C_SCALE):#x}")
    for u in range(16):
        g(f"v_mul_f32 v{acc+u}, s{sT0}, v{acc+u}")
    for u in range(8):
        g(f"v_cvt_pk_bf16_f32 v{16+u}, v{acc+2*u}, v{acc+2*u+1}")
    g(f"buffer_store_dwordx4 v[16:19], v{vLANE16}, s[{sWS}:{sWS+3}], s{sBASE0} offen sc1")
    g(f"buffer_store_dwordx4 v[20:23], v{vLANE16}, s[{sWS}:{sWS+3}], s{sBASE0} offen offset:1024 sc1")
    att_setup(g)
    g(f"s_lshl_b32 s{sT2}, s{sGH}, 2")
    g(f"s_add_u32 s{sT2}, s{sT2}, s{sW4}")
    g(f"s_lshl_b32 s{sBASE0}, s{sT2}, 13")
    g(f"s_mul_i32 s{sT2}, s{sT2}, {FS}")
    g(f"s_add_u32 s{sT2}, s{sT2}, {F1:#x}")
    g.nonce_finish()
    g("s_waitcnt vmcnt(0)")
    g.flag(sBASE1)
    g("s_barrier")
    g.ts(3)
    g.spoll4(sT2)
    g.ts(4)
    for s in range(8):
        if s == 4: g(f"s_add_u32 s{sBASE0}, s{sBASE0}, 4096")
        g(f"buffer_load_dwordx4 v[{vQ+4*s}:{vQ+4*s+3}], v{vLANE16}, s[{sWS}:{sWS+3}], s{sBASE0} offen offset:{1024*(s&3)} {qf}")
    g("s_barrier")
    if cprio: g(f"s_setprio {cprio}")
    g("s_barrier")
    att_loop(g, dict(nks=NKS))
    g.ts(6)
    if g.debug and g.debug != 9:
        g("s_memtime s[100:101]")
        g("s_waitcnt lgkmcnt(0)")
        g(f"s_sub_u32 s{sTS+15}, s100, s{sTS+15}")
    if cprio: g("s_setprio 0")
    LSC = 98304 if NKS == 4 else 65536
    g(f"s_lshl_b32 s{sBASE0}, s{sGH}, 17")
    g(f"s_lshl_b32 s{sT0}, s{sW4}, 13")
    g(f"s_add_u32 s{sBASE0}, s{sBASE0}, s{sT0}")
    g(f"s_lshl_b32 s{sT0}, s{sKQ}, 10")
    g(f"s_add_u32 s{sBASE0}, s{sBASE0}, s{sT0}")
    g(f"s_add_u32 s{sBASE0}, s{sBASE0}, {PO:#x}")
    g(f"s_lshl_b32 s{sT1}, s{sGH}, 2")
    g(f"s_add_u32 s{sT1}, s{sT1}, s{sW4}")
    g(f"s_lshl_b32 s{sT2}, s{sT1}, 10")
    g(f"s_lshl_b32 s{sT3}, s{sKQ}, 8")
    g(f"s_add_u32 s{sT2}, s{sT2}, s{sT3}")
    g(f"s_add_u32 s{sT2}, s{sT2}, {ST:#x}")
    g(f"v_and_b32 v{vA0}, 31, v0")
    g(f"v_lshlrev_b32 v{vA0}, 3, v{vA0}")
    g(f"s_lshl_b32 s{sT3}, s{sW4}, 11")
    g(f"s_add_u32 s{sT3}, s{sT3}, {LSC}")
    g(f"v_add_u32 v{vA1}, s{sT3}, v{vLANE16}")
    g(f"s_lshl_b32 s{sT3}, s{sW4}, 8")
    g(f"s_add_u32 s{sT3}, s{sT3}, {LSC + 8192}")
    g(f"v_add_u32 v{vA2}, s{sT3}, v{vA0}")
    g(f"v_sub_f32 v{vT0}, 0, v{vNEG}")
    for o in range(4):
        for fi in range(2):
            f = 2*o + fi; src = vO + 8*f; dst = vKR + 4*f
            for u in range(4):
                g(f"v_cvt_pk_bf16_f32 v{dst+u}, v{src+2*u}, v{src+2*u+1}")
        lo = g.newlab("LOC"); nx = g.newlab("NXT")
        dst = vKR + 8*o
        g(f"s_cmp_eq_u32 s{sKQ}, {o}")
        g(f"s_cbranch_scc1 {lo}")
        g(f"s_add_u32 s{sT0}, s{sBASE0}, {o*32768:#x}")
        g(f"s_add_u32 s{sT3}, s{sBASE0}, {o*32768 + 4096:#x}")
        g(f"buffer_store_dwordx4 v[{dst}:{dst+3}], v{vLANE16}, s[{sWS}:{sWS+3}], s{sT0} offen {wf}")
        g(f"buffer_store_dwordx4 v[{dst+4}:{dst+7}], v{vLANE16}, s[{sWS}:{sWS+3}], s{sT3} offen {wf}")
        g(f"s_branch {nx}")
        g.lab(lo)
        g(f"ds_write_b128 v{vA1}, v[{dst}:{dst+3}]")
        g(f"ds_write_b128 v{vA1}, v[{dst+4}:{dst+7}] offset:1024")
        g.lab(nx)
        if o == 0:
            g(f"v_mov_b32 v{vT1}, v{vLS}")
            g(f"buffer_store_dwordx2 v[{vT0}:{vT1}], v{vA0}, s[{sWS}:{sWS+3}], s{sT2} offen {wf}")
            g(f"ds_write_b64 v{vA2}, v[{vT0}:{vT1}]")
    if 9 in bplan: g("s_barrier")

    g.lab("L_BACK")
    sBB, sHP = sCT, sK0
    g(f"s_and_b32 s{sBB}, s{sWAVE}, 1")
    g(f"s_lshr_b32 s{sHP}, s{sWAVE}, 1")
    g(f"s_sub_u32 s{sT0}, s{sHP}, s{sRT}")
    g(f"s_and_b32 s{sT0}, s{sT0}, 3")
    if NKS == 4:
        g(f"s_sub_u32 s{sT2}, s{sT0}, 1")
        g(f"s_cmp_eq_u32 s{sT0}, 0")
        g(f"s_cselect_b32 s{sT2}, 4, s{sT2}")
    else:
        g(f"s_sub_u32 s{sT2}, s{sT0}, 2")
        g(f"s_add_u32 s{sT3}, s{sT0}, 3")
        g(f"s_cmp_lt_u32 s{sT0}, 2")
        g(f"s_cselect_b32 s{sT2}, s{sT3}, s{sT2}")
    g(f"s_lshl_b32 s{sT2}, s{sT2}, 15")
    g("v_lshrrev_b32 v4, 5, v0")
    g("v_bfe_u32 v5, v0, 2, 2")
    g("v_lshl_add_u32 v6, v4, 2, v5")
    g("v_lshlrev_b32 v6, 7, v6")
    g("v_and_b32 v7, 1, v0")
    g("v_lshl_add_u32 v6, v7, 3, v6")
    g(f"v_add_u32 v6, s{sT2}, v6")
    g("v_bfe_u32 v7, v0, 1, 1")
    g("v_bfe_u32 v8, v0, 4, 1")
    g("v_lshl_add_u32 v7, v8, 1, v7")
    g("v_lshlrev_b32 v5, 1, v5")
    g("v_and_b32 v5, 4, v5")
    g("v_xor_b32 v7, v7, v5")
    g(f"v_lshl_add_u32 v{vKA}, v7, 4, v6")
    g("v_xor_b32 v7, 4, v7")
    g(f"v_lshl_add_u32 v{vKA+1}, v7, 4, v6")
    g(f"s_lshl_b32 s{sT1}, s{sGH}, 2")
    g(f"s_add_u32 s{sT1}, s{sT1}, s{sW4}")
    g(f"s_lshl_b32 s{sBASE1}, s{sT1}, 10")
    g(f"s_add_u32 s{sBASE1}, s{sBASE1}, {ST:#x}")
    g(f"s_lshl_b32 s{sBASE0}, s{sGH}, 17")
    g(f"s_lshl_b32 s{sT0}, s{sKQ}, 15")
    g(f"s_add_u32 s{sBASE0}, s{sBASE0}, s{sT0}")
    g(f"s_lshl_b32 s{sT0}, s{sW4}, 13")
    g(f"s_add_u32 s{sBASE0}, s{sBASE0}, s{sT0}")
    g(f"s_lshl_b32 s{sT0}, s{sROLE}, 12")
    g(f"s_add_u32 s{sBASE0}, s{sBASE0}, s{sT0}")
    g(f"s_add_u32 s{sBASE0}, s{sBASE0}, {PO:#x}")
    g(f"v_and_b32 v{vA0}, 31, v0")
    g(f"v_lshlrev_b32 v{vA0}, 3, v{vA0}")
    g(f"s_lshl_b32 s{sT0}, s{sW4}, 11")
    g(f"s_lshl_b32 s{sT2}, s{sROLE}, 10")
    g(f"s_add_u32 s{sT0}, s{sT0}, s{sT2}")
    g(f"s_add_u32 s{sT0}, s{sT0}, {LSC}")
    g(f"v_add_u32 v{vA1}, s{sT0}, v{vLANE16}")
    g(f"s_lshl_b32 s{sT0}, s{sW4}, 8")
    g(f"s_add_u32 s{sT0}, s{sT0}, {LSC + 8192}")
    g(f"v_add_u32 v{vA2}, s{sT0}, v{vA0}")
    g(f"s_mul_i32 s{sT2}, s{sGH}, {FS}")
    g(f"s_add_u32 s{sT2}, s{sT2}, {F2:#x}")
    g(f"s_lshl_b32 s{sT3}, s{sKQ}, 3")
    g(f"s_add_u32 s{sT3}, s{sT3}, s{sT2}")
    g("s_waitcnt vmcnt(0) lgkmcnt(0)")
    g.ts(7)
    g("s_barrier")
    g.ts(7, 4)
    g(f"s_cmp_lg_u32 s{sWAVE}, {pw2}")
    g("s_cbranch_scc1 L_NOF2")
    g.flag2(sT3) if f2fast else g.flag(sT3)
    g.lab("L_NOF2")
    g(f"ds_read_b64 v[16:17], v{vA2}")
    g(f"ds_read_b128 v[48:51], v{vA1}")
    vB = 112
    cnt = 0
    for n in range(16):
        for nt in range(2):
            b = vB + (n*2+nt)*4
            g(f"ds_read_b64_tr_b16 v[{b}:{b+1}], v{vKA+nt} offset:{2048*n}")
            g(f"ds_read_b64_tr_b16 v[{b+2}:{b+3}], v{vKA+nt} offset:{2048*n+1024}")
            cnt += 2
            if cnt % 8 == 0: g("s_waitcnt lgkmcnt(5)")
    g("s_waitcnt lgkmcnt(0)")
    g(f"s_cmp_lg_u32 s{sWAVE}, {pw2}")
    g("s_cbranch_scc1 L_NOP2")
    g.vpoll4(sT2, vp) if vp else g.spoll4(sT2)
    g.lab("L_NOP2")
    g("s_barrier")
    g.ts(8); g.ts(8, 4)
    for e in range(1, 4):
        g(f"s_add_u32 s{sT0}, s{sKQ}, {e}")
        g(f"s_and_b32 s{sT0}, s{sT0}, 3")
        g(f"s_lshl_b32 s{sT2}, s{sT0}, 8")
        g(f"s_add_u32 s{sT2}, s{sT2}, s{sBASE1}")
        g(f"buffer_load_dwordx2 v[{16+2*e}:{17+2*e}], v{vA0}, s[{sWS}:{sWS+3}], s{sT2} offen {rf}")
    for e in range(1, 4):
        g(f"s_add_u32 s{sT0}, s{sKQ}, {e}")
        g(f"s_and_b32 s{sT0}, s{sT0}, 3")
        g(f"s_lshl_b32 s{sT2}, s{sT0}, 10")
        g(f"s_add_u32 s{sT2}, s{sT2}, s{sBASE0}")
        g(f"buffer_load_dwordx4 v[{48+4*e}:{51+4*e}], v{vLANE16}, s[{sWS}:{sWS+3}], s{sT2} offen {rf}")
    g(f"s_lshl_b32 s{sT0}, s{sT1}, 13")
    g(f"s_lshl_b32 s{sT2}, s{sKQ}, 11")
    g(f"s_add_u32 s{sT0}, s{sT0}, s{sT2}")
    g(f"s_lshl_b32 s{sT2}, s{sROLE}, 10")
    g(f"s_add_u32 s{sT0}, s{sT0}, s{sT2}")
    g(f"s_add_u32 s{sT1}, s{sT0}, {OF:#x}")
    g(f"s_lshl_b32 s{sT0}, s{sRT}, 1")
    g(f"s_add_u32 s{sT0}, s{sT0}, s{sBB}")
    g(f"s_lshl_b32 s{sT0}, s{sT0}, 2")
    g(f"s_add_u32 s{sT0}, s{sT0}, s{sOH}")
    g(f"s_lshl_b32 s{sBASE0}, s{sT0}, 16")
    g(f"s_lshl_b32 s{sT2}, s{sHP}, 14")
    g(f"s_add_u32 s{sBASE0}, s{sBASE0}, s{sT2}")
    g(f"s_add_u32 s{sBASE0}, s{sBASE0}, {OF:#x}")
    g(f"s_mul_i32 s{sT2}, s{sGH}, {16*FS}")
    g(f"s_lshl_b32 s{sT3}, s{sKQ}, 3")
    g(f"s_add_u32 s{sT2}, s{sT2}, s{sT3}")
    g(f"s_add_u32 s{sT2}, s{sT2}, {F3:#x}")
    g(f"v_mul_u32_u24 v{vA3}, {FS}, v0")
    g(f"v_add_u32 v{vA3}, s{sT2}, v{vA3}")
    g(f"s_lshl_b32 s{sT0}, s{sRT}, 3")
    g(f"s_add_u32 s{sT0}, s{sT0}, s{sOH}")
    g(f"s_lshl_b32 s{sT0}, s{sT0}, 5")
    g(f"s_add_u32 s{sT0}, s{sT0}, s{sN0}")
    g(f"s_mul_i32 s{sBASE1}, s{sT0}, {FS}")
    g(f"s_add_u32 s{sBASE1}, s{sBASE1}, {F3:#x}")
    for u in range(4):
        g(f"v_lshlrev_b32 v{32+2*u}, 16, v{48+u}")
        g(f"v_and_b32 v{33+2*u}, 0xffff0000, v{48+u}")
    g("s_waitcnt vmcnt(3)")
    g.ts(9, 4)
    g("v_max3_f32 v24, v16, v18, v20")
    g("v_max_f32 v24, v22, v24")
    for s in range(4): g(f"v_sub_f32 v{16+2*s}, v{16+2*s}, v24")
    for s in range(4): g(f"v_exp_f32 v{16+2*s}, v{16+2*s}")
    g("s_nop 0")
    g("v_mul_f32 v24, v16, v17")
    g("v_fmac_f32 v24, v18, v19")
    g("v_fmac_f32 v24, v20, v21")
    g("v_fmac_f32 v24, v22, v23")
    g("v_rcp_f32 v24, v24")
    g("s_nop 0")
    for s in range(4): g(f"v_mul_f32 v{16+2*s}, v{16+2*s}, v24")
    for c in range(8): g(f"v_mul_f32 v{32+c}, v{32+c}, v16")
    if debug == 4:
        g("s_waitcnt vmcnt(0)"); g.ts(10, 4)
    for s in range(1, 4):
        g(f"s_waitcnt vmcnt({3 - s})")
        for u in range(4):
            src = 48 + 4*s + u
            g(f"v_lshlrev_b32 v28, 16, v{src}")
            g(f"v_and_b32 v29, 0xffff0000, v{src}")
            g(f"v_fmac_f32 v{32+2*u}, v28, v{16+2*s}")
            g(f"v_fmac_f32 v{33+2*u}, v29, v{16+2*s}")
    for u in range(4):
        g(f"v_cvt_pk_bf16_f32 v{40+u}, v{32+2*u}, v{33+2*u}")
    g.ts(11, 4)
    g(f"buffer_store_dwordx4 v[40:43], v{vLANE16}, s[{sWS}:{sWS+3}], s{sT1} offen {wf}")
    g("s_waitcnt vmcnt(0)")
    g.ts(12, 4)
    g("s_barrier")
    g.ts(13, 4)
    g.ts(9)
    g(f"s_cmp_lg_u32 s{sWAVE}, 4")
    g("s_cbranch_scc1 L_NOP3")
    g("s_mov_b64 exec, 0xffff")
    g(f"buffer_store_dwordx2 v[{vNON}:{vNON+1}], v{vA3}, s[{sWS}:{sWS+3}], 0 offen sc1")
    g("s_mov_b64 exec, -1")
    if not f3wave: g.spollN(sBASE1, (0, 16*FS, 128*FS, 144*FS))
    g.lab("L_NOP3")
    g(f"s_lshl_b32 s{sT0}, s{sWAVE}, 13")
    g(f"v_add_u32 v{vA0}, s{sT0}, v{vLANE16}")
    g(f"s_lshl_b32 s{sT0}, s{sBB}, 13")
    g(f"s_lshl_b32 s{sT1}, s{sHP}, 11")
    g(f"s_add_u32 s{sT0}, s{sT0}, s{sT1}")
    g(f"v_add_u32 v{vA1}, s{sT0}, v{vLANE16}")
    if aprio:
        g(f"s_xor_b32 s{sT0}, s{sN0}, s{sROLE}")
        g(f"s_bitcmp1_b32 s{sT0}, 0")
        g("s_cbranch_scc0 L_NOPRIO")
        g("s_setprio 3")
        g.lab("L_NOPRIO")
    if f3wave:
        g(f"s_mul_i32 s{sT0}, s{sBB}, {128*FS}")
        g(f"s_mul_i32 s{sT1}, s{sROLE}, {16*FS}")
        g(f"s_add_u32 s{sBASE1}, s{sBASE1}, s{sT0}")
        g(f"s_add_u32 s{sBASE1}, s{sBASE1}, s{sT1}")
        g.vpoll4(sBASE1, vp) if vp else g.spoll4(sBASE1)
    else:
        g("s_barrier")
    g.ts(10)
    vA = 16
    if apf:
        g(f"s_and_b32 s{sT0}, s{sN0}, 7")
        g(f"s_lshl_b32 s{sT0}, s{sT0}, 11")
        g(f"s_add_u32 s{sT0}, s{sT0}, s{sBASE0}")
        g(f"buffer_load_dwordx4 v[4:7], v{vLANE16}, s[{sWS}:{sWS+3}], s{sT0} offen {rf}")
        g(f"buffer_load_dwordx4 v[4:7], v{vLANE16}, s[{sWS}:{sWS+3}], s{sT0} offen offset:1024 {rf}")
    for n in range(16):
        if n and n % 4 == 0: g(f"s_add_u32 s{sBASE0}, s{sBASE0}, 4096")
        g(f"buffer_load_dwordx4 v[{vA+4*n}:{vA+4*n+3}], v{vLANE16}, s[{sWS}:{sWS+3}], s{sBASE0} offen offset:{1024*(n&3)} {rf}")
    g(f"s_lshl_b32 s{sT2}, s{sBB}, 1")
    g(f"s_lshr_b32 s{sT3}, s{sHP}, 1")
    g(f"s_add_u32 s{sT2}, s{sT2}, s{sT3}")
    g(f"s_lshl_b32 s{sT0}, s{sRT}, 4")
    g(f"s_add_u32 s{sT0}, s{sT0}, s{sN0}")
    g(f"s_lshl_b32 s{sT0}, s{sT0}, 2")
    g(f"s_add_u32 s{sT0}, s{sT0}, s{sT2}")
    g(f"s_lshl_b32 s{sT0}, s{sT0}, 1")
    g(f"s_and_b32 s{sT1}, s{sHP}, 1")
    g(f"s_add_u32 s{sT0}, s{sT0}, s{sT1}")
    g(f"s_lshl_b32 s{sBASE0}, s{sT0}, 14")
    g(f"s_add_u32 s{sBASE0}, s{sBASE0}, {OP:#x}")
    g(f"s_mul_i32 s{sBASE1}, s{sT0}, {FS}")
    g(f"s_add_u32 s{sBASE1}, s{sBASE1}, {F4:#x}")
    g(f"s_lshl_b32 s{sT3}, s{sOH}, 3")
    g(f"s_add_u32 s{sT3}, s{sT3}, s{sBASE1}")
    vD = 80
    for n in range(16):
        g(f"s_waitcnt vmcnt({15-n})")
        for nt in range(2):
            mfma(g, vD+16*nt, vB + (n*2+nt)*4, vA+4*n, None if n == 0 else vD+16*nt)
    g.ts(11)
    g(f"v_mov_b32 v51, s{sN}")
    g(f"v_mov_b32 v55, s{sN}")
    g(f"v_mov_b32 v58, 0")
    g(f"v_mov_b32 v59, s{sN}")
    g("v_and_b32 v24, 31, v0")
    g("v_lshrrev_b32 v25, 5, v0")
    g("v_lshlrev_b32 v24, 11, v24")
    g(f"v_lshl_add_u32 v{vA2}, v25, 3, v24")
    g("s_nop 2")
    for q in range(8):
        g(f"ds_write_b128 v{vA0}, v[{vD+4*q}:{vD+4*q+3}] offset:{1024*q}")
    g("s_waitcnt lgkmcnt(0)")
    g("s_barrier")
    for hp2 in range(4):
        for e in range(2):
            g(f"ds_read_b128 v[{16+8*hp2+4*e}:{19+8*hp2+4*e}], v{vA1} offset:{16384*hp2 + 1024*e}")
    res = [48, 49, 50, 52, 53, 54, 56, 57]
    g("s_waitcnt lgkmcnt(4)")
    for c in range(8): g(f"v_add_f32 v{16+c}, v{16+c}, v{24+c}")
    g("s_waitcnt lgkmcnt(0)")
    for c in range(8): g(f"v_add_f32 v{32+c}, v{32+c}, v{40+c}")
    for c in range(8): g(f"v_add_f32 v{res[c]}, v{16+c}, v{32+c}")
    g.ts(12)
    g(f"s_cmp_eq_u32 s{sT2}, s{sOH}")
    g("s_cbranch_scc1 L_OWN")
    g(f"s_lshl_b32 s{sT0}, s{sOH}, 12")
    g(f"s_add_u32 s{sT0}, s{sT0}, s{sBASE0}")
    for j in range(3):
        g(f"buffer_store_dwordx4 v[{48+4*j}:{51+4*j}], v{vLANE16}, s[{sWS}:{sWS+3}], s{sT0} offen offset:{1024*j} {wf}")
    if ophint: g.flag(sT3)
    g("s_branch L_FIN")
    g.lab("L_OWN")
    if ophint: g.flag(sT3)
    g(f"s_lshl_b32 s{sT2}, s{sRT}, 1")
    g(f"s_add_u32 s{sT2}, s{sT2}, s{sBB}")
    g(f"s_lshl_b32 s{sT2}, s{sT2}, 16")
    g(f"s_lshl_b32 s{sT1}, s{sN0}, 7")
    g(f"s_add_u32 s{sT2}, s{sT2}, s{sT1}")
    g(f"s_lshl_b32 s{sT1}, s{sHP}, 5")
    g(f"s_add_u32 s{sT2}, s{sT2}, s{sT1}")
    if ophint: g.vpoll4(sBASE1, vp) if vp else g.spoll4(sBASE1)
    g.ts(13)
    g(f"s_mov_b32 s{sCNT}, 0")
    g.lab("L_OPL")
    for e in range(1, 4):
        g(f"s_add_u32 s{sT0}, s{sOH}, {e}")
        g(f"s_and_b32 s{sT0}, s{sT0}, 3")
        g(f"s_lshl_b32 s{sT0}, s{sT0}, 12")
        g(f"s_add_u32 s{sT0}, s{sT0}, s{sBASE0}")
        for j in range(3):
            r = 60 + 12*(e-1) + 4*j
            g(f"buffer_load_dwordx4 v[{r}:{r+3}], v{vLANE16}, s[{sWS}:{sWS+3}], s{sT0} offen offset:{1024*j} {rf}")
    g(f"s_add_u32 s{sCNT}, s{sCNT}, 1")
    g("s_waitcnt vmcnt(0)")
    tags = [63 + 4*k for k in range(9)]
    g(f"v_min3_u32 v16, v{tags[0]}, v{tags[1]}, v{tags[2]}")
    g(f"v_max3_u32 v17, v{tags[0]}, v{tags[1]}, v{tags[2]}")
    for k in (3, 5, 7):
        g(f"v_min3_u32 v16, v{tags[k]}, v{tags[k+1]}, v16")
        g(f"v_max3_u32 v17, v{tags[k]}, v{tags[k+1]}, v17")
    g(f"v_xor_b32 v16, s{sN}, v16")
    g(f"v_xor_b32 v17, s{sN}, v17")
    g("v_or_b32 v16, v16, v17")
    g("v_cmp_ne_u32 vcc, 0, v16")
    g("s_cbranch_vccz L_OPD")
    g(f"s_cmp_lt_u32 s{sCNT}, {g.limit:#x}")
    g("s_cbranch_scc1 L_OPL")
    g.lab("L_OPD")
    for e in range(3):
        for c in range(8):
            g(f"v_add_f32 v{res[c]}, v{res[c]}, v{res[c] + 12*(e+1)}")
    for u in range(4):
        g(f"v_cvt_pk_bf16_f32 v{16+u}, v{res[2*u]}, v{res[2*u+1]}")
    g(f"buffer_store_dwordx2 v[16:17], v{vA2}, s[{sOUT}:{sOUT+3}], s{sT2} offen {outflag}")
    g(f"buffer_store_dwordx2 v[18:19], v{vA2}, s[{sOUT}:{sOUT+3}], s{sT2} offen offset:16 {outflag}")
    g.lab("L_FIN")
    if span:
        g("s_waitcnt vmcnt(0)")
        g("s_memrealtime s[100:101]")
        g.srd(sDBG, 28, 256)
        g("s_waitcnt lgkmcnt(0)")
        g(f"s_sub_u32 s100, s100, s{sN}")
        g("v_mov_b32 v16, s100")
        g(f"s_lshl_b32 s{sT0}, s{sXCD}, 2")
        g(f"s_add_u32 s{sT0}, s{sT0}, 8")
        g(f"v_mov_b32 v17, s{sT0}")
        g("s_mov_b64 exec, 1")
        g(f"buffer_atomic_umax v16, v17, s[{sDBG}:{sDBG+3}], 0 offen")
    if debug:
        g("s_waitcnt vmcnt(0)")
        g.ts(14)
        g(f"s_lshl_b32 s{sT0}, s2, 3")
        g(f"s_add_u32 s{sT0}, s{sT0}, s{sWAVE}")
        g(f"s_lshl_b32 s{sT0}, s{sT0}, 6")
        g(f"s_add_u32 s{sT0}, s{sT0}, {TSB:#x}")
        g(f"v_mov_b32 v{vA3}, s{sT0}")
        g("s_mov_b64 exec, 1")
        for n in range(16):
            g(f"v_mov_b32 v{16+n}, s{sTS+n}")
            g(f"buffer_store_dword v{16+n}, v{vA3}, s[{sWS}:{sWS+3}], 0 offen offset:{4*n}")
    g.lab("L_END")
    g("s_endpgm")
    rare_path(g)
    g.lab("L_CODE_END")
    hdr = f"""; Fused Q-projection + sliding-window GQA attention + output projection (generated by gen/gen2.py)
; @launch grid=(256,1,1) block=(512,1,1) lds=163840
.amdgcn_target "amdgcn-amd-amdhsa--gfx950"
.text
.globl {NAME}
.p2align 8
.type {NAME},@function
{NAME}:
"""
    ftr = f"""
.section .rodata,"a"
.p2align 6
.amdhsa_kernel {NAME}
  .amdhsa_next_free_vgpr 256
  .amdhsa_next_free_sgpr 102
  .amdhsa_accum_offset 256
  .amdhsa_group_segment_fixed_size 0
  .amdhsa_kernarg_size 64
  .amdhsa_user_sgpr_count 2
  .amdhsa_user_sgpr_kernarg_segment_ptr 1
  .amdhsa_system_sgpr_workgroup_id_x 1
.end_amdhsa_kernel
"""
    return hdr + "\n".join(g.L) + ftr

if __name__ == "__main__":
    import argparse
    ap = argparse.ArgumentParser()
    ap.add_argument("-o", default="standalone__sliding_block_cached__sampling.s")
    ap.add_argument("--debug", type=int, default=0)
    ap.add_argument("--la", type=int, default=2)
    ap.add_argument("--cprio", type=int, default=1)
    ap.add_argument("--norot", action="store_true")
    ap.add_argument("--xnt", action="store_true")
    ap.add_argument("--nocodepf", action="store_true")
    ap.add_argument("--kw", default="")
    a = ap.parse_args()
    kw = eval("dict(" + a.kw + ")")
    open(a.o, "w").write(gen(debug=a.debug, LA=a.la, cprio=a.cprio, rot=not a.norot, xnt=a.xnt, codepf=not a.nocodepf, **kw))
```

```python
import struct, math, sys

NAME = "standalone__sliding_block_cached__sampling_kernel"
C_SCALE = math.log2(math.e) / math.sqrt(128.0)
def f2u(x): return struct.unpack("<I", struct.pack("<f", x))[0]
THR = 10.0

QF   = 0x0000000
OF   = 0x0200000
PO   = 0x0400000
ST   = 0x0C00000
FS   = 1152
F1   = 0x2000000
F2   = 0x2200000
F3   = 0x2300000
F4   = 0x2800000
OP   = 0x0E00000
TSB  = 0x1600000
WS_BYTES = 268435456

sXCD, sI, sWAVE, sW4, sROLE = 3, 4, 5, 6, 7
sT0, sT1, sT2, sT3 = 8, 9, 10, 11
sCNT, sLW1K, sG, sKQ = 12, 13, 14, 15
sX, sK, sV, sWQ, sWO, sOUT, sDBG, sWS = 32, 36, 40, 44, 48, 52, 56, 60
sBASE0, sBASE1, sCT, sRT = 64, 65, 66, 67
sHQ, sKV = 68, 69
sN = 70
sPA = 72
sK0 = 74
sGH = 75
sEX = 76
sRET = 78
sPD = 16
sTS = 80
sN0, sOH, sRP = 96, 97, 98
sTHR = 99

vLANE16 = 1
vKA, vVA = 2, 10
vT0, vT1 = 14, 15
vKR, vVR, vQ, vO, vS, vP, vNEG, vLS, vONE = 16, 48, 80, 112, 176, 208, 224, 240, 244
vTM, vT2 = 248, 249
vNON = 250
vA0, vA1, vA2, vA3 = 252, 253, 254, 255

class G:
    def __init__(self, debug=False, limit=1 << 21):
        self.L = []; self.debug = debug; self.nlab = 0; self.limit = limit
    def __call__(self, s): self.L.append("  " + s)
    def lab(self, s): self.L.append(s + ":")
    def newlab(self, p="L"):
        self.nlab += 1; return f"{p}_{self.nlab}"
    def ts(self, n, lvl=1):
        if self.debug == 9 and n not in (0, 14): return
        if self.debug >= 2 and lvl == 1 and 7 <= n <= 13: return
        if lvl >= 2 and self.debug != lvl: return
        if self.debug:
            self(f"s_memrealtime s[100:101]")
            self("s_waitcnt lgkmcnt(0)")
            self(f"s_mov_b32 s{sTS+n}, s100")
    def srd(self, d, p, nbytes):
        self(f"s_mov_b32 s{d}, s{p}")
        self(f"s_and_b32 s{d+1}, s{p+1}, 0xffff")
        self(f"s_mov_b32 s{d+2}, {nbytes:#x}")
        self(f"s_mov_b32 s{d+3}, 0x20000")
    def dma(self, voff, srd, sbase, soff_const, m0base, m0_const, flags=""):
        self(f"s_add_u32 m0, s{m0base}, {m0_const:#x}")
        self(f"s_add_u32 s{sT0}, s{sbase}, {soff_const:#x}")
        self(f"buffer_load_dwordx4 v{voff}, s[{srd}:{srd+3}], s{sT0} offen {flags} lds".replace("  ", " "))
    def spoll4(self, soff):
        l = self.newlab("POLL"); d = self.newlab("POLLD")
        self(f"s_add_u32 s{sPA}, s{sWS}, s{soff}")
        self(f"s_addc_u32 s{sPA+1}, s{sWS+1}, 0")
        self(f"s_mov_b32 s{sCNT}, 0")
        self.lab(l)
        self(f"s_load_dwordx8 s[{sPD}:{sPD+7}], s[{sPA}:{sPA+1}], 0 glc")
        self(f"s_add_u32 s{sCNT}, s{sCNT}, 1")
        self(f"s_cmp_ge_u32 s{sCNT}, {self.limit:#x}")
        self("s_waitcnt lgkmcnt(0)")
        self(f"s_cbranch_scc1 {d}")
        for q in range(4):
            self(f"s_cmp_eq_u64 s[{sPD+2*q}:{sPD+2*q+1}], s[{sN}:{sN+1}]")
            self(f"s_cbranch_scc0 {l}")
        self.lab(d)
    def vpoll4(self, soff, flags):
        l = self.newlab("POLL"); d = self.newlab("POLLD")
        self("v_and_b32 v10, 3, v0")
        self("v_lshlrev_b32 v10, 3, v10")
        self(f"s_mov_b32 s{sCNT}, 0")
        self.lab(l)
        self(f"buffer_load_dwordx2 v[12:13], v10, s[{sWS}:{sWS+3}], s{soff} offen {flags}")
        self(f"s_add_u32 s{sCNT}, s{sCNT}, 1")
        self("s_waitcnt vmcnt(0)")
        self(f"v_cmp_ne_u64 vcc, s[{sN}:{sN+1}], v[12:13]")
        self(f"s_cbranch_vccz {d}")
        self(f"s_cmp_lt_u32 s{sCNT}, {self.limit:#x}")
        self(f"s_cbranch_scc1 {l}")
        self.lab(d)
    def spoll4x2(self, soff):
        l = self.newlab("POLL"); d = self.newlab("POLLD")
        self(f"s_add_u32 s{sPA}, s{sWS}, s{soff}")
        self(f"s_addc_u32 s{sPA+1}, s{sWS+1}, 0")
        self(f"s_mov_b32 s{sCNT}, 0")
        self.lab(l)
        self(f"s_load_dwordx8 s[16:23], s[{sPA}:{sPA+1}], 0x80 glc")
        self(f"s_add_u32 s{sCNT}, s{sCNT}, 1")
        self(f"s_and_b32 s32, s{sCNT}, 3")
        self(f"s_cmp_lg_u32 s32, 0")
        n = self.newlab("POLLF")
        self(f"s_cbranch_scc1 {n}")
        self("s_waitcnt lgkmcnt(0)")
        self(f"s_load_dwordx8 s[16:23], s[{sPA}:{sPA+1}], 0 glc")
        self.lab(n)
        self(f"s_cmp_ge_u32 s{sCNT}, {self.limit:#x}")
        self("s_waitcnt lgkmcnt(0)")
        self(f"s_cbranch_scc1 {d}")
        for q in range(4):
            self(f"s_cmp_eq_u64 s[{16+2*q}:{17+2*q}], s[{sN}:{sN+1}]")
            self(f"s_cbranch_scc0 {l}")
        self.lab(d)
    def flag2(self, saddr):
        self(f"v_mov_b32 v{vA3}, s{saddr}")
        self(f"s_mov_b64 s[{sEX}:{sEX+1}], exec")
        self("s_mov_b64 exec, 1")
        self(f"buffer_store_dwordx2 v[{vNON}:{vNON+1}], v{vA3}, s[{sWS}:{sWS+3}], 0 offen offset:128")
        self(f"buffer_store_dwordx2 v[{vNON}:{vNON+1}], v{vA3}, s[{sWS}:{sWS+3}], 0 offen sc1")
        self(f"s_mov_b64 exec, s[{sEX}:{sEX+1}]")
    def spollN(self, soff, deltas):
        l = self.newlab("POLL"); d = self.newlab("POLLD")
        regs = [16, 24, 32, 40][:len(deltas)]
        self(f"s_add_u32 s{sPA}, s{sWS}, s{soff}")
        self(f"s_addc_u32 s{sPA+1}, s{sWS+1}, 0")
        self(f"s_mov_b32 s{sCNT}, 0")
        self.lab(l)
        for r, dl in zip(regs, deltas):
            self(f"s_load_dwordx8 s[{r}:{r+7}], s[{sPA}:{sPA+1}], {dl:#x} glc")
        self(f"s_add_u32 s{sCNT}, s{sCNT}, 1")
        self(f"s_cmp_ge_u32 s{sCNT}, {self.limit:#x}")
        self("s_waitcnt lgkmcnt(0)")
        self(f"s_cbranch_scc1 {d}")
        for r in regs:
            for q in range(4):
                self(f"s_cmp_eq_u64 s[{r+2*q}:{r+2*q+1}], s[{sN}:{sN+1}]")
                self(f"s_cbranch_scc0 {l}")
        self.lab(d)
    def flag(self, saddr):
        self(f"v_mov_b32 v{vA3}, s{saddr}")
        self(f"s_mov_b64 s[{sEX}:{sEX+1}], exec")
        self("s_mov_b64 exec, 1")
        self(f"buffer_store_dwordx2 v[{vNON}:{vNON+1}], v{vA3}, s[{sWS}:{sWS+3}], 0 offen sc1")
        self(f"s_mov_b64 exec, s[{sEX}:{sEX+1}]")
    def nonce_issue(self, glc=""):
        self(f"s_load_dwordx2 s[{sN}:{sN+1}], s[28:29], 0{glc}")
    def nonce_finish(self):
        l = self.newlab("NON"); d = self.newlab("NOND")
        self(f"s_mov_b32 s{sCNT}, 0")
        self.lab(l)
        self("s_waitcnt lgkmcnt(0)")
        self(f"s_cmp_lg_u32 s{sN}, 0")
        self(f"s_cbranch_scc1 {d}")
        self(f"s_add_u32 s{sCNT}, s{sCNT}, 1")
        self(f"s_cmp_ge_u32 s{sCNT}, {self.limit:#x}")
        self(f"s_cbranch_scc1 {d}")
        self("s_sleep 8")
        self.nonce_issue(" glc")
        self(f"s_branch {l}")
        self.lab(d)
        self(f"v_mov_b32 v{vNON}, s{sN}")
        self(f"v_mov_b32 v{vNON+1}, s{sN+1}")

def mfma(g, d, a, b, c):
    cs = "0" if c is None else f"v[{c}:{c+15}]"
    g(f"v_mfma_f32_32x32x16_bf16 v[{d}:{d+15}], v[{a}:{a+3}], v[{b}:{b+3}], {cs}")
def mfma16(g, d, a, b, c):
    cs = "0" if c is None else f"v[{c}:{c+3}]"
    g(f"v_mfma_f32_16x16x32_bf16 v[{d}:{d+3}], v[{a}:{a+3}], v[{b}:{b+3}], {cs}")

def att_setup(g):
    g("v_and_b32 v24, 31, v0")
    g("v_lshrrev_b32 v25, 5, v0")
    g("v_and_b32 v26, 15, v0")
    g("v_xor_b32 v27, v26, v25")
    g("v_lshlrev_b32 v24, 8, v24")
    for s in range(8):
        g(f"v_xor_b32 v28, {2*s}, v27")
        g(f"v_lshl_add_u32 v{vKA+s}, v28, 4, v24")
    g("v_lshrrev_b32 v28, 2, v26")
    g("v_lshl_add_u32 v29, v25, 2, v28")
    g("v_lshlrev_b32 v29, 8, v29")
    g("v_and_b32 v30, 1, v0")
    g("v_lshl_add_u32 v29, v30, 3, v29")
    g("v_add_u32 v29, 16384, v29")
    g("v_bfe_u32 v30, v0, 1, 1")
    g("v_bfe_u32 v31, v0, 4, 1")
    g("v_lshl_add_u32 v30, v31, 1, v30")
    g("v_lshlrev_b32 v28, 2, v28")
    g("v_xor_b32 v30, v30, v28")
    for dt in range(4):
        g(f"v_xor_b32 v31, {4*dt}, v30")
        g(f"v_lshl_add_u32 v{vVA+dt}, v31, 4, v29")
    mask = sum(1 << l for l in (0, 8, 32, 40, 20, 28, 52, 60))
    g(f"s_mov_b32 s{sEX}, {mask & 0xffffffff:#x}")
    g(f"s_mov_b32 s{sEX+1}, {mask >> 32:#x}")
    g(f"v_mov_b32 v28, 0x3f803f80")
    g(f"v_cndmask_b32 v{vONE}, 0, v28, s[{sEX}:{sEX+1}]")
    for u in range(1, 4): g(f"v_mov_b32 v{vONE+u}, v{vONE}")
    g(f"s_mov_b32 s{sTHR}, {f2u(THR):#x}")

BIAS = 9.0
vOR = 252
def att_loop(g, O=None):
    O = {**dict(sum="m16", e2=(7, 9), barwait=False, m16s=(12, 13), ord="DDDDDDDDDDIVMDMM"), **(O or {})}
    g.stubs = []
    kcur = [0]; vcur = [0]
    def kbase(t):
        slot = (t // 2) % O.get('nks', 4)
        want = (slot >> 1) * 65536
        r = []
        if want != kcur[0]:
            r.append(f"s_mov_b32 s{sT0}, {(want - kcur[0]) & 0xffffffff:#x}")
            for x in range(vKA, vKA+8): r.append(f"v_add_u32 v{x}, s{sT0}, v{x}")
            kcur[0] = want
        return (slot & 1) * 32768 + (t & 1) * 8192, r
    def vbase(t):
        slot = (t // 2) % O.get('nks', 4)
        want = (slot >> 1) * 65536
        r = []
        if want != vcur[0]:
            r.append(f"s_mov_b32 s{sT1}, {(want - vcur[0]) & 0xffffffff:#x}")
            for x in range(vVA, vVA+4): r.append(f"v_add_u32 v{x}, s{sT1}, v{x}")
            vcur[0] = want
        return (slot & 1) * 32768 + (t & 1) * 8192, r
    def krd(off, s, base=vKR):
        return [f"ds_read_b128 v[{base+4*s}:{base+4*s+3}], v{vKA+s} offset:{off}"]
    def vrd(off, n):
        t2, dt = n >> 2, n & 3
        b = vVR + 4*n
        return [f"ds_read_b64_tr_b16 v[{b}:{b+1}], v{vVA+dt} offset:{off + 4096*t2}",
                f"ds_read_b64_tr_b16 v[{b+2}:{b+3}], v{vVA+dt} offset:{off + 4096*t2 + 2048}"]
    def em(l):
        for x in l: g(x)
    mf = lambda d, a, b, c: f"v_mfma_f32_32x32x16_bf16 v[{d}:{d+15}], v[{a}:{a+3}], v[{b}:{b+3}], " + ("0" if c is None else f"v[{c}:{c+15}]")
    m16 = lambda d, a, b, c: f"v_mfma_f32_16x16x32_bf16 v[{d}:{d+3}], v[{a}:{a+3}], v[{b}:{b+3}], " + ("0" if c is None else f"v[{c}:{c+3}]")
    o, _ = kbase(0)
    for s in range(8): em(krd(o, s, vVR))
    o1, _ = kbase(1)
    for s in range(7): em(krd(o1, s))
    g("s_waitcnt vmcnt(0)")
    g.ts(5)
    if g.debug and g.debug != 9:
        g("s_memtime s[100:101]")
        g("s_waitcnt lgkmcnt(0)")
        g(f"s_mov_b32 s{sTS+15}, s100")
    g(f"s_waitcnt lgkmcnt(7)")
    for s in range(8):
        g(mf(vS, vVR+4*s, vQ+4*s, None if s == 0 else vS))
        if s == 0: em(krd(o1, 7))
    g(f"s_mov_b32 s{sT0}, {f2u(BIAS):#x}")
    if O["sum"] != "m16":
        g(f"v_mov_b32 v{vLS}, 0"); g(f"v_mov_b32 v{vLS+1}, 0")
    NT = 16
    tmp = [(vT0, vT1), (vTM, vT2)]
    for t in range(0, NT + 1):
        Sc = vS + 16*(t & 1); Sn = vS + 16*((t+1) & 1)
        Pc = vP + 8*(t & 1); Pp = vP + 8*((t-1) & 1)
        doS = t + 1 < NT; doPV = t >= 1; doSM = t < NT; doK = t + 2 < NT
        pre = [[] for _ in range(16)]; M = [[] for _ in range(16)]; D = [[] for _ in range(16)]; V = [[] for _ in range(16)]
        if t == 16: break
        if t == 15:
            vo, bump = vbase(15)
            assert not bump
            pre[0].append("s_waitcnt lgkmcnt(8)")
            pre[4].append("s_waitcnt lgkmcnt(6)")
            pre[8].append("s_waitcnt lgkmcnt(8)")
            pre[12].append("s_waitcnt lgkmcnt(0)")
            for n in range(8):
                dt = n & 3; t2 = n >> 2
                M[n].append(mf(vO+16*dt, vVR+4*n, Pp+4*t2, vO+16*dt))
                D[n] += vrd(vo, n)
                M[8+n].append(mf(vO+16*dt, vVR+4*n, Pc+4*t2, vO+16*dt))
            if O["sum"] == "m16":
                M[1].append(m16(vLS, vONE, Pp, vLS)); M[5].append(m16(vLS, vONE, Pp+4, vLS))
                M[9].append(m16(vLS, vONE, Pc, vLS)); M[13].append(m16(vLS, vONE, Pc+4, vLS))
        elif doPV:
            vo, bump = vbase(t-1)
            pre[0] += bump
            for n in range(8): D[n] += vrd(vo, n)
            for n in range(8):
                dt = n & 3; t2 = n >> 2
                M[8+n].append(mf(vO+16*dt, vVR+4*n, Pp+4*t2, None if (t == 1 and t2 == 0) else vO+16*dt))
            if O["sum"] == "m16":
                M[O["m16s"][0]].append(m16(vLS, vONE, Pp, None if t == 1 else vLS))
                M[O["m16s"][1]].append(m16(vLS, vONE, Pp+4, vLS))
            pre[8].append("s_waitcnt lgkmcnt(8)")
            pre[12].append(f"s_waitcnt lgkmcnt({4 if doK else 6})")
        if t < 15: pre[4].append(f"s_waitcnt lgkmcnt({6 if doPV else 0})")
        if doS:
            pre[0].append("s_waitcnt lgkmcnt(4)")
            for s in range(8): M[s].append(mf(Sn, vKR+4*s, vQ+4*s, (None if t == 0 else vNEG) if s == 0 else Sn))
        if t % 2 == 0 and t <= 14:
            if O["barwait"] or t == 14: D[8].append("s_waitcnt lgkmcnt(0)")
            if t >= 2 and g.debug == 2:
                D[8] += ["s_memrealtime s[100:101]", "s_waitcnt lgkmcnt(0)", f"s_mov_b32 s{sTS+6+t//2}, s100"]
            D[8].append("s_barrier")
        if t == 14:
            vo, bump = vbase(14)
            D[8] += bump
            for n in range(8): D[8+n] += vrd(vo, n)
        if doK:
            ko, bump = kbase(t+2)
            D[8] += bump
            for n in range(8): D[8+n] += krd(ko, n)
        if doSM:
            if t == 0:
                V[2] += ["s_nop 7"]
                V[3] += [f"v_max3_f32 v{vTM}, v{vS}, v{vS+1}, v{vS+2}", f"v_max3_f32 v{vT2}, v{vS+3}, v{vS+4}, v{vS+5}",
                         f"v_max3_f32 v{vTM}, v{vS+6}, v{vS+7}, v{vTM}", f"v_max3_f32 v{vT2}, v{vS+8}, v{vS+9}, v{vT2}"]
                V[4] += [f"v_max3_f32 v{vTM}, v{vS+10}, v{vS+11}, v{vTM}", f"v_max3_f32 v{vT2}, v{vS+12}, v{vS+13}, v{vT2}",
                         f"v_max3_f32 v{vTM}, v{vS+14}, v{vS+15}, v{vTM}", f"v_max_f32 v{vTM}, v{vT2}, v{vTM}",
                         f"v_add_f32 v{vTM}, s{sT0}, v{vTM}", f"v_mov_b32 v{vT2}, v{vTM}"]
                V[5] += ["s_nop 0", f"v_permlane32_swap_b32 v{vTM}, v{vT2}", "s_nop 1", f"v_max_f32 v{vTM}, v{vTM}, v{vT2}",
                         f"v_sub_f32 v{vNEG}, 0, v{vTM}"]
                slots = [6, 6, 7, 7] + [8 + k//2 for k in range(12)]
                for u in range(1, 16): V[8 + min(6, (u-1)//2)].append(f"v_mov_b32 v{vNEG+u}, v{vNEG}")
            elif t == 15:
                slots = [0, 0, 0, 1, 1, 2, 2, 2, 3, 3, 4, 4, 4, 5, 5, 6]
            elif O.get("eslots"):
                slots = list(O["eslots"])
            else:
                slots = []
                for sl in range(14):
                    slots.append(sl)
                    if sl in O["e2"]: slots.append(sl)
            assert len(slots) == 16
            for e in range(16):
                T = tmp[(e >> 1) & 1][e & 1]
                if t <= 1:
                    V[slots[e]].append(f"v_add_f32 v{Sc+e}, v{Sc+e}, v{vNEG}")
                V[slots[e]].append(f"v_exp_f32 v{T}, v{Sc+e}")
            for u in range(8):
                sl = slots[2*u+1] + 1
                a, b = tmp[u & 1]
                ins = []
                if O["sum"] == "add":
                    ins += [f"v_add_f32 v{vLS}, v{vLS}, v{a}", f"v_add_f32 v{vLS+1}, v{vLS+1}, v{b}"]
                if O["sum"] == "pk":
                    ins += [f"v_pk_add_f32 v[{vLS}:{vLS+1}], v[{vLS}:{vLS+1}], v[{a}:{b}]"]
                ins.append(f"v_cvt_pk_bf16_f32 v{Pc+u}, v{a}, v{b}")
                V[sl] = ins + V[sl]
                if O["sum"] == "dot":
                    V[sl].append(f"v_dot2c_f32_bf16 v{vLS + (u & 1)}, v{Pc+u}, v{vONE}")
                if u & 1 and t > 0:
                    orr = f"v_or_b32 v{vOR}, v{Pc}, v{Pc+1}" if u == 1 else f"v_or3_b32 v{vOR}, v{Pc+u-1}, v{Pc+u}, v{vOR}"
                    V[sl].append(orr)
            if t > 0:
                cs = 7 if t == 15 else 14
                V[cs].append(f"v_and_b32 v{vOR}, 0x40004000, v{vOR}")
                V[cs].append(f"v_cmp_ne_u32 vcc, 0, v{vOR}")
        for sl in range(16):
            od = O.get("ord", "D" * 16)[sl] if 1 <= t <= 14 else "D"
            em(pre[sl])
            plain = all(x.startswith("ds_read") for x in D[sl])
            if od == "D" or not plain or not M[sl]:
                em(M[sl]); em(D[sl])
                if not M[sl] and not D[sl] and V[sl]: g("s_nop 0")
                em(V[sl])
            elif od == "V":
                em(M[sl]); em(V[sl]); em(D[sl])
            elif od == "I":
                em(M[sl]); d = list(D[sl]); v = list(V[sl])
                while d or v:
                    if d: g(d.pop(0))
                    if v: g(v.pop(0))
            elif od == "M":
                em(M[sl][:1]); em(D[sl]); em(V[sl]); em(M[sl][1:])
            if doSM and t > 0 and sl == (7 if t == 15 else 15):
                st = g.newlab("RS"); bk = g.newlab("RB")
                g(f"s_cbranch_vccnz {st}")
                g.lab(bk)
                g.stubs.append((st, bk, t & 1))
    if O["sum"] != "m16":
        g(f"v_add_f32 v{vLS}, v{vLS}, v{vLS+1}")
        g(f"v_mov_b32 v{vT2}, v{vLS}")
        g("s_nop 1")
        g(f"v_permlane32_swap_b32 v{vLS}, v{vT2}")
        g("s_nop 1")
        g(f"v_add_f32 v{vLS}, v{vLS}, v{vT2}")

def rare_path(g, O=None):
    for st, bk, par in g.stubs:
        g.lab(st)
        g(f"s_call_b64 s[{sRET}:{sRET+1}], L_RARE{par}")
        g(f"s_branch {bk}")
    for par in range(2):
        g.lab(f"L_RARE{par}")
        Sc = vS + 16*par; Sn = vS + 16*(par ^ 1); Pc = vP + 8*par
        g("s_nop 15")
        g(f"v_max3_f32 v{vTM}, v{Sc}, v{Sc+1}, v{Sc+2}")
        for u in range(6): g(f"v_max3_f32 v{vTM}, v{Sc+3+2*u}, v{Sc+4+2*u}, v{vTM}")
        g(f"v_max_f32 v{vTM}, v{Sc+15}, v{vTM}")
        g(f"v_add_f32 v{vTM}, {f2u(BIAS):#x}, v{vTM}")
        g(f"v_mov_b32 v{vT2}, v{vTM}")
        g("s_nop 1")
        g(f"v_permlane32_swap_b32 v{vTM}, v{vT2}")
        g("s_nop 1")
        g(f"v_max3_f32 v{vTM}, v{vTM}, v{vT2}, 0")
        g(f"v_ceil_f32 v{vTM}, v{vTM}")
        g(f"v_sub_f32 v{vT2}, 0, v{vTM}")
        g(f"v_exp_f32 v{vT2}, v{vT2}")
        for u in range(16): g(f"v_sub_f32 v{Sc+u}, v{Sc+u}, v{vTM}")
        for u in range(16): g(f"v_sub_f32 v{Sn+u}, v{Sn+u}, v{vTM}")
        for u in range(16): g(f"v_sub_f32 v{vNEG+u}, v{vNEG+u}, v{vTM}")
        for u in range(64): g(f"v_mul_f32 v{vO+u}, v{vO+u}, v{vT2}")
        g(f"v_mul_f32 v{vLS}, v{vLS}, v{vT2}")
        for u in range(8):
            g(f"v_exp_f32 v{vT0}, v{Sc+2*u}")
            g(f"v_exp_f32 v{vT1}, v{Sc+2*u+1}")
            g("s_nop 0")
            g(f"v_cvt_pk_bf16_f32 v{Pc+u}, v{vT0}, v{vT1}")
        g("s_nop 1")
        g(f"s_setpc_b64 s[{sRET}:{sRET+1}]")

def gen(debug=False, LA=2, cprio=1, rot=True, xnt=False, codepf=True, early={5: 1, 6: 2}, nq1=1, bflag='', pfflag='', kvflag='nt', wqflag='', span=False, pfirst=True, kvmap='rr', polay=0, pretouch=True, NKS=5, vp='sc0 sc1', wf='sc1', rf='sc0 sc1', qf='sc1', ophint=True, f2fast=False, apf=False, f3wave=True, aprio=False, pffront={}, outflag='', pw2=0, pfplan={5: 8}, bplan={7: (0, 1), 8: (2, 3)}):
    g = G(debug=debug)
    qslot = lambda k: 1 + k % 4
    g("s_cmp_ge_u32 s2, 256")
    g("s_cbranch_scc1 L_END")
    g("s_load_dwordx16 s[16:31], s[0:1], 0")
    g(f"s_and_b32 s{sXCD}, s2, 7")
    g(f"s_lshr_b32 s{sI}, s2, 3")
    g("v_lshrrev_b32 v1, 6, v0")
    g("v_and_b32 v0, 63, v0")
    g(f"v_readfirstlane_b32 s{sWAVE}, v1")
    g(f"v_lshlrev_b32 v{vLANE16}, 4, v0")
    g(f"s_and_b32 s{sT0}, s{sI}, 7")
    g(f"s_lshl_b32 s{sCT}, s{sXCD}, 3")
    g(f"s_add_u32 s{sCT}, s{sCT}, s{sT0}")
    g(f"s_lshr_b32 s{sRT}, s{sI}, 3")
    g(f"s_lshl_b32 s{sK0}, s{sRT}, 1")
    g(f"s_add_u32 s{sK0}, s{sK0}, s{sT0}")
    if not rot: g(f"s_mov_b32 s{sK0}, 0")
    g(f"s_lshl_b32 s{sG}, s{sXCD}, 2")
    g(f"s_add_u32 s{sG}, s{sG}, s{sRT}")
    g(f"s_and_b32 s{sKQ}, s{sI}, 3")
    g(f"s_bfe_u32 s{sHQ}, s{sI}, 0x10002")
    g(f"s_lshl_b32 s{sGH}, s{sG}, 1")
    g(f"s_add_u32 s{sGH}, s{sGH}, s{sHQ}")
    g(f"s_and_b32 s{sW4}, s{sWAVE}, 3")
    g(f"s_lshr_b32 s{sROLE}, s{sWAVE}, 2")
    g(f"s_lshl_b32 s{sLW1K}, s{sW4}, 10")
    g(f"s_lshr_b32 s{sOH}, s{sXCD}, 1")
    g(f"s_and_b32 s{sN0}, s{sXCD}, 1")
    g(f"s_lshl_b32 s{sN0}, s{sN0}, 3")
    g(f"s_add_u32 s{sN0}, s{sN0}, s{sT0}")
    g(f"s_cmp_eq_u32 s{sROLE}, 0")
    g("s_cbranch_scc1 L_CWAVE")

    vXO, vWQO, vKO, vVO, vWOO = 16, 17, 18, 19, 20
    g("v_lshrrev_b32 v21, 4, v0")
    g(f"s_lshl_b32 s{sT1}, s{sW4}, 2")
    g(f"v_add_u32 v22, s{sT1}, v21")
    g("v_and_b32 v23, 15, v0")
    g("v_xor_b32 v24, v23, v22")
    g("v_lshlrev_b32 v24, 4, v24")
    g(f"v_lshl_add_u32 v{vXO}, v22, 11, v24")
    g("v_lshrrev_b32 v25, 3, v0")
    g("v_and_b32 v26, 7, v0")
    g("v_lshlrev_b32 v27, 1, v25")
    g("v_and_b32 v27, 4, v27")
    g("v_xor_b32 v26, v26, v27")
    g("v_lshlrev_b32 v26, 4, v26")
    g(f"v_lshl_add_u32 v{vWQO}, v25, 13, v26")
    g(f"s_lshl_b32 s{sBASE0}, s{sRT}, 17")
    g(f"s_lshl_b32 s{sBASE1}, s{sCT}, 7")
    g(f"s_lshl_b32 s{sT1}, s{sW4}, 16")
    g(f"s_add_u32 s{sBASE1}, s{sBASE1}, s{sT1}")
    g(f"s_mov_b32 s{sWQ+2}, {1024*4096*2:#x}")
    g(f"s_mov_b32 s{sWQ+3}, 0x20000")
    g(f"s_mov_b32 s{sX+2}, {8*32*1024*2:#x}")
    g(f"s_mov_b32 s{sX+3}, 0x20000")
    g("s_waitcnt lgkmcnt(0)")
    g(f"s_mov_b32 s{sWQ}, s22")
    g(f"s_and_b32 s{sWQ+1}, s23, 0xffff")
    g(f"s_mov_b32 s{sX}, s16")
    g(f"s_and_b32 s{sX+1}, s17, 0xffff")
    Q = []
    def need(*tags):
        last = max(i for i, x in enumerate(Q) if x in tags)
        g(f"s_waitcnt vmcnt({len(Q) - 1 - last})")
    def stage(k):
        slot = qslot(k) * 32768
        g(f"s_add_u32 s{sT1}, s{sK0}, {k}")
        g(f"s_and_b32 s{sT1}, s{sT1}, 7")
        g(f"s_lshl_b32 s{sT2}, s{sT1}, 20")
        g(f"s_add_u32 s{sT2}, s{sT2}, s{sBASE1}")
        g(f"s_lshl_b32 s{sT3}, s{sT1}, 8")
        g(f"s_add_u32 s{sT3}, s{sT3}, s{sBASE0}")
        for m in range(4):
            g.dma(vWQO, sWQ, sT2, 32*m*8192, sLW1K, slot + 16384 + 4096*m, wqflag)
            g.dma(vXO, sX, sT3, m*16*2048, sLW1K, slot + 4096*m, "nt" if xnt else "")
            Q.extend([f"S{k}"] * 2)
    def chunk(s):
        if kvmap == "contig":
            g(f"s_lshl_b32 s{sT1}, s{sKQ}, 17")
            g(f"s_add_u32 s{sT1}, s{sT1}, {s*16384}")
        elif kvmap == "rr":
            g(f"s_lshl_b32 s{sT1}, s{sKQ}, 14")
            g(f"s_add_u32 s{sT1}, s{sT1}, {s*65536}")
        elif kvmap in ("rrg", "rrx", "rri"):
            src = {"rrg": sG, "rrx": sXCD, "rri": sRT}[kvmap]
            if kvmap == "rri":
                g(f"s_lshl_b32 s{sT1}, s{src}, 1")
                g(f"s_add_u32 s{sT1}, s{sT1}, {s}")
            else:
                g(f"s_add_u32 s{sT1}, s{src}, {s}")
            g(f"s_and_b32 s{sT1}, s{sT1}, 7")
            g(f"s_lshl_b32 s{sT1}, s{sT1}, 2")
            g(f"s_add_u32 s{sT1}, s{sT1}, s{sKQ}")
            g(f"s_lshl_b32 s{sT1}, s{sT1}, 14")
        elif kvmap == "rr2":
            g(f"s_lshl_b32 s{sT1}, s{sKQ}, 15")
            g(f"s_add_u32 s{sT1}, s{sT1}, {(s >> 1)*131072 + (s & 1)*16384}")
        elif kvmap == "rot":
            g(f"s_add_u32 s{sT1}, s{sKQ}, {s >> 1}")
            g(f"s_and_b32 s{sT1}, s{sT1}, 3")
            g(f"s_lshl_b32 s{sT1}, s{sT1}, 2")
            g(f"s_add_u32 s{sT1}, s{sT1}, s{sKQ}")
            g(f"s_lshl_b32 s{sT1}, s{sT1}, 15")
            if s & 1: g(f"s_add_u32 s{sT1}, s{sT1}, 16384")
        elif kvmap == "rot2":
            g(f"s_add_u32 s{sT1}, s{sKQ}, {s & 3}")
            g(f"s_and_b32 s{sT1}, s{sT1}, 3")
            g(f"s_lshl_b32 s{sT1}, s{sT1}, 2")
            g(f"s_add_u32 s{sT1}, s{sT1}, s{sKQ}")
            g(f"s_lshl_b32 s{sT1}, s{sT1}, 15")
            if s >> 2: g(f"s_add_u32 s{sT1}, s{sT1}, 16384")
        g(f"s_add_u32 s{sT1}, s{sT1}, s{sKV}")
    def kpart(s):
        chunk(s)
        for m in range(4):
            g.dma(vKO, sK, sT1, 16*m*256, sLW1K, (s % NKS)*32768 + 4096*m, kvflag)
            Q.append(f"K{s}")
    def vpart(s):
        chunk(s)
        for m in range(4):
            g.dma(vVO, sV, sT1, 16*m*256, sLW1K, (s % NKS)*32768 + 16384 + 4096*m, kvflag)
            Q.append(f"V{s}")
    def part(tag):
        (kpart if tag[0] == "K" else vpart)(int(tag[1]))
    for k in range(LA): stage(k)
    g.ts(0)
    g.srd(sK, 18, 8*4*8192*128*2)
    g.srd(sV, 20, 8*4*8192*128*2)
    g.srd(sWO, 24, 4096*1024*2)
    g.srd(sOUT, 26, 8*32*1024*2)
    g.srd(sWS, 30, WS_BYTES)
    g(f"v_lshl_add_u32 v{vKO}, v22, 8, v24")
    g("v_lshlrev_b32 v28, 2, v21")
    g("v_xor_b32 v28, v23, v28")
    g("v_lshlrev_b32 v28, 4, v28")
    g(f"v_lshl_add_u32 v{vVO}, v22, 8, v28")
    g(f"v_lshl_add_u32 v{vWOO}, v25, 11, v26")
    g(f"s_lshl_b32 s{sKV}, s{sG}, 21")
    g(f"s_add_u32 s{sKV}, s{sKV}, {6144*256:#x}")
    sPF = sCT
    g(f"s_lshl_b32 s{sPF}, s{sOH}, 21")
    g(f"s_lshl_b32 s{sT1}, s{sW4}, 14")
    g(f"s_add_u32 s{sPF}, s{sPF}, s{sT1}")
    g(f"s_lshl_b32 s{sT1}, s{sI}, 16")
    g(f"s_add_u32 s{sPF}, s{sPF}, s{sT1}")
    g(f"s_and_b32 s{sT1}, s{sXCD}, 1")
    g(f"s_lshl_b32 s{sT1}, s{sT1}, 10")
    g(f"s_add_u32 s{sPF}, s{sPF}, s{sT1}")
    npf = [0]
    def wopf(n):
        for _ in range(n):
            g(f"s_add_u32 s{sT0}, s{sPF}, {npf[0]*2048:#x}")
            g(f"buffer_load_dwordx4 v[32:35], v{vLANE16}, s[{sWO}:{sWO+3}], s{sT0} offen {pfflag}")
            Q.append("PF"); npf[0] += 1
    if pretouch:
        def touch(expr_lines, base):
            for l in expr_lines: g(l)
            g(f"s_mul_i32 s{sT1}, s{sT1}, {FS}")
            g(f"s_add_u32 s{sT1}, s{sT1}, {base:#x}")
            g(f"s_add_u32 s{sPA}, s{sWS}, s{sT1}")
            g(f"s_addc_u32 s{sPA+1}, s{sWS+1}, 0")
            g(f"s_load_dword s{sRET}, s[{sPA}:{sPA+1}], 0 glc")
        touch([f"s_lshl_b32 s{sT1}, s{sGH}, 2", f"s_add_u32 s{sT1}, s{sT1}, s{sW4}"], F1)
        touch([f"s_mov_b32 s{sT1}, s{sGH}"], F2)
        touch([f"s_lshl_b32 s{sT1}, s{sRT}, 3", f"s_add_u32 s{sT1}, s{sT1}, s{sOH}", f"s_lshl_b32 s{sT1}, s{sT1}, 5", f"s_add_u32 s{sT1}, s{sT1}, s{sN0}",
               f"s_and_b32 s{sT2}, s{sW4}, 1", f"s_lshl_b32 s{sT2}, s{sT2}, 7", f"s_add_u32 s{sT1}, s{sT1}, s{sT2}",
               f"s_lshr_b32 s{sT2}, s{sW4}, 1", f"s_lshl_b32 s{sT2}, s{sT2}, 4", f"s_add_u32 s{sT1}, s{sT1}, s{sT2}"], F3)
        touch([f"s_lshl_b32 s{sT1}, s{sRT}, 4", f"s_add_u32 s{sT1}, s{sT1}, s{sN0}", f"s_lshl_b32 s{sT1}, s{sT1}, 2", f"s_add_u32 s{sT1}, s{sT1}, s{sOH}",
               f"s_lshl_b32 s{sT1}, s{sT1}, 1", f"s_and_b32 s{sT2}, s{sW4}, 1", f"s_add_u32 s{sT1}, s{sT1}, s{sT2}"], F4)
    order = ["K0", "K1", "V0"] + [x for s_ in range(1, 8) for x in ([f"K{s_+1}"] if s_ < 7 else []) + [f"V{s_}"]]
    todo = list(order)
    def issue(n):
        for _ in range(n):
            if todo: part(todo.pop(0))
    for k in range(8):
        need(f"S{k}")
        if k >= 1: g.ts(6 + k, 5)
        g("s_barrier")
        if k == 0: g.ts(1)
        if k + LA < 8: stage(k + LA)
        wopf(pffront.get(k, 0))
        issue(early.get(k, 0))
    g.ts(2)
    g.nonce_issue()
    g(f"s_lshl_b32 s{sBASE0}, s{sOH}, 21")
    g(f"s_lshl_b32 s{sT1}, s{sW4}, 14")
    g(f"s_add_u32 s{sBASE0}, s{sBASE0}, s{sT1}")
    g(f"s_lshl_b32 s{sT1}, s{sN0}, 7")
    g(f"s_add_u32 s{sBASE0}, s{sBASE0}, s{sT1}")
    def bpart(pos):
        slot = ([4, 0, 1, 2] if NKS == 4 else [3, 4, 0, 1])[pos]
        g(f"s_add_u32 s{sT1}, s{sRT}, {pos}")
        g(f"s_and_b32 s{sT1}, s{sT1}, 3")
        g(f"s_lshl_b32 s{sT1}, s{sT1}, 19")
        g(f"s_add_u32 s{sT1}, s{sT1}, s{sBASE0}")
        for m in range(8):
            g.dma(vWOO, sWO, sT1, 32*m*2048, sLW1K, slot*32768 + 4096*m, bflag)
            Q.append(f"B{pos}")
    g.nonce_finish()
    g("s_barrier")
    g.ts(3)
    issue(nq1)
    g("s_barrier")
    g.ts(4)
    while len(order) - len(todo) < 3: issue(1)
    need("K0")
    g("s_barrier")
    g.ts(5)
    for s in range(0, 8):
        la = s + 1 + (NKS - 4)
        lim = order.index(f"V{la}") + 1 if la <= 7 else len(order)
        while len(order) - len(todo) < lim: issue(1)
        wopf(pfplan.get(s, 0))
        for pos in bplan.get(s, ()): bpart(pos)
        if s < 7: need(f"K{s+1}", f"V{s}")
        else: need("V7")
        if s >= 1: g.ts(6 + s, 2)
        g("s_barrier")
    g.ts(11, 3)
    for pos in bplan.get(8, ()): bpart(pos)
    if 9 in bplan:
        g("s_barrier")
        wopf(pfplan.get(9, 0))
        for pos in bplan[9]: bpart(pos)
    g.ts(6)
    if g.debug == 3:
        g("s_waitcnt vmcnt(16)"); g.ts(12, 3)
        g("s_waitcnt vmcnt(0)"); g.ts(13, 3)
    g("s_branch L_BACK")

    g.lab("L_CWAVE")
    g("s_waitcnt lgkmcnt(0)")
    g.srd(sWS, 30, WS_BYTES)
    g.srd(sDBG, 28, 256)
    g(f"s_or_b32 s{sT0}, s2, s{sWAVE}")
    g(f"s_cmp_lg_u32 s{sT0}, 0")
    g("s_cbranch_scc1 L_NOPUB")
    g(f"s_memrealtime s[{sN}:{sN+1}]")
    g("s_waitcnt lgkmcnt(0)")
    g(f"s_or_b32 s{sN}, s{sN}, 1")
    g(f"s_xor_b32 s{sN+1}, s{sN+1}, 0x5bd1e995")
    g(f"v_mov_b32 v{vNON}, s{sN}")
    g(f"v_mov_b32 v{vNON+1}, s{sN+1}")
    g(f"v_mov_b32 v{vA3}, 0")
    g(f"buffer_store_dwordx2 v[{vNON}:{vNON+1}], v{vA3}, s[{sDBG}:{sDBG+3}], 0 offen sc1")
    g.lab("L_NOPUB")
    if codepf:
        g(f"s_cmp_lg_u32 s{sWAVE}, 1")
        g("s_cbranch_scc1 L_NOPF")
        g(f"s_getpc_b64 s[{sPA}:{sPA+1}]")
        g.lab("L_PC")
        g(f"s_lshl_b32 s{sT0}, s{sI}, 10")
        g(f"s_min_u32 s{sT0}, s{sT0}, L_CODE_END-L_PC-1024")
        g(f"v_add_u32 v{vA0}, s{sT0}, v{vLANE16}")
        g(f"global_load_dwordx4 v[{vS}:{vS+3}], v{vA0}, s[{sPA}:{sPA+1}]")
        g.lab("L_NOPF")
    g.ts(0)
    g.srd(sOUT, 26, 8*32*1024*2)
    g(f"s_and_b32 s{sT0}, s{sW4}, 1")
    g(f"s_lshl_b32 s{sT0}, s{sT0}, 13")
    g("v_and_b32 v20, 31, v0")
    g("v_lshrrev_b32 v21, 5, v0")
    g("v_and_b32 v22, 15, v0")
    g("v_xor_b32 v22, v22, v21")
    g(f"v_lshlrev_b32 v23, 8, v20")
    g(f"v_add_u32 v23, s{sT0}, v23")
    for s in range(8):
        g(f"v_xor_b32 v24, {2*s}, v22")
        g(f"v_lshl_add_u32 v{vKA+s}, v24, 4, v23")
    g("v_and_b32 v20, 15, v0")
    g("v_lshrrev_b32 v22, 2, v20")
    g("v_lshl_add_u32 v23, v21, 3, v22")
    g("v_lshlrev_b32 v23, 7, v23")
    g("v_and_b32 v24, 1, v0")
    g("v_bfe_u32 v25, v0, 4, 1")
    g("v_lshl_add_u32 v24, v25, 1, v24")
    g(f"s_lshr_b32 s{sT0}, s{sW4}, 1")
    g(f"s_lshl_b32 s{sT0}, s{sT0}, 2")
    g(f"v_add_u32 v24, s{sT0}, v24")
    g("v_lshlrev_b32 v26, 1, v22")
    g("v_and_b32 v26, 4, v26")
    g("v_xor_b32 v24, v24, v26")
    g("v_lshl_add_u32 v23, v24, 4, v23")
    g("v_bfe_u32 v25, v0, 1, 1")
    g(f"v_lshl_add_u32 v{vVA}, v25, 3, v23")
    g(f"v_add_u32 v{vVA}, 16384, v{vVA}")
    acc = vO
    fr = 16
    cur = [0]
    def setbase(regs, want):
        if want != cur[0]:
            g(f"s_mov_b32 s{sT0}, {(want - cur[0]) & 0xffffffff:#x}")
            for r in regs: g(f"v_add_u32 v{r}, s{sT0}, v{r}")
            cur[0] = want
    for k in range(8):
        slot = qslot(k)
        setbase(list(range(vKA, vKA+8)) + [vVA], (slot >> 1) * 65536)
        io = (slot & 1) * 32768
        if k >= 1: g.ts(6 + k, 5)
        g("s_barrier")
        if k == 0: g.ts(1)
        def rd(s):
            b = fr + 8*s
            g(f"ds_read_b64_tr_b16 v[{b}:{b+1}], v{vVA} offset:{io + 2048*s}")
            g(f"ds_read_b64_tr_b16 v[{b+2}:{b+3}], v{vVA} offset:{io + 2048*s + 512}")
            g(f"ds_read_b128 v[{b+4}:{b+7}], v{vKA+s} offset:{io}")
        for s in range(5): rd(s)
        for s in range(8):
            g(f"s_waitcnt lgkmcnt({min(4, 7 - s) * 3})")
            mfma(g, acc, fr + 8*s, fr + 8*s + 4, None if (k == 0 and s == 0) else acc)
            if s + 5 < 8: rd(s + 5)
    g.ts(2)
    g.nonce_issue()
    g(f"s_and_b32 s{sT0}, s{sW4}, 1")
    g(f"s_lshl_b32 s{sT1}, s{sRT}, 1")
    g(f"s_add_u32 s{sT1}, s{sT1}, s{sT0}")
    g(f"s_lshl_b32 s{sT1}, s{sT1}, 5")
    g(f"s_lshr_b32 s{sT2}, s{sCT}, 1")
    g(f"s_add_u32 s{sT1}, s{sT1}, s{sT2}")
    g(f"s_and_b32 s{sT2}, s{sCT}, 1")
    g(f"s_lshl_b32 s{sT2}, s{sT2}, 1")
    g(f"s_lshr_b32 s{sT3}, s{sW4}, 1")
    g(f"s_add_u32 s{sT2}, s{sT2}, s{sT3}")
    g(f"s_lshl_b32 s{sBASE0}, s{sT1}, 13")
    g(f"s_lshl_b32 s{sT3}, s{sT2}, 11")
    g(f"s_add_u32 s{sBASE0}, s{sBASE0}, s{sT3}")
    g(f"s_mul_i32 s{sBASE1}, s{sT1}, {FS}")
    g(f"s_lshl_b32 s{sT3}, s{sT2}, 3")
    g(f"s_add_u32 s{sBASE1}, s{sBASE1}, s{sT3}")
    g(f"s_add_u32 s{sBASE1}, s{sBASE1}, {F1:#x}")
    g(f"s_mov_b32 s{sT0}, {f2u(C_SCALE):#x}")
    for u in range(16):
        g(f"v_mul_f32 v{acc+u}, s{sT0}, v{acc+u}")
    for u in range(8):
        g(f"v_cvt_pk_bf16_f32 v{16+u}, v{acc+2*u}, v{acc+2*u+1}")
    g(f"buffer_store_dwordx4 v[16:19], v{vLANE16}, s[{sWS}:{sWS+3}], s{sBASE0} offen sc1")
    g(f"buffer_store_dwordx4 v[20:23], v{vLANE16}, s[{sWS}:{sWS+3}], s{sBASE0} offen offset:1024 sc1")
    att_setup(g)
    g(f"s_lshl_b32 s{sT2}, s{sGH}, 2")
    g(f"s_add_u32 s{sT2}, s{sT2}, s{sW4}")
    g(f"s_lshl_b32 s{sBASE0}, s{sT2}, 13")
    g(f"s_mul_i32 s{sT2}, s{sT2}, {FS}")
    g(f"s_add_u32 s{sT2}, s{sT2}, {F1:#x}")
    g.nonce_finish()
    g("s_waitcnt vmcnt(0)")
    g.flag(sBASE1)
    g("s_barrier")
    g.ts(3)
    g.spoll4(sT2)
    g.ts(4)
    for s in range(8):
        if s == 4: g(f"s_add_u32 s{sBASE0}, s{sBASE0}, 4096")
        g(f"buffer_load_dwordx4 v[{vQ+4*s}:{vQ+4*s+3}], v{vLANE16}, s[{sWS}:{sWS+3}], s{sBASE0} offen offset:{1024*(s&3)} {qf}")
    g("s_barrier")
    if cprio: g(f"s_setprio {cprio}")
    g("s_barrier")
    att_loop(g, dict(nks=NKS))
    g.ts(6)
    if g.debug and g.debug != 9:
        g("s_memtime s[100:101]")
        g("s_waitcnt lgkmcnt(0)")
        g(f"s_sub_u32 s{sTS+15}, s100, s{sTS+15}")
    if cprio: g("s_setprio 0")
    LSC = 98304 if NKS == 4 else 65536
    sh_own, sh_w4, sh_fi, sh_sp = ((15, 13, 12, 10), (13, 11, 10, 15), (15, 11, 10, 13))[polay]
    g(f"s_lshl_b32 s{sBASE0}, s{sGH}, 17")
    g(f"s_lshl_b32 s{sT0}, s{sW4}, {sh_w4}")
    g(f"s_add_u32 s{sBASE0}, s{sBASE0}, s{sT0}")
    g(f"s_lshl_b32 s{sT0}, s{sKQ}, {sh_sp}")
    g(f"s_add_u32 s{sBASE0}, s{sBASE0}, s{sT0}")
    g(f"s_add_u32 s{sBASE0}, s{sBASE0}, {PO:#x}")
    g(f"s_lshl_b32 s{sT1}, s{sGH}, 2")
    g(f"s_add_u32 s{sT1}, s{sT1}, s{sW4}")
    g(f"s_lshl_b32 s{sT2}, s{sT1}, 10")
    g(f"s_lshl_b32 s{sT3}, s{sKQ}, 8")
    g(f"s_add_u32 s{sT2}, s{sT2}, s{sT3}")
    g(f"s_add_u32 s{sT2}, s{sT2}, {ST:#x}")
    g(f"v_and_b32 v{vA0}, 31, v0")
    g(f"v_lshlrev_b32 v{vA0}, 3, v{vA0}")
    g(f"s_lshl_b32 s{sT3}, s{sW4}, 11")
    g(f"s_add_u32 s{sT3}, s{sT3}, {LSC}")
    g(f"v_add_u32 v{vA1}, s{sT3}, v{vLANE16}")
    g(f"s_lshl_b32 s{sT3}, s{sW4}, 8")
    g(f"s_add_u32 s{sT3}, s{sT3}, {LSC + 8192}")
    g(f"v_add_u32 v{vA2}, s{sT3}, v{vA0}")
    g(f"v_sub_f32 v{vT0}, 0, v{vNEG}")
    for o in range(4):
        for fi in range(2):
            f = 2*o + fi; src = vO + 8*f; dst = vKR + 4*f
            for u in range(4):
                g(f"v_cvt_pk_bf16_f32 v{dst+u}, v{src+2*u}, v{src+2*u+1}")
        lo = g.newlab("LOC"); nx = g.newlab("NXT")
        dst = vKR + 8*o
        g(f"s_cmp_eq_u32 s{sKQ}, {o}")
        g(f"s_cbranch_scc1 {lo}")
        g(f"s_add_u32 s{sT0}, s{sBASE0}, {o << sh_own:#x}")
        g(f"s_add_u32 s{sT3}, s{sBASE0}, {(o << sh_own) + (1 << sh_fi):#x}")
        g(f"buffer_store_dwordx4 v[{dst}:{dst+3}], v{vLANE16}, s[{sWS}:{sWS+3}], s{sT0} offen {wf}")
        g(f"buffer_store_dwordx4 v[{dst+4}:{dst+7}], v{vLANE16}, s[{sWS}:{sWS+3}], s{sT3} offen {wf}")
        g(f"s_branch {nx}")
        g.lab(lo)
        g(f"ds_write_b128 v{vA1}, v[{dst}:{dst+3}]")
        g(f"ds_write_b128 v{vA1}, v[{dst+4}:{dst+7}] offset:1024")
        g.lab(nx)
        if o == 0:
            g(f"v_mov_b32 v{vT1}, v{vLS}")
            g(f"buffer_store_dwordx2 v[{vT0}:{vT1}], v{vA0}, s[{sWS}:{sWS+3}], s{sT2} offen {wf}")
            g(f"ds_write_b64 v{vA2}, v[{vT0}:{vT1}]")
    if 9 in bplan: g("s_barrier")

    g.lab("L_BACK")
    sBB, sHP = sCT, sK0
    g(f"s_and_b32 s{sBB}, s{sWAVE}, 1")
    g(f"s_lshr_b32 s{sHP}, s{sWAVE}, 1")
    g(f"s_sub_u32 s{sT0}, s{sHP}, s{sRT}")
    g(f"s_and_b32 s{sT0}, s{sT0}, 3")
    if NKS == 4:
        g(f"s_sub_u32 s{sT2}, s{sT0}, 1")
        g(f"s_cmp_eq_u32 s{sT0}, 0")
        g(f"s_cselect_b32 s{sT2}, 4, s{sT2}")
    else:
        g(f"s_sub_u32 s{sT2}, s{sT0}, 2")
        g(f"s_add_u32 s{sT3}, s{sT0}, 3")
        g(f"s_cmp_lt_u32 s{sT0}, 2")
        g(f"s_cselect_b32 s{sT2}, s{sT3}, s{sT2}")
    g(f"s_lshl_b32 s{sT2}, s{sT2}, 15")
    g("v_lshrrev_b32 v4, 5, v0")
    g("v_bfe_u32 v5, v0, 2, 2")
    g("v_lshl_add_u32 v6, v4, 2, v5")
    g("v_lshlrev_b32 v6, 7, v6")
    g("v_and_b32 v7, 1, v0")
    g("v_lshl_add_u32 v6, v7, 3, v6")
    g(f"v_add_u32 v6, s{sT2}, v6")
    g("v_bfe_u32 v7, v0, 1, 1")
    g("v_bfe_u32 v8, v0, 4, 1")
    g("v_lshl_add_u32 v7, v8, 1, v7")
    g("v_lshlrev_b32 v5, 1, v5")
    g("v_and_b32 v5, 4, v5")
    g("v_xor_b32 v7, v7, v5")
    g(f"v_lshl_add_u32 v{vKA}, v7, 4, v6")
    g("v_xor_b32 v7, 4, v7")
    g(f"v_lshl_add_u32 v{vKA+1}, v7, 4, v6")
    g(f"s_lshl_b32 s{sT1}, s{sGH}, 2")
    g(f"s_add_u32 s{sT1}, s{sT1}, s{sW4}")
    g(f"s_lshl_b32 s{sBASE1}, s{sT1}, 10")
    g(f"s_add_u32 s{sBASE1}, s{sBASE1}, {ST:#x}")
    g(f"s_lshl_b32 s{sBASE0}, s{sGH}, 17")
    g(f"s_lshl_b32 s{sT0}, s{sKQ}, {sh_own}")
    g(f"s_add_u32 s{sBASE0}, s{sBASE0}, s{sT0}")
    g(f"s_lshl_b32 s{sT0}, s{sW4}, {sh_w4}")
    g(f"s_add_u32 s{sBASE0}, s{sBASE0}, s{sT0}")
    g(f"s_lshl_b32 s{sT0}, s{sROLE}, {sh_fi}")
    g(f"s_add_u32 s{sBASE0}, s{sBASE0}, s{sT0}")
    g(f"s_add_u32 s{sBASE0}, s{sBASE0}, {PO:#x}")
    g(f"v_and_b32 v{vA0}, 31, v0")
    g(f"v_lshlrev_b32 v{vA0}, 3, v{vA0}")
    g(f"s_lshl_b32 s{sT0}, s{sW4}, 11")
    g(f"s_lshl_b32 s{sT2}, s{sROLE}, 10")
    g(f"s_add_u32 s{sT0}, s{sT0}, s{sT2}")
    g(f"s_add_u32 s{sT0}, s{sT0}, {LSC}")
    g(f"v_add_u32 v{vA1}, s{sT0}, v{vLANE16}")
    g(f"s_lshl_b32 s{sT0}, s{sW4}, 8")
    g(f"s_add_u32 s{sT0}, s{sT0}, {LSC + 8192}")
    g(f"v_add_u32 v{vA2}, s{sT0}, v{vA0}")
    g(f"s_mul_i32 s{sT2}, s{sGH}, {FS}")
    g(f"s_add_u32 s{sT2}, s{sT2}, {F2:#x}")
    g(f"s_lshl_b32 s{sT3}, s{sKQ}, 3")
    g(f"s_add_u32 s{sT3}, s{sT3}, s{sT2}")
    g("s_waitcnt vmcnt(0) lgkmcnt(0)")
    g.ts(7)
    g("s_barrier")
    g.ts(7, 4)
    vB = 112
    def bread():
        cnt = 0
        for n in range(16):
            for nt in range(2):
                b = vB + (n*2+nt)*4
                g(f"ds_read_b64_tr_b16 v[{b}:{b+1}], v{vKA+nt} offset:{2048*n}")
                g(f"ds_read_b64_tr_b16 v[{b+2}:{b+3}], v{vKA+nt} offset:{2048*n+1024}")
                cnt += 2
                if cnt % 8 == 0: g("s_waitcnt lgkmcnt(5)")
        g("s_waitcnt lgkmcnt(0)")
    g(f"ds_read_b64 v[16:17], v{vA2}")
    g(f"ds_read_b128 v[48:51], v{vA1}")
    g(f"s_cmp_lg_u32 s{sWAVE}, {pw2}")
    g("s_cbranch_scc1 L_NOF2")
    g.flag(sT3)
    if pfirst:
        g.vpoll4(sT2, vp) if vp else g.spoll4(sT2)
        g("s_branch L_NOP2")
    g.lab("L_NOF2")
    bread()
    if not pfirst:
        g(f"s_cmp_lg_u32 s{sWAVE}, {pw2}")
        g("s_cbranch_scc1 L_NOP2")
        g.vpoll4(sT2, vp) if vp else g.spoll4(sT2)
    g.lab("L_NOP2")
    g("s_barrier")
    g.ts(8); g.ts(8, 4)
    for e in range(1, 4):
        g(f"s_add_u32 s{sT0}, s{sKQ}, {e}")
        g(f"s_and_b32 s{sT0}, s{sT0}, 3")
        g(f"s_lshl_b32 s{sT2}, s{sT0}, 8")
        g(f"s_add_u32 s{sT2}, s{sT2}, s{sBASE1}")
        g(f"buffer_load_dwordx2 v[{16+2*e}:{17+2*e}], v{vA0}, s[{sWS}:{sWS+3}], s{sT2} offen {rf}")
    for e in range(1, 4):
        g(f"s_add_u32 s{sT0}, s{sKQ}, {e}")
        g(f"s_and_b32 s{sT0}, s{sT0}, 3")
        g(f"s_lshl_b32 s{sT2}, s{sT0}, {sh_sp}")
        g(f"s_add_u32 s{sT2}, s{sT2}, s{sBASE0}")
        g(f"buffer_load_dwordx4 v[{48+4*e}:{51+4*e}], v{vLANE16}, s[{sWS}:{sWS+3}], s{sT2} offen {rf}")
    g(f"s_lshl_b32 s{sT0}, s{sT1}, 13")
    g(f"s_lshl_b32 s{sT2}, s{sKQ}, 11")
    g(f"s_add_u32 s{sT0}, s{sT0}, s{sT2}")
    g(f"s_lshl_b32 s{sT2}, s{sROLE}, 10")
    g(f"s_add_u32 s{sT0}, s{sT0}, s{sT2}")
    g(f"s_add_u32 s{sT1}, s{sT0}, {OF:#x}")
    g(f"s_lshl_b32 s{sT0}, s{sRT}, 1")
    g(f"s_add_u32 s{sT0}, s{sT0}, s{sBB}")
    g(f"s_lshl_b32 s{sT0}, s{sT0}, 2")
    g(f"s_add_u32 s{sT0}, s{sT0}, s{sOH}")
    g(f"s_lshl_b32 s{sBASE0}, s{sT0}, 16")
    g(f"s_lshl_b32 s{sT2}, s{sHP}, 14")
    g(f"s_add_u32 s{sBASE0}, s{sBASE0}, s{sT2}")
    g(f"s_add_u32 s{sBASE0}, s{sBASE0}, {OF:#x}")
    g(f"s_mul_i32 s{sT2}, s{sGH}, {16*FS}")
    g(f"s_lshl_b32 s{sT3}, s{sKQ}, 3")
    g(f"s_add_u32 s{sT2}, s{sT2}, s{sT3}")
    g(f"s_add_u32 s{sT2}, s{sT2}, {F3:#x}")
    g(f"v_mul_u32_u24 v{vA3}, {FS}, v0")
    g(f"v_add_u32 v{vA3}, s{sT2}, v{vA3}")
    g(f"s_lshl_b32 s{sT0}, s{sRT}, 3")
    g(f"s_add_u32 s{sT0}, s{sT0}, s{sOH}")
    g(f"s_lshl_b32 s{sT0}, s{sT0}, 5")
    g(f"s_add_u32 s{sT0}, s{sT0}, s{sN0}")
    g(f"s_mul_i32 s{sBASE1}, s{sT0}, {FS}")
    g(f"s_add_u32 s{sBASE1}, s{sBASE1}, {F3:#x}")
    if pfirst:
        g(f"s_cmp_lg_u32 s{sWAVE}, {pw2}")
        g("s_cbranch_scc1 L_NOB")
        bread()
        g.lab("L_NOB")
    for u in range(4):
        g(f"v_lshlrev_b32 v{32+2*u}, 16, v{48+u}")
        g(f"v_and_b32 v{33+2*u}, 0xffff0000, v{48+u}")
    g("s_waitcnt vmcnt(3)")
    g.ts(9, 4)
    g("v_max3_f32 v24, v16, v18, v20")
    g("v_max_f32 v24, v22, v24")
    for s in range(4): g(f"v_sub_f32 v{16+2*s}, v{16+2*s}, v24")
    for s in range(4): g(f"v_exp_f32 v{16+2*s}, v{16+2*s}")
    g("s_nop 0")
    g("v_mul_f32 v24, v16, v17")
    g("v_fmac_f32 v24, v18, v19")
    g("v_fmac_f32 v24, v20, v21")
    g("v_fmac_f32 v24, v22, v23")
    g("v_rcp_f32 v24, v24")
    g("s_nop 0")
    for s in range(4): g(f"v_mul_f32 v{16+2*s}, v{16+2*s}, v24")
    for c in range(8): g(f"v_mul_f32 v{32+c}, v{32+c}, v16")
    if debug == 4:
        g("s_waitcnt vmcnt(0)"); g.ts(10, 4)
    for s in range(1, 4):
        g(f"s_waitcnt vmcnt({3 - s})")
        for u in range(4):
            src = 48 + 4*s + u
            g(f"v_lshlrev_b32 v28, 16, v{src}")
            g(f"v_and_b32 v29, 0xffff0000, v{src}")
            g(f"v_fmac_f32 v{32+2*u}, v28, v{16+2*s}")
            g(f"v_fmac_f32 v{33+2*u}, v29, v{16+2*s}")
    for u in range(4):
        g(f"v_cvt_pk_bf16_f32 v{40+u}, v{32+2*u}, v{33+2*u}")
    g.ts(11, 4)
    g(f"buffer_store_dwordx4 v[40:43], v{vLANE16}, s[{sWS}:{sWS+3}], s{sT1} offen {wf}")
    g("s_waitcnt vmcnt(0)")
    g.ts(12, 4)
    g("s_barrier")
    g.ts(13, 4)
    g.ts(9)
    g(f"s_cmp_lg_u32 s{sWAVE}, 4")
    g("s_cbranch_scc1 L_NOP3")
    g("s_mov_b64 exec, 0xffff")
    g(f"buffer_store_dwordx2 v[{vNON}:{vNON+1}], v{vA3}, s[{sWS}:{sWS+3}], 0 offen sc1")
    g("s_mov_b64 exec, -1")
    if not f3wave: g.spollN(sBASE1, (0, 16*FS, 128*FS, 144*FS))
    g.lab("L_NOP3")
    g(f"s_lshl_b32 s{sT0}, s{sWAVE}, 13")
    g(f"v_add_u32 v{vA0}, s{sT0}, v{vLANE16}")
    g(f"s_lshl_b32 s{sT0}, s{sBB}, 13")
    g(f"s_lshl_b32 s{sT1}, s{sHP}, 11")
    g(f"s_add_u32 s{sT0}, s{sT0}, s{sT1}")
    g(f"v_add_u32 v{vA1}, s{sT0}, v{vLANE16}")
    if aprio:
        g(f"s_xor_b32 s{sT0}, s{sN0}, s{sROLE}")
        g(f"s_bitcmp1_b32 s{sT0}, 0")
        g("s_cbranch_scc0 L_NOPRIO")
        g("s_setprio 3")
        g.lab("L_NOPRIO")
    if f3wave:
        g(f"s_mul_i32 s{sT0}, s{sBB}, {128*FS}")
        g(f"s_mul_i32 s{sT1}, s{sROLE}, {16*FS}")
        g(f"s_add_u32 s{sBASE1}, s{sBASE1}, s{sT0}")
        g(f"s_add_u32 s{sBASE1}, s{sBASE1}, s{sT1}")
        g.vpoll4(sBASE1, vp) if vp else g.spoll4(sBASE1)
    else:
        g("s_barrier")
    g.ts(10)
    vA = 16
    if apf:
        g(f"s_and_b32 s{sT0}, s{sN0}, 7")
        g(f"s_lshl_b32 s{sT0}, s{sT0}, 11")
        g(f"s_add_u32 s{sT0}, s{sT0}, s{sBASE0}")
        g(f"buffer_load_dwordx4 v[4:7], v{vLANE16}, s[{sWS}:{sWS+3}], s{sT0} offen {rf}")
        g(f"buffer_load_dwordx4 v[4:7], v{vLANE16}, s[{sWS}:{sWS+3}], s{sT0} offen offset:1024 {rf}")
    for n in range(16):
        if n and n % 4 == 0: g(f"s_add_u32 s{sBASE0}, s{sBASE0}, 4096")
        g(f"buffer_load_dwordx4 v[{vA+4*n}:{vA+4*n+3}], v{vLANE16}, s[{sWS}:{sWS+3}], s{sBASE0} offen offset:{1024*(n&3)} {rf}")
    g(f"s_lshl_b32 s{sT2}, s{sBB}, 1")
    g(f"s_lshr_b32 s{sT3}, s{sHP}, 1")
    g(f"s_add_u32 s{sT2}, s{sT2}, s{sT3}")
    g(f"s_lshl_b32 s{sT0}, s{sRT}, 4")
    g(f"s_add_u32 s{sT0}, s{sT0}, s{sN0}")
    g(f"s_lshl_b32 s{sT0}, s{sT0}, 2")
    g(f"s_add_u32 s{sT0}, s{sT0}, s{sT2}")
    g(f"s_lshl_b32 s{sT0}, s{sT0}, 1")
    g(f"s_and_b32 s{sT1}, s{sHP}, 1")
    g(f"s_add_u32 s{sT0}, s{sT0}, s{sT1}")
    g(f"s_lshl_b32 s{sBASE0}, s{sT0}, 14")
    g(f"s_add_u32 s{sBASE0}, s{sBASE0}, {OP:#x}")
    g(f"s_mul_i32 s{sBASE1}, s{sT0}, {FS}")
    g(f"s_add_u32 s{sBASE1}, s{sBASE1}, {F4:#x}")
    g(f"s_lshl_b32 s{sT3}, s{sOH}, 3")
    g(f"s_add_u32 s{sT3}, s{sT3}, s{sBASE1}")
    vD = 80
    for n in range(16):
        g(f"s_waitcnt vmcnt({15-n})")
        for nt in range(2):
            mfma(g, vD+16*nt, vB + (n*2+nt)*4, vA+4*n, None if n == 0 else vD+16*nt)
    g.ts(11)
    g(f"v_mov_b32 v51, s{sN}")
    g(f"v_mov_b32 v55, s{sN}")
    g(f"v_mov_b32 v58, 0")
    g(f"v_mov_b32 v59, s{sN}")
    g("v_and_b32 v24, 31, v0")
    g("v_lshrrev_b32 v25, 5, v0")
    g("v_lshlrev_b32 v24, 11, v24")
    g(f"v_lshl_add_u32 v{vA2}, v25, 3, v24")
    g("s_nop 2")
    for q in range(8):
        g(f"ds_write_b128 v{vA0}, v[{vD+4*q}:{vD+4*q+3}] offset:{1024*q}")
    g("s_waitcnt lgkmcnt(0)")
    g("s_barrier")
    for hp2 in range(4):
        for e in range(2):
            g(f"ds_read_b128 v[{16+8*hp2+4*e}:{19+8*hp2+4*e}], v{vA1} offset:{16384*hp2 + 1024*e}")
    res = [48, 49, 50, 52, 53, 54, 56, 57]
    g("s_waitcnt lgkmcnt(4)")
    for c in range(8): g(f"v_add_f32 v{16+c}, v{16+c}, v{24+c}")
    g("s_waitcnt lgkmcnt(0)")
    for c in range(8): g(f"v_add_f32 v{32+c}, v{32+c}, v{40+c}")
    for c in range(8): g(f"v_add_f32 v{res[c]}, v{16+c}, v{32+c}")
    g.ts(12)
    g(f"s_cmp_eq_u32 s{sT2}, s{sOH}")
    g("s_cbranch_scc1 L_OWN")
    g(f"s_lshl_b32 s{sT0}, s{sOH}, 12")
    g(f"s_add_u32 s{sT0}, s{sT0}, s{sBASE0}")
    for j in range(3):
        g(f"buffer_store_dwordx4 v[{48+4*j}:{51+4*j}], v{vLANE16}, s[{sWS}:{sWS+3}], s{sT0} offen offset:{1024*j} {wf}")
    if ophint: g.flag(sT3)
    g("s_branch L_FIN")
    g.lab("L_OWN")
    if ophint: g.flag(sT3)
    g(f"s_lshl_b32 s{sT2}, s{sRT}, 1")
    g(f"s_add_u32 s{sT2}, s{sT2}, s{sBB}")
    g(f"s_lshl_b32 s{sT2}, s{sT2}, 16")
    g(f"s_lshl_b32 s{sT1}, s{sN0}, 7")
    g(f"s_add_u32 s{sT2}, s{sT2}, s{sT1}")
    g(f"s_lshl_b32 s{sT1}, s{sHP}, 5")
    g(f"s_add_u32 s{sT2}, s{sT2}, s{sT1}")
    if ophint: g.vpoll4(sBASE1, vp) if vp else g.spoll4(sBASE1)
    g.ts(13)
    g(f"s_mov_b32 s{sCNT}, 0")
    g.lab("L_OPL")
    for e in range(1, 4):
        g(f"s_add_u32 s{sT0}, s{sOH}, {e}")
        g(f"s_and_b32 s{sT0}, s{sT0}, 3")
        g(f"s_lshl_b32 s{sT0}, s{sT0}, 12")
        g(f"s_add_u32 s{sT0}, s{sT0}, s{sBASE0}")
        for j in range(3):
            r = 60 + 12*(e-1) + 4*j
            g(f"buffer_load_dwordx4 v[{r}:{r+3}], v{vLANE16}, s[{sWS}:{sWS+3}], s{sT0} offen offset:{1024*j} {rf}")
    g(f"s_add_u32 s{sCNT}, s{sCNT}, 1")
    g("s_waitcnt vmcnt(0)")
    tags = [63 + 4*k for k in range(9)]
    g(f"v_min3_u32 v16, v{tags[0]}, v{tags[1]}, v{tags[2]}")
    g(f"v_max3_u32 v17, v{tags[0]}, v{tags[1]}, v{tags[2]}")
    for k in (3, 5, 7):
        g(f"v_min3_u32 v16, v{tags[k]}, v{tags[k+1]}, v16")
        g(f"v_max3_u32 v17, v{tags[k]}, v{tags[k+1]}, v17")
    g(f"v_xor_b32 v16, s{sN}, v16")
    g(f"v_xor_b32 v17, s{sN}, v17")
    g("v_or_b32 v16, v16, v17")
    g("v_cmp_ne_u32 vcc, 0, v16")
    g("s_cbranch_vccz L_OPD")
    g(f"s_cmp_lt_u32 s{sCNT}, {g.limit:#x}")
    g("s_cbranch_scc1 L_OPL")
    g.lab("L_OPD")
    for e in range(3):
        for c in range(8):
            g(f"v_add_f32 v{res[c]}, v{res[c]}, v{res[c] + 12*(e+1)}")
    for u in range(4):
        g(f"v_cvt_pk_bf16_f32 v{16+u}, v{res[2*u]}, v{res[2*u+1]}")
    g(f"buffer_store_dwordx2 v[16:17], v{vA2}, s[{sOUT}:{sOUT+3}], s{sT2} offen {outflag}")
    g(f"buffer_store_dwordx2 v[18:19], v{vA2}, s[{sOUT}:{sOUT+3}], s{sT2} offen offset:16 {outflag}")
    g.lab("L_FIN")
    if span:
        g("s_waitcnt vmcnt(0)")
        g("s_memrealtime s[100:101]")
        g.srd(sDBG, 28, 256)
        g("s_waitcnt lgkmcnt(0)")
        g(f"s_sub_u32 s100, s100, s{sN}")
        g("v_mov_b32 v16, s100")
        g(f"s_lshl_b32 s{sT0}, s{sXCD}, 2")
        g(f"s_add_u32 s{sT0}, s{sT0}, 8")
        g(f"v_mov_b32 v17, s{sT0}")
        g("s_mov_b64 exec, 1")
        g(f"buffer_atomic_umax v16, v17, s[{sDBG}:{sDBG+3}], 0 offen")
    if debug:
        g("s_waitcnt vmcnt(0)")
        g.ts(14)
        g(f"s_lshl_b32 s{sT0}, s2, 3")
        g(f"s_add_u32 s{sT0}, s{sT0}, s{sWAVE}")
        g(f"s_lshl_b32 s{sT0}, s{sT0}, 6")
        g(f"s_add_u32 s{sT0}, s{sT0}, {TSB:#x}")
        g(f"v_mov_b32 v{vA3}, s{sT0}")
        g("s_mov_b64 exec, 1")
        for n in range(16):
            g(f"v_mov_b32 v{16+n}, s{sTS+n}")
            g(f"buffer_store_dword v{16+n}, v{vA3}, s[{sWS}:{sWS+3}], 0 offen offset:{4*n}")
    g.lab("L_END")
    g("s_endpgm")
    rare_path(g)
    g.lab("L_CODE_END")
    hdr = f"""; Fused Q-projection + sliding-window GQA attention + output projection (generated by gen/gen2.py)
; @launch grid=(256,1,1) block=(512,1,1) lds=163840
.amdgcn_target "amdgcn-amd-amdhsa--gfx950"
.text
.globl {NAME}
.p2align 8
.type {NAME},@function
{NAME}:
"""
    ftr = f"""
.section .rodata,"a"
.p2align 6
.amdhsa_kernel {NAME}
  .amdhsa_next_free_vgpr 256
  .amdhsa_next_free_sgpr 102
  .amdhsa_accum_offset 256
  .amdhsa_group_segment_fixed_size 0
  .amdhsa_kernarg_size 64
  .amdhsa_user_sgpr_count 2
  .amdhsa_user_sgpr_kernarg_segment_ptr 1
  .amdhsa_system_sgpr_workgroup_id_x 1
.end_amdhsa_kernel
"""
    return hdr + "\n".join(g.L) + ftr

if __name__ == "__main__":
    import argparse
    ap = argparse.ArgumentParser()
    ap.add_argument("-o", default="standalone__sliding_block_cached__sampling.s")
    ap.add_argument("--debug", type=int, default=0)
    ap.add_argument("--la", type=int, default=2)
    ap.add_argument("--cprio", type=int, default=1)
    ap.add_argument("--norot", action="store_true")
    ap.add_argument("--xnt", action="store_true")
    ap.add_argument("--nocodepf", action="store_true")
    ap.add_argument("--kw", default="")
    a = ap.parse_args()
    kw = eval("dict(" + a.kw + ")")
    open(a.o, "w").write(gen(debug=a.debug, LA=a.la, cprio=a.cprio, rot=not a.norot, xnt=a.xnt, codepf=not a.nocodepf, **kw))
```

```python
import struct, math, sys

NAME = "standalone__sliding_block_cached__sampling_kernel"
C_SCALE = math.log2(math.e) / math.sqrt(128.0)
def f2u(x): return struct.unpack("<I", struct.pack("<f", x))[0]
THR = 10.0

QF   = 0x0000000
OF   = 0x0200000
PO   = 0x0400000
ST   = 0x0C00000
FS   = 1152
F1   = 0x2000000
F2   = 0x2200000
F3   = 0x2300000
F4   = 0x2800000
OP   = 0x0E00000
TSB  = 0x1600000
WS_BYTES = 268435456

sXCD, sI, sWAVE, sW4, sROLE = 3, 4, 5, 6, 7
sT0, sT1, sT2, sT3 = 8, 9, 10, 11
sCNT, sLW1K, sG, sKQ = 12, 13, 14, 15
sX, sK, sV, sWQ, sWO, sOUT, sDBG, sWS = 32, 36, 40, 44, 48, 52, 56, 60
sBASE0, sBASE1, sCT, sRT = 64, 65, 66, 67
sHQ, sKV = 68, 69
sN = 70
sPA = 72
sK0 = 74
sGH = 75
sEX = 76
sRET = 78
sPD = 16
sTS = 80
sN0, sOH, sRP = 96, 97, 98
sTHR = 99

vLANE16 = 1
vKA, vVA = 2, 10
vT0, vT1 = 14, 15
vKR, vVR, vQ, vO, vS, vP, vNEG, vLS, vONE = 16, 48, 80, 112, 176, 208, 224, 240, 244
vTM, vT2 = 248, 249
vNON = 250
vA0, vA1, vA2, vA3 = 252, 253, 254, 255

class G:
    def __init__(self, debug=False, limit=1 << 21):
        self.L = []; self.debug = debug; self.nlab = 0; self.limit = limit
    def __call__(self, s): self.L.append("  " + s)
    def lab(self, s): self.L.append(s + ":")
    def newlab(self, p="L"):
        self.nlab += 1; return f"{p}_{self.nlab}"
    def ts(self, n, lvl=1):
        if self.debug == 9 and n not in (0, 14): return
        if self.debug == 8 and (n not in (0, 2, 5, 6, 14) or lvl != 1): return
        if self.debug == 8 and n in (0, 2, 14):
            self("s_memtime s[100:101]")
            self("s_waitcnt lgkmcnt(0)")
            self(f"s_mov_b32 s{sTS + {0: 10, 2: 11, 14: 12}[n]}, s100")
        if self.debug >= 2 and lvl == 1 and 7 <= n <= 13: return
        if lvl >= 2 and self.debug != lvl: return
        if self.debug:
            self(f"s_memrealtime s[100:101]")
            self("s_waitcnt lgkmcnt(0)")
            self(f"s_mov_b32 s{sTS+n}, s100")
    def srd(self, d, p, nbytes):
        self(f"s_mov_b32 s{d}, s{p}")
        self(f"s_and_b32 s{d+1}, s{p+1}, 0xffff")
        self(f"s_mov_b32 s{d+2}, {nbytes:#x}")
        self(f"s_mov_b32 s{d+3}, 0x20000")
    def srd_ws(self, off):
        if not off:
            return self.srd(sWS, 30, WS_BYTES)
        self(f"s_add_u32 s{sWS}, s30, {off:#x}")
        self(f"s_addc_u32 s{sWS+1}, s31, 0")
        self(f"s_and_b32 s{sWS+1}, s{sWS+1}, 0xffff")
        self(f"s_mov_b32 s{sWS+2}, {WS_BYTES - off:#x}")
        self(f"s_mov_b32 s{sWS+3}, 0x20000")
    def dma(self, voff, srd, sbase, soff_const, m0base, m0_const, flags=""):
        self(f"s_add_u32 m0, s{m0base}, {m0_const:#x}")
        self(f"s_add_u32 s{sT0}, s{sbase}, {soff_const:#x}")
        self(f"buffer_load_dwordx4 v{voff}, s[{srd}:{srd+3}], s{sT0} offen {flags} lds".replace("  ", " "))
    def spoll4(self, soff):
        l = self.newlab("POLL"); d = self.newlab("POLLD")
        self(f"s_add_u32 s{sPA}, s{sWS}, s{soff}")
        self(f"s_addc_u32 s{sPA+1}, s{sWS+1}, 0")
        self(f"s_mov_b32 s{sCNT}, 0")
        self.lab(l)
        self(f"s_load_dwordx8 s[{sPD}:{sPD+7}], s[{sPA}:{sPA+1}], 0 glc")
        self(f"s_add_u32 s{sCNT}, s{sCNT}, 1")
        self(f"s_cmp_ge_u32 s{sCNT}, {self.limit:#x}")
        self("s_waitcnt lgkmcnt(0)")
        self(f"s_cbranch_scc1 {d}")
        for q in range(4):
            self(f"s_cmp_eq_u64 s[{sPD+2*q}:{sPD+2*q+1}], s[{sN}:{sN+1}]")
            self(f"s_cbranch_scc0 {l}")
        self.lab(d)
    def vpoll4(self, soff, flags):
        l = self.newlab("POLL"); d = self.newlab("POLLD")
        self("v_and_b32 v10, 3, v0")
        self("v_lshlrev_b32 v10, 3, v10")
        self(f"s_mov_b32 s{sCNT}, 0")
        self.lab(l)
        self(f"buffer_load_dwordx2 v[12:13], v10, s[{sWS}:{sWS+3}], s{soff} offen {flags}")
        self(f"s_add_u32 s{sCNT}, s{sCNT}, 1")
        self("s_waitcnt vmcnt(0)")
        self(f"v_cmp_ne_u64 vcc, s[{sN}:{sN+1}], v[12:13]")
        self(f"s_cbranch_vccz {d}")
        self(f"s_cmp_lt_u32 s{sCNT}, {self.limit:#x}")
        self(f"s_cbranch_scc1 {l}")
        self.lab(d)
    def spoll4x2(self, soff):
        l = self.newlab("POLL"); d = self.newlab("POLLD")
        self(f"s_add_u32 s{sPA}, s{sWS}, s{soff}")
        self(f"s_addc_u32 s{sPA+1}, s{sWS+1}, 0")
        self(f"s_mov_b32 s{sCNT}, 0")
        self.lab(l)
        self(f"s_load_dwordx8 s[16:23], s[{sPA}:{sPA+1}], 0x80 glc")
        self(f"s_add_u32 s{sCNT}, s{sCNT}, 1")
        self(f"s_and_b32 s32, s{sCNT}, 3")
        self(f"s_cmp_lg_u32 s32, 0")
        n = self.newlab("POLLF")
        self(f"s_cbranch_scc1 {n}")
        self("s_waitcnt lgkmcnt(0)")
        self(f"s_load_dwordx8 s[16:23], s[{sPA}:{sPA+1}], 0 glc")
        self.lab(n)
        self(f"s_cmp_ge_u32 s{sCNT}, {self.limit:#x}")
        self("s_waitcnt lgkmcnt(0)")
        self(f"s_cbranch_scc1 {d}")
        for q in range(4):
            self(f"s_cmp_eq_u64 s[{16+2*q}:{17+2*q}], s[{sN}:{sN+1}]")
            self(f"s_cbranch_scc0 {l}")
        self.lab(d)
    def flag2(self, saddr):
        self(f"v_mov_b32 v{vA3}, s{saddr}")
        self(f"s_mov_b64 s[{sEX}:{sEX+1}], exec")
        self("s_mov_b64 exec, 1")
        self(f"buffer_store_dwordx2 v[{vNON}:{vNON+1}], v{vA3}, s[{sWS}:{sWS+3}], 0 offen offset:128")
        self(f"buffer_store_dwordx2 v[{vNON}:{vNON+1}], v{vA3}, s[{sWS}:{sWS+3}], 0 offen sc1")
        self(f"s_mov_b64 exec, s[{sEX}:{sEX+1}]")
    def spollN(self, soff, deltas):
        l = self.newlab("POLL"); d = self.newlab("POLLD")
        regs = [16, 24, 32, 40][:len(deltas)]
        self(f"s_add_u32 s{sPA}, s{sWS}, s{soff}")
        self(f"s_addc_u32 s{sPA+1}, s{sWS+1}, 0")
        self(f"s_mov_b32 s{sCNT}, 0")
        self.lab(l)
        for r, dl in zip(regs, deltas):
            self(f"s_load_dwordx8 s[{r}:{r+7}], s[{sPA}:{sPA+1}], {dl:#x} glc")
        self(f"s_add_u32 s{sCNT}, s{sCNT}, 1")
        self(f"s_cmp_ge_u32 s{sCNT}, {self.limit:#x}")
        self("s_waitcnt lgkmcnt(0)")
        self(f"s_cbranch_scc1 {d}")
        for r in regs:
            for q in range(4):
                self(f"s_cmp_eq_u64 s[{r+2*q}:{r+2*q+1}], s[{sN}:{sN+1}]")
                self(f"s_cbranch_scc0 {l}")
        self.lab(d)
    def flag(self, saddr):
        self(f"v_mov_b32 v{vA3}, s{saddr}")
        self(f"s_mov_b64 s[{sEX}:{sEX+1}], exec")
        self("s_mov_b64 exec, 1")
        self(f"buffer_store_dwordx2 v[{vNON}:{vNON+1}], v{vA3}, s[{sWS}:{sWS+3}], 0 offen sc1")
        self(f"s_mov_b64 exec, s[{sEX}:{sEX+1}]")
    def nonce_issue(self, glc=""):
        self(f"s_load_dwordx2 s[{sN}:{sN+1}], s[28:29], 0{glc}")
    def nonce_finish(self):
        l = self.newlab("NON"); d = self.newlab("NOND")
        self(f"s_mov_b32 s{sCNT}, 0")
        self.lab(l)
        self("s_waitcnt lgkmcnt(0)")
        self(f"s_cmp_lg_u32 s{sN}, 0")
        self(f"s_cbranch_scc1 {d}")
        self(f"s_add_u32 s{sCNT}, s{sCNT}, 1")
        self(f"s_cmp_ge_u32 s{sCNT}, {self.limit:#x}")
        self(f"s_cbranch_scc1 {d}")
        self("s_sleep 8")
        self.nonce_issue(" glc")
        self(f"s_branch {l}")
        self.lab(d)
        self(f"v_mov_b32 v{vNON}, s{sN}")
        self(f"v_mov_b32 v{vNON+1}, s{sN+1}")

def mfma(g, d, a, b, c):
    cs = "0" if c is None else f"v[{c}:{c+15}]"
    g(f"v_mfma_f32_32x32x16_bf16 v[{d}:{d+15}], v[{a}:{a+3}], v[{b}:{b+3}], {cs}")
def mfma16(g, d, a, b, c):
    cs = "0" if c is None else f"v[{c}:{c+3}]"
    g(f"v_mfma_f32_16x16x32_bf16 v[{d}:{d+3}], v[{a}:{a+3}], v[{b}:{b+3}], {cs}")

def att_setup(g):
    g("v_and_b32 v24, 31, v0")
    g("v_lshrrev_b32 v25, 5, v0")
    g("v_and_b32 v26, 15, v0")
    g("v_xor_b32 v27, v26, v25")
    g("v_lshlrev_b32 v24, 8, v24")
    for s in range(8):
        g(f"v_xor_b32 v28, {2*s}, v27")
        g(f"v_lshl_add_u32 v{vKA+s}, v28, 4, v24")
    g("v_lshrrev_b32 v28, 2, v26")
    g("v_lshl_add_u32 v29, v25, 2, v28")
    g("v_lshlrev_b32 v29, 8, v29")
    g("v_and_b32 v30, 1, v0")
    g("v_lshl_add_u32 v29, v30, 3, v29")
    g("v_add_u32 v29, 16384, v29")
    g("v_bfe_u32 v30, v0, 1, 1")
    g("v_bfe_u32 v31, v0, 4, 1")
    g("v_lshl_add_u32 v30, v31, 1, v30")
    g("v_lshlrev_b32 v28, 2, v28")
    g("v_xor_b32 v30, v30, v28")
    for dt in range(4):
        g(f"v_xor_b32 v31, {4*dt}, v30")
        g(f"v_lshl_add_u32 v{vVA+dt}, v31, 4, v29")
    mask = sum(1 << l for l in (0, 8, 32, 40, 20, 28, 52, 60))
    g(f"s_mov_b32 s{sEX}, {mask & 0xffffffff:#x}")
    g(f"s_mov_b32 s{sEX+1}, {mask >> 32:#x}")
    g(f"v_mov_b32 v28, 0x3f803f80")
    g(f"v_cndmask_b32 v{vONE}, 0, v28, s[{sEX}:{sEX+1}]")
    for u in range(1, 4): g(f"v_mov_b32 v{vONE+u}, v{vONE}")
    g(f"s_mov_b32 s{sTHR}, {f2u(THR):#x}")

BIAS = 9.0
vOR = 252
def att_loop(g, O=None):
    O = {**dict(sum="m16", e2=(7, 9), barwait=False, m16s=(12, 13), ord="DDDDDDDDDDIVMDMM"), **(O or {})}
    g.stubs = []
    kcur = [0]; vcur = [0]
    def kbase(t):
        slot = (t // 2) % O.get('nks', 4)
        want = (slot >> 1) * 65536
        r = []
        if want != kcur[0]:
            r.append(f"s_mov_b32 s{sT0}, {(want - kcur[0]) & 0xffffffff:#x}")
            for x in range(vKA, vKA+8): r.append(f"v_add_u32 v{x}, s{sT0}, v{x}")
            kcur[0] = want
        return (slot & 1) * 32768 + (t & 1) * 8192, r
    def vbase(t):
        slot = (t // 2) % O.get('nks', 4)
        want = (slot >> 1) * 65536
        r = []
        if want != vcur[0]:
            r.append(f"s_mov_b32 s{sT1}, {(want - vcur[0]) & 0xffffffff:#x}")
            for x in range(vVA, vVA+4): r.append(f"v_add_u32 v{x}, s{sT1}, v{x}")
            vcur[0] = want
        return (slot & 1) * 32768 + (t & 1) * 8192, r
    def krd(off, s, base=vKR):
        return [f"ds_read_b128 v[{base+4*s}:{base+4*s+3}], v{vKA+s} offset:{off}"]
    def vrd(off, n):
        t2, dt = n >> 2, n & 3
        b = vVR + 4*n
        return [f"ds_read_b64_tr_b16 v[{b}:{b+1}], v{vVA+dt} offset:{off + 4096*t2}",
                f"ds_read_b64_tr_b16 v[{b+2}:{b+3}], v{vVA+dt} offset:{off + 4096*t2 + 2048}"]
    def em(l):
        for x in l: g(x)
    mf = lambda d, a, b, c: f"v_mfma_f32_32x32x16_bf16 v[{d}:{d+15}], v[{a}:{a+3}], v[{b}:{b+3}], " + ("0" if c is None else f"v[{c}:{c+15}]")
    m16 = lambda d, a, b, c: f"v_mfma_f32_16x16x32_bf16 v[{d}:{d+3}], v[{a}:{a+3}], v[{b}:{b+3}], " + ("0" if c is None else f"v[{c}:{c+3}]")
    o, _ = kbase(0)
    for s in range(8): em(krd(o, s, vVR))
    o1, _ = kbase(1)
    for s in range(7): em(krd(o1, s))
    g("s_waitcnt vmcnt(0)")
    g.ts(5)
    if g.debug and g.debug != 9:
        g("s_memtime s[100:101]")
        g("s_waitcnt lgkmcnt(0)")
        g(f"s_mov_b32 s{sTS+15}, s100")
    g(f"s_waitcnt lgkmcnt(7)")
    for s in range(8):
        g(mf(vS, vVR+4*s, vQ+4*s, None if s == 0 else vS))
        if s == 0: em(krd(o1, 7))
    g(f"s_mov_b32 s{sT0}, {f2u(BIAS):#x}")
    if O["sum"] != "m16":
        g(f"v_mov_b32 v{vLS}, 0"); g(f"v_mov_b32 v{vLS+1}, 0")
    NT = 16
    tmp = [(vT0, vT1), (vTM, vT2)]
    for t in range(0, NT + 1):
        Sc = vS + 16*(t & 1); Sn = vS + 16*((t+1) & 1)
        Pc = vP + 8*(t & 1); Pp = vP + 8*((t-1) & 1)
        doS = t + 1 < NT; doPV = t >= 1; doSM = t < NT; doK = t + 2 < NT
        pre = [[] for _ in range(16)]; M = [[] for _ in range(16)]; D = [[] for _ in range(16)]; V = [[] for _ in range(16)]
        if t == 16: break
        if t == 15:
            vo, bump = vbase(15)
            assert not bump
            pre[0].append("s_waitcnt lgkmcnt(8)")
            pre[4].append("s_waitcnt lgkmcnt(6)")
            pre[8].append("s_waitcnt lgkmcnt(8)")
            pre[12].append("s_waitcnt lgkmcnt(0)")
            for n in range(8):
                dt = n & 3; t2 = n >> 2
                M[n].append(mf(vO+16*dt, vVR+4*n, Pp+4*t2, vO+16*dt))
                D[n] += vrd(vo, n)
                if not O.get("tail"): M[8+n].append(mf(vO+16*dt, vVR+4*n, Pc+4*t2, vO+16*dt))
            if O["sum"] == "m16":
                M[1].append(m16(vLS, vONE, Pp, vLS)); M[5].append(m16(vLS, vONE, Pp+4, vLS))
                if not O.get("tail"):
                    M[9].append(m16(vLS, vONE, Pc, vLS)); M[13].append(m16(vLS, vONE, Pc+4, vLS))
            if O.get("tail"):
                pre[8] = []; pre[12] = []
        elif doPV:
            vo, bump = vbase(t-1)
            pre[0] += bump
            for n in range(8): D[n] += vrd(vo, n)
            for n in range(8):
                dt = n & 3; t2 = n >> 2
                M[8+n].append(mf(vO+16*dt, vVR+4*n, Pp+4*t2, None if (t == 1 and t2 == 0) else vO+16*dt))
            if O["sum"] == "m16":
                M[O["m16s"][0]].append(m16(vLS, vONE, Pp, None if t == 1 else vLS))
                M[O["m16s"][1]].append(m16(vLS, vONE, Pp+4, vLS))
            pre[8].append("s_waitcnt lgkmcnt(8)")
            pre[12].append(f"s_waitcnt lgkmcnt({4 if doK else 6})")
        if t < 15: pre[4].append(f"s_waitcnt lgkmcnt({6 if doPV else 0})")
        if doS:
            pre[0].append("s_waitcnt lgkmcnt(4)")
            for s in range(8): M[s].append(mf(Sn, vKR+4*s, vQ+4*s, (None if t == 0 else vNEG) if s == 0 else Sn))
        if t % 2 == 0 and t <= 14:
            if O["barwait"] or t == 14: D[8].append("s_waitcnt lgkmcnt(0)")
            if t >= 2 and g.debug == 2:
                D[8] += ["s_memrealtime s[100:101]", "s_waitcnt lgkmcnt(0)", f"s_mov_b32 s{sTS+6+t//2}, s100"]
            D[8].append("s_barrier")
        if t == 14:
            vo, bump = vbase(14)
            D[8] += bump
            for n in range(8): D[8+n] += vrd(vo, n)
        if doK:
            ko, bump = kbase(t+2)
            D[8] += bump
            for n in range(8): D[8+n] += krd(ko, n)
        if doSM:
            if t == 0:
                V[2] += ["s_nop 7"]
                V[3] += [f"v_max3_f32 v{vTM}, v{vS}, v{vS+1}, v{vS+2}", f"v_max3_f32 v{vT2}, v{vS+3}, v{vS+4}, v{vS+5}",
                         f"v_max3_f32 v{vTM}, v{vS+6}, v{vS+7}, v{vTM}", f"v_max3_f32 v{vT2}, v{vS+8}, v{vS+9}, v{vT2}"]
                V[4] += [f"v_max3_f32 v{vTM}, v{vS+10}, v{vS+11}, v{vTM}", f"v_max3_f32 v{vT2}, v{vS+12}, v{vS+13}, v{vT2}",
                         f"v_max3_f32 v{vTM}, v{vS+14}, v{vS+15}, v{vTM}", f"v_max_f32 v{vTM}, v{vT2}, v{vTM}",
                         f"v_add_f32 v{vTM}, s{sT0}, v{vTM}", f"v_mov_b32 v{vT2}, v{vTM}"]
                V[5] += ["s_nop 0", f"v_permlane32_swap_b32 v{vTM}, v{vT2}", "s_nop 1", f"v_max_f32 v{vTM}, v{vTM}, v{vT2}",
                         f"v_sub_f32 v{vNEG}, 0, v{vTM}"]
                slots = [6, 6, 7, 7] + [8 + k//2 for k in range(12)]
                for u in range(1, 16): V[8 + min(6, (u-1)//2)].append(f"v_mov_b32 v{vNEG+u}, v{vNEG}")
            elif t == 15:
                slots = [0, 0, 0, 1, 1, 2, 2, 2, 3, 3, 4, 4, 4, 5, 5, 6]
            elif O.get("eslots"):
                slots = list(O["eslots"])
            else:
                slots = []
                for sl in range(14):
                    slots.append(sl)
                    if sl in O["e2"]: slots.append(sl)
            assert len(slots) == 16
            for e in range(16):
                T = tmp[(e >> 1) & 1][e & 1]
                if t <= 1:
                    V[slots[e]].append(f"v_add_f32 v{Sc+e}, v{Sc+e}, v{vNEG}")
                V[slots[e]].append(f"v_exp_f32 v{T}, v{Sc+e}")
            for u in range(8):
                sl = slots[2*u+1] + 1
                a, b = tmp[u & 1]
                ins = []
                if O["sum"] == "add":
                    ins += [f"v_add_f32 v{vLS}, v{vLS}, v{a}", f"v_add_f32 v{vLS+1}, v{vLS+1}, v{b}"]
                if O["sum"] == "pk":
                    ins += [f"v_pk_add_f32 v[{vLS}:{vLS+1}], v[{vLS}:{vLS+1}], v[{a}:{b}]"]
                ins.append(f"v_cvt_pk_bf16_f32 v{Pc+u}, v{a}, v{b}")
                V[sl] = ins + V[sl]
                if O["sum"] == "dot":
                    V[sl].append(f"v_dot2c_f32_bf16 v{vLS + (u & 1)}, v{Pc+u}, v{vONE}")
                if u & 1 and t > 0:
                    orr = f"v_or_b32 v{vOR}, v{Pc}, v{Pc+1}" if u == 1 else f"v_or3_b32 v{vOR}, v{Pc+u-1}, v{Pc+u}, v{vOR}"
                    V[sl].append(orr)
            if t > 0:
                cs = 7 if t == 15 else 14
                V[cs].append(f"v_and_b32 v{vOR}, 0x40004000, v{vOR}")
                V[cs].append(f"v_cmp_ne_u32 vcc, 0, v{vOR}")
        for sl in range(16):
            od = O.get("ord", "D" * 16)[sl] if 1 <= t <= 14 else "D"
            em(pre[sl])
            plain = all(x.startswith("ds_read") for x in D[sl])
            if od == "D" or not plain or not M[sl]:
                em(M[sl]); em(D[sl])
                if not M[sl] and not D[sl] and V[sl]: g("s_nop 0")
                em(V[sl])
            elif od == "V":
                em(M[sl]); em(V[sl]); em(D[sl])
            elif od == "I":
                em(M[sl]); d = list(D[sl]); v = list(V[sl])
                while d or v:
                    if d: g(d.pop(0))
                    if v: g(v.pop(0))
            elif od == "M":
                em(M[sl][:1]); em(D[sl]); em(V[sl]); em(M[sl][1:])
            if doSM and t > 0 and sl == (7 if t == 15 else 15):
                st = g.newlab("RS"); bk = g.newlab("RB")
                g(f"s_cbranch_vccnz {st}")
                g.lab(bk)
                g.stubs.append((st, bk, t & 1))
    if O["sum"] != "m16":
        g(f"v_add_f32 v{vLS}, v{vLS}, v{vLS+1}")
        g(f"v_mov_b32 v{vT2}, v{vLS}")
        g("s_nop 1")
        g(f"v_permlane32_swap_b32 v{vLS}, v{vT2}")
        g("s_nop 1")
        g(f"v_add_f32 v{vLS}, v{vLS}, v{vT2}")

def rare_path(g, O=None):
    for st, bk, par in g.stubs:
        g.lab(st)
        g(f"s_call_b64 s[{sRET}:{sRET+1}], L_RARE{par}")
        g(f"s_branch {bk}")
    for par in range(2):
        g.lab(f"L_RARE{par}")
        Sc = vS + 16*par; Sn = vS + 16*(par ^ 1); Pc = vP + 8*par
        g("s_nop 15")
        g(f"v_max3_f32 v{vTM}, v{Sc}, v{Sc+1}, v{Sc+2}")
        for u in range(6): g(f"v_max3_f32 v{vTM}, v{Sc+3+2*u}, v{Sc+4+2*u}, v{vTM}")
        g(f"v_max_f32 v{vTM}, v{Sc+15}, v{vTM}")
        g(f"v_add_f32 v{vTM}, {f2u(BIAS):#x}, v{vTM}")
        g(f"v_mov_b32 v{vT2}, v{vTM}")
        g("s_nop 1")
        g(f"v_permlane32_swap_b32 v{vTM}, v{vT2}")
        g("s_nop 1")
        g(f"v_max3_f32 v{vTM}, v{vTM}, v{vT2}, 0")
        g(f"v_ceil_f32 v{vTM}, v{vTM}")
        g(f"v_sub_f32 v{vT2}, 0, v{vTM}")
        g(f"v_exp_f32 v{vT2}, v{vT2}")
        for u in range(16): g(f"v_sub_f32 v{Sc+u}, v{Sc+u}, v{vTM}")
        for u in range(16): g(f"v_sub_f32 v{Sn+u}, v{Sn+u}, v{vTM}")
        for u in range(16): g(f"v_sub_f32 v{vNEG+u}, v{vNEG+u}, v{vTM}")
        for u in range(64): g(f"v_mul_f32 v{vO+u}, v{vO+u}, v{vT2}")
        g(f"v_mul_f32 v{vLS}, v{vLS}, v{vT2}")
        for u in range(8):
            g(f"v_exp_f32 v{vT0}, v{Sc+2*u}")
            g(f"v_exp_f32 v{vT1}, v{Sc+2*u+1}")
            g("s_nop 0")
            g(f"v_cvt_pk_bf16_f32 v{Pc+u}, v{vT0}, v{vT1}")
        g("s_nop 1")
        g(f"s_setpc_b64 s[{sRET}:{sRET+1}]")

def gen(debug=False, LA=2, cprio=1, rot=True, xnt=False, codepf=True, early={5: 1, 6: 2}, nq1=1, bflag='', pfflag='', kvflag='nt', wqflag='', span=False, wsoff=0, ptail=True, pfirst=True, kvmap='rr', polay=0, pretouch=True, NKS=5, vp='sc0 sc1', wf='sc1', rf='sc0 sc1', qf='sc1', ophint=True, f2fast=False, apf=False, f3wave=True, aprio=False, pffront={}, outflag='', pw2=0, pfplan={5: 8}, bplan={7: (0, 1), 8: (2, 3)}):
    g = G(debug=debug)
    qslot = lambda k: 1 + k % 4
    g("s_cmp_ge_u32 s2, 256")
    g("s_cbranch_scc1 L_END")
    g("s_load_dwordx16 s[16:31], s[0:1], 0")
    g(f"s_and_b32 s{sXCD}, s2, 7")
    g(f"s_lshr_b32 s{sI}, s2, 3")
    g("v_lshrrev_b32 v1, 6, v0")
    g("v_and_b32 v0, 63, v0")
    g(f"v_readfirstlane_b32 s{sWAVE}, v1")
    g(f"v_lshlrev_b32 v{vLANE16}, 4, v0")
    g(f"s_and_b32 s{sT0}, s{sI}, 7")
    g(f"s_lshl_b32 s{sCT}, s{sXCD}, 3")
    g(f"s_add_u32 s{sCT}, s{sCT}, s{sT0}")
    g(f"s_lshr_b32 s{sRT}, s{sI}, 3")
    g(f"s_lshl_b32 s{sK0}, s{sRT}, 1")
    g(f"s_add_u32 s{sK0}, s{sK0}, s{sT0}")
    if not rot: g(f"s_mov_b32 s{sK0}, 0")
    g(f"s_lshl_b32 s{sG}, s{sXCD}, 2")
    g(f"s_add_u32 s{sG}, s{sG}, s{sRT}")
    g(f"s_and_b32 s{sKQ}, s{sI}, 3")
    g(f"s_bfe_u32 s{sHQ}, s{sI}, 0x10002")
    g(f"s_lshl_b32 s{sGH}, s{sG}, 1")
    g(f"s_add_u32 s{sGH}, s{sGH}, s{sHQ}")
    g(f"s_and_b32 s{sW4}, s{sWAVE}, 3")
    g(f"s_lshr_b32 s{sROLE}, s{sWAVE}, 2")
    g(f"s_lshl_b32 s{sLW1K}, s{sW4}, 10")
    g(f"s_lshr_b32 s{sOH}, s{sXCD}, 1")
    g(f"s_and_b32 s{sN0}, s{sXCD}, 1")
    g(f"s_lshl_b32 s{sN0}, s{sN0}, 3")
    g(f"s_add_u32 s{sN0}, s{sN0}, s{sT0}")
    g(f"s_cmp_eq_u32 s{sROLE}, 0")
    g("s_cbranch_scc1 L_CWAVE")

    vXO, vWQO, vKO, vVO, vWOO = 16, 17, 18, 19, 20
    g("v_lshrrev_b32 v21, 4, v0")
    g(f"s_lshl_b32 s{sT1}, s{sW4}, 2")
    g(f"v_add_u32 v22, s{sT1}, v21")
    g("v_and_b32 v23, 15, v0")
    g("v_xor_b32 v24, v23, v22")
    g("v_lshlrev_b32 v24, 4, v24")
    g(f"v_lshl_add_u32 v{vXO}, v22, 11, v24")
    g("v_lshrrev_b32 v25, 3, v0")
    g("v_and_b32 v26, 7, v0")
    g("v_lshlrev_b32 v27, 1, v25")
    g("v_and_b32 v27, 4, v27")
    g("v_xor_b32 v26, v26, v27")
    g("v_lshlrev_b32 v26, 4, v26")
    g(f"v_lshl_add_u32 v{vWQO}, v25, 13, v26")
    g(f"s_lshl_b32 s{sBASE0}, s{sRT}, 17")
    g(f"s_lshl_b32 s{sBASE1}, s{sCT}, 7")
    g(f"s_lshl_b32 s{sT1}, s{sW4}, 16")
    g(f"s_add_u32 s{sBASE1}, s{sBASE1}, s{sT1}")
    g(f"s_mov_b32 s{sWQ+2}, {1024*4096*2:#x}")
    g(f"s_mov_b32 s{sWQ+3}, 0x20000")
    g(f"s_mov_b32 s{sX+2}, {8*32*1024*2:#x}")
    g(f"s_mov_b32 s{sX+3}, 0x20000")
    g("s_waitcnt lgkmcnt(0)")
    g(f"s_mov_b32 s{sWQ}, s22")
    g(f"s_and_b32 s{sWQ+1}, s23, 0xffff")
    g(f"s_mov_b32 s{sX}, s16")
    g(f"s_and_b32 s{sX+1}, s17, 0xffff")
    Q = []
    def need(*tags):
        last = max(i for i, x in enumerate(Q) if x in tags)
        g(f"s_waitcnt vmcnt({len(Q) - 1 - last})")
    def stage(k):
        slot = qslot(k) * 32768
        g(f"s_add_u32 s{sT1}, s{sK0}, {k}")
        g(f"s_and_b32 s{sT1}, s{sT1}, 7")
        g(f"s_lshl_b32 s{sT2}, s{sT1}, 20")
        g(f"s_add_u32 s{sT2}, s{sT2}, s{sBASE1}")
        g(f"s_lshl_b32 s{sT3}, s{sT1}, 8")
        g(f"s_add_u32 s{sT3}, s{sT3}, s{sBASE0}")
        for m in range(4):
            g.dma(vWQO, sWQ, sT2, 32*m*8192, sLW1K, slot + 16384 + 4096*m, wqflag)
            g.dma(vXO, sX, sT3, m*16*2048, sLW1K, slot + 4096*m, "nt" if xnt else "")
            Q.extend([f"S{k}"] * 2)
    def chunk(s):
        if kvmap == "contig":
            g(f"s_lshl_b32 s{sT1}, s{sKQ}, 17")
            g(f"s_add_u32 s{sT1}, s{sT1}, {s*16384}")
        elif kvmap == "rr":
            g(f"s_lshl_b32 s{sT1}, s{sKQ}, 14")
            g(f"s_add_u32 s{sT1}, s{sT1}, {s*65536}")
        elif kvmap in ("rrg", "rrx", "rri"):
            src = {"rrg": sG, "rrx": sXCD, "rri": sRT}[kvmap]
            if kvmap == "rri":
                g(f"s_lshl_b32 s{sT1}, s{src}, 1")
                g(f"s_add_u32 s{sT1}, s{sT1}, {s}")
            else:
                g(f"s_add_u32 s{sT1}, s{src}, {s}")
            g(f"s_and_b32 s{sT1}, s{sT1}, 7")
            g(f"s_lshl_b32 s{sT1}, s{sT1}, 2")
            g(f"s_add_u32 s{sT1}, s{sT1}, s{sKQ}")
            g(f"s_lshl_b32 s{sT1}, s{sT1}, 14")
        elif kvmap == "rr2":
            g(f"s_lshl_b32 s{sT1}, s{sKQ}, 15")
            g(f"s_add_u32 s{sT1}, s{sT1}, {(s >> 1)*131072 + (s & 1)*16384}")
        elif kvmap == "rot":
            g(f"s_add_u32 s{sT1}, s{sKQ}, {s >> 1}")
            g(f"s_and_b32 s{sT1}, s{sT1}, 3")
            g(f"s_lshl_b32 s{sT1}, s{sT1}, 2")
            g(f"s_add_u32 s{sT1}, s{sT1}, s{sKQ}")
            g(f"s_lshl_b32 s{sT1}, s{sT1}, 15")
            if s & 1: g(f"s_add_u32 s{sT1}, s{sT1}, 16384")
        elif kvmap == "rot2":
            g(f"s_add_u32 s{sT1}, s{sKQ}, {s & 3}")
            g(f"s_and_b32 s{sT1}, s{sT1}, 3")
            g(f"s_lshl_b32 s{sT1}, s{sT1}, 2")
            g(f"s_add_u32 s{sT1}, s{sT1}, s{sKQ}")
            g(f"s_lshl_b32 s{sT1}, s{sT1}, 15")
            if s >> 2: g(f"s_add_u32 s{sT1}, s{sT1}, 16384")
        g(f"s_add_u32 s{sT1}, s{sT1}, s{sKV}")
    def kpart(s):
        chunk(s)
        for m in range(4):
            g.dma(vKO, sK, sT1, 16*m*256, sLW1K, (s % NKS)*32768 + 4096*m, kvflag)
            Q.append(f"K{s}")
    def vpart(s):
        chunk(s)
        for m in range(4):
            g.dma(vVO, sV, sT1, 16*m*256, sLW1K, (s % NKS)*32768 + 16384 + 4096*m, kvflag)
            Q.append(f"V{s}")
    def part(tag):
        (kpart if tag[0] == "K" else vpart)(int(tag[1]))
    for k in range(LA): stage(k)
    g.ts(0)
    g.srd(sK, 18, 8*4*8192*128*2)
    g.srd(sV, 20, 8*4*8192*128*2)
    g.srd(sWO, 24, 4096*1024*2)
    g.srd(sOUT, 26, 8*32*1024*2)
    g.srd_ws(wsoff)
    g(f"v_lshl_add_u32 v{vKO}, v22, 8, v24")
    g("v_lshlrev_b32 v28, 2, v21")
    g("v_xor_b32 v28, v23, v28")
    g("v_lshlrev_b32 v28, 4, v28")
    g(f"v_lshl_add_u32 v{vVO}, v22, 8, v28")
    g(f"v_lshl_add_u32 v{vWOO}, v25, 11, v26")
    g(f"s_lshl_b32 s{sKV}, s{sG}, 21")
    g(f"s_add_u32 s{sKV}, s{sKV}, {6144*256:#x}")
    sPF = sCT
    g(f"s_lshl_b32 s{sPF}, s{sOH}, 21")
    g(f"s_lshl_b32 s{sT1}, s{sW4}, 14")
    g(f"s_add_u32 s{sPF}, s{sPF}, s{sT1}")
    g(f"s_lshl_b32 s{sT1}, s{sI}, 16")
    g(f"s_add_u32 s{sPF}, s{sPF}, s{sT1}")
    g(f"s_and_b32 s{sT1}, s{sXCD}, 1")
    g(f"s_lshl_b32 s{sT1}, s{sT1}, 10")
    g(f"s_add_u32 s{sPF}, s{sPF}, s{sT1}")
    npf = [0]
    def wopf(n):
        for _ in range(n):
            g(f"s_add_u32 s{sT0}, s{sPF}, {npf[0]*2048:#x}")
            g(f"buffer_load_dwordx4 v[32:35], v{vLANE16}, s[{sWO}:{sWO+3}], s{sT0} offen {pfflag}")
            Q.append("PF"); npf[0] += 1
    if pretouch:
        def touch(expr_lines, base):
            for l in expr_lines: g(l)
            g(f"s_mul_i32 s{sT1}, s{sT1}, {FS}")
            g(f"s_add_u32 s{sT1}, s{sT1}, {base:#x}")
            g(f"s_add_u32 s{sPA}, s{sWS}, s{sT1}")
            g(f"s_addc_u32 s{sPA+1}, s{sWS+1}, 0")
            g(f"s_load_dword s{sRET}, s[{sPA}:{sPA+1}], 0 glc")
        touch([f"s_lshl_b32 s{sT1}, s{sGH}, 2", f"s_add_u32 s{sT1}, s{sT1}, s{sW4}"], F1)
        touch([f"s_mov_b32 s{sT1}, s{sGH}"], F2)
        touch([f"s_lshl_b32 s{sT1}, s{sRT}, 3", f"s_add_u32 s{sT1}, s{sT1}, s{sOH}", f"s_lshl_b32 s{sT1}, s{sT1}, 5", f"s_add_u32 s{sT1}, s{sT1}, s{sN0}",
               f"s_and_b32 s{sT2}, s{sW4}, 1", f"s_lshl_b32 s{sT2}, s{sT2}, 7", f"s_add_u32 s{sT1}, s{sT1}, s{sT2}",
               f"s_lshr_b32 s{sT2}, s{sW4}, 1", f"s_lshl_b32 s{sT2}, s{sT2}, 4", f"s_add_u32 s{sT1}, s{sT1}, s{sT2}"], F3)
        touch([f"s_lshl_b32 s{sT1}, s{sRT}, 4", f"s_add_u32 s{sT1}, s{sT1}, s{sN0}", f"s_lshl_b32 s{sT1}, s{sT1}, 2", f"s_add_u32 s{sT1}, s{sT1}, s{sOH}",
               f"s_lshl_b32 s{sT1}, s{sT1}, 1", f"s_and_b32 s{sT2}, s{sW4}, 1", f"s_add_u32 s{sT1}, s{sT1}, s{sT2}"], F4)
    order = ["K0", "K1", "V0"] + [x for s_ in range(1, 8) for x in ([f"K{s_+1}"] if s_ < 7 else []) + [f"V{s_}"]]
    todo = list(order)
    def issue(n):
        for _ in range(n):
            if todo: part(todo.pop(0))
    for k in range(8):
        need(f"S{k}")
        if k >= 1: g.ts(6 + k, 5)
        g("s_barrier")
        if k == 0: g.ts(1)
        if k + LA < 8: stage(k + LA)
        wopf(pffront.get(k, 0))
        issue(early.get(k, 0))
    g.ts(2)
    g.nonce_issue()
    g(f"s_lshl_b32 s{sBASE0}, s{sOH}, 21")
    g(f"s_lshl_b32 s{sT1}, s{sW4}, 14")
    g(f"s_add_u32 s{sBASE0}, s{sBASE0}, s{sT1}")
    g(f"s_lshl_b32 s{sT1}, s{sN0}, 7")
    g(f"s_add_u32 s{sBASE0}, s{sBASE0}, s{sT1}")
    def bpart(pos):
        slot = ([4, 0, 1, 2] if NKS == 4 else [3, 4, 0, 1])[pos]
        g(f"s_add_u32 s{sT1}, s{sRT}, {pos}")
        g(f"s_and_b32 s{sT1}, s{sT1}, 3")
        g(f"s_lshl_b32 s{sT1}, s{sT1}, 19")
        g(f"s_add_u32 s{sT1}, s{sT1}, s{sBASE0}")
        for m in range(8):
            g.dma(vWOO, sWO, sT1, 32*m*2048, sLW1K, slot*32768 + 4096*m, bflag)
            Q.append(f"B{pos}")
    g.nonce_finish()
    g("s_barrier")
    g.ts(3)
    issue(nq1)
    g("s_barrier")
    g.ts(4)
    while len(order) - len(todo) < 3: issue(1)
    need("K0")
    g("s_barrier")
    g.ts(5)
    for s in range(0, 8):
        la = s + 1 + (NKS - 4)
        lim = order.index(f"V{la}") + 1 if la <= 7 else len(order)
        while len(order) - len(todo) < lim: issue(1)
        wopf(pfplan.get(s, 0))
        for pos in bplan.get(s, ()): bpart(pos)
        if s < 7: need(f"K{s+1}", f"V{s}")
        else: need("V7")
        if s >= 1: g.ts(6 + s, 2)
        g("s_barrier")
    g.ts(11, 3)
    for pos in bplan.get(8, ()): bpart(pos)
    if 9 in bplan:
        g("s_barrier")
        wopf(pfplan.get(9, 0))
        for pos in bplan[9]: bpart(pos)
    g.ts(6)
    if g.debug == 3:
        g("s_waitcnt vmcnt(16)"); g.ts(12, 3)
        g("s_waitcnt vmcnt(0)"); g.ts(13, 3)
    g("s_branch L_BACK")

    g.lab("L_CWAVE")
    g("s_waitcnt lgkmcnt(0)")
    g.srd_ws(wsoff)
    g.srd(sDBG, 28, 256)
    g(f"s_or_b32 s{sT0}, s2, s{sWAVE}")
    g(f"s_cmp_lg_u32 s{sT0}, 0")
    g("s_cbranch_scc1 L_NOPUB")
    g(f"s_memrealtime s[{sN}:{sN+1}]")
    g("s_waitcnt lgkmcnt(0)")
    g(f"s_or_b32 s{sN}, s{sN}, 1")
    g(f"s_xor_b32 s{sN+1}, s{sN+1}, 0x5bd1e995")
    g(f"v_mov_b32 v{vNON}, s{sN}")
    g(f"v_mov_b32 v{vNON+1}, s{sN+1}")
    g(f"v_mov_b32 v{vA3}, 0")
    g(f"buffer_store_dwordx2 v[{vNON}:{vNON+1}], v{vA3}, s[{sDBG}:{sDBG+3}], 0 offen sc1")
    g.lab("L_NOPUB")
    if codepf:
        g(f"s_cmp_lg_u32 s{sWAVE}, 1")
        g("s_cbranch_scc1 L_NOPF")
        g(f"s_getpc_b64 s[{sPA}:{sPA+1}]")
        g.lab("L_PC")
        g(f"s_lshl_b32 s{sT0}, s{sI}, 10")
        g(f"s_min_u32 s{sT0}, s{sT0}, L_CODE_END-L_PC-1024")
        g(f"v_add_u32 v{vA0}, s{sT0}, v{vLANE16}")
        g(f"global_load_dwordx4 v[{vS}:{vS+3}], v{vA0}, s[{sPA}:{sPA+1}]")
        g.lab("L_NOPF")
    g.ts(0)
    g.srd(sOUT, 26, 8*32*1024*2)
    g(f"s_and_b32 s{sT0}, s{sW4}, 1")
    g(f"s_lshl_b32 s{sT0}, s{sT0}, 13")
    g("v_and_b32 v20, 31, v0")
    g("v_lshrrev_b32 v21, 5, v0")
    g("v_and_b32 v22, 15, v0")
    g("v_xor_b32 v22, v22, v21")
    g(f"v_lshlrev_b32 v23, 8, v20")
    g(f"v_add_u32 v23, s{sT0}, v23")
    for s in range(8):
        g(f"v_xor_b32 v24, {2*s}, v22")
        g(f"v_lshl_add_u32 v{vKA+s}, v24, 4, v23")
    g("v_and_b32 v20, 15, v0")
    g("v_lshrrev_b32 v22, 2, v20")
    g("v_lshl_add_u32 v23, v21, 3, v22")
    g("v_lshlrev_b32 v23, 7, v23")
    g("v_and_b32 v24, 1, v0")
    g("v_bfe_u32 v25, v0, 4, 1")
    g("v_lshl_add_u32 v24, v25, 1, v24")
    g(f"s_lshr_b32 s{sT0}, s{sW4}, 1")
    g(f"s_lshl_b32 s{sT0}, s{sT0}, 2")
    g(f"v_add_u32 v24, s{sT0}, v24")
    g("v_lshlrev_b32 v26, 1, v22")
    g("v_and_b32 v26, 4, v26")
    g("v_xor_b32 v24, v24, v26")
    g("v_lshl_add_u32 v23, v24, 4, v23")
    g("v_bfe_u32 v25, v0, 1, 1")
    g(f"v_lshl_add_u32 v{vVA}, v25, 3, v23")
    g(f"v_add_u32 v{vVA}, 16384, v{vVA}")
    acc = vO
    fr = 16
    cur = [0]
    def setbase(regs, want):
        if want != cur[0]:
            g(f"s_mov_b32 s{sT0}, {(want - cur[0]) & 0xffffffff:#x}")
            for r in regs: g(f"v_add_u32 v{r}, s{sT0}, v{r}")
            cur[0] = want
    for k in range(8):
        slot = qslot(k)
        setbase(list(range(vKA, vKA+8)) + [vVA], (slot >> 1) * 65536)
        io = (slot & 1) * 32768
        if k >= 1: g.ts(6 + k, 5)
        g("s_barrier")
        if k == 0: g.ts(1)
        def rd(s):
            b = fr + 8*s
            g(f"ds_read_b64_tr_b16 v[{b}:{b+1}], v{vVA} offset:{io + 2048*s}")
            g(f"ds_read_b64_tr_b16 v[{b+2}:{b+3}], v{vVA} offset:{io + 2048*s + 512}")
            g(f"ds_read_b128 v[{b+4}:{b+7}], v{vKA+s} offset:{io}")
        for s in range(5): rd(s)
        for s in range(8):
            g(f"s_waitcnt lgkmcnt({min(4, 7 - s) * 3})")
            mfma(g, acc, fr + 8*s, fr + 8*s + 4, None if (k == 0 and s == 0) else acc)
            if s + 5 < 8: rd(s + 5)
    g.ts(2)
    g.nonce_issue()
    g(f"s_and_b32 s{sT0}, s{sW4}, 1")
    g(f"s_lshl_b32 s{sT1}, s{sRT}, 1")
    g(f"s_add_u32 s{sT1}, s{sT1}, s{sT0}")
    g(f"s_lshl_b32 s{sT1}, s{sT1}, 5")
    g(f"s_lshr_b32 s{sT2}, s{sCT}, 1")
    g(f"s_add_u32 s{sT1}, s{sT1}, s{sT2}")
    g(f"s_and_b32 s{sT2}, s{sCT}, 1")
    g(f"s_lshl_b32 s{sT2}, s{sT2}, 1")
    g(f"s_lshr_b32 s{sT3}, s{sW4}, 1")
    g(f"s_add_u32 s{sT2}, s{sT2}, s{sT3}")
    g(f"s_lshl_b32 s{sBASE0}, s{sT1}, 13")
    g(f"s_lshl_b32 s{sT3}, s{sT2}, 11")
    g(f"s_add_u32 s{sBASE0}, s{sBASE0}, s{sT3}")
    g(f"s_mul_i32 s{sBASE1}, s{sT1}, {FS}")
    g(f"s_lshl_b32 s{sT3}, s{sT2}, 3")
    g(f"s_add_u32 s{sBASE1}, s{sBASE1}, s{sT3}")
    g(f"s_add_u32 s{sBASE1}, s{sBASE1}, {F1:#x}")
    g(f"s_mov_b32 s{sT0}, {f2u(C_SCALE):#x}")
    for u in range(16):
        g(f"v_mul_f32 v{acc+u}, s{sT0}, v{acc+u}")
    for u in range(8):
        g(f"v_cvt_pk_bf16_f32 v{16+u}, v{acc+2*u}, v{acc+2*u+1}")
    g(f"buffer_store_dwordx4 v[16:19], v{vLANE16}, s[{sWS}:{sWS+3}], s{sBASE0} offen sc1")
    g(f"buffer_store_dwordx4 v[20:23], v{vLANE16}, s[{sWS}:{sWS+3}], s{sBASE0} offen offset:1024 sc1")
    att_setup(g)
    g(f"s_lshl_b32 s{sT2}, s{sGH}, 2")
    g(f"s_add_u32 s{sT2}, s{sT2}, s{sW4}")
    g(f"s_lshl_b32 s{sBASE0}, s{sT2}, 13")
    g(f"s_mul_i32 s{sT2}, s{sT2}, {FS}")
    g(f"s_add_u32 s{sT2}, s{sT2}, {F1:#x}")
    g.nonce_finish()
    g("s_waitcnt vmcnt(0)")
    g.flag(sBASE1)
    g("s_barrier")
    g.ts(3)
    g.spoll4(sT2)
    g.ts(4)
    for s in range(8):
        if s == 4: g(f"s_add_u32 s{sBASE0}, s{sBASE0}, 4096")
        g(f"buffer_load_dwordx4 v[{vQ+4*s}:{vQ+4*s+3}], v{vLANE16}, s[{sWS}:{sWS+3}], s{sBASE0} offen offset:{1024*(s&3)} {qf}")
    g("s_barrier")
    if cprio: g(f"s_setprio {cprio}")
    g("s_barrier")
    att_loop(g, dict(nks=NKS, tail=ptail))
    def stamp6():
        g.ts(6)
        if g.debug and g.debug != 9:
            g("s_memtime s[100:101]")
            g("s_waitcnt lgkmcnt(0)")
            g(f"s_sub_u32 s{sTS+15}, s100, s{sTS+15}")
        if cprio: g("s_setprio 0")
    if not ptail: stamp6()
    Pl = vP + 8
    def pv(dt):
        if dt == 0: g("s_waitcnt lgkmcnt(6)")
        if dt == 2: g("s_waitcnt lgkmcnt(0)")
        mfma(g, vO+16*dt, vVR+4*dt, Pl, vO+16*dt)
        if dt == 1: g("s_waitcnt lgkmcnt(2)")
        mfma(g, vO+16*dt, vVR+16+4*dt, Pl+4, vO+16*dt)
    if ptail:
        pv(0); mfma16(g, vLS, vONE, Pl, vLS); pv(1)
    LSC = 98304 if NKS == 4 else 65536
    sh_own, sh_w4, sh_fi, sh_sp = ((15, 13, 12, 10), (13, 11, 10, 15), (15, 11, 10, 13))[polay]
    g(f"s_lshl_b32 s{sBASE0}, s{sGH}, 17")
    g(f"s_lshl_b32 s{sT0}, s{sW4}, {sh_w4}")
    g(f"s_add_u32 s{sBASE0}, s{sBASE0}, s{sT0}")
    g(f"s_lshl_b32 s{sT0}, s{sKQ}, {sh_sp}")
    g(f"s_add_u32 s{sBASE0}, s{sBASE0}, s{sT0}")
    g(f"s_add_u32 s{sBASE0}, s{sBASE0}, {PO:#x}")
    g(f"s_lshl_b32 s{sT1}, s{sGH}, 2")
    g(f"s_add_u32 s{sT1}, s{sT1}, s{sW4}")
    g(f"s_lshl_b32 s{sT2}, s{sT1}, 10")
    g(f"s_lshl_b32 s{sT3}, s{sKQ}, 8")
    g(f"s_add_u32 s{sT2}, s{sT2}, s{sT3}")
    g(f"s_add_u32 s{sT2}, s{sT2}, {ST:#x}")
    g(f"v_and_b32 v{vA0}, 31, v0")
    g(f"v_lshlrev_b32 v{vA0}, 3, v{vA0}")
    g(f"s_lshl_b32 s{sT3}, s{sW4}, 11")
    g(f"s_add_u32 s{sT3}, s{sT3}, {LSC}")
    g(f"v_add_u32 v{vA1}, s{sT3}, v{vLANE16}")
    g(f"s_lshl_b32 s{sT3}, s{sW4}, 8")
    g(f"s_add_u32 s{sT3}, s{sT3}, {LSC + 8192}")
    g(f"v_add_u32 v{vA2}, s{sT3}, v{vA0}")
    g(f"v_sub_f32 v{vT0}, 0, v{vNEG}")
    if ptail:
        mfma16(g, vLS, vONE, Pl+4, vLS); pv(2)
    for o in range(4):
        if ptail and o == 2: stamp6()
        if ptail and o == 3: g("s_nop 3")
        for fi in range(2):
            f = 2*o + fi; src = vO + 8*f; dst = vKR + 4*f
            for u in range(4):
                g(f"v_cvt_pk_bf16_f32 v{dst+u}, v{src+2*u}, v{src+2*u+1}")
        if ptail and o == 0: pv(3)
        lo = g.newlab("LOC"); nx = g.newlab("NXT")
        dst = vKR + 8*o
        g(f"s_cmp_eq_u32 s{sKQ}, {o}")
        g(f"s_cbranch_scc1 {lo}")
        g(f"s_add_u32 s{sT0}, s{sBASE0}, {o << sh_own:#x}")
        g(f"s_add_u32 s{sT3}, s{sBASE0}, {(o << sh_own) + (1 << sh_fi):#x}")
        g(f"buffer_store_dwordx4 v[{dst}:{dst+3}], v{vLANE16}, s[{sWS}:{sWS+3}], s{sT0} offen {wf}")
        g(f"buffer_store_dwordx4 v[{dst+4}:{dst+7}], v{vLANE16}, s[{sWS}:{sWS+3}], s{sT3} offen {wf}")
        g(f"s_branch {nx}")
        g.lab(lo)
        g(f"ds_write_b128 v{vA1}, v[{dst}:{dst+3}]")
        g(f"ds_write_b128 v{vA1}, v[{dst+4}:{dst+7}] offset:1024")
        g.lab(nx)
        if o == (1 if ptail else 0):
            g(f"v_mov_b32 v{vT1}, v{vLS}")
            g(f"buffer_store_dwordx2 v[{vT0}:{vT1}], v{vA0}, s[{sWS}:{sWS+3}], s{sT2} offen {wf}")
            g(f"ds_write_b64 v{vA2}, v[{vT0}:{vT1}]")
    if 9 in bplan: g("s_barrier")

    g.lab("L_BACK")
    sBB, sHP = sCT, sK0
    g(f"s_and_b32 s{sBB}, s{sWAVE}, 1")
    g(f"s_lshr_b32 s{sHP}, s{sWAVE}, 1")
    g(f"s_sub_u32 s{sT0}, s{sHP}, s{sRT}")
    g(f"s_and_b32 s{sT0}, s{sT0}, 3")
    if NKS == 4:
        g(f"s_sub_u32 s{sT2}, s{sT0}, 1")
        g(f"s_cmp_eq_u32 s{sT0}, 0")
        g(f"s_cselect_b32 s{sT2}, 4, s{sT2}")
    else:
        g(f"s_sub_u32 s{sT2}, s{sT0}, 2")
        g(f"s_add_u32 s{sT3}, s{sT0}, 3")
        g(f"s_cmp_lt_u32 s{sT0}, 2")
        g(f"s_cselect_b32 s{sT2}, s{sT3}, s{sT2}")
    g(f"s_lshl_b32 s{sT2}, s{sT2}, 15")
    g("v_lshrrev_b32 v4, 5, v0")
    g("v_bfe_u32 v5, v0, 2, 2")
    g("v_lshl_add_u32 v6, v4, 2, v5")
    g("v_lshlrev_b32 v6, 7, v6")
    g("v_and_b32 v7, 1, v0")
    g("v_lshl_add_u32 v6, v7, 3, v6")
    g(f"v_add_u32 v6, s{sT2}, v6")
    g("v_bfe_u32 v7, v0, 1, 1")
    g("v_bfe_u32 v8, v0, 4, 1")
    g("v_lshl_add_u32 v7, v8, 1, v7")
    g("v_lshlrev_b32 v5, 1, v5")
    g("v_and_b32 v5, 4, v5")
    g("v_xor_b32 v7, v7, v5")
    g(f"v_lshl_add_u32 v{vKA}, v7, 4, v6")
    g("v_xor_b32 v7, 4, v7")
    g(f"v_lshl_add_u32 v{vKA+1}, v7, 4, v6")
    g(f"s_lshl_b32 s{sT1}, s{sGH}, 2")
    g(f"s_add_u32 s{sT1}, s{sT1}, s{sW4}")
    g(f"s_lshl_b32 s{sBASE1}, s{sT1}, 10")
    g(f"s_add_u32 s{sBASE1}, s{sBASE1}, {ST:#x}")
    g(f"s_lshl_b32 s{sBASE0}, s{sGH}, 17")
    g(f"s_lshl_b32 s{sT0}, s{sKQ}, {sh_own}")
    g(f"s_add_u32 s{sBASE0}, s{sBASE0}, s{sT0}")
    g(f"s_lshl_b32 s{sT0}, s{sW4}, {sh_w4}")
    g(f"s_add_u32 s{sBASE0}, s{sBASE0}, s{sT0}")
    g(f"s_lshl_b32 s{sT0}, s{sROLE}, {sh_fi}")
    g(f"s_add_u32 s{sBASE0}, s{sBASE0}, s{sT0}")
    g(f"s_add_u32 s{sBASE0}, s{sBASE0}, {PO:#x}")
    g(f"v_and_b32 v{vA0}, 31, v0")
    g(f"v_lshlrev_b32 v{vA0}, 3, v{vA0}")
    g(f"s_lshl_b32 s{sT0}, s{sW4}, 11")
    g(f"s_lshl_b32 s{sT2}, s{sROLE}, 10")
    g(f"s_add_u32 s{sT0}, s{sT0}, s{sT2}")
    g(f"s_add_u32 s{sT0}, s{sT0}, {LSC}")
    g(f"v_add_u32 v{vA1}, s{sT0}, v{vLANE16}")
    g(f"s_lshl_b32 s{sT0}, s{sW4}, 8")
    g(f"s_add_u32 s{sT0}, s{sT0}, {LSC + 8192}")
    g(f"v_add_u32 v{vA2}, s{sT0}, v{vA0}")
    g(f"s_mul_i32 s{sT2}, s{sGH}, {FS}")
    g(f"s_add_u32 s{sT2}, s{sT2}, {F2:#x}")
    g(f"s_lshl_b32 s{sT3}, s{sKQ}, 3")
    g(f"s_add_u32 s{sT3}, s{sT3}, s{sT2}")
    g("s_waitcnt vmcnt(0) lgkmcnt(0)")
    g.ts(7)
    g("s_barrier")
    g.ts(7, 4)
    vB = 112
    def bread():
        cnt = 0
        for n in range(16):
            for nt in range(2):
                b = vB + (n*2+nt)*4
                g(f"ds_read_b64_tr_b16 v[{b}:{b+1}], v{vKA+nt} offset:{2048*n}")
                g(f"ds_read_b64_tr_b16 v[{b+2}:{b+3}], v{vKA+nt} offset:{2048*n+1024}")
                cnt += 2
                if cnt % 8 == 0: g("s_waitcnt lgkmcnt(5)")
        g("s_waitcnt lgkmcnt(0)")
    g(f"ds_read_b64 v[16:17], v{vA2}")
    g(f"ds_read_b128 v[48:51], v{vA1}")
    g(f"s_cmp_lg_u32 s{sWAVE}, {pw2}")
    g("s_cbranch_scc1 L_NOF2")
    g.flag(sT3)
    if pfirst:
        g.vpoll4(sT2, vp) if vp else g.spoll4(sT2)
        g("s_branch L_NOP2")
    g.lab("L_NOF2")
    bread()
    if not pfirst:
        g(f"s_cmp_lg_u32 s{sWAVE}, {pw2}")
        g("s_cbranch_scc1 L_NOP2")
        g.vpoll4(sT2, vp) if vp else g.spoll4(sT2)
    g.lab("L_NOP2")
    g("s_barrier")
    g.ts(8); g.ts(8, 4)
    for e in range(1, 4):
        g(f"s_add_u32 s{sT0}, s{sKQ}, {e}")
        g(f"s_and_b32 s{sT0}, s{sT0}, 3")
        g(f"s_lshl_b32 s{sT2}, s{sT0}, 8")
        g(f"s_add_u32 s{sT2}, s{sT2}, s{sBASE1}")
        g(f"buffer_load_dwordx2 v[{16+2*e}:{17+2*e}], v{vA0}, s[{sWS}:{sWS+3}], s{sT2} offen {rf}")
    for e in range(1, 4):
        g(f"s_add_u32 s{sT0}, s{sKQ}, {e}")
        g(f"s_and_b32 s{sT0}, s{sT0}, 3")
        g(f"s_lshl_b32 s{sT2}, s{sT0}, {sh_sp}")
        g(f"s_add_u32 s{sT2}, s{sT2}, s{sBASE0}")
        g(f"buffer_load_dwordx4 v[{48+4*e}:{51+4*e}], v{vLANE16}, s[{sWS}:{sWS+3}], s{sT2} offen {rf}")
    g(f"s_lshl_b32 s{sT0}, s{sT1}, 13")
    g(f"s_lshl_b32 s{sT2}, s{sKQ}, 11")
    g(f"s_add_u32 s{sT0}, s{sT0}, s{sT2}")
    g(f"s_lshl_b32 s{sT2}, s{sROLE}, 10")
    g(f"s_add_u32 s{sT0}, s{sT0}, s{sT2}")
    g(f"s_add_u32 s{sT1}, s{sT0}, {OF:#x}")
    g(f"s_lshl_b32 s{sT0}, s{sRT}, 1")
    g(f"s_add_u32 s{sT0}, s{sT0}, s{sBB}")
    g(f"s_lshl_b32 s{sT0}, s{sT0}, 2")
    g(f"s_add_u32 s{sT0}, s{sT0}, s{sOH}")
    g(f"s_lshl_b32 s{sBASE0}, s{sT0}, 16")
    g(f"s_lshl_b32 s{sT2}, s{sHP}, 14")
    g(f"s_add_u32 s{sBASE0}, s{sBASE0}, s{sT2}")
    g(f"s_add_u32 s{sBASE0}, s{sBASE0}, {OF:#x}")
    g(f"s_mul_i32 s{sT2}, s{sGH}, {16*FS}")
    g(f"s_lshl_b32 s{sT3}, s{sKQ}, 3")
    g(f"s_add_u32 s{sT2}, s{sT2}, s{sT3}")
    g(f"s_add_u32 s{sT2}, s{sT2}, {F3:#x}")
    g(f"v_mul_u32_u24 v{vA3}, {FS}, v0")
    g(f"v_add_u32 v{vA3}, s{sT2}, v{vA3}")
    g(f"s_lshl_b32 s{sT0}, s{sRT}, 3")
    g(f"s_add_u32 s{sT0}, s{sT0}, s{sOH}")
    g(f"s_lshl_b32 s{sT0}, s{sT0}, 5")
    g(f"s_add_u32 s{sT0}, s{sT0}, s{sN0}")
    g(f"s_mul_i32 s{sBASE1}, s{sT0}, {FS}")
    g(f"s_add_u32 s{sBASE1}, s{sBASE1}, {F3:#x}")
    if pfirst:
        g(f"s_cmp_lg_u32 s{sWAVE}, {pw2}")
        g("s_cbranch_scc1 L_NOB")
        bread()
        g.lab("L_NOB")
    for u in range(4):
        g(f"v_lshlrev_b32 v{32+2*u}, 16, v{48+u}")
        g(f"v_and_b32 v{33+2*u}, 0xffff0000, v{48+u}")
    g("s_waitcnt vmcnt(3)")
    g.ts(9, 4)
    g("v_max3_f32 v24, v16, v18, v20")
    g("v_max_f32 v24, v22, v24")
    for s in range(4): g(f"v_sub_f32 v{16+2*s}, v{16+2*s}, v24")
    for s in range(4): g(f"v_exp_f32 v{16+2*s}, v{16+2*s}")
    g("s_nop 0")
    g("v_mul_f32 v24, v16, v17")
    g("v_fmac_f32 v24, v18, v19")
    g("v_fmac_f32 v24, v20, v21")
    g("v_fmac_f32 v24, v22, v23")
    g("v_rcp_f32 v24, v24")
    g("s_nop 0")
    for s in range(4): g(f"v_mul_f32 v{16+2*s}, v{16+2*s}, v24")
    for c in range(8): g(f"v_mul_f32 v{32+c}, v{32+c}, v16")
    if debug == 4:
        g("s_waitcnt vmcnt(0)"); g.ts(10, 4)
    for s in range(1, 4):
        g(f"s_waitcnt vmcnt({3 - s})")
        for u in range(4):
            src = 48 + 4*s + u
            g(f"v_lshlrev_b32 v28, 16, v{src}")
            g(f"v_and_b32 v29, 0xffff0000, v{src}")
            g(f"v_fmac_f32 v{32+2*u}, v28, v{16+2*s}")
            g(f"v_fmac_f32 v{33+2*u}, v29, v{16+2*s}")
    for u in range(4):
        g(f"v_cvt_pk_bf16_f32 v{40+u}, v{32+2*u}, v{33+2*u}")
    g.ts(11, 4)
    g(f"buffer_store_dwordx4 v[40:43], v{vLANE16}, s[{sWS}:{sWS+3}], s{sT1} offen {wf}")
    g("s_waitcnt vmcnt(0)")
    g.ts(12, 4)
    g("s_barrier")
    g.ts(13, 4)
    g.ts(9)
    g(f"s_cmp_lg_u32 s{sWAVE}, 4")
    g("s_cbranch_scc1 L_NOP3")
    g("s_mov_b64 exec, 0xffff")
    g(f"buffer_store_dwordx2 v[{vNON}:{vNON+1}], v{vA3}, s[{sWS}:{sWS+3}], 0 offen sc1")
    g("s_mov_b64 exec, -1")
    if not f3wave: g.spollN(sBASE1, (0, 16*FS, 128*FS, 144*FS))
    g.lab("L_NOP3")
    g(f"s_lshl_b32 s{sT0}, s{sWAVE}, 13")
    g(f"v_add_u32 v{vA0}, s{sT0}, v{vLANE16}")
    g(f"s_lshl_b32 s{sT0}, s{sBB}, 13")
    g(f"s_lshl_b32 s{sT1}, s{sHP}, 11")
    g(f"s_add_u32 s{sT0}, s{sT0}, s{sT1}")
    g(f"v_add_u32 v{vA1}, s{sT0}, v{vLANE16}")
    if aprio:
        g(f"s_xor_b32 s{sT0}, s{sN0}, s{sROLE}")
        g(f"s_bitcmp1_b32 s{sT0}, 0")
        g("s_cbranch_scc0 L_NOPRIO")
        g("s_setprio 3")
        g.lab("L_NOPRIO")
    if f3wave:
        g(f"s_mul_i32 s{sT0}, s{sBB}, {128*FS}")
        g(f"s_mul_i32 s{sT1}, s{sROLE}, {16*FS}")
        g(f"s_add_u32 s{sBASE1}, s{sBASE1}, s{sT0}")
        g(f"s_add_u32 s{sBASE1}, s{sBASE1}, s{sT1}")
        g.vpoll4(sBASE1, vp) if vp else g.spoll4(sBASE1)
    else:
        g("s_barrier")
    g.ts(10)
    vA = 16
    if apf:
        g(f"s_and_b32 s{sT0}, s{sN0}, 7")
        g(f"s_lshl_b32 s{sT0}, s{sT0}, 11")
        g(f"s_add_u32 s{sT0}, s{sT0}, s{sBASE0}")
        g(f"buffer_load_dwordx4 v[4:7], v{vLANE16}, s[{sWS}:{sWS+3}], s{sT0} offen {rf}")
        g(f"buffer_load_dwordx4 v[4:7], v{vLANE16}, s[{sWS}:{sWS+3}], s{sT0} offen offset:1024 {rf}")
    for n in range(16):
        if n and n % 4 == 0: g(f"s_add_u32 s{sBASE0}, s{sBASE0}, 4096")
        g(f"buffer_load_dwordx4 v[{vA+4*n}:{vA+4*n+3}], v{vLANE16}, s[{sWS}:{sWS+3}], s{sBASE0} offen offset:{1024*(n&3)} {rf}")
    g(f"s_lshl_b32 s{sT2}, s{sBB}, 1")
    g(f"s_lshr_b32 s{sT3}, s{sHP}, 1")
    g(f"s_add_u32 s{sT2}, s{sT2}, s{sT3}")
    g(f"s_lshl_b32 s{sT0}, s{sRT}, 4")
    g(f"s_add_u32 s{sT0}, s{sT0}, s{sN0}")
    g(f"s_lshl_b32 s{sT0}, s{sT0}, 2")
    g(f"s_add_u32 s{sT0}, s{sT0}, s{sT2}")
    g(f"s_lshl_b32 s{sT0}, s{sT0}, 1")
    g(f"s_and_b32 s{sT1}, s{sHP}, 1")
    g(f"s_add_u32 s{sT0}, s{sT0}, s{sT1}")
    g(f"s_lshl_b32 s{sBASE0}, s{sT0}, 14")
    g(f"s_add_u32 s{sBASE0}, s{sBASE0}, {OP:#x}")
    g(f"s_mul_i32 s{sBASE1}, s{sT0}, {FS}")
    g(f"s_add_u32 s{sBASE1}, s{sBASE1}, {F4:#x}")
    g(f"s_lshl_b32 s{sT3}, s{sOH}, 3")
    g(f"s_add_u32 s{sT3}, s{sT3}, s{sBASE1}")
    vD = 80
    for n in range(16):
        g(f"s_waitcnt vmcnt({15-n})")
        for nt in range(2):
            mfma(g, vD+16*nt, vB + (n*2+nt)*4, vA+4*n, None if n == 0 else vD+16*nt)
    g.ts(11)
    g(f"v_mov_b32 v51, s{sN}")
    g(f"v_mov_b32 v55, s{sN}")
    g(f"v_mov_b32 v58, 0")
    g(f"v_mov_b32 v59, s{sN}")
    g("v_and_b32 v24, 31, v0")
    g("v_lshrrev_b32 v25, 5, v0")
    g("v_lshlrev_b32 v24, 11, v24")
    g(f"v_lshl_add_u32 v{vA2}, v25, 3, v24")
    g("s_nop 2")
    for q in range(8):
        g(f"ds_write_b128 v{vA0}, v[{vD+4*q}:{vD+4*q+3}] offset:{1024*q}")
    g("s_waitcnt lgkmcnt(0)")
    g("s_barrier")
    for hp2 in range(4):
        for e in range(2):
            g(f"ds_read_b128 v[{16+8*hp2+4*e}:{19+8*hp2+4*e}], v{vA1} offset:{16384*hp2 + 1024*e}")
    res = [48, 49, 50, 52, 53, 54, 56, 57]
    g("s_waitcnt lgkmcnt(4)")
    for c in range(8): g(f"v_add_f32 v{16+c}, v{16+c}, v{24+c}")
    g("s_waitcnt lgkmcnt(0)")
    for c in range(8): g(f"v_add_f32 v{32+c}, v{32+c}, v{40+c}")
    for c in range(8): g(f"v_add_f32 v{res[c]}, v{16+c}, v{32+c}")
    g.ts(12)
    g(f"s_cmp_eq_u32 s{sT2}, s{sOH}")
    g("s_cbranch_scc1 L_OWN")
    g(f"s_lshl_b32 s{sT0}, s{sOH}, 12")
    g(f"s_add_u32 s{sT0}, s{sT0}, s{sBASE0}")
    for j in range(3):
        g(f"buffer_store_dwordx4 v[{48+4*j}:{51+4*j}], v{vLANE16}, s[{sWS}:{sWS+3}], s{sT0} offen offset:{1024*j} {wf}")
    if ophint: g.flag(sT3)
    g("s_branch L_FIN")
    g.lab("L_OWN")
    if ophint: g.flag(sT3)
    g(f"s_lshl_b32 s{sT2}, s{sRT}, 1")
    g(f"s_add_u32 s{sT2}, s{sT2}, s{sBB}")
    g(f"s_lshl_b32 s{sT2}, s{sT2}, 16")
    g(f"s_lshl_b32 s{sT1}, s{sN0}, 7")
    g(f"s_add_u32 s{sT2}, s{sT2}, s{sT1}")
    g(f"s_lshl_b32 s{sT1}, s{sHP}, 5")
    g(f"s_add_u32 s{sT2}, s{sT2}, s{sT1}")
    if ophint: g.vpoll4(sBASE1, vp) if vp else g.spoll4(sBASE1)
    g.ts(13)
    g(f"s_mov_b32 s{sCNT}, 0")
    g.lab("L_OPL")
    for e in range(1, 4):
        g(f"s_add_u32 s{sT0}, s{sOH}, {e}")
        g(f"s_and_b32 s{sT0}, s{sT0}, 3")
        g(f"s_lshl_b32 s{sT0}, s{sT0}, 12")
        g(f"s_add_u32 s{sT0}, s{sT0}, s{sBASE0}")
        for j in range(3):
            r = 60 + 12*(e-1) + 4*j
            g(f"buffer_load_dwordx4 v[{r}:{r+3}], v{vLANE16}, s[{sWS}:{sWS+3}], s{sT0} offen offset:{1024*j} {rf}")
    g(f"s_add_u32 s{sCNT}, s{sCNT}, 1")
    g("s_waitcnt vmcnt(0)")
    tags = [63 + 4*k for k in range(9)]
    g(f"v_min3_u32 v16, v{tags[0]}, v{tags[1]}, v{tags[2]}")
    g(f"v_max3_u32 v17, v{tags[0]}, v{tags[1]}, v{tags[2]}")
    for k in (3, 5, 7):
        g(f"v_min3_u32 v16, v{tags[k]}, v{tags[k+1]}, v16")
        g(f"v_max3_u32 v17, v{tags[k]}, v{tags[k+1]}, v17")
    g(f"v_xor_b32 v16, s{sN}, v16")
    g(f"v_xor_b32 v17, s{sN}, v17")
    g("v_or_b32 v16, v16, v17")
    g("v_cmp_ne_u32 vcc, 0, v16")
    g("s_cbranch_vccz L_OPD")
    g(f"s_cmp_lt_u32 s{sCNT}, {g.limit:#x}")
    g("s_cbranch_scc1 L_OPL")
    g.lab("L_OPD")
    for e in range(3):
        for c in range(8):
            g(f"v_add_f32 v{res[c]}, v{res[c]}, v{res[c] + 12*(e+1)}")
    for u in range(4):
        g(f"v_cvt_pk_bf16_f32 v{16+u}, v{res[2*u]}, v{res[2*u+1]}")
    g(f"buffer_store_dwordx2 v[16:17], v{vA2}, s[{sOUT}:{sOUT+3}], s{sT2} offen {outflag}")
    g(f"buffer_store_dwordx2 v[18:19], v{vA2}, s[{sOUT}:{sOUT+3}], s{sT2} offen offset:16 {outflag}")
    g.lab("L_FIN")
    if span:
        g("s_sub_u32 s100, s2, 128")
        g("s_cmp_ge_u32 s100, 2")
        g("s_cbranch_scc1 L_END")
        g(f"s_cmp_lg_u32 s{sWAVE}, 0")
        g("s_cbranch_scc1 L_END")
        g("s_waitcnt vmcnt(0)")
        g.ts(14)
        g.srd(sDBG, 28, 256)
        g("s_sub_u32 s100, s2, 128")
        g("s_mul_i32 s100, s100, 28")
        g("s_add_u32 s100, s100, 8")
        g("v_mov_b32 v17, s100")
        g("s_mov_b64 exec, 1")
        for k, n in enumerate((0, 2, 5, 6, 8, 10, 14)):
            g(f"s_sub_u32 s101, s{sTS+n}, s{sN}")
            g(f"v_mov_b32 v{18+k}, s101")
            g(f"buffer_store_dword v{18+k}, v17, s[{sDBG}:{sDBG+3}], 0 offen offset:{4*k}")
        g("s_branch L_END")
    if debug:
        g("s_waitcnt vmcnt(0)")
        g.ts(14)
        g(f"s_lshl_b32 s{sT0}, s2, 3")
        g(f"s_add_u32 s{sT0}, s{sT0}, s{sWAVE}")
        g(f"s_lshl_b32 s{sT0}, s{sT0}, 6")
        g(f"s_add_u32 s{sT0}, s{sT0}, {TSB:#x}")
        g(f"v_mov_b32 v{vA3}, s{sT0}")
        g("s_mov_b64 exec, 1")
        for n in range(16):
            g(f"v_mov_b32 v{16+n}, s{sTS+n}")
            g(f"buffer_store_dword v{16+n}, v{vA3}, s[{sWS}:{sWS+3}], 0 offen offset:{4*n}")
    g.lab("L_END")
    g("s_endpgm")
    rare_path(g)
    g.lab("L_CODE_END")
    hdr = f"""; Fused Q-projection + sliding-window GQA attention + output projection (generated by gen/gen2.py)
; @launch grid=(256,1,1) block=(512,1,1) lds=163840
.amdgcn_target "amdgcn-amd-amdhsa--gfx950"
.text
.globl {NAME}
.p2align 8
.type {NAME},@function
{NAME}:
"""
    ftr = f"""
.section .rodata,"a"
.p2align 6
.amdhsa_kernel {NAME}
  .amdhsa_next_free_vgpr 256
  .amdhsa_next_free_sgpr 102
  .amdhsa_accum_offset 256
  .amdhsa_group_segment_fixed_size 0
  .amdhsa_kernarg_size 64
  .amdhsa_user_sgpr_count 2
  .amdhsa_user_sgpr_kernarg_segment_ptr 1
  .amdhsa_system_sgpr_workgroup_id_x 1
.end_amdhsa_kernel
"""
    return hdr + "\n".join(g.L) + ftr

if __name__ == "__main__":
    import argparse
    ap = argparse.ArgumentParser()
    ap.add_argument("-o", default="standalone__sliding_block_cached__sampling.s")
    ap.add_argument("--debug", type=int, default=0)
    ap.add_argument("--la", type=int, default=2)
    ap.add_argument("--cprio", type=int, default=1)
    ap.add_argument("--norot", action="store_true")
    ap.add_argument("--xnt", action="store_true")
    ap.add_argument("--nocodepf", action="store_true")
    ap.add_argument("--kw", default="")
    a = ap.parse_args()
    kw = eval("dict(" + a.kw + ")")
    open(a.o, "w").write(gen(debug=a.debug, LA=a.la, cprio=a.cprio, rot=not a.norot, xnt=a.xnt, codepf=not a.nocodepf, **kw))
```

```python
import struct, math, sys

NAME = "standalone__sliding_block_cached__sampling_kernel"
C_SCALE = math.log2(math.e) / math.sqrt(128.0)
def f2u(x): return struct.unpack("<I", struct.pack("<f", x))[0]
THR = 10.0

QF   = 0x0000000
OF   = 0x0200000
PO   = 0x0400000
ST   = 0x0C00000
FS   = 1152
F1   = 0x2000000
F2   = 0x2200000
F3   = 0x2300000
F4   = 0x2800000
OP   = 0x0E00000
TSB  = 0x1600000
WS_BYTES = 268435456

sXCD, sI, sWAVE, sW4, sROLE = 3, 4, 5, 6, 7
sT0, sT1, sT2, sT3 = 8, 9, 10, 11
sCNT, sLW1K, sG, sKQ = 12, 13, 14, 15
sX, sK, sV, sWQ, sWO, sOUT, sDBG, sWS = 32, 36, 40, 44, 48, 52, 56, 60
sBASE0, sBASE1, sCT, sRT = 64, 65, 66, 67
sHQ, sKV = 68, 69
sN = 70
sPA = 72
sK0 = 74
sGH = 75
sEX = 76
sRET = 78
sPD = 16
sTS = 80
sN0, sOH, sRP = 96, 97, 98
sTHR = 99

vLANE16 = 1
vKA, vVA = 2, 10
aKA, aVA = 2, 6
vT0, vT1 = 14, 15
vKR, vVR, vQ, vO, vS, vP, vNEG, vLS, vONE = 16, 48, 80, 112, 176, 208, 224, 232, 240
vT3, vT4, vT5 = 244, 245, 246
vTM, vT2 = 248, 249
vNON = 250
vA0, vA1, vA2, vA3 = 252, 253, 254, 255

class G:
    psleep = 0
    def __init__(self, debug=False, limit=1 << 21):
        self.L = []; self.debug = debug; self.nlab = 0; self.limit = limit
    def __call__(self, s): self.L.append("  " + s)
    def lab(self, s): self.L.append(s + ":")
    def newlab(self, p="L"):
        self.nlab += 1; return f"{p}_{self.nlab}"
    def ts(self, n, lvl=1):
        if self.debug == 9 and n not in (0, 14): return
        if self.debug == 8 and (n not in (0, 2, 5, 6, 14) or lvl != 1): return
        if self.debug == 8 and n in (0, 2, 14):
            self("s_memtime s[100:101]")
            self("s_waitcnt lgkmcnt(0)")
            self(f"s_mov_b32 s{sTS + {0: 10, 2: 11, 14: 12}[n]}, s100")
        if self.debug >= 2 and lvl == 1 and 7 <= n <= 13: return
        if lvl >= 2 and self.debug != lvl: return
        if self.debug:
            self(f"s_memrealtime s[100:101]")
            self("s_waitcnt lgkmcnt(0)")
            self(f"s_mov_b32 s{sTS+n}, s100")
    def srd(self, d, p, nbytes):
        self(f"s_mov_b32 s{d}, s{p}")
        self(f"s_and_b32 s{d+1}, s{p+1}, 0xffff")
        self(f"s_mov_b32 s{d+2}, {nbytes:#x}")
        self(f"s_mov_b32 s{d+3}, 0x20000")
    def srd_ws(self, off):
        if not off:
            return self.srd(sWS, 30, WS_BYTES)
        self(f"s_add_u32 s{sWS}, s30, {off:#x}")
        self(f"s_addc_u32 s{sWS+1}, s31, 0")
        self(f"s_and_b32 s{sWS+1}, s{sWS+1}, 0xffff")
        self(f"s_mov_b32 s{sWS+2}, {WS_BYTES - off:#x}")
        self(f"s_mov_b32 s{sWS+3}, 0x20000")
    def dma(self, voff, srd, sbase, soff_const, m0base, m0_const, flags=""):
        self(f"s_add_u32 m0, s{m0base}, {m0_const:#x}")
        self(f"s_add_u32 s{sT0}, s{sbase}, {soff_const:#x}")
        self(f"buffer_load_dwordx4 v{voff}, s[{srd}:{srd+3}], s{sT0} offen {flags} lds".replace("  ", " "))
    def spoll4(self, soff):
        l = self.newlab("POLL"); d = self.newlab("POLLD")
        self(f"s_add_u32 s{sPA}, s{sWS}, s{soff}")
        self(f"s_addc_u32 s{sPA+1}, s{sWS+1}, 0")
        self(f"s_mov_b32 s{sCNT}, 0")
        self.lab(l)
        self(f"s_load_dwordx8 s[{sPD}:{sPD+7}], s[{sPA}:{sPA+1}], 0 glc")
        self(f"s_add_u32 s{sCNT}, s{sCNT}, 1")
        self(f"s_cmp_ge_u32 s{sCNT}, {self.limit:#x}")
        self("s_waitcnt lgkmcnt(0)")
        self(f"s_cbranch_scc1 {d}")
        r = l
        if self.psleep: r = self.newlab("POLLS")
        for q in range(4):
            self(f"s_cmp_eq_u64 s[{sPD+2*q}:{sPD+2*q+1}], s[{sN}:{sN+1}]")
            self(f"s_cbranch_scc0 {r}")
        if self.psleep:
            self(f"s_branch {d}")
            self.lab(r)
            self(f"s_sleep {self.psleep}")
            self(f"s_branch {l}")
        self.lab(d)
    def vpoll4(self, soff, flags):
        l = self.newlab("POLL"); d = self.newlab("POLLD")
        self("v_and_b32 v10, 3, v0")
        self("v_lshlrev_b32 v10, 3, v10")
        self(f"s_mov_b32 s{sCNT}, 0")
        self.lab(l)
        self(f"buffer_load_dwordx2 v[12:13], v10, s[{sWS}:{sWS+3}], s{soff} offen {flags}")
        self(f"s_add_u32 s{sCNT}, s{sCNT}, 1")
        self("s_waitcnt vmcnt(0)")
        self(f"v_cmp_ne_u64 vcc, s[{sN}:{sN+1}], v[12:13]")
        self(f"s_cbranch_vccz {d}")
        if self.psleep: self(f"s_sleep {self.psleep}")
        self(f"s_cmp_lt_u32 s{sCNT}, {self.limit:#x}")
        self(f"s_cbranch_scc1 {l}")
        self.lab(d)
    def spoll4x2(self, soff):
        l = self.newlab("POLL"); d = self.newlab("POLLD")
        self(f"s_add_u32 s{sPA}, s{sWS}, s{soff}")
        self(f"s_addc_u32 s{sPA+1}, s{sWS+1}, 0")
        self(f"s_mov_b32 s{sCNT}, 0")
        self.lab(l)
        self(f"s_load_dwordx8 s[16:23], s[{sPA}:{sPA+1}], 0x80 glc")
        self(f"s_add_u32 s{sCNT}, s{sCNT}, 1")
        self(f"s_and_b32 s32, s{sCNT}, 3")
        self(f"s_cmp_lg_u32 s32, 0")
        n = self.newlab("POLLF")
        self(f"s_cbranch_scc1 {n}")
        self("s_waitcnt lgkmcnt(0)")
        self(f"s_load_dwordx8 s[16:23], s[{sPA}:{sPA+1}], 0 glc")
        self.lab(n)
        self(f"s_cmp_ge_u32 s{sCNT}, {self.limit:#x}")
        self("s_waitcnt lgkmcnt(0)")
        self(f"s_cbranch_scc1 {d}")
        for q in range(4):
            self(f"s_cmp_eq_u64 s[{16+2*q}:{17+2*q}], s[{sN}:{sN+1}]")
            self(f"s_cbranch_scc0 {l}")
        self.lab(d)
    def flag2(self, saddr):
        self(f"v_mov_b32 v{vA3}, s{saddr}")
        self(f"s_mov_b64 s[{sEX}:{sEX+1}], exec")
        self("s_mov_b64 exec, 1")
        self(f"buffer_store_dwordx2 v[{vNON}:{vNON+1}], v{vA3}, s[{sWS}:{sWS+3}], 0 offen offset:128")
        self(f"buffer_store_dwordx2 v[{vNON}:{vNON+1}], v{vA3}, s[{sWS}:{sWS+3}], 0 offen sc1")
        self(f"s_mov_b64 exec, s[{sEX}:{sEX+1}]")
    def spollN(self, soff, deltas):
        l = self.newlab("POLL"); d = self.newlab("POLLD")
        regs = [16, 24, 32, 40][:len(deltas)]
        self(f"s_add_u32 s{sPA}, s{sWS}, s{soff}")
        self(f"s_addc_u32 s{sPA+1}, s{sWS+1}, 0")
        self(f"s_mov_b32 s{sCNT}, 0")
        self.lab(l)
        for r, dl in zip(regs, deltas):
            self(f"s_load_dwordx8 s[{r}:{r+7}], s[{sPA}:{sPA+1}], {dl:#x} glc")
        self(f"s_add_u32 s{sCNT}, s{sCNT}, 1")
        self(f"s_cmp_ge_u32 s{sCNT}, {self.limit:#x}")
        self("s_waitcnt lgkmcnt(0)")
        self(f"s_cbranch_scc1 {d}")
        for r in regs:
            for q in range(4):
                self(f"s_cmp_eq_u64 s[{r+2*q}:{r+2*q+1}], s[{sN}:{sN+1}]")
                self(f"s_cbranch_scc0 {l}")
        self.lab(d)
    def flag(self, saddr):
        self(f"v_mov_b32 v{vA3}, s{saddr}")
        self(f"s_mov_b64 s[{sEX}:{sEX+1}], exec")
        self("s_mov_b64 exec, 1")
        self(f"buffer_store_dwordx2 v[{vNON}:{vNON+1}], v{vA3}, s[{sWS}:{sWS+3}], 0 offen sc1")
        self(f"s_mov_b64 exec, s[{sEX}:{sEX+1}]")
    def nonce_issue(self, glc=""):
        self(f"s_load_dwordx2 s[{sN}:{sN+1}], s[28:29], 0{glc}")
    def nonce_finish(self):
        l = self.newlab("NON"); d = self.newlab("NOND")
        self(f"s_mov_b32 s{sCNT}, 0")
        self.lab(l)
        self("s_waitcnt lgkmcnt(0)")
        self(f"s_cmp_lg_u32 s{sN}, 0")
        self(f"s_cbranch_scc1 {d}")
        self(f"s_add_u32 s{sCNT}, s{sCNT}, 1")
        self(f"s_cmp_ge_u32 s{sCNT}, {self.limit:#x}")
        self(f"s_cbranch_scc1 {d}")
        self("s_sleep 8")
        self.nonce_issue(" glc")
        self(f"s_branch {l}")
        self.lab(d)
        self(f"v_mov_b32 v{vNON}, s{sN}")
        self(f"v_mov_b32 v{vNON+1}, s{sN+1}")

def mfma(g, d, a, b, c):
    cs = "0" if c is None else f"v[{c}:{c+15}]"
    g(f"v_mfma_f32_32x32x16_bf16 v[{d}:{d+15}], v[{a}:{a+3}], v[{b}:{b+3}], {cs}")
def mfma16(g, d, a, b, c):
    cs = "0" if c is None else f"v[{c}:{c+3}]"
    g(f"v_mfma_f32_16x16x32_bf16 v[{d}:{d+3}], v[{a}:{a+3}], v[{b}:{b+3}], {cs}")

def att_setup(g):
    g("v_and_b32 v32, 15, v0")
    g("v_lshrrev_b32 v33, 4, v0")
    g("v_xor_b32 v34, v32, v33")
    g("v_lshlrev_b32 v35, 8, v32")
    for s in range(4):
        g(f"v_xor_b32 v36, {4*s}, v34")
        g(f"v_lshl_add_u32 v{aKA+s}, v36, 4, v35")
    g("v_lshrrev_b32 v36, 2, v32")
    g("v_lshl_add_u32 v36, v33, 2, v36")
    g("v_and_b32 v37, 7, v36")
    g("v_lshlrev_b32 v37, 1, v37")
    g("v_bfe_u32 v38, v0, 1, 1")
    g("v_xor_b32 v37, v37, v38")
    g("v_lshlrev_b32 v36, 8, v36")
    g("v_and_b32 v38, 1, v0")
    g("v_lshl_add_u32 v36, v38, 3, v36")
    g("v_add_u32 v36, 16384, v36")
    for dt in range(8):
        g(f"v_xor_b32 v38, {2*dt}, v37")
        g(f"v_lshl_add_u32 v{aVA+dt}, v38, 4, v36")
    for u in range(4): g(f"v_mov_b32 v{vONE+u}, 0x3f803f80")

BIAS = 9.0
vOR = 252
def rowmax(S, hf, dst, tmp):
    b = S + 8*hf
    return [[f"v_max3_f32 v{dst}, v{b}, v{b+1}, v{b+2}", f"v_max3_f32 v{tmp}, v{b+3}, v{b+4}, v{b+5}"],
            [f"v_max3_f32 v{dst}, v{b+6}, v{b+7}, v{dst}", f"v_max_f32 v{dst}, v{dst}, v{tmp}", f"v_mov_b32 v{tmp}, v{dst}"],
            ["s_nop 1", f"v_permlane16_swap_b32 v{dst}, v{tmp}", "s_nop 1", f"v_max_f32 v{dst}, v{dst}, v{tmp}", f"v_mov_b32 v{tmp}, v{dst}"],
            ["s_nop 1", f"v_permlane32_swap_b32 v{dst}, v{tmp}", "s_nop 1", f"v_max_f32 v{dst}, v{dst}, v{tmp}"]]

def att_loop(g, O=None):
    O = {**dict(eslots=(0, 2, 4, 6, 8, 10, 12, 14, 16, 17, 19, 21, 23, 25, 26, 27), m16s=(18, 26), vslots=tuple(range(16)), kslots=(17, 19, 21, 23, 25, 27, 29, 31), cdel=1), **(O or {})}
    NKS = O.get("nks", 4)
    g.stubs = []
    kcur = [0]; vcur = [0]
    def kbase(t):
        slot = (t // 2) % NKS
        want = (slot >> 1) * 65536
        r = []
        if want != kcur[0]:
            r.append(f"s_mov_b32 s{sT0}, {(want - kcur[0]) & 0xffffffff:#x}")
            for x in range(aKA, aKA+4): r.append(f"v_add_u32 v{x}, s{sT0}, v{x}")
            kcur[0] = want
        return (slot & 1) * 32768 + (t & 1) * 8192, r
    def vbase(t):
        slot = (t // 2) % NKS
        want = (slot >> 1) * 65536
        r = []
        if want != vcur[0]:
            r.append(f"s_mov_b32 s{sT1}, {(want - vcur[0]) & 0xffffffff:#x}")
            for x in range(aVA, aVA+8): r.append(f"v_add_u32 v{x}, s{sT1}, v{x}")
            vcur[0] = want
        return (slot & 1) * 32768 + (t & 1) * 8192, r
    def krd(off, n, base=vKR):
        return f"ds_read_b128 v[{base+4*n}:{base+4*n+3}], v{aKA+(n&3)} offset:{off + 4096*(n>>2)}"
    def vrd(off, x):
        dt, jj = x >> 1, x & 1
        b = vVR + 4*dt + 2*jj
        return f"ds_read_b64_tr_b16 v[{b}:{b+1}], v{aVA+dt} offset:{off + 4096*jj}"
    def em(l):
        for x in l: g(x)
    m16 = lambda d, a, b, c: f"v_mfma_f32_16x16x32_bf16 v[{d}:{d+3}], v[{a}:{a+3}], v[{b}:{b+3}], " + ("0" if c is None else f"v[{c}:{c+3}]")
    def smf(S, kb, sl, first):
        n, hf = sl >> 1, sl & 1
        kt, s = n >> 2, n & 3
        d = S + 8*hf + 4*kt
        return m16(d, kb + 4*n, vQ + 16*hf + 4*s, (first(hf) if s == 0 else d))
    def pmf(P, sl, init=False):
        dt, hf = sl >> 1, sl & 1
        d = vO + 32*hf + 4*dt
        return m16(d, vVR + 4*dt, P + 4*hf, None if init else d)
    g.pmf = pmf; g.m16 = m16
    o, _ = kbase(0)
    for n in range(8): g(krd(o, n, vVR))
    o1, _ = kbase(1)
    for n in range(7): g(krd(o1, n))
    g("s_waitcnt vmcnt(0)")
    g.ts(5)
    if g.debug and g.debug != 9:
        g("s_memtime s[100:101]")
        g("s_waitcnt lgkmcnt(0)")
        g(f"s_mov_b32 s{sTS+15}, s100")
    g(f"s_waitcnt lgkmcnt(7)")
    for sl in range(16):
        g(smf(vS, vVR, sl, lambda hf: None))
        if sl == 0: g(krd(o1, 7))
    g(f"s_mov_b32 s{sT0}, {f2u(BIAS):#x}")
    NT = 16
    tmp = [(vT0, vT1), (vTM, vT2), (vT3, vT4)]
    for t in range(0, NT):
        Sc = vS + 16*(t & 1); Sn = vS + 16*((t+1) & 1)
        Pc = vP + 8*(t & 1); Pp = vP + 8*((t-1) & 1)
        doS = t + 1 < NT; doPV = t >= 1; doK = t + 2 < NT
        pre = [[] for _ in range(32)]; M = [[] for _ in range(32)]; D = [[] for _ in range(32)]; V = [[] for _ in range(32)]
        if t == 15:
            vo, bump = vbase(15)
            assert not bump
            pre[0].append("s_waitcnt lgkmcnt(8)")
            pre[8].append("s_waitcnt lgkmcnt(6)")
            for sl in range(16):
                M[sl].append(pmf(Pp, sl))
                if sl & 1: D[sl] += [vrd(vo, sl - 1), vrd(vo, sl)]
            M[2].append(m16(vLS, vONE, Pp, vLS)); M[10].append(m16(vLS+4, vONE, Pp+4, vLS+4))
            if not O.get("tail"):
                pre[16].append("s_waitcnt lgkmcnt(8)"); pre[24].append("s_waitcnt lgkmcnt(0)")
                for sl in range(16): M[16+sl].append(pmf(Pc, sl))
                M[18].append(m16(vLS, vONE, Pc, vLS)); M[26].append(m16(vLS+4, vONE, Pc+4, vLS+4))
        elif doPV:
            vo, bump = vbase(t-1)
            pre[0] += bump
            for x in range(16): D[O["vslots"][x]].append(vrd(vo, x))
            for sl in range(16): M[16+sl].append(pmf(Pp, sl, t == 1))
            M[O["m16s"][0]].append(m16(vLS, vONE, Pp, None if t == 1 else vLS))
            M[O["m16s"][1]].append(m16(vLS+4, vONE, Pp+4, None if t == 1 else vLS+4))
            pre[16].append("s_waitcnt lgkmcnt(8)")
            nk = sum(1 for x in O["kslots"] if x < 24)
            pre[24].append(f"s_waitcnt lgkmcnt({nk if doK else 6})")
        if t < 15:
            nv = sum(1 for x in O["vslots"] if x < 8)
            pre[8].append(f"s_waitcnt lgkmcnt({min(6, nv) if doPV else 0})")
        if doS:
            pre[0].append("s_waitcnt lgkmcnt(4)")
            for sl in range(16): M[sl].append(smf(Sn, vKR, sl, (lambda hf: None) if t == 0 else (lambda hf: vNEG + 4*hf)))
        if t % 2 == 0 and t <= 14:
            if t == 14: D[16].append("s_waitcnt lgkmcnt(0)")
            if t >= 2 and g.debug == 2:
                D[16] += ["s_memrealtime s[100:101]", "s_waitcnt lgkmcnt(0)", f"s_mov_b32 s{sTS+6+t//2}, s100"]
            D[16].append("s_barrier")
        if t == 14:
            vo, bump = vbase(14)
            D[16] += bump
            for sl in range(1, 16, 2): D[16+sl] += [vrd(vo, sl - 1), vrd(vo, sl)]
        if doK:
            ko, bump = kbase(t+2)
            D[16] += bump
            for n in range(8): D[O["kslots"][n]].append(krd(ko, n))
        if t == 0:
            r0 = rowmax(vS, 0, vTM, vT2); r1 = rowmax(vS, 1, vT3, vT4)
            V[2] += ["s_nop 3"]
            for k in range(4):
                V[3 + 2*k] += r0[k]; V[4 + 2*k] += r1[k]
            V[11] += [f"v_add_f32 v{vTM}, s{sT0}, v{vTM}", f"v_add_f32 v{vT3}, s{sT0}, v{vT3}"]
            V[12] += [f"v_sub_f32 v{vNEG+u}, 0, v{vTM}" for u in range(4)]
            V[13] += [f"v_sub_f32 v{vNEG+4+u}, 0, v{vT3}" for u in range(4)]
            slots = [14, 14, 15, 15] + [16 + k for k in range(12)]
        elif t == 15:
            slots = [0, 0, 1, 2, 3, 3, 4, 5, 6, 6, 7, 8, 9, 9, 10, 11]
        else:
            slots = list(O["eslots"])
        cdel = O["cdel"]
        for e in range(16):
            T = tmp[(e >> 1) % 3][e & 1]
            if t <= 1:
                V[slots[e]].append(f"v_add_f32 v{Sc+e}, v{Sc+e}, v{vNEG + 4*(e >> 3)}")
            V[slots[e]].append(f"v_exp_f32 v{T}, v{Sc+e}")
        last = 0
        for u in range(8):
            sl = slots[2*u+1] + cdel
            assert u + 3 > 7 or slots[2*u+6] >= sl
            a, b = tmp[u % 3]
            V[sl] = [f"v_cvt_pk_bf16_f32 v{Pc+u}, v{a}, v{b}"] + V[sl]
            if u & 1 and t > 0:
                orr = f"v_or_b32 v{vOR}, v{Pc}, v{Pc+1}" if u == 1 else f"v_or3_b32 v{vOR}, v{Pc+u-1}, v{Pc+u}, v{vOR}"
                V[min(sl + 1, 31)].append(orr)
                last = min(sl + 1, 31)
        endsl = 15 if t == 15 else 31
        if t > 0:
            cs = min(last + 1, endsl)
            V[cs].append(f"v_and_b32 v{vOR}, 0x40004000, v{vOR}")
            V[min(cs + 1, endsl)].append(f"v_cmp_ne_u32 vcc, 0, v{vOR}")
        for sl in range(32):
            em(pre[sl]); em(M[sl]); em(D[sl])
            if not M[sl] and not D[sl] and V[sl]: g("s_nop 0")
            em(V[sl])
            if t > 0 and sl == endsl:
                st = g.newlab("RS"); bk = g.newlab("RB")
                g(f"s_cbranch_vccnz {st}")
                g.lab(bk)
                g.stubs.append((st, bk, t & 1))

def emu16(body):
    import re
    cnt = {}; firsts = {}; nb = []
    for l in body:
        m = re.match(r"\s*v_mfma_f32_32x32x16_bf16 v\[(\d+):\d+\], (v\[\d+:\d+\]), (v\[\d+:\d+\]), (.*)", l)
        if not m:
            nb.append(l); continue
        d = int(m.group(1)); c = m.group(4).strip()
        if c == "0" or int(re.match(r"v\[(\d+)", c).group(1)) != d:
            cnt[d] = 0; firsts[d] = c
        k = cnt.get(d, 0); cnt[d] = k + 1
        for q in (2*(k % 2), 2*(k % 2) + 1):
            cc = f"v[{d+4*q}:{d+4*q+3}]"
            if k < 2 and d in firsts:
                f = firsts[d]
                if f == "0": cc = "0"
                else:
                    cb = int(re.match(r"v\[(\d+)", f).group(1)); cc = f"v[{cb+4*q}:{cb+4*q+3}]"
            nb.append(f"  v_mfma_f32_16x16x32_bf16 v[{d+4*q}:{d+4*q+3}], {m.group(2)}, {m.group(3)}, {cc}")
        if k == 1: firsts.pop(d, None)
    out = []; i = 0
    while i < len(nb):
        if i + 1 < len(nb) and "16x16x32" in nb[i] and "16x16x32" in nb[i+1] and "v[240:243]" not in nb[i] and "v[240:243]" not in nb[i+1]:
            out.append(nb[i]); second = nb[i+1]; i += 2
            rest = []
            while i < len(nb) and not re.search(r"mfma|waitcnt|barrier|:$|branch", nb[i]):
                rest.append(nb[i]); i += 1
            a = re.search(r"\], (v\[\d+:\d+\])", second).group(1)
            lo = int(re.match(r"v\[(\d+)", a).group(1))
            def hits(l):
                m = re.match(r"\s*ds_read\w+ v\[(\d+):", l)
                return m and lo <= int(m.group(1)) <= lo + 3
            free = [l for l in rest if not hits(l)]; late = [l for l in rest if hits(l)]
            h = min((len(rest) + 1) // 2, len(free))
            out += free[:h] + [second] + late + free[h:]
        else:
            out.append(nb[i]); i += 1
    return out

def rare_path(g, O=None):
    for st, bk, par in g.stubs:
        g.lab(st)
        g(f"s_call_b64 s[{sRET}:{sRET+1}], L_RARE{par}")
        g(f"s_branch {bk}")
    for par in range(2):
        g.lab(f"L_RARE{par}")
        Sc = vS + 16*par; Sn = vS + 16*(par ^ 1); Pc = vP + 8*par
        g("s_nop 15")
        for hf in range(2):
            for grp in rowmax(Sc, hf, vTM, vT2):
                for x in grp: g(x)
            g(f"v_add_f32 v{vTM}, {f2u(BIAS):#x}, v{vTM}")
            g(f"v_max_f32 v{vTM}, 0, v{vTM}")
            g(f"v_ceil_f32 v{vTM}, v{vTM}")
            g(f"v_sub_f32 v{vT2}, 0, v{vTM}")
            g(f"v_exp_f32 v{vT2}, v{vT2}")
            for u in range(8): g(f"v_sub_f32 v{Sc+8*hf+u}, v{Sc+8*hf+u}, v{vTM}")
            for u in range(8): g(f"v_sub_f32 v{Sn+8*hf+u}, v{Sn+8*hf+u}, v{vTM}")
            for u in range(4): g(f"v_sub_f32 v{vNEG+4*hf+u}, v{vNEG+4*hf+u}, v{vTM}")
            for u in range(32): g(f"v_mul_f32 v{vO+32*hf+u}, v{vO+32*hf+u}, v{vT2}")
            for u in range(4): g(f"v_mul_f32 v{vLS+4*hf+u}, v{vLS+4*hf+u}, v{vT2}")
        for u in range(8):
            g(f"v_exp_f32 v{vT0}, v{Sc+2*u}")
            g(f"v_exp_f32 v{vT1}, v{Sc+2*u+1}")
            g("s_nop 0")
            g(f"v_cvt_pk_bf16_f32 v{Pc+u}, v{vT0}, v{vT1}")
        g("s_nop 1")
        g(f"s_setpc_b64 s[{sRET}:{sRET+1}]")

def gen(debug=False, LA=2, cprio=1, rot=True, xnt=False, codepf=True, early={5: 1, 6: 2}, nq1=1, bflag='', pfflag='', kvflag='nt', wqflag='', span=False, psleep=0, emu=False, attO={}, kvflag1='', wsoff=0, ptail=True, pfirst=True, kvmap='rr', polay=0, pretouch=True, NKS=5, vp='sc0 sc1', wf='sc1', rf='sc0 sc1', qf='sc1', ophint=True, f2fast=False, apf=False, f3wave=True, aprio=False, pffront={}, outflag='', pw2=0, pfplan={5: 8}, bplan={7: (0, 1), 8: (2, 3)}):
    g = G(debug=debug)
    g.psleep = psleep
    qslot = lambda k: 1 + k % 4
    g("s_cmp_ge_u32 s2, 256")
    g("s_cbranch_scc1 L_END")
    g("s_load_dwordx16 s[16:31], s[0:1], 0")
    g(f"s_and_b32 s{sXCD}, s2, 7")
    g(f"s_lshr_b32 s{sI}, s2, 3")
    g("v_lshrrev_b32 v1, 6, v0")
    g("v_and_b32 v0, 63, v0")
    g(f"v_readfirstlane_b32 s{sWAVE}, v1")
    g(f"v_lshlrev_b32 v{vLANE16}, 4, v0")
    g(f"s_and_b32 s{sT0}, s{sI}, 7")
    g(f"s_lshl_b32 s{sCT}, s{sXCD}, 3")
    g(f"s_add_u32 s{sCT}, s{sCT}, s{sT0}")
    g(f"s_lshr_b32 s{sRT}, s{sI}, 3")
    g(f"s_lshl_b32 s{sK0}, s{sRT}, 1")
    g(f"s_add_u32 s{sK0}, s{sK0}, s{sT0}")
    if not rot: g(f"s_mov_b32 s{sK0}, 0")
    g(f"s_lshl_b32 s{sG}, s{sXCD}, 2")
    g(f"s_add_u32 s{sG}, s{sG}, s{sRT}")
    g(f"s_and_b32 s{sKQ}, s{sI}, 3")
    g(f"s_bfe_u32 s{sHQ}, s{sI}, 0x10002")
    g(f"s_lshl_b32 s{sGH}, s{sG}, 1")
    g(f"s_add_u32 s{sGH}, s{sGH}, s{sHQ}")
    g(f"s_and_b32 s{sW4}, s{sWAVE}, 3")
    g(f"s_lshr_b32 s{sROLE}, s{sWAVE}, 2")
    g(f"s_lshl_b32 s{sLW1K}, s{sW4}, 10")
    g(f"s_lshr_b32 s{sOH}, s{sXCD}, 1")
    g(f"s_and_b32 s{sN0}, s{sXCD}, 1")
    g(f"s_lshl_b32 s{sN0}, s{sN0}, 3")
    g(f"s_add_u32 s{sN0}, s{sN0}, s{sT0}")
    g(f"s_cmp_eq_u32 s{sROLE}, 0")
    g("s_cbranch_scc1 L_CWAVE")

    vXO, vWQO, vKO, vVO, vWOO = 16, 17, 18, 19, 20
    g("v_lshrrev_b32 v21, 4, v0")
    g(f"s_lshl_b32 s{sT1}, s{sW4}, 2")
    g(f"v_add_u32 v22, s{sT1}, v21")
    g("v_and_b32 v23, 15, v0")
    g("v_xor_b32 v24, v23, v22")
    g("v_lshlrev_b32 v24, 4, v24")
    g(f"v_lshl_add_u32 v{vXO}, v22, 11, v24")
    g("v_lshrrev_b32 v25, 3, v0")
    g("v_and_b32 v26, 7, v0")
    g("v_lshlrev_b32 v27, 1, v25")
    g("v_and_b32 v27, 4, v27")
    g("v_xor_b32 v26, v26, v27")
    g("v_lshlrev_b32 v26, 4, v26")
    g(f"v_lshl_add_u32 v{vWQO}, v25, 13, v26")
    g(f"s_lshl_b32 s{sBASE0}, s{sRT}, 17")
    g(f"s_lshl_b32 s{sBASE1}, s{sCT}, 7")
    g(f"s_lshl_b32 s{sT1}, s{sW4}, 16")
    g(f"s_add_u32 s{sBASE1}, s{sBASE1}, s{sT1}")
    g(f"s_mov_b32 s{sWQ+2}, {1024*4096*2:#x}")
    g(f"s_mov_b32 s{sWQ+3}, 0x20000")
    g(f"s_mov_b32 s{sX+2}, {8*32*1024*2:#x}")
    g(f"s_mov_b32 s{sX+3}, 0x20000")
    g("s_waitcnt lgkmcnt(0)")
    g(f"s_mov_b32 s{sWQ}, s22")
    g(f"s_and_b32 s{sWQ+1}, s23, 0xffff")
    g(f"s_mov_b32 s{sX}, s16")
    g(f"s_and_b32 s{sX+1}, s17, 0xffff")
    Q = []
    def need(*tags):
        last = max(i for i, x in enumerate(Q) if x in tags)
        g(f"s_waitcnt vmcnt({len(Q) - 1 - last})")
    def stage(k):
        slot = qslot(k) * 32768
        g(f"s_add_u32 s{sT1}, s{sK0}, {k}")
        g(f"s_and_b32 s{sT1}, s{sT1}, 7")
        g(f"s_lshl_b32 s{sT2}, s{sT1}, 20")
        g(f"s_add_u32 s{sT2}, s{sT2}, s{sBASE1}")
        g(f"s_lshl_b32 s{sT3}, s{sT1}, 8")
        g(f"s_add_u32 s{sT3}, s{sT3}, s{sBASE0}")
        for m in range(4):
            g.dma(vWQO, sWQ, sT2, 32*m*8192, sLW1K, slot + 16384 + 4096*m, wqflag)
            g.dma(vXO, sX, sT3, m*16*2048, sLW1K, slot + 4096*m, "nt" if xnt else "")
            Q.extend([f"S{k}"] * 2)
    def kvf(s):
        if kvmap == "blk": return kvflag if (s >> 1) & 1 else kvflag1
        if kvmap == "alt": return kvflag if s & 1 else kvflag1
        return kvflag
    def chunk(s):
        if kvmap == "contig":
            g(f"s_lshl_b32 s{sT1}, s{sKQ}, 17")
            g(f"s_add_u32 s{sT1}, s{sT1}, {s*16384}")
        elif kvmap == "rr":
            g(f"s_lshl_b32 s{sT1}, s{sKQ}, 14")
            g(f"s_add_u32 s{sT1}, s{sT1}, {s*65536}")
        elif kvmap in ("rrg", "rrx", "rri"):
            src = {"rrg": sG, "rrx": sXCD, "rri": sRT}[kvmap]
            if kvmap == "rri":
                g(f"s_lshl_b32 s{sT1}, s{src}, 1")
                g(f"s_add_u32 s{sT1}, s{sT1}, {s}")
            else:
                g(f"s_add_u32 s{sT1}, s{src}, {s}")
            g(f"s_and_b32 s{sT1}, s{sT1}, 7")
            g(f"s_lshl_b32 s{sT1}, s{sT1}, 2")
            g(f"s_add_u32 s{sT1}, s{sT1}, s{sKQ}")
            g(f"s_lshl_b32 s{sT1}, s{sT1}, 14")
        elif kvmap in ("blk", "alt"):
            g(f"s_lshl_b32 s{sT1}, s{sHQ}, {17 if kvmap == 'blk' else 16}")
            g(f"s_xor_b32 s{sT1}, s{sT1}, {s*65536}")
            g(f"s_lshl_b32 s{sT2}, s{sKQ}, 14")
            g(f"s_add_u32 s{sT1}, s{sT1}, s{sT2}")
        elif kvmap == "rr2":
            g(f"s_lshl_b32 s{sT1}, s{sKQ}, 15")
            g(f"s_add_u32 s{sT1}, s{sT1}, {(s >> 1)*131072 + (s & 1)*16384}")
        elif kvmap == "rot":
            g(f"s_add_u32 s{sT1}, s{sKQ}, {s >> 1}")
            g(f"s_and_b32 s{sT1}, s{sT1}, 3")
            g(f"s_lshl_b32 s{sT1}, s{sT1}, 2")
            g(f"s_add_u32 s{sT1}, s{sT1}, s{sKQ}")
            g(f"s_lshl_b32 s{sT1}, s{sT1}, 15")
            if s & 1: g(f"s_add_u32 s{sT1}, s{sT1}, 16384")
        elif kvmap == "rot2":
            g(f"s_add_u32 s{sT1}, s{sKQ}, {s & 3}")
            g(f"s_and_b32 s{sT1}, s{sT1}, 3")
            g(f"s_lshl_b32 s{sT1}, s{sT1}, 2")
            g(f"s_add_u32 s{sT1}, s{sT1}, s{sKQ}")
            g(f"s_lshl_b32 s{sT1}, s{sT1}, 15")
            if s >> 2: g(f"s_add_u32 s{sT1}, s{sT1}, 16384")
        g(f"s_add_u32 s{sT1}, s{sT1}, s{sKV}")
    def kpart(s):
        chunk(s)
        for m in range(4):
            g.dma(vKO, sK, sT1, 16*m*256, sLW1K, (s % NKS)*32768 + 4096*m, kvf(s))
            Q.append(f"K{s}")
    def vpart(s):
        chunk(s)
        for m in range(4):
            g.dma(vVO, sV, sT1, 16*m*256, sLW1K, (s % NKS)*32768 + 16384 + 4096*m, kvf(s))
            Q.append(f"V{s}")
    def part(tag):
        (kpart if tag[0] == "K" else vpart)(int(tag[1]))
    for k in range(LA): stage(k)
    g.ts(0)
    g.srd(sK, 18, 8*4*8192*128*2)
    g.srd(sV, 20, 8*4*8192*128*2)
    g.srd(sWO, 24, 4096*1024*2)
    g.srd(sOUT, 26, 8*32*1024*2)
    g.srd_ws(wsoff)
    g(f"v_lshl_add_u32 v{vKO}, v22, 8, v24")
    g("v_and_b32 v28, 7, v22")
    g("v_lshlrev_b32 v28, 1, v28")
    g("v_xor_b32 v28, v23, v28")
    g("v_lshlrev_b32 v28, 4, v28")
    g(f"v_lshl_add_u32 v{vVO}, v22, 8, v28")
    g(f"v_lshl_add_u32 v{vWOO}, v25, 11, v26")
    g(f"s_lshl_b32 s{sKV}, s{sG}, 21")
    g(f"s_add_u32 s{sKV}, s{sKV}, {6144*256:#x}")
    sPF = sCT
    g(f"s_lshl_b32 s{sPF}, s{sOH}, 21")
    g(f"s_lshl_b32 s{sT1}, s{sW4}, 14")
    g(f"s_add_u32 s{sPF}, s{sPF}, s{sT1}")
    g(f"s_lshl_b32 s{sT1}, s{sI}, 16")
    g(f"s_add_u32 s{sPF}, s{sPF}, s{sT1}")
    g(f"s_and_b32 s{sT1}, s{sXCD}, 1")
    g(f"s_lshl_b32 s{sT1}, s{sT1}, 10")
    g(f"s_add_u32 s{sPF}, s{sPF}, s{sT1}")
    npf = [0]
    def wopf(n):
        for _ in range(n):
            g(f"s_add_u32 s{sT0}, s{sPF}, {npf[0]*2048:#x}")
            g(f"buffer_load_dwordx4 v[32:35], v{vLANE16}, s[{sWO}:{sWO+3}], s{sT0} offen {pfflag}")
            Q.append("PF"); npf[0] += 1
    if pretouch:
        def touch(expr_lines, base):
            for l in expr_lines: g(l)
            g(f"s_mul_i32 s{sT1}, s{sT1}, {FS}")
            g(f"s_add_u32 s{sT1}, s{sT1}, {base:#x}")
            g(f"s_add_u32 s{sPA}, s{sWS}, s{sT1}")
            g(f"s_addc_u32 s{sPA+1}, s{sWS+1}, 0")
            g(f"s_load_dword s{sRET}, s[{sPA}:{sPA+1}], 0 glc")
        touch([f"s_lshl_b32 s{sT1}, s{sGH}, 2", f"s_add_u32 s{sT1}, s{sT1}, s{sW4}"], F1)
        touch([f"s_mov_b32 s{sT1}, s{sGH}"], F2)
        touch([f"s_lshl_b32 s{sT1}, s{sRT}, 3", f"s_add_u32 s{sT1}, s{sT1}, s{sOH}", f"s_lshl_b32 s{sT1}, s{sT1}, 5", f"s_add_u32 s{sT1}, s{sT1}, s{sN0}",
               f"s_and_b32 s{sT2}, s{sW4}, 1", f"s_lshl_b32 s{sT2}, s{sT2}, 7", f"s_add_u32 s{sT1}, s{sT1}, s{sT2}",
               f"s_lshr_b32 s{sT2}, s{sW4}, 1", f"s_lshl_b32 s{sT2}, s{sT2}, 4", f"s_add_u32 s{sT1}, s{sT1}, s{sT2}"], F3)
        touch([f"s_lshl_b32 s{sT1}, s{sRT}, 4", f"s_add_u32 s{sT1}, s{sT1}, s{sN0}", f"s_lshl_b32 s{sT1}, s{sT1}, 2", f"s_add_u32 s{sT1}, s{sT1}, s{sOH}",
               f"s_lshl_b32 s{sT1}, s{sT1}, 1", f"s_and_b32 s{sT2}, s{sW4}, 1", f"s_add_u32 s{sT1}, s{sT1}, s{sT2}"], F4)
    order = ["K0", "K1", "V0"] + [x for s_ in range(1, 8) for x in ([f"K{s_+1}"] if s_ < 7 else []) + [f"V{s_}"]]
    todo = list(order)
    def issue(n):
        for _ in range(n):
            if todo: part(todo.pop(0))
    for k in range(8):
        need(f"S{k}")
        if k >= 1: g.ts(6 + k, 5)
        g("s_barrier")
        if k == 0: g.ts(1)
        if k + LA < 8: stage(k + LA)
        wopf(pffront.get(k, 0))
        issue(early.get(k, 0))
    g.ts(2)
    g.nonce_issue()
    g(f"s_lshl_b32 s{sBASE0}, s{sOH}, 21")
    g(f"s_lshl_b32 s{sT1}, s{sW4}, 14")
    g(f"s_add_u32 s{sBASE0}, s{sBASE0}, s{sT1}")
    g(f"s_lshl_b32 s{sT1}, s{sN0}, 7")
    g(f"s_add_u32 s{sBASE0}, s{sBASE0}, s{sT1}")
    def bpart(pos):
        slot = ([4, 0, 1, 2] if NKS == 4 else [3, 4, 0, 1])[pos]
        g(f"s_add_u32 s{sT1}, s{sRT}, {pos}")
        g(f"s_and_b32 s{sT1}, s{sT1}, 3")
        g(f"s_lshl_b32 s{sT1}, s{sT1}, 19")
        g(f"s_add_u32 s{sT1}, s{sT1}, s{sBASE0}")
        for m in range(8):
            g.dma(vWOO, sWO, sT1, 32*m*2048, sLW1K, slot*32768 + 4096*m, bflag)
            Q.append(f"B{pos}")
    g.nonce_finish()
    g("s_barrier")
    g.ts(3)
    issue(nq1)
    g("s_barrier")
    g.ts(4)
    while len(order) - len(todo) < 3: issue(1)
    need("K0")
    g("s_barrier")
    g.ts(5)
    for s in range(0, 8):
        la = s + 1 + (NKS - 4)
        lim = order.index(f"V{la}") + 1 if la <= 7 else len(order)
        while len(order) - len(todo) < lim: issue(1)
        wopf(pfplan.get(s, 0))
        for pos in bplan.get(s, ()): bpart(pos)
        if s < 7: need(f"K{s+1}", f"V{s}")
        else: need("V7")
        if s >= 1: g.ts(6 + s, 2)
        g("s_barrier")
    g.ts(11, 3)
    for pos in bplan.get(8, ()): bpart(pos)
    if 9 in bplan:
        g("s_barrier")
        wopf(pfplan.get(9, 0))
        for pos in bplan[9]: bpart(pos)
    g.ts(6)
    if g.debug == 3:
        g("s_waitcnt vmcnt(16)"); g.ts(12, 3)
        g("s_waitcnt vmcnt(0)"); g.ts(13, 3)
    g("s_branch L_BACK")

    g.lab("L_CWAVE")
    g("s_waitcnt lgkmcnt(0)")
    g.srd_ws(wsoff)
    g.srd(sDBG, 28, 256)
    g(f"s_or_b32 s{sT0}, s2, s{sWAVE}")
    g(f"s_cmp_lg_u32 s{sT0}, 0")
    g("s_cbranch_scc1 L_NOPUB")
    g(f"s_memrealtime s[{sN}:{sN+1}]")
    g("s_waitcnt lgkmcnt(0)")
    g(f"s_or_b32 s{sN}, s{sN}, 1")
    g(f"s_xor_b32 s{sN+1}, s{sN+1}, 0x5bd1e995")
    g(f"v_mov_b32 v{vNON}, s{sN}")
    g(f"v_mov_b32 v{vNON+1}, s{sN+1}")
    g(f"v_mov_b32 v{vA3}, 0")
    g(f"buffer_store_dwordx2 v[{vNON}:{vNON+1}], v{vA3}, s[{sDBG}:{sDBG+3}], 0 offen sc1")
    g.lab("L_NOPUB")
    if codepf:
        g(f"s_cmp_lg_u32 s{sWAVE}, 1")
        g("s_cbranch_scc1 L_NOPF")
        g(f"s_getpc_b64 s[{sPA}:{sPA+1}]")
        g.lab("L_PC")
        g(f"s_lshl_b32 s{sT0}, s{sI}, 10")
        g(f"s_min_u32 s{sT0}, s{sT0}, L_CODE_END-L_PC-1024")
        g(f"v_add_u32 v{vA0}, s{sT0}, v{vLANE16}")
        g(f"global_load_dwordx4 v[{vS}:{vS+3}], v{vA0}, s[{sPA}:{sPA+1}]")
        g.lab("L_NOPF")
    g.ts(0)
    g.srd(sOUT, 26, 8*32*1024*2)
    g(f"s_and_b32 s{sT0}, s{sW4}, 1")
    g(f"s_lshl_b32 s{sT0}, s{sT0}, 13")
    g("v_and_b32 v20, 31, v0")
    g("v_lshrrev_b32 v21, 5, v0")
    g("v_and_b32 v22, 15, v0")
    g("v_xor_b32 v22, v22, v21")
    g(f"v_lshlrev_b32 v23, 8, v20")
    g(f"v_add_u32 v23, s{sT0}, v23")
    for s in range(8):
        g(f"v_xor_b32 v24, {2*s}, v22")
        g(f"v_lshl_add_u32 v{vKA+s}, v24, 4, v23")
    g("v_and_b32 v20, 15, v0")
    g("v_lshrrev_b32 v22, 2, v20")
    g("v_lshl_add_u32 v23, v21, 3, v22")
    g("v_lshlrev_b32 v23, 7, v23")
    g("v_and_b32 v24, 1, v0")
    g("v_bfe_u32 v25, v0, 4, 1")
    g("v_lshl_add_u32 v24, v25, 1, v24")
    g(f"s_lshr_b32 s{sT0}, s{sW4}, 1")
    g(f"s_lshl_b32 s{sT0}, s{sT0}, 2")
    g(f"v_add_u32 v24, s{sT0}, v24")
    g("v_lshlrev_b32 v26, 1, v22")
    g("v_and_b32 v26, 4, v26")
    g("v_xor_b32 v24, v24, v26")
    g("v_lshl_add_u32 v23, v24, 4, v23")
    g("v_bfe_u32 v25, v0, 1, 1")
    g(f"v_lshl_add_u32 v{vVA}, v25, 3, v23")
    g(f"v_add_u32 v{vVA}, 16384, v{vVA}")
    acc = vO
    fr = 16
    cur = [0]
    def setbase(regs, want):
        if want != cur[0]:
            g(f"s_mov_b32 s{sT0}, {(want - cur[0]) & 0xffffffff:#x}")
            for r in regs: g(f"v_add_u32 v{r}, s{sT0}, v{r}")
            cur[0] = want
    for k in range(8):
        slot = qslot(k)
        setbase(list(range(vKA, vKA+8)) + [vVA], (slot >> 1) * 65536)
        io = (slot & 1) * 32768
        if k >= 1: g.ts(6 + k, 5)
        g("s_barrier")
        if k == 0: g.ts(1)
        def rd(s):
            b = fr + 8*s
            g(f"ds_read_b64_tr_b16 v[{b}:{b+1}], v{vVA} offset:{io + 2048*s}")
            g(f"ds_read_b64_tr_b16 v[{b+2}:{b+3}], v{vVA} offset:{io + 2048*s + 512}")
            g(f"ds_read_b128 v[{b+4}:{b+7}], v{vKA+s} offset:{io}")
        for s in range(5): rd(s)
        for s in range(8):
            g(f"s_waitcnt lgkmcnt({min(4, 7 - s) * 3})")
            mfma(g, acc, fr + 8*s, fr + 8*s + 4, None if (k == 0 and s == 0) else acc)
            if s + 5 < 8: rd(s + 5)
    g.ts(2)
    g.nonce_issue()
    g(f"s_and_b32 s{sT0}, s{sW4}, 1")
    g(f"s_lshl_b32 s{sT1}, s{sRT}, 1")
    g(f"s_add_u32 s{sT1}, s{sT1}, s{sT0}")
    g(f"s_lshl_b32 s{sT1}, s{sT1}, 5")
    g(f"s_lshr_b32 s{sT2}, s{sCT}, 1")
    g(f"s_add_u32 s{sT1}, s{sT1}, s{sT2}")
    g(f"s_and_b32 s{sT2}, s{sCT}, 1")
    g(f"s_lshl_b32 s{sT2}, s{sT2}, 1")
    g(f"s_lshr_b32 s{sT3}, s{sW4}, 1")
    g(f"s_add_u32 s{sT2}, s{sT2}, s{sT3}")
    g(f"s_lshl_b32 s{sBASE0}, s{sT1}, 13")
    g(f"s_lshl_b32 s{sT3}, s{sT2}, 10")
    g(f"s_add_u32 s{sBASE0}, s{sBASE0}, s{sT3}")
    g("v_and_b32 v24, 15, v0")
    g("v_lshlrev_b32 v24, 4, v24")
    g("v_lshrrev_b32 v25, 5, v0")
    g("v_lshl_add_u32 v24, v25, 8, v24")
    g("v_bfe_u32 v25, v0, 4, 1")
    g("v_lshl_add_u32 v24, v25, 12, v24")
    g(f"s_mul_i32 s{sBASE1}, s{sT1}, {FS}")
    g(f"s_lshl_b32 s{sT3}, s{sT2}, 3")
    g(f"s_add_u32 s{sBASE1}, s{sBASE1}, s{sT3}")
    g(f"s_add_u32 s{sBASE1}, s{sBASE1}, {F1:#x}")
    g(f"s_mov_b32 s{sT0}, {f2u(C_SCALE):#x}")
    for u in range(16):
        g(f"v_mul_f32 v{acc+u}, s{sT0}, v{acc+u}")
    for u in range(8):
        g(f"v_cvt_pk_bf16_f32 v{16+u}, v{acc+2*u}, v{acc+2*u+1}")
    g(f"buffer_store_dwordx4 v[16:19], v24, s[{sWS}:{sWS+3}], s{sBASE0} offen sc1")
    g(f"buffer_store_dwordx4 v[20:23], v24, s[{sWS}:{sWS+3}], s{sBASE0} offen offset:512 sc1")
    att_setup(g)
    g(f"s_lshl_b32 s{sT2}, s{sGH}, 2")
    g(f"s_add_u32 s{sT2}, s{sT2}, s{sW4}")
    g(f"s_lshl_b32 s{sBASE0}, s{sT2}, 13")
    g(f"s_mul_i32 s{sT2}, s{sT2}, {FS}")
    g(f"s_add_u32 s{sT2}, s{sT2}, {F1:#x}")
    g.nonce_finish()
    g("s_waitcnt vmcnt(0)")
    g.flag(sBASE1)
    g("s_barrier")
    g.ts(3)
    g.spoll4(sT2)
    g.ts(4)
    for s in range(8):
        if s == 4: g(f"s_add_u32 s{sBASE0}, s{sBASE0}, 4096")
        g(f"buffer_load_dwordx4 v[{vQ+4*s}:{vQ+4*s+3}], v{vLANE16}, s[{sWS}:{sWS+3}], s{sBASE0} offen offset:{1024*(s&3)} {qf}")
    g("s_barrier")
    if cprio: g(f"s_setprio {cprio}")
    g("s_barrier")
    n0 = len(g.L)
    att_loop(g, dict(nks=NKS, tail=ptail, **attO))
    if emu: g.L = g.L[:n0] + emu16(g.L[n0:])
    def stamp6():
        g.ts(6)
        if g.debug and g.debug != 9:
            g("s_memtime s[100:101]")
            g("s_waitcnt lgkmcnt(0)")
            g(f"s_sub_u32 s{sTS+15}, s100, s{sTS+15}")
        if cprio: g("s_setprio 0")
    if not ptail: stamp6()
    Pl = vP + 8
    def pv(p):
        if p == 0: g("s_waitcnt lgkmcnt(8)")
        if p == 2: g("s_waitcnt lgkmcnt(0)")
        for sl in range(4*p, 4*p + 4): g(g.pmf(Pl, sl))
    if ptail:
        pv(0); g(g.m16(vLS, vONE, Pl, vLS)); g(g.m16(vLS+4, vONE, Pl+4, vLS+4)); pv(1)
    LSC = 98304 if NKS == 4 else 65536
    sh_own, sh_w4, sh_fi, sh_sp = ((15, 13, 12, 10), (13, 11, 10, 15), (15, 11, 10, 13))[polay]
    vEG, vEL = 246, 247
    g(f"s_lshl_b32 s{sBASE0}, s{sGH}, 17")
    g(f"s_lshl_b32 s{sT0}, s{sW4}, {sh_w4}")
    g(f"s_add_u32 s{sBASE0}, s{sBASE0}, s{sT0}")
    g(f"s_lshl_b32 s{sT0}, s{sKQ}, {sh_sp}")
    g(f"s_add_u32 s{sBASE0}, s{sBASE0}, s{sT0}")
    g(f"s_add_u32 s{sBASE0}, s{sBASE0}, {PO:#x}")
    g(f"v_and_b32 v{vT3}, 15, v0")
    g(f"v_bfe_u32 v{vT4}, v0, 4, 1")
    g(f"v_lshl_add_u32 v{vT3}, v{vT4}, 5, v{vT3}")
    g(f"v_lshlrev_b32 v{vT3}, 4, v{vT3}")
    g(f"v_lshrrev_b32 v{vEL}, 5, v0")
    g(f"v_lshl_add_u32 v{vEG}, v{vEL}, {sh_fi}, v{vT3}")
    g(f"v_lshl_add_u32 v{vEL}, v{vEL}, 10, v{vT3}")
    g(f"s_lshl_b32 s{sT3}, s{sW4}, 11")
    g(f"s_add_u32 s{sT3}, s{sT3}, {LSC}")
    g(f"v_add_u32 v{vEL}, s{sT3}, v{vEL}")
    if ptail: pv(2)
    for o in range(4):
        if ptail and o == 2: stamp6()
        for hf in range(2):
            src = vO + 32*hf + 8*o; dst = vKR + 8*o + 4*hf
            for u in range(4):
                g(f"v_cvt_pk_bf16_f32 v{dst+u}, v{src+2*u}, v{src+2*u+1}")
        if ptail and o == 0: pv(3)
        lo = g.newlab("LOC"); nx = g.newlab("NXT")
        dst = vKR + 8*o
        g(f"s_cmp_eq_u32 s{sKQ}, {o}")
        g(f"s_cbranch_scc1 {lo}")
        g(f"s_add_u32 s{sT0}, s{sBASE0}, {o << sh_own:#x}")
        g(f"buffer_store_dwordx4 v[{dst}:{dst+3}], v{vEG}, s[{sWS}:{sWS+3}], s{sT0} offen {wf}")
        g(f"buffer_store_dwordx4 v[{dst+4}:{dst+7}], v{vEG}, s[{sWS}:{sWS+3}], s{sT0} offen offset:256 {wf}")
        g(f"s_branch {nx}")
        g.lab(lo)
        g(f"ds_write_b128 v{vEL}, v[{dst}:{dst+3}]")
        g(f"ds_write_b128 v{vEL}, v[{dst+4}:{dst+7}] offset:256")
        g.lab(nx)
        if o == 1:
            g(f"s_lshl_b32 s{sT1}, s{sGH}, 2")
            g(f"s_add_u32 s{sT1}, s{sT1}, s{sW4}")
            g(f"s_lshl_b32 s{sT2}, s{sT1}, 10")
            g(f"s_lshl_b32 s{sT3}, s{sKQ}, 8")
            g(f"s_add_u32 s{sT2}, s{sT2}, s{sT3}")
            g(f"s_add_u32 s{sT2}, s{sT2}, {ST:#x}")
            g(f"v_cmp_ne_u32 vcc, 0, v{vT4}")
            g(f"v_and_b32 v{vA0}, 31, v0")
            g(f"v_lshlrev_b32 v{vA0}, 3, v{vA0}")
            g(f"v_cndmask_b32 v{vT0}, v{vNEG}, v{vNEG+4}, vcc")
            g(f"v_cndmask_b32 v{vT1}, v{vLS}, v{vLS+4}, vcc")
            g(f"v_sub_f32 v{vT0}, 0, v{vT0}")
            g(f"s_lshl_b32 s{sT3}, s{sW4}, 8")
            g(f"s_add_u32 s{sT3}, s{sT3}, {LSC + 8192}")
            g(f"v_add_u32 v{vA2}, s{sT3}, v{vA0}")
            g(f"buffer_store_dwordx2 v[{vT0}:{vT1}], v{vA0}, s[{sWS}:{sWS+3}], s{sT2} offen {wf}")
            g(f"ds_write_b64 v{vA2}, v[{vT0}:{vT1}]")
    if 9 in bplan: g("s_barrier")

    g.lab("L_BACK")
    sBB, sHP = sCT, sK0
    g(f"s_and_b32 s{sBB}, s{sWAVE}, 1")
    g(f"s_lshr_b32 s{sHP}, s{sWAVE}, 1")
    g(f"s_sub_u32 s{sT0}, s{sHP}, s{sRT}")
    g(f"s_and_b32 s{sT0}, s{sT0}, 3")
    if NKS == 4:
        g(f"s_sub_u32 s{sT2}, s{sT0}, 1")
        g(f"s_cmp_eq_u32 s{sT0}, 0")
        g(f"s_cselect_b32 s{sT2}, 4, s{sT2}")
    else:
        g(f"s_sub_u32 s{sT2}, s{sT0}, 2")
        g(f"s_add_u32 s{sT3}, s{sT0}, 3")
        g(f"s_cmp_lt_u32 s{sT0}, 2")
        g(f"s_cselect_b32 s{sT2}, s{sT3}, s{sT2}")
    g(f"s_lshl_b32 s{sT2}, s{sT2}, 15")
    g("v_lshrrev_b32 v4, 5, v0")
    g("v_bfe_u32 v5, v0, 2, 2")
    g("v_lshl_add_u32 v6, v4, 2, v5")
    g("v_lshlrev_b32 v6, 7, v6")
    g("v_and_b32 v7, 1, v0")
    g("v_lshl_add_u32 v6, v7, 3, v6")
    g(f"v_add_u32 v6, s{sT2}, v6")
    g("v_bfe_u32 v7, v0, 1, 1")
    g("v_bfe_u32 v8, v0, 4, 1")
    g("v_lshl_add_u32 v7, v8, 1, v7")
    g("v_lshlrev_b32 v5, 1, v5")
    g("v_and_b32 v5, 4, v5")
    g("v_xor_b32 v7, v7, v5")
    g(f"v_lshl_add_u32 v{vKA}, v7, 4, v6")
    g("v_xor_b32 v7, 4, v7")
    g(f"v_lshl_add_u32 v{vKA+1}, v7, 4, v6")
    g(f"s_lshl_b32 s{sT1}, s{sGH}, 2")
    g(f"s_add_u32 s{sT1}, s{sT1}, s{sW4}")
    g(f"s_lshl_b32 s{sBASE1}, s{sT1}, 10")
    g(f"s_add_u32 s{sBASE1}, s{sBASE1}, {ST:#x}")
    g(f"s_lshl_b32 s{sBASE0}, s{sGH}, 17")
    g(f"s_lshl_b32 s{sT0}, s{sKQ}, {sh_own}")
    g(f"s_add_u32 s{sBASE0}, s{sBASE0}, s{sT0}")
    g(f"s_lshl_b32 s{sT0}, s{sW4}, {sh_w4}")
    g(f"s_add_u32 s{sBASE0}, s{sBASE0}, s{sT0}")
    g(f"s_lshl_b32 s{sT0}, s{sROLE}, {sh_fi}")
    g(f"s_add_u32 s{sBASE0}, s{sBASE0}, s{sT0}")
    g(f"s_add_u32 s{sBASE0}, s{sBASE0}, {PO:#x}")
    g(f"v_and_b32 v{vA0}, 31, v0")
    g(f"v_lshlrev_b32 v{vA0}, 3, v{vA0}")
    g(f"s_lshl_b32 s{sT0}, s{sW4}, 11")
    g(f"s_lshl_b32 s{sT2}, s{sROLE}, 10")
    g(f"s_add_u32 s{sT0}, s{sT0}, s{sT2}")
    g(f"s_add_u32 s{sT0}, s{sT0}, {LSC}")
    g(f"v_add_u32 v{vA1}, s{sT0}, v{vLANE16}")
    g(f"s_lshl_b32 s{sT0}, s{sW4}, 8")
    g(f"s_add_u32 s{sT0}, s{sT0}, {LSC + 8192}")
    g(f"v_add_u32 v{vA2}, s{sT0}, v{vA0}")
    g(f"s_mul_i32 s{sT2}, s{sGH}, {FS}")
    g(f"s_add_u32 s{sT2}, s{sT2}, {F2:#x}")
    g(f"s_lshl_b32 s{sT3}, s{sKQ}, 3")
    g(f"s_add_u32 s{sT3}, s{sT3}, s{sT2}")
    g("s_waitcnt vmcnt(0) lgkmcnt(0)")
    g.ts(7)
    g("s_barrier")
    g.ts(7, 4)
    vB = 112
    def bread():
        cnt = 0
        for n in range(16):
            for nt in range(2):
                b = vB + (n*2+nt)*4
                row = 32*(n >> 1) + 8*(n & 1)
                g(f"ds_read_b64_tr_b16 v[{b}:{b+1}], v{vKA+nt} offset:{128*row}")
                g(f"ds_read_b64_tr_b16 v[{b+2}:{b+3}], v{vKA+nt} offset:{128*(row+16)}")
                cnt += 2
                if cnt % 8 == 0: g("s_waitcnt lgkmcnt(5)")
        g("s_waitcnt lgkmcnt(0)")
    g(f"ds_read_b64 v[16:17], v{vA2}")
    g(f"ds_read_b128 v[48:51], v{vA1}")
    g(f"s_cmp_lg_u32 s{sWAVE}, {pw2}")
    g("s_cbranch_scc1 L_NOF2")
    g.flag(sT3)
    if pfirst:
        g.vpoll4(sT2, vp) if vp else g.spoll4(sT2)
        g("s_branch L_NOP2")
    g.lab("L_NOF2")
    bread()
    if not pfirst:
        g(f"s_cmp_lg_u32 s{sWAVE}, {pw2}")
        g("s_cbranch_scc1 L_NOP2")
        g.vpoll4(sT2, vp) if vp else g.spoll4(sT2)
    g.lab("L_NOP2")
    g("s_barrier")
    g.ts(8); g.ts(8, 4)
    for e in range(1, 4):
        g(f"s_add_u32 s{sT0}, s{sKQ}, {e}")
        g(f"s_and_b32 s{sT0}, s{sT0}, 3")
        g(f"s_lshl_b32 s{sT2}, s{sT0}, 8")
        g(f"s_add_u32 s{sT2}, s{sT2}, s{sBASE1}")
        g(f"buffer_load_dwordx2 v[{16+2*e}:{17+2*e}], v{vA0}, s[{sWS}:{sWS+3}], s{sT2} offen {rf}")
    for e in range(1, 4):
        g(f"s_add_u32 s{sT0}, s{sKQ}, {e}")
        g(f"s_and_b32 s{sT0}, s{sT0}, 3")
        g(f"s_lshl_b32 s{sT2}, s{sT0}, {sh_sp}")
        g(f"s_add_u32 s{sT2}, s{sT2}, s{sBASE0}")
        g(f"buffer_load_dwordx4 v[{48+4*e}:{51+4*e}], v{vLANE16}, s[{sWS}:{sWS+3}], s{sT2} offen {rf}")
    g(f"s_lshl_b32 s{sT0}, s{sT1}, 13")
    g(f"s_lshl_b32 s{sT2}, s{sKQ}, 11")
    g(f"s_add_u32 s{sT0}, s{sT0}, s{sT2}")
    g(f"s_lshl_b32 s{sT2}, s{sROLE}, 10")
    g(f"s_add_u32 s{sT0}, s{sT0}, s{sT2}")
    g(f"s_add_u32 s{sT1}, s{sT0}, {OF:#x}")
    g(f"s_lshl_b32 s{sT0}, s{sRT}, 1")
    g(f"s_add_u32 s{sT0}, s{sT0}, s{sBB}")
    g(f"s_lshl_b32 s{sT0}, s{sT0}, 2")
    g(f"s_add_u32 s{sT0}, s{sT0}, s{sOH}")
    g(f"s_lshl_b32 s{sBASE0}, s{sT0}, 16")
    g(f"s_lshl_b32 s{sT2}, s{sHP}, 14")
    g(f"s_add_u32 s{sBASE0}, s{sBASE0}, s{sT2}")
    g(f"s_add_u32 s{sBASE0}, s{sBASE0}, {OF:#x}")
    g(f"s_mul_i32 s{sT2}, s{sGH}, {16*FS}")
    g(f"s_lshl_b32 s{sT3}, s{sKQ}, 3")
    g(f"s_add_u32 s{sT2}, s{sT2}, s{sT3}")
    g(f"s_add_u32 s{sT2}, s{sT2}, {F3:#x}")
    g(f"v_mul_u32_u24 v{vA3}, {FS}, v0")
    g(f"v_add_u32 v{vA3}, s{sT2}, v{vA3}")
    g(f"s_lshl_b32 s{sT0}, s{sRT}, 3")
    g(f"s_add_u32 s{sT0}, s{sT0}, s{sOH}")
    g(f"s_lshl_b32 s{sT0}, s{sT0}, 5")
    g(f"s_add_u32 s{sT0}, s{sT0}, s{sN0}")
    g(f"s_mul_i32 s{sBASE1}, s{sT0}, {FS}")
    g(f"s_add_u32 s{sBASE1}, s{sBASE1}, {F3:#x}")
    if pfirst:
        g(f"s_cmp_lg_u32 s{sWAVE}, {pw2}")
        g("s_cbranch_scc1 L_NOB")
        bread()
        g.lab("L_NOB")
    for u in range(4):
        g(f"v_lshlrev_b32 v{32+2*u}, 16, v{48+u}")
        g(f"v_and_b32 v{33+2*u}, 0xffff0000, v{48+u}")
    g("s_waitcnt vmcnt(3)")
    g.ts(9, 4)
    g("v_max3_f32 v24, v16, v18, v20")
    g("v_max_f32 v24, v22, v24")
    for s in range(4): g(f"v_sub_f32 v{16+2*s}, v{16+2*s}, v24")
    for s in range(4): g(f"v_exp_f32 v{16+2*s}, v{16+2*s}")
    g("s_nop 0")
    g("v_mul_f32 v24, v16, v17")
    g("v_fmac_f32 v24, v18, v19")
    g("v_fmac_f32 v24, v20, v21")
    g("v_fmac_f32 v24, v22, v23")
    g("v_rcp_f32 v24, v24")
    g("s_nop 0")
    for s in range(4): g(f"v_mul_f32 v{16+2*s}, v{16+2*s}, v24")
    for c in range(8): g(f"v_mul_f32 v{32+c}, v{32+c}, v16")
    if debug == 4:
        g("s_waitcnt vmcnt(0)"); g.ts(10, 4)
    for s in range(1, 4):
        g(f"s_waitcnt vmcnt({3 - s})")
        for u in range(4):
            src = 48 + 4*s + u
            g(f"v_lshlrev_b32 v28, 16, v{src}")
            g(f"v_and_b32 v29, 0xffff0000, v{src}")
            g(f"v_fmac_f32 v{32+2*u}, v28, v{16+2*s}")
            g(f"v_fmac_f32 v{33+2*u}, v29, v{16+2*s}")
    for u in range(4):
        g(f"v_cvt_pk_bf16_f32 v{40+u}, v{32+2*u}, v{33+2*u}")
    g.ts(11, 4)
    g(f"buffer_store_dwordx4 v[40:43], v{vLANE16}, s[{sWS}:{sWS+3}], s{sT1} offen {wf}")
    g("s_waitcnt vmcnt(0)")
    g.ts(12, 4)
    g("s_barrier")
    g.ts(13, 4)
    g.ts(9)
    g(f"s_cmp_lg_u32 s{sWAVE}, 4")
    g("s_cbranch_scc1 L_NOP3")
    g("s_mov_b64 exec, 0xffff")
    g(f"buffer_store_dwordx2 v[{vNON}:{vNON+1}], v{vA3}, s[{sWS}:{sWS+3}], 0 offen sc1")
    g("s_mov_b64 exec, -1")
    if not f3wave: g.spollN(sBASE1, (0, 16*FS, 128*FS, 144*FS))
    g.lab("L_NOP3")
    g(f"s_lshl_b32 s{sT0}, s{sWAVE}, 13")
    g(f"v_add_u32 v{vA0}, s{sT0}, v{vLANE16}")
    g(f"s_lshl_b32 s{sT0}, s{sBB}, 13")
    g(f"s_lshl_b32 s{sT1}, s{sHP}, 11")
    g(f"s_add_u32 s{sT0}, s{sT0}, s{sT1}")
    g(f"v_add_u32 v{vA1}, s{sT0}, v{vLANE16}")
    if aprio:
        g(f"s_xor_b32 s{sT0}, s{sN0}, s{sROLE}")
        g(f"s_bitcmp1_b32 s{sT0}, 0")
        g("s_cbranch_scc0 L_NOPRIO")
        g("s_setprio 3")
        g.lab("L_NOPRIO")
    if f3wave:
        g(f"s_mul_i32 s{sT0}, s{sBB}, {128*FS}")
        g(f"s_mul_i32 s{sT1}, s{sROLE}, {16*FS}")
        g(f"s_add_u32 s{sBASE1}, s{sBASE1}, s{sT0}")
        g(f"s_add_u32 s{sBASE1}, s{sBASE1}, s{sT1}")
        g.vpoll4(sBASE1, vp) if vp else g.spoll4(sBASE1)
    else:
        g("s_barrier")
    g.ts(10)
    vA = 16
    if apf:
        g(f"s_and_b32 s{sT0}, s{sN0}, 7")
        g(f"s_lshl_b32 s{sT0}, s{sT0}, 11")
        g(f"s_add_u32 s{sT0}, s{sT0}, s{sBASE0}")
        g(f"buffer_load_dwordx4 v[4:7], v{vLANE16}, s[{sWS}:{sWS+3}], s{sT0} offen {rf}")
        g(f"buffer_load_dwordx4 v[4:7], v{vLANE16}, s[{sWS}:{sWS+3}], s{sT0} offen offset:1024 {rf}")
    for n in range(16):
        if n and n % 4 == 0: g(f"s_add_u32 s{sBASE0}, s{sBASE0}, 4096")
        g(f"buffer_load_dwordx4 v[{vA+4*n}:{vA+4*n+3}], v{vLANE16}, s[{sWS}:{sWS+3}], s{sBASE0} offen offset:{1024*(n&3)} {rf}")
    g(f"s_lshl_b32 s{sT2}, s{sBB}, 1")
    g(f"s_lshr_b32 s{sT3}, s{sHP}, 1")
    g(f"s_add_u32 s{sT2}, s{sT2}, s{sT3}")
    g(f"s_lshl_b32 s{sT0}, s{sRT}, 4")
    g(f"s_add_u32 s{sT0}, s{sT0}, s{sN0}")
    g(f"s_lshl_b32 s{sT0}, s{sT0}, 2")
    g(f"s_add_u32 s{sT0}, s{sT0}, s{sT2}")
    g(f"s_lshl_b32 s{sT0}, s{sT0}, 1")
    g(f"s_and_b32 s{sT1}, s{sHP}, 1")
    g(f"s_add_u32 s{sT0}, s{sT0}, s{sT1}")
    g(f"s_lshl_b32 s{sBASE0}, s{sT0}, 14")
    g(f"s_add_u32 s{sBASE0}, s{sBASE0}, {OP:#x}")
    g(f"s_mul_i32 s{sBASE1}, s{sT0}, {FS}")
    g(f"s_add_u32 s{sBASE1}, s{sBASE1}, {F4:#x}")
    g(f"s_lshl_b32 s{sT3}, s{sOH}, 3")
    g(f"s_add_u32 s{sT3}, s{sT3}, s{sBASE1}")
    vD = 80
    for n in range(16):
        g(f"s_waitcnt vmcnt({15-n})")
        for nt in range(2):
            mfma(g, vD+16*nt, vB + (n*2+nt)*4, vA+4*n, None if n == 0 else vD+16*nt)
    g.ts(11)
    g(f"v_mov_b32 v51, s{sN}")
    g(f"v_mov_b32 v55, s{sN}")
    g(f"v_mov_b32 v58, 0")
    g(f"v_mov_b32 v59, s{sN}")
    g("v_and_b32 v24, 31, v0")
    g("v_lshrrev_b32 v25, 5, v0")
    g("v_lshlrev_b32 v24, 11, v24")
    g(f"v_lshl_add_u32 v{vA2}, v25, 3, v24")
    g("s_nop 2")
    for q in range(8):
        g(f"ds_write_b128 v{vA0}, v[{vD+4*q}:{vD+4*q+3}] offset:{1024*q}")
    g("s_waitcnt lgkmcnt(0)")
    g("s_barrier")
    for hp2 in range(4):
        for e in range(2):
            g(f"ds_read_b128 v[{16+8*hp2+4*e}:{19+8*hp2+4*e}], v{vA1} offset:{16384*hp2 + 1024*e}")
    res = [48, 49, 50, 52, 53, 54, 56, 57]
    g("s_waitcnt lgkmcnt(4)")
    for c in range(8): g(f"v_add_f32 v{16+c}, v{16+c}, v{24+c}")
    g("s_waitcnt lgkmcnt(0)")
    for c in range(8): g(f"v_add_f32 v{32+c}, v{32+c}, v{40+c}")
    for c in range(8): g(f"v_add_f32 v{res[c]}, v{16+c}, v{32+c}")
    g.ts(12)
    g(f"s_cmp_eq_u32 s{sT2}, s{sOH}")
    g("s_cbranch_scc1 L_OWN")
    g(f"s_lshl_b32 s{sT0}, s{sOH}, 12")
    g(f"s_add_u32 s{sT0}, s{sT0}, s{sBASE0}")
    for j in range(3):
        g(f"buffer_store_dwordx4 v[{48+4*j}:{51+4*j}], v{vLANE16}, s[{sWS}:{sWS+3}], s{sT0} offen offset:{1024*j} {wf}")
    if ophint: g.flag(sT3)
    g("s_branch L_FIN")
    g.lab("L_OWN")
    if ophint: g.flag(sT3)
    g(f"s_lshl_b32 s{sT2}, s{sRT}, 1")
    g(f"s_add_u32 s{sT2}, s{sT2}, s{sBB}")
    g(f"s_lshl_b32 s{sT2}, s{sT2}, 16")
    g(f"s_lshl_b32 s{sT1}, s{sN0}, 7")
    g(f"s_add_u32 s{sT2}, s{sT2}, s{sT1}")
    g(f"s_lshl_b32 s{sT1}, s{sHP}, 5")
    g(f"s_add_u32 s{sT2}, s{sT2}, s{sT1}")
    if ophint: g.vpoll4(sBASE1, vp) if vp else g.spoll4(sBASE1)
    g.ts(13)
    g(f"s_mov_b32 s{sCNT}, 0")
    g.lab("L_OPL")
    for e in range(1, 4):
        g(f"s_add_u32 s{sT0}, s{sOH}, {e}")
        g(f"s_and_b32 s{sT0}, s{sT0}, 3")
        g(f"s_lshl_b32 s{sT0}, s{sT0}, 12")
        g(f"s_add_u32 s{sT0}, s{sT0}, s{sBASE0}")
        for j in range(3):
            r = 60 + 12*(e-1) + 4*j
            g(f"buffer_load_dwordx4 v[{r}:{r+3}], v{vLANE16}, s[{sWS}:{sWS+3}], s{sT0} offen offset:{1024*j} {rf}")
    g(f"s_add_u32 s{sCNT}, s{sCNT}, 1")
    g("s_waitcnt vmcnt(0)")
    tags = [63 + 4*k for k in range(9)]
    g(f"v_min3_u32 v16, v{tags[0]}, v{tags[1]}, v{tags[2]}")
    g(f"v_max3_u32 v17, v{tags[0]}, v{tags[1]}, v{tags[2]}")
    for k in (3, 5, 7):
        g(f"v_min3_u32 v16, v{tags[k]}, v{tags[k+1]}, v16")
        g(f"v_max3_u32 v17, v{tags[k]}, v{tags[k+1]}, v17")
    g(f"v_xor_b32 v16, s{sN}, v16")
    g(f"v_xor_b32 v17, s{sN}, v17")
    g("v_or_b32 v16, v16, v17")
    g("v_cmp_ne_u32 vcc, 0, v16")
    g("s_cbranch_vccz L_OPD")
    g(f"s_cmp_lt_u32 s{sCNT}, {g.limit:#x}")
    g("s_cbranch_scc1 L_OPL")
    g.lab("L_OPD")
    for e in range(3):
        for c in range(8):
            g(f"v_add_f32 v{res[c]}, v{res[c]}, v{res[c] + 12*(e+1)}")
    for u in range(4):
        g(f"v_cvt_pk_bf16_f32 v{16+u}, v{res[2*u]}, v{res[2*u+1]}")
    g(f"buffer_store_dwordx2 v[16:17], v{vA2}, s[{sOUT}:{sOUT+3}], s{sT2} offen {outflag}")
    g(f"buffer_store_dwordx2 v[18:19], v{vA2}, s[{sOUT}:{sOUT+3}], s{sT2} offen offset:16 {outflag}")
    g.lab("L_FIN")
    if span:
        g("s_sub_u32 s100, s2, 128")
        g("s_cmp_ge_u32 s100, 2")
        g("s_cbranch_scc1 L_END")
        g(f"s_cmp_lg_u32 s{sWAVE}, 0")
        g("s_cbranch_scc1 L_END")
        g("s_waitcnt vmcnt(0)")
        g.ts(14)
        g.srd(sDBG, 28, 256)
        g("s_sub_u32 s100, s2, 128")
        g("s_mul_i32 s100, s100, 28")
        g("s_add_u32 s100, s100, 8")
        g("v_mov_b32 v17, s100")
        g("s_mov_b64 exec, 1")
        for k, n in enumerate((0, 2, 5, 6, 8, 10, 14)):
            g(f"s_sub_u32 s101, s{sTS+n}, s{sN}")
            g(f"v_mov_b32 v{18+k}, s101")
            g(f"buffer_store_dword v{18+k}, v17, s[{sDBG}:{sDBG+3}], 0 offen offset:{4*k}")
        g("s_branch L_END")
    if debug:
        g("s_waitcnt vmcnt(0)")
        g.ts(14)
        g(f"s_lshl_b32 s{sT0}, s2, 3")
        g(f"s_add_u32 s{sT0}, s{sT0}, s{sWAVE}")
        g(f"s_lshl_b32 s{sT0}, s{sT0}, 6")
        g(f"s_add_u32 s{sT0}, s{sT0}, {TSB:#x}")
        g(f"v_mov_b32 v{vA3}, s{sT0}")
        g("s_mov_b64 exec, 1")
        for n in range(16):
            g(f"v_mov_b32 v{16+n}, s{sTS+n}")
            g(f"buffer_store_dword v{16+n}, v{vA3}, s[{sWS}:{sWS+3}], 0 offen offset:{4*n}")
    g.lab("L_END")
    g("s_endpgm")
    rare_path(g)
    g.lab("L_CODE_END")
    hdr = f"""; Fused Q-projection + sliding-window GQA attention + output projection (generated by gen/gen3.py)
; @launch grid=(256,1,1) block=(512,1,1) lds=163840
.amdgcn_target "amdgcn-amd-amdhsa--gfx950"
.text
.globl {NAME}
.p2align 8
.type {NAME},@function
{NAME}:
"""
    ftr = f"""
.section .rodata,"a"
.p2align 6
.amdhsa_kernel {NAME}
  .amdhsa_next_free_vgpr 256
  .amdhsa_next_free_sgpr 102
  .amdhsa_accum_offset 256
  .amdhsa_group_segment_fixed_size 0
  .amdhsa_kernarg_size 64
  .amdhsa_user_sgpr_count 2
  .amdhsa_user_sgpr_kernarg_segment_ptr 1
  .amdhsa_system_sgpr_workgroup_id_x 1
.end_amdhsa_kernel
"""
    return hdr + "\n".join(g.L) + ftr

if __name__ == "__main__":
    import argparse
    ap = argparse.ArgumentParser()
    ap.add_argument("-o", default="standalone__sliding_block_cached__sampling.s")
    ap.add_argument("--debug", type=int, default=0)
    ap.add_argument("--la", type=int, default=2)
    ap.add_argument("--cprio", type=int, default=1)
    ap.add_argument("--norot", action="store_true")
    ap.add_argument("--xnt", action="store_true")
    ap.add_argument("--nocodepf", action="store_true")
    ap.add_argument("--kw", default="")
    a = ap.parse_args()
    kw = eval("dict(" + a.kw + ")")
    open(a.o, "w").write(gen(debug=a.debug, LA=a.la, cprio=a.cprio, rot=not a.norot, xnt=a.xnt, codepf=not a.nocodepf, **kw))
```

```python
import struct, math, sys

NAME = "standalone__sliding_block_cached__sampling_kernel"
C_SCALE = math.log2(math.e) / math.sqrt(128.0)
def f2u(x): return struct.unpack("<I", struct.pack("<f", x))[0]
THR = 10.0

QF   = 0x0000000
OF   = 0x0200000
PO   = 0x0400000
ST   = 0x0C00000
FS   = 1152
F1   = 0x2000000
F2   = 0x2200000
F3   = 0x2300000
F4   = 0x2800000
OP   = 0x0E00000
TSB  = 0x1600000
WS_BYTES = 268435456

sXCD, sI, sWAVE, sW4, sROLE = 3, 4, 5, 6, 7
sT0, sT1, sT2, sT3 = 8, 9, 10, 11
sCNT, sLW1K, sG, sKQ = 12, 13, 14, 15
sX, sK, sV, sWQ, sWO, sOUT, sDBG, sWS = 32, 36, 40, 44, 48, 52, 56, 60
sBASE0, sBASE1, sCT, sRT = 64, 65, 66, 67
sHQ, sKV = 68, 69
sN = 70
sPA = 72
sK0 = 74
sGH = 75
sEX = 76
sRET = 78
sPD = 16
sTS = 80
sN0, sOH, sRP = 96, 97, 98
sTHR = 99

vLANE16 = 1
vKA, vVA = 2, 10
aKA, aVA = 2, 6
vT0, vT1 = 14, 15
vKR, vVR, vQ, vO, vS, vP, vNEG, vLS, vONE = 16, 48, 80, 112, 176, 208, 224, 232, 240
vT3, vT4, vT5 = 244, 245, 246
vTM, vT2 = 248, 249
vNON = 250
vA0, vA1, vA2, vA3 = 252, 253, 254, 255

class G:
    psleep = 0
    def __init__(self, debug=False, limit=1 << 21):
        self.L = []; self.debug = debug; self.nlab = 0; self.limit = limit
    def __call__(self, s): self.L.append("  " + s)
    def lab(self, s): self.L.append(s + ":")
    def newlab(self, p="L"):
        self.nlab += 1; return f"{p}_{self.nlab}"
    def ts(self, n, lvl=1):
        if self.debug == 9 and n not in (0, 14): return
        if self.debug == 7:
            if n not in (0, 5, 6, 14) or lvl != 1: return
            if n in (5, 6):
                self("s_memtime s[100:101]")
                self("s_waitcnt lgkmcnt(0)")
                self(f"s_mov_b32 s{sTS + 6 + n}, s100")
        if self.debug == 8 and (n not in (0, 2, 5, 6, 14) or lvl != 1): return
        if self.debug == 8 and n in (0, 2, 14):
            self("s_memtime s[100:101]")
            self("s_waitcnt lgkmcnt(0)")
            self(f"s_mov_b32 s{sTS + {0: 10, 2: 11, 14: 12}[n]}, s100")
        if self.debug >= 2 and lvl == 1 and 7 <= n <= 13: return
        if lvl >= 2 and self.debug != lvl: return
        if self.debug:
            self(f"s_memrealtime s[100:101]")
            self("s_waitcnt lgkmcnt(0)")
            self(f"s_mov_b32 s{sTS+n}, s100")
    def srd(self, d, p, nbytes):
        self(f"s_mov_b32 s{d}, s{p}")
        self(f"s_and_b32 s{d+1}, s{p+1}, 0xffff")
        self(f"s_mov_b32 s{d+2}, {nbytes:#x}")
        self(f"s_mov_b32 s{d+3}, 0x20000")
    def srd_ws(self, off):
        if not off:
            return self.srd(sWS, 30, WS_BYTES)
        self(f"s_add_u32 s{sWS}, s30, {off:#x}")
        self(f"s_addc_u32 s{sWS+1}, s31, 0")
        self(f"s_and_b32 s{sWS+1}, s{sWS+1}, 0xffff")
        self(f"s_mov_b32 s{sWS+2}, {WS_BYTES - off:#x}")
        self(f"s_mov_b32 s{sWS+3}, 0x20000")
    def dma(self, voff, srd, sbase, soff_const, m0base, m0_const, flags=""):
        self(f"s_add_u32 m0, s{m0base}, {m0_const:#x}")
        self(f"s_add_u32 s{sT0}, s{sbase}, {soff_const:#x}")
        self(f"buffer_load_dwordx4 v{voff}, s[{srd}:{srd+3}], s{sT0} offen {flags} lds".replace("  ", " "))
    def spoll4(self, soff):
        l = self.newlab("POLL"); d = self.newlab("POLLD")
        self(f"s_add_u32 s{sPA}, s{sWS}, s{soff}")
        self(f"s_addc_u32 s{sPA+1}, s{sWS+1}, 0")
        self(f"s_mov_b32 s{sCNT}, 0")
        self.lab(l)
        self(f"s_load_dwordx8 s[{sPD}:{sPD+7}], s[{sPA}:{sPA+1}], 0 glc")
        self(f"s_add_u32 s{sCNT}, s{sCNT}, 1")
        self(f"s_cmp_ge_u32 s{sCNT}, {self.limit:#x}")
        self("s_waitcnt lgkmcnt(0)")
        self(f"s_cbranch_scc1 {d}")
        r = l
        if self.psleep: r = self.newlab("POLLS")
        for q in range(4):
            self(f"s_cmp_eq_u64 s[{sPD+2*q}:{sPD+2*q+1}], s[{sN}:{sN+1}]")
            self(f"s_cbranch_scc0 {r}")
        if self.psleep:
            self(f"s_branch {d}")
            self.lab(r)
            self(f"s_sleep {self.psleep}")
            self(f"s_branch {l}")
        self.lab(d)
    def vpoll4(self, soff, flags):
        l = self.newlab("POLL"); d = self.newlab("POLLD")
        self("v_and_b32 v10, 3, v0")
        self("v_lshlrev_b32 v10, 3, v10")
        self(f"s_mov_b32 s{sCNT}, 0")
        self.lab(l)
        self(f"buffer_load_dwordx2 v[12:13], v10, s[{sWS}:{sWS+3}], s{soff} offen {flags}")
        self(f"s_add_u32 s{sCNT}, s{sCNT}, 1")
        self("s_waitcnt vmcnt(0)")
        self(f"v_cmp_ne_u64 vcc, s[{sN}:{sN+1}], v[12:13]")
        self(f"s_cbranch_vccz {d}")
        if self.psleep: self(f"s_sleep {self.psleep}")
        self(f"s_cmp_lt_u32 s{sCNT}, {self.limit:#x}")
        self(f"s_cbranch_scc1 {l}")
        self.lab(d)
    def spoll4x2(self, soff):
        l = self.newlab("POLL"); d = self.newlab("POLLD")
        self(f"s_add_u32 s{sPA}, s{sWS}, s{soff}")
        self(f"s_addc_u32 s{sPA+1}, s{sWS+1}, 0")
        self(f"s_mov_b32 s{sCNT}, 0")
        self.lab(l)
        self(f"s_load_dwordx8 s[16:23], s[{sPA}:{sPA+1}], 0x80 glc")
        self(f"s_add_u32 s{sCNT}, s{sCNT}, 1")
        self(f"s_and_b32 s32, s{sCNT}, 3")
        self(f"s_cmp_lg_u32 s32, 0")
        n = self.newlab("POLLF")
        self(f"s_cbranch_scc1 {n}")
        self("s_waitcnt lgkmcnt(0)")
        self(f"s_load_dwordx8 s[16:23], s[{sPA}:{sPA+1}], 0 glc")
        self.lab(n)
        self(f"s_cmp_ge_u32 s{sCNT}, {self.limit:#x}")
        self("s_waitcnt lgkmcnt(0)")
        self(f"s_cbranch_scc1 {d}")
        for q in range(4):
            self(f"s_cmp_eq_u64 s[{16+2*q}:{17+2*q}], s[{sN}:{sN+1}]")
            self(f"s_cbranch_scc0 {l}")
        self.lab(d)
    def flag2(self, saddr):
        self(f"v_mov_b32 v{vA3}, s{saddr}")
        self(f"s_mov_b64 s[{sEX}:{sEX+1}], exec")
        self("s_mov_b64 exec, 1")
        self(f"buffer_store_dwordx2 v[{vNON}:{vNON+1}], v{vA3}, s[{sWS}:{sWS+3}], 0 offen offset:128")
        self(f"buffer_store_dwordx2 v[{vNON}:{vNON+1}], v{vA3}, s[{sWS}:{sWS+3}], 0 offen sc1")
        self(f"s_mov_b64 exec, s[{sEX}:{sEX+1}]")
    def spollN(self, soff, deltas):
        l = self.newlab("POLL"); d = self.newlab("POLLD")
        regs = [16, 24, 32, 40][:len(deltas)]
        self(f"s_add_u32 s{sPA}, s{sWS}, s{soff}")
        self(f"s_addc_u32 s{sPA+1}, s{sWS+1}, 0")
        self(f"s_mov_b32 s{sCNT}, 0")
        self.lab(l)
        for r, dl in zip(regs, deltas):
            self(f"s_load_dwordx8 s[{r}:{r+7}], s[{sPA}:{sPA+1}], {dl:#x} glc")
        self(f"s_add_u32 s{sCNT}, s{sCNT}, 1")
        self(f"s_cmp_ge_u32 s{sCNT}, {self.limit:#x}")
        self("s_waitcnt lgkmcnt(0)")
        self(f"s_cbranch_scc1 {d}")
        for r in regs:
            for q in range(4):
                self(f"s_cmp_eq_u64 s[{r+2*q}:{r+2*q+1}], s[{sN}:{sN+1}]")
                self(f"s_cbranch_scc0 {l}")
        self.lab(d)
    def flag(self, saddr):
        self(f"v_mov_b32 v{vA3}, s{saddr}")
        self(f"s_mov_b64 s[{sEX}:{sEX+1}], exec")
        self("s_mov_b64 exec, 1")
        self(f"buffer_store_dwordx2 v[{vNON}:{vNON+1}], v{vA3}, s[{sWS}:{sWS+3}], 0 offen sc1")
        self(f"s_mov_b64 exec, s[{sEX}:{sEX+1}]")
    def nonce_issue(self, glc=""):
        self(f"s_load_dwordx2 s[{sN}:{sN+1}], s[28:29], 0{glc}")
    def nonce_finish(self):
        l = self.newlab("NON"); d = self.newlab("NOND")
        self(f"s_mov_b32 s{sCNT}, 0")
        self.lab(l)
        self("s_waitcnt lgkmcnt(0)")
        self(f"s_cmp_lg_u32 s{sN}, 0")
        self(f"s_cbranch_scc1 {d}")
        self(f"s_add_u32 s{sCNT}, s{sCNT}, 1")
        self(f"s_cmp_ge_u32 s{sCNT}, {self.limit:#x}")
        self(f"s_cbranch_scc1 {d}")
        self("s_sleep 8")
        self.nonce_issue(" glc")
        self(f"s_branch {l}")
        self.lab(d)
        self(f"v_mov_b32 v{vNON}, s{sN}")
        self(f"v_mov_b32 v{vNON+1}, s{sN+1}")

def mfma(g, d, a, b, c):
    cs = "0" if c is None else f"v[{c}:{c+15}]"
    g(f"v_mfma_f32_32x32x16_bf16 v[{d}:{d+15}], v[{a}:{a+3}], v[{b}:{b+3}], {cs}")
def mfma16(g, d, a, b, c):
    cs = "0" if c is None else f"v[{c}:{c+3}]"
    g(f"v_mfma_f32_16x16x32_bf16 v[{d}:{d+3}], v[{a}:{a+3}], v[{b}:{b+3}], {cs}")

def att_setup(g):
    g("v_and_b32 v32, 15, v0")
    g("v_lshrrev_b32 v33, 4, v0")
    g("v_xor_b32 v34, v32, v33")
    g("v_lshlrev_b32 v35, 8, v32")
    for s in range(4):
        g(f"v_xor_b32 v36, {4*s}, v34")
        g(f"v_lshl_add_u32 v{aKA+s}, v36, 4, v35")
    g("v_lshrrev_b32 v36, 2, v32")
    g("v_lshl_add_u32 v36, v33, 2, v36")
    g("v_and_b32 v37, 7, v36")
    g("v_lshlrev_b32 v37, 1, v37")
    g("v_bfe_u32 v38, v0, 1, 1")
    g("v_xor_b32 v37, v37, v38")
    g("v_lshlrev_b32 v36, 8, v36")
    g("v_and_b32 v38, 1, v0")
    g("v_lshl_add_u32 v36, v38, 3, v36")
    g("v_add_u32 v36, 16384, v36")
    for dt in range(8):
        g(f"v_xor_b32 v38, {2*dt}, v37")
        g(f"v_lshl_add_u32 v{aVA+dt}, v38, 4, v36")
    for u in range(4): g(f"v_mov_b32 v{vONE+u}, 0x3f803f80")

BIAS = 9.0
vOR = 252
def rowmax(S, hf, dst, tmp):
    b = S + 8*hf
    return [[f"v_max3_f32 v{dst}, v{b}, v{b+1}, v{b+2}", f"v_max3_f32 v{tmp}, v{b+3}, v{b+4}, v{b+5}"],
            [f"v_max3_f32 v{dst}, v{b+6}, v{b+7}, v{dst}", f"v_max_f32 v{dst}, v{dst}, v{tmp}", f"v_mov_b32 v{tmp}, v{dst}"],
            ["s_nop 1", f"v_permlane16_swap_b32 v{dst}, v{tmp}", "s_nop 1", f"v_max_f32 v{dst}, v{dst}, v{tmp}", f"v_mov_b32 v{tmp}, v{dst}"],
            ["s_nop 1", f"v_permlane32_swap_b32 v{dst}, v{tmp}", "s_nop 1", f"v_max_f32 v{dst}, v{dst}, v{tmp}"]]

def att_loop(g, O=None):
    O = {**dict(eslots=(0, 2, 4, 6, 8, 10, 12, 14, 16, 17, 19, 21, 23, 25, 26, 27), m16s=(18, 26), vslots=tuple(range(16)), kslots=(17, 19, 21, 23, 25, 27, 29, 31), cdel=1), **(O or {})}
    NKS = O.get("nks", 4)
    g.stubs = []
    kcur = [0]; vcur = [0]
    def kbase(t):
        slot = (t // 2) % NKS
        want = (slot >> 1) * 65536
        r = []
        if want != kcur[0]:
            r.append(f"s_mov_b32 s{sT0}, {(want - kcur[0]) & 0xffffffff:#x}")
            for x in range(aKA, aKA+4): r.append(f"v_add_u32 v{x}, s{sT0}, v{x}")
            kcur[0] = want
        return (slot & 1) * 32768 + (t & 1) * 8192, r
    def vbase(t):
        slot = (t // 2) % NKS
        want = (slot >> 1) * 65536
        r = []
        if want != vcur[0]:
            r.append(f"s_mov_b32 s{sT1}, {(want - vcur[0]) & 0xffffffff:#x}")
            for x in range(aVA, aVA+8): r.append(f"v_add_u32 v{x}, s{sT1}, v{x}")
            vcur[0] = want
        return (slot & 1) * 32768 + (t & 1) * 8192, r
    def krd(off, n, base=vKR):
        return f"ds_read_b128 v[{base+4*n}:{base+4*n+3}], v{aKA+(n&3)} offset:{off + 4096*(n>>2)}"
    def vrd(off, x):
        dt, jj = x >> 1, x & 1
        b = vVR + 4*dt + 2*jj
        return f"ds_read_b64_tr_b16 v[{b}:{b+1}], v{aVA+dt} offset:{off + 4096*jj}"
    def em(l):
        for x in l: g(x)
    m16 = lambda d, a, b, c: f"v_mfma_f32_16x16x32_bf16 v[{d}:{d+3}], v[{a}:{a+3}], v[{b}:{b+3}], " + ("0" if c is None else f"v[{c}:{c+3}]")
    def smf(S, kb, sl, first):
        n, hf = sl >> 1, sl & 1
        kt, s = n >> 2, n & 3
        if O.get("qkord") == "B":
            kt, hf, s = sl & 1, (sl >> 1) & 1, sl >> 2
            n = 4*kt + s
        d = S + 8*hf + 4*kt
        return m16(d, kb + 4*n, vQ + 16*hf + 4*s, (first(hf) if s == 0 else d))
    def pmf(P, sl, init=False):
        dt, hf = sl >> 1, sl & 1
        d = vO + 32*hf + 4*dt
        return m16(d, vVR + 4*dt, P + 4*hf, None if init else d)
    g.pmf = pmf; g.m16 = m16
    o, _ = kbase(0)
    for n in range(8): g(krd(o, n, vVR))
    o1, _ = kbase(1)
    for n in range(7): g(krd(o1, n))
    g("s_waitcnt vmcnt(0)")
    g.ts(5)
    if g.debug and g.debug not in (7, 9):
        g("s_memtime s[100:101]")
        g("s_waitcnt lgkmcnt(0)")
        g(f"s_mov_b32 s{sTS+15}, s100")
    g(f"s_waitcnt lgkmcnt(7)")
    for sl in range(16):
        g(smf(vS, vVR, sl, lambda hf: None))
        if sl == 0: g(krd(o1, 7))
    g(f"s_mov_b32 s{sT0}, {f2u(BIAS):#x}")
    NT = 16
    tmp = [(vT0, vT1), (vTM, vT2), (vT3, vT4)]
    O0 = O
    for t in range(0, NT):
        O = {**O0, **O0["alt"]} if t in O0.get("alt_t", ()) else O0
        Sc = vS + 16*(t & 1); Sn = vS + 16*((t+1) & 1)
        Pc = vP + 8*(t & 1); Pp = vP + 8*((t-1) & 1)
        doS = t + 1 < NT; doPV = t >= 1; doK = t + 2 < NT
        pre = [[] for _ in range(32)]; M = [[] for _ in range(32)]; D = [[] for _ in range(32)]; V = [[] for _ in range(32)]
        if t == 15:
            vo, bump = vbase(15)
            assert not bump
            pre[0].append("s_waitcnt lgkmcnt(8)")
            pre[8].append("s_waitcnt lgkmcnt(6)")
            for sl in range(16):
                M[sl].append(pmf(Pp, sl))
                if sl & 1: D[sl] += [vrd(vo, sl - 1), vrd(vo, sl)]
            M[2].append(m16(vLS, vONE, Pp, vLS)); M[10].append(m16(vLS+4, vONE, Pp+4, vLS+4))
            if not O.get("tail"):
                pre[16].append("s_waitcnt lgkmcnt(8)"); pre[24].append("s_waitcnt lgkmcnt(0)")
                for sl in range(16): M[16+sl].append(pmf(Pc, sl))
                M[18].append(m16(vLS, vONE, Pc, vLS)); M[26].append(m16(vLS+4, vONE, Pc+4, vLS+4))
        elif doPV:
            vo, bump = vbase(t-1)
            pre[0] += bump
            for x in range(16): D[O["vslots"][x]].append(vrd(vo, x))
            for sl in range(16):
                s2 = sl
                if O.get("pvord") == "B" and t < 14: s2 = 2*(sl & 3) + 8*(sl >> 3) + ((sl >> 2) & 1)
                M[16+sl].append(pmf(Pp, s2, t == 1))
            M[O["m16s"][0]].append(m16(vLS, vONE, Pp, None if t == 1 else vLS))
            M[O["m16s"][1]].append(m16(vLS+4, vONE, Pp+4, None if t == 1 else vLS+4))
            pre[16].append("s_waitcnt lgkmcnt(8)")
            nk = sum(1 for x in O["kslots"] if x < 24)
            pre[24].append(f"s_waitcnt lgkmcnt({nk if doK else 6})")
        if t < 15:
            nv = sum(1 for x in O["vslots"] if x < 8)
            pre[8].append(f"s_waitcnt lgkmcnt({min(6, nv) if doPV else 0})")
        if doS:
            pre[0].append("s_waitcnt lgkmcnt(0)" if O.get("qkord") == "B" else "s_waitcnt lgkmcnt(4)")
            for sl in range(16): M[sl].append(smf(Sn, vKR, sl, (lambda hf: None) if t == 0 else (lambda hf: vNEG + 4*hf)))
        if t % 2 == 0 and t <= 14:
            if t == 14: D[16].append("s_waitcnt lgkmcnt(0)")
            if t >= 2 and g.debug == 2:
                D[16] += ["s_memrealtime s[100:101]", "s_waitcnt lgkmcnt(0)", f"s_mov_b32 s{sTS+6+t//2}, s100"]
            if g.debug == 7 and t in (2, 6, 10, 14):
                k = (t + 2) // 4
                D[16] += ["s_memrealtime s[100:101]", "s_memtime s[98:99]", "s_waitcnt lgkmcnt(0)", f"s_mov_b32 s{sTS+k}, s100", f"s_mov_b32 s{sTS+6+k}, s98"]
            D[16].append("s_barrier")
        if t == 14:
            vo, bump = vbase(14)
            D[16] += bump
            for sl in range(1, 16, 2): D[16+sl] += [vrd(vo, sl - 1), vrd(vo, sl)]
        if doK:
            ko, bump = kbase(t+2)
            D[16] += bump
            for n in range(8): D[O["kslots"][n]].append(krd(ko, n))
        if t == 0:
            r0 = rowmax(vS, 0, vTM, vT2); r1 = rowmax(vS, 1, vT3, vT4)
            V[2] += ["s_nop 3"]
            for k in range(4):
                V[3 + 2*k] += r0[k]; V[4 + 2*k] += r1[k]
            V[11] += [f"v_add_f32 v{vTM}, s{sT0}, v{vTM}", f"v_add_f32 v{vT3}, s{sT0}, v{vT3}"]
            V[12] += [f"v_sub_f32 v{vNEG+u}, 0, v{vTM}" for u in range(4)]
            V[13] += [f"v_sub_f32 v{vNEG+4+u}, 0, v{vT3}" for u in range(4)]
            slots = [14, 14, 15, 15] + [16 + k for k in range(12)]
        elif t == 15:
            slots = [0, 0, 1, 2, 3, 3, 4, 5, 6, 6, 7, 8, 9, 9, 10, 11]
        else:
            slots = list(O["eslots"])
        cdel = O["cdel"]
        for e in range(16):
            T = tmp[(e >> 1) % 3][e & 1]
            if t <= 1:
                V[slots[e]].append(f"v_add_f32 v{Sc+e}, v{Sc+e}, v{vNEG + 4*(e >> 3)}")
            V[slots[e]].append(f"v_exp_f32 v{T}, v{Sc+e}")
        last = 0
        for u in range(8):
            sl = slots[2*u+1] + cdel
            assert u + 3 > 7 or slots[2*u+6] >= sl
            a, b = tmp[u % 3]
            V[sl] = [f"v_cvt_pk_bf16_f32 v{Pc+u}, v{a}, v{b}"] + V[sl]
            if u & 1 and t > 0:
                orr = f"v_or_b32 v{vOR}, v{Pc}, v{Pc+1}" if u == 1 else f"v_or3_b32 v{vOR}, v{Pc+u-1}, v{Pc+u}, v{vOR}"
                V[min(sl + 1, 31)].append(orr)
                last = min(sl + 1, 31)
        endsl = 15 if t == 15 else 31
        if t > 0:
            cs = min(last + 1, endsl)
            V[cs].append(f"v_and_b32 v{vOR}, 0x40004000, v{vOR}")
            V[min(cs + 1, endsl)].append(f"v_cmp_ne_u32 vcc, 0, v{vOR}")
        for sl in range(32):
            em(pre[sl]); em(M[sl]); em(D[sl])
            if not M[sl] and not D[sl] and V[sl]: g("s_nop 0")
            em(V[sl])
            if t > 0 and sl == endsl:
                st = g.newlab("RS"); bk = g.newlab("RB")
                g(f"s_cbranch_vccnz {st}")
                g.lab(bk)
                g.stubs.append((st, bk, t & 1))

def emu16(body):
    import re
    cnt = {}; firsts = {}; nb = []
    for l in body:
        m = re.match(r"\s*v_mfma_f32_32x32x16_bf16 v\[(\d+):\d+\], (v\[\d+:\d+\]), (v\[\d+:\d+\]), (.*)", l)
        if not m:
            nb.append(l); continue
        d = int(m.group(1)); c = m.group(4).strip()
        if c == "0" or int(re.match(r"v\[(\d+)", c).group(1)) != d:
            cnt[d] = 0; firsts[d] = c
        k = cnt.get(d, 0); cnt[d] = k + 1
        for q in (2*(k % 2), 2*(k % 2) + 1):
            cc = f"v[{d+4*q}:{d+4*q+3}]"
            if k < 2 and d in firsts:
                f = firsts[d]
                if f == "0": cc = "0"
                else:
                    cb = int(re.match(r"v\[(\d+)", f).group(1)); cc = f"v[{cb+4*q}:{cb+4*q+3}]"
            nb.append(f"  v_mfma_f32_16x16x32_bf16 v[{d+4*q}:{d+4*q+3}], {m.group(2)}, {m.group(3)}, {cc}")
        if k == 1: firsts.pop(d, None)
    out = []; i = 0
    while i < len(nb):
        if i + 1 < len(nb) and "16x16x32" in nb[i] and "16x16x32" in nb[i+1] and "v[240:243]" not in nb[i] and "v[240:243]" not in nb[i+1]:
            out.append(nb[i]); second = nb[i+1]; i += 2
            rest = []
            while i < len(nb) and not re.search(r"mfma|waitcnt|barrier|:$|branch", nb[i]):
                rest.append(nb[i]); i += 1
            a = re.search(r"\], (v\[\d+:\d+\])", second).group(1)
            lo = int(re.match(r"v\[(\d+)", a).group(1))
            def hits(l):
                m = re.match(r"\s*ds_read\w+ v\[(\d+):", l)
                return m and lo <= int(m.group(1)) <= lo + 3
            free = [l for l in rest if not hits(l)]; late = [l for l in rest if hits(l)]
            h = min((len(rest) + 1) // 2, len(free))
            out += free[:h] + [second] + late + free[h:]
        else:
            out.append(nb[i]); i += 1
    return out

def rare_path(g, O=None):
    for st, bk, par in g.stubs:
        g.lab(st)
        g(f"s_call_b64 s[{sRET}:{sRET+1}], L_RARE{par}")
        g(f"s_branch {bk}")
    for par in range(2):
        g.lab(f"L_RARE{par}")
        Sc = vS + 16*par; Sn = vS + 16*(par ^ 1); Pc = vP + 8*par
        g("s_nop 15")
        for hf in range(2):
            for grp in rowmax(Sc, hf, vTM, vT2):
                for x in grp: g(x)
            g(f"v_add_f32 v{vTM}, {f2u(BIAS):#x}, v{vTM}")
            g(f"v_max_f32 v{vTM}, 0, v{vTM}")
            g(f"v_ceil_f32 v{vTM}, v{vTM}")
            g(f"v_sub_f32 v{vT2}, 0, v{vTM}")
            g(f"v_exp_f32 v{vT2}, v{vT2}")
            for u in range(8): g(f"v_sub_f32 v{Sc+8*hf+u}, v{Sc+8*hf+u}, v{vTM}")
            for u in range(8): g(f"v_sub_f32 v{Sn+8*hf+u}, v{Sn+8*hf+u}, v{vTM}")
            for u in range(4): g(f"v_sub_f32 v{vNEG+4*hf+u}, v{vNEG+4*hf+u}, v{vTM}")
            for u in range(32): g(f"v_mul_f32 v{vO+32*hf+u}, v{vO+32*hf+u}, v{vT2}")
            for u in range(4): g(f"v_mul_f32 v{vLS+4*hf+u}, v{vLS+4*hf+u}, v{vT2}")
        for u in range(8):
            g(f"v_exp_f32 v{vT0}, v{Sc+2*u}")
            g(f"v_exp_f32 v{vT1}, v{Sc+2*u+1}")
            g("s_nop 0")
            g(f"v_cvt_pk_bf16_f32 v{Pc+u}, v{vT0}, v{vT1}")
        g("s_nop 1")
        g(f"s_setpc_b64 s[{sRET}:{sRET+1}]")

DENSE = {'eslots': [1, 3, 5, 7, 11, 11, 12, 13, 16, 17, 19, 21, 22, 24, 25, 26], 'm16s': [16, 31], 'vslots': [0, 0, 2, 2, 4, 4, 6, 6, 8, 9, 10, 10, 12, 12, 13, 14], 'kslots': [17, 18, 20, 22, 27, 28, 29, 30], 'cdel': 1}
MED = {'eslots': [1, 3, 5, 7, 9, 11, 13, 13, 17, 18, 19, 21, 22, 25, 25, 26], 'm16s': [18, 26], 'vslots': [0, 0, 2, 2, 4, 4, 6, 6, 8, 8, 10, 10, 11, 12, 14, 14], 'kslots': [17, 18, 20, 22, 24, 26, 28, 30], 'cdel': 1}
def gen(debug=False, LA=2, cprio=1, rot=True, xnt=False, codepf=True, early={5: 1, 6: 2}, nq1=1, bflag='', pfflag='', kvflag='nt', wqflag='', span=False, emuq=False, nosum=False, psleep=0, emu=False, attO={}, kvflag1='', wsoff=0, ptail=True, pfirst=True, kvmap='rr', polay=0, pretouch=True, NKS=5, vp='sc0 sc1', wf='sc1', rf='sc0 sc1', qf='sc1', ophint=True, f2fast=False, apf=False, f3wave=True, aprio=False, pffront={}, outflag='', pw2=0, pfplan={5: 8}, bplan={7: (0, 1), 8: (2, 3)}):
    g = G(debug=debug)
    g.psleep = psleep
    qslot = lambda k: 1 + k % 4
    g("s_cmp_ge_u32 s2, 256")
    g("s_cbranch_scc1 L_END")
    g("s_load_dwordx16 s[16:31], s[0:1], 0")
    g(f"s_and_b32 s{sXCD}, s2, 7")
    g(f"s_lshr_b32 s{sI}, s2, 3")
    g("v_lshrrev_b32 v1, 6, v0")
    g("v_and_b32 v0, 63, v0")
    g(f"v_readfirstlane_b32 s{sWAVE}, v1")
    g(f"v_lshlrev_b32 v{vLANE16}, 4, v0")
    g(f"s_and_b32 s{sT0}, s{sI}, 7")
    g(f"s_lshl_b32 s{sCT}, s{sXCD}, 3")
    g(f"s_add_u32 s{sCT}, s{sCT}, s{sT0}")
    g(f"s_lshr_b32 s{sRT}, s{sI}, 3")
    g(f"s_lshl_b32 s{sK0}, s{sRT}, 1")
    g(f"s_add_u32 s{sK0}, s{sK0}, s{sT0}")
    if not rot: g(f"s_mov_b32 s{sK0}, 0")
    g(f"s_lshl_b32 s{sG}, s{sXCD}, 2")
    g(f"s_add_u32 s{sG}, s{sG}, s{sRT}")
    g(f"s_and_b32 s{sKQ}, s{sI}, 3")
    g(f"s_bfe_u32 s{sHQ}, s{sI}, 0x10002")
    g(f"s_lshl_b32 s{sGH}, s{sG}, 1")
    g(f"s_add_u32 s{sGH}, s{sGH}, s{sHQ}")
    g(f"s_and_b32 s{sW4}, s{sWAVE}, 3")
    g(f"s_lshr_b32 s{sROLE}, s{sWAVE}, 2")
    g(f"s_lshl_b32 s{sLW1K}, s{sW4}, 10")
    g(f"s_lshr_b32 s{sOH}, s{sXCD}, 1")
    g(f"s_and_b32 s{sN0}, s{sXCD}, 1")
    g(f"s_lshl_b32 s{sN0}, s{sN0}, 3")
    g(f"s_add_u32 s{sN0}, s{sN0}, s{sT0}")
    g(f"s_cmp_eq_u32 s{sROLE}, 0")
    g("s_cbranch_scc1 L_CWAVE")

    vXO, vWQO, vKO, vVO, vWOO = 16, 17, 18, 19, 20
    g("v_lshrrev_b32 v21, 4, v0")
    g(f"s_lshl_b32 s{sT1}, s{sW4}, 2")
    g(f"v_add_u32 v22, s{sT1}, v21")
    g("v_and_b32 v23, 15, v0")
    g("v_xor_b32 v24, v23, v22")
    g("v_lshlrev_b32 v24, 4, v24")
    g(f"v_lshl_add_u32 v{vXO}, v22, 11, v24")
    g("v_lshrrev_b32 v25, 3, v0")
    g("v_and_b32 v26, 7, v0")
    g("v_lshlrev_b32 v27, 1, v25")
    g("v_and_b32 v27, 4, v27")
    g("v_xor_b32 v26, v26, v27")
    g("v_lshlrev_b32 v26, 4, v26")
    g(f"v_lshl_add_u32 v{vWQO}, v25, 13, v26")
    g(f"s_lshl_b32 s{sBASE0}, s{sRT}, 17")
    g(f"s_lshl_b32 s{sBASE1}, s{sCT}, 7")
    g(f"s_lshl_b32 s{sT1}, s{sW4}, 16")
    g(f"s_add_u32 s{sBASE1}, s{sBASE1}, s{sT1}")
    g(f"s_mov_b32 s{sWQ+2}, {1024*4096*2:#x}")
    g(f"s_mov_b32 s{sWQ+3}, 0x20000")
    g(f"s_mov_b32 s{sX+2}, {8*32*1024*2:#x}")
    g(f"s_mov_b32 s{sX+3}, 0x20000")
    g("s_waitcnt lgkmcnt(0)")
    g(f"s_mov_b32 s{sWQ}, s22")
    g(f"s_and_b32 s{sWQ+1}, s23, 0xffff")
    g(f"s_mov_b32 s{sX}, s16")
    g(f"s_and_b32 s{sX+1}, s17, 0xffff")
    Q = []
    def need(*tags):
        last = max(i for i, x in enumerate(Q) if x in tags)
        g(f"s_waitcnt vmcnt({len(Q) - 1 - last})")
    def stage(k):
        slot = qslot(k) * 32768
        g(f"s_add_u32 s{sT1}, s{sK0}, {k}")
        g(f"s_and_b32 s{sT1}, s{sT1}, 7")
        g(f"s_lshl_b32 s{sT2}, s{sT1}, 20")
        g(f"s_add_u32 s{sT2}, s{sT2}, s{sBASE1}")
        g(f"s_lshl_b32 s{sT3}, s{sT1}, 8")
        g(f"s_add_u32 s{sT3}, s{sT3}, s{sBASE0}")
        for m in range(4):
            g.dma(vWQO, sWQ, sT2, 32*m*8192, sLW1K, slot + 16384 + 4096*m, wqflag)
            g.dma(vXO, sX, sT3, m*16*2048, sLW1K, slot + 4096*m, "nt" if xnt else "")
            Q.extend([f"S{k}"] * 2)
    def kvf(s):
        if kvmap == "blk": return kvflag if (s >> 1) & 1 else kvflag1
        if kvmap == "alt": return kvflag if s & 1 else kvflag1
        return kvflag
    def chunk(s):
        if kvmap == "contig":
            g(f"s_lshl_b32 s{sT1}, s{sKQ}, 17")
            g(f"s_add_u32 s{sT1}, s{sT1}, {s*16384}")
        elif kvmap == "rr":
            g(f"s_lshl_b32 s{sT1}, s{sKQ}, 14")
            g(f"s_add_u32 s{sT1}, s{sT1}, {s*65536}")
        elif kvmap in ("rrg", "rrx", "rri"):
            src = {"rrg": sG, "rrx": sXCD, "rri": sRT}[kvmap]
            if kvmap == "rri":
                g(f"s_lshl_b32 s{sT1}, s{src}, 1")
                g(f"s_add_u32 s{sT1}, s{sT1}, {s}")
            else:
                g(f"s_add_u32 s{sT1}, s{src}, {s}")
            g(f"s_and_b32 s{sT1}, s{sT1}, 7")
            g(f"s_lshl_b32 s{sT1}, s{sT1}, 2")
            g(f"s_add_u32 s{sT1}, s{sT1}, s{sKQ}")
            g(f"s_lshl_b32 s{sT1}, s{sT1}, 14")
        elif kvmap in ("blk", "alt"):
            g(f"s_lshl_b32 s{sT1}, s{sHQ}, {17 if kvmap == 'blk' else 16}")
            g(f"s_xor_b32 s{sT1}, s{sT1}, {s*65536}")
            g(f"s_lshl_b32 s{sT2}, s{sKQ}, 14")
            g(f"s_add_u32 s{sT1}, s{sT1}, s{sT2}")
        elif kvmap == "rr2":
            g(f"s_lshl_b32 s{sT1}, s{sKQ}, 15")
            g(f"s_add_u32 s{sT1}, s{sT1}, {(s >> 1)*131072 + (s & 1)*16384}")
        elif kvmap == "rot":
            g(f"s_add_u32 s{sT1}, s{sKQ}, {s >> 1}")
            g(f"s_and_b32 s{sT1}, s{sT1}, 3")
            g(f"s_lshl_b32 s{sT1}, s{sT1}, 2")
            g(f"s_add_u32 s{sT1}, s{sT1}, s{sKQ}")
            g(f"s_lshl_b32 s{sT1}, s{sT1}, 15")
            if s & 1: g(f"s_add_u32 s{sT1}, s{sT1}, 16384")
        elif kvmap == "rot2":
            g(f"s_add_u32 s{sT1}, s{sKQ}, {s & 3}")
            g(f"s_and_b32 s{sT1}, s{sT1}, 3")
            g(f"s_lshl_b32 s{sT1}, s{sT1}, 2")
            g(f"s_add_u32 s{sT1}, s{sT1}, s{sKQ}")
            g(f"s_lshl_b32 s{sT1}, s{sT1}, 15")
            if s >> 2: g(f"s_add_u32 s{sT1}, s{sT1}, 16384")
        g(f"s_add_u32 s{sT1}, s{sT1}, s{sKV}")
    def kpart(s):
        chunk(s)
        for m in range(4):
            g.dma(vKO, sK, sT1, 16*m*256, sLW1K, (s % NKS)*32768 + 4096*m, kvf(s))
            Q.append(f"K{s}")
    def vpart(s):
        chunk(s)
        for m in range(4):
            g.dma(vVO, sV, sT1, 16*m*256, sLW1K, (s % NKS)*32768 + 16384 + 4096*m, kvf(s))
            Q.append(f"V{s}")
    def part(tag):
        (kpart if tag[0] == "K" else vpart)(int(tag[1]))
    for k in range(LA): stage(k)
    g.ts(0)
    g.srd(sK, 18, 8*4*8192*128*2)
    g.srd(sV, 20, 8*4*8192*128*2)
    g.srd(sWO, 24, 4096*1024*2)
    g.srd(sOUT, 26, 8*32*1024*2)
    g.srd_ws(wsoff)
    g(f"v_lshl_add_u32 v{vKO}, v22, 8, v24")
    g("v_and_b32 v28, 7, v22")
    g("v_lshlrev_b32 v28, 1, v28")
    g("v_xor_b32 v28, v23, v28")
    g("v_lshlrev_b32 v28, 4, v28")
    g(f"v_lshl_add_u32 v{vVO}, v22, 8, v28")
    g(f"v_lshl_add_u32 v{vWOO}, v25, 11, v26")
    g(f"s_lshl_b32 s{sKV}, s{sG}, 21")
    g(f"s_add_u32 s{sKV}, s{sKV}, {6144*256:#x}")
    sPF = sCT
    g(f"s_lshl_b32 s{sPF}, s{sOH}, 21")
    g(f"s_lshl_b32 s{sT1}, s{sW4}, 14")
    g(f"s_add_u32 s{sPF}, s{sPF}, s{sT1}")
    g(f"s_lshl_b32 s{sT1}, s{sI}, 16")
    g(f"s_add_u32 s{sPF}, s{sPF}, s{sT1}")
    g(f"s_and_b32 s{sT1}, s{sXCD}, 1")
    g(f"s_lshl_b32 s{sT1}, s{sT1}, 10")
    g(f"s_add_u32 s{sPF}, s{sPF}, s{sT1}")
    npf = [0]
    def wopf(n):
        for _ in range(n):
            g(f"s_add_u32 s{sT0}, s{sPF}, {npf[0]*2048:#x}")
            g(f"buffer_load_dwordx4 v[32:35], v{vLANE16}, s[{sWO}:{sWO+3}], s{sT0} offen {pfflag}")
            Q.append("PF"); npf[0] += 1
    if pretouch:
        def touch(expr_lines, base):
            for l in expr_lines: g(l)
            g(f"s_mul_i32 s{sT1}, s{sT1}, {FS}")
            g(f"s_add_u32 s{sT1}, s{sT1}, {base:#x}")
            g(f"s_add_u32 s{sPA}, s{sWS}, s{sT1}")
            g(f"s_addc_u32 s{sPA+1}, s{sWS+1}, 0")
            g(f"s_load_dword s{sRET}, s[{sPA}:{sPA+1}], 0 glc")
        touch([f"s_lshl_b32 s{sT1}, s{sGH}, 2", f"s_add_u32 s{sT1}, s{sT1}, s{sW4}"], F1)
        touch([f"s_mov_b32 s{sT1}, s{sGH}"], F2)
        touch([f"s_lshl_b32 s{sT1}, s{sRT}, 3", f"s_add_u32 s{sT1}, s{sT1}, s{sOH}", f"s_lshl_b32 s{sT1}, s{sT1}, 5", f"s_add_u32 s{sT1}, s{sT1}, s{sN0}",
               f"s_and_b32 s{sT2}, s{sW4}, 1", f"s_lshl_b32 s{sT2}, s{sT2}, 7", f"s_add_u32 s{sT1}, s{sT1}, s{sT2}",
               f"s_lshr_b32 s{sT2}, s{sW4}, 1", f"s_lshl_b32 s{sT2}, s{sT2}, 4", f"s_add_u32 s{sT1}, s{sT1}, s{sT2}"], F3)
        touch([f"s_lshl_b32 s{sT1}, s{sRT}, 4", f"s_add_u32 s{sT1}, s{sT1}, s{sN0}", f"s_lshl_b32 s{sT1}, s{sT1}, 2", f"s_add_u32 s{sT1}, s{sT1}, s{sOH}",
               f"s_lshl_b32 s{sT1}, s{sT1}, 1", f"s_and_b32 s{sT2}, s{sW4}, 1", f"s_add_u32 s{sT1}, s{sT1}, s{sT2}"], F4)
    order = ["K0", "K1", "V0"] + [x for s_ in range(1, 8) for x in ([f"K{s_+1}"] if s_ < 7 else []) + [f"V{s_}"]]
    todo = list(order)
    def issue(n):
        for _ in range(n):
            if todo: part(todo.pop(0))
    for k in range(8):
        need(f"S{k}")
        if k >= 1: g.ts(6 + k, 5)
        g("s_barrier")
        if k == 0: g.ts(1)
        if k + LA < 8: stage(k + LA)
        wopf(pffront.get(k, 0))
        issue(early.get(k, 0))
    g.ts(2)
    g.nonce_issue()
    g(f"s_lshl_b32 s{sBASE0}, s{sOH}, 21")
    g(f"s_lshl_b32 s{sT1}, s{sW4}, 14")
    g(f"s_add_u32 s{sBASE0}, s{sBASE0}, s{sT1}")
    g(f"s_lshl_b32 s{sT1}, s{sN0}, 7")
    g(f"s_add_u32 s{sBASE0}, s{sBASE0}, s{sT1}")
    def bpart(pos):
        slot = ([4, 0, 1, 2] if NKS == 4 else [3, 4, 0, 1])[pos]
        g(f"s_add_u32 s{sT1}, s{sRT}, {pos}")
        g(f"s_and_b32 s{sT1}, s{sT1}, 3")
        g(f"s_lshl_b32 s{sT1}, s{sT1}, 19")
        g(f"s_add_u32 s{sT1}, s{sT1}, s{sBASE0}")
        for m in range(8):
            g.dma(vWOO, sWO, sT1, 32*m*2048, sLW1K, slot*32768 + 4096*m, bflag)
            Q.append(f"B{pos}")
    g.nonce_finish()
    g("s_barrier")
    g.ts(3)
    issue(nq1)
    g("s_barrier")
    g.ts(4)
    while len(order) - len(todo) < 3: issue(1)
    need("K0")
    g("s_barrier")
    g.ts(5)
    for s in range(0, 8):
        la = s + 1 + (NKS - 4)
        lim = order.index(f"V{la}") + 1 if la <= 7 else len(order)
        while len(order) - len(todo) < lim: issue(1)
        wopf(pfplan.get(s, 0))
        for pos in bplan.get(s, ()): bpart(pos)
        if s < 7: need(f"K{s+1}", f"V{s}")
        else: need("V7")
        if s >= 1: g.ts(6 + s, 2)
        g("s_barrier")
    g.ts(11, 3)
    for pos in bplan.get(8, ()): bpart(pos)
    if 9 in bplan:
        g("s_barrier")
        wopf(pfplan.get(9, 0))
        for pos in bplan[9]: bpart(pos)
    g.ts(6)
    if g.debug == 3:
        g("s_waitcnt vmcnt(16)"); g.ts(12, 3)
        g("s_waitcnt vmcnt(0)"); g.ts(13, 3)
    g("s_branch L_BACK")

    g.lab("L_CWAVE")
    g("s_waitcnt lgkmcnt(0)")
    g.srd_ws(wsoff)
    g.srd(sDBG, 28, 256)
    g(f"s_or_b32 s{sT0}, s2, s{sWAVE}")
    g(f"s_cmp_lg_u32 s{sT0}, 0")
    g("s_cbranch_scc1 L_NOPUB")
    g(f"s_memrealtime s[{sN}:{sN+1}]")
    g("s_waitcnt lgkmcnt(0)")
    g(f"s_or_b32 s{sN}, s{sN}, 1")
    g(f"s_xor_b32 s{sN+1}, s{sN+1}, 0x5bd1e995")
    g(f"v_mov_b32 v{vNON}, s{sN}")
    g(f"v_mov_b32 v{vNON+1}, s{sN+1}")
    g(f"v_mov_b32 v{vA3}, 0")
    g(f"buffer_store_dwordx2 v[{vNON}:{vNON+1}], v{vA3}, s[{sDBG}:{sDBG+3}], 0 offen sc1")
    g.lab("L_NOPUB")
    if codepf:
        g(f"s_cmp_lg_u32 s{sWAVE}, 1")
        g("s_cbranch_scc1 L_NOPF")
        g(f"s_getpc_b64 s[{sPA}:{sPA+1}]")
        g.lab("L_PC")
        g(f"s_lshl_b32 s{sT0}, s{sI}, 10")
        g(f"s_min_u32 s{sT0}, s{sT0}, L_CODE_END-L_PC-1024")
        g(f"v_add_u32 v{vA0}, s{sT0}, v{vLANE16}")
        g(f"global_load_dwordx4 v[{vS}:{vS+3}], v{vA0}, s[{sPA}:{sPA+1}]")
        g.lab("L_NOPF")
    g.ts(0)
    g.srd(sOUT, 26, 8*32*1024*2)
    g(f"s_and_b32 s{sT0}, s{sW4}, 1")
    g(f"s_lshl_b32 s{sT0}, s{sT0}, 13")
    g("v_and_b32 v20, 31, v0")
    g("v_lshrrev_b32 v21, 5, v0")
    g("v_and_b32 v22, 15, v0")
    g("v_xor_b32 v22, v22, v21")
    g(f"v_lshlrev_b32 v23, 8, v20")
    g(f"v_add_u32 v23, s{sT0}, v23")
    for s in range(8):
        g(f"v_xor_b32 v24, {2*s}, v22")
        g(f"v_lshl_add_u32 v{vKA+s}, v24, 4, v23")
    g("v_and_b32 v20, 15, v0")
    g("v_lshrrev_b32 v22, 2, v20")
    g("v_lshl_add_u32 v23, v21, 3, v22")
    g("v_lshlrev_b32 v23, 7, v23")
    g("v_and_b32 v24, 1, v0")
    g("v_bfe_u32 v25, v0, 4, 1")
    g("v_lshl_add_u32 v24, v25, 1, v24")
    g(f"s_lshr_b32 s{sT0}, s{sW4}, 1")
    g(f"s_lshl_b32 s{sT0}, s{sT0}, 2")
    g(f"v_add_u32 v24, s{sT0}, v24")
    g("v_lshlrev_b32 v26, 1, v22")
    g("v_and_b32 v26, 4, v26")
    g("v_xor_b32 v24, v24, v26")
    g("v_lshl_add_u32 v23, v24, 4, v23")
    g("v_bfe_u32 v25, v0, 1, 1")
    g(f"v_lshl_add_u32 v{vVA}, v25, 3, v23")
    g(f"v_add_u32 v{vVA}, 16384, v{vVA}")
    nq0 = len(g.L)
    acc = vO
    fr = 16
    cur = [0]
    def setbase(regs, want):
        if want != cur[0]:
            g(f"s_mov_b32 s{sT0}, {(want - cur[0]) & 0xffffffff:#x}")
            for r in regs: g(f"v_add_u32 v{r}, s{sT0}, v{r}")
            cur[0] = want
    for k in range(8):
        slot = qslot(k)
        setbase(list(range(vKA, vKA+8)) + [vVA], (slot >> 1) * 65536)
        io = (slot & 1) * 32768
        if k >= 1: g.ts(6 + k, 5)
        g("s_barrier")
        if k == 0: g.ts(1)
        def rd(s):
            b = fr + 8*s
            g(f"ds_read_b64_tr_b16 v[{b}:{b+1}], v{vVA} offset:{io + 2048*s}")
            g(f"ds_read_b64_tr_b16 v[{b+2}:{b+3}], v{vVA} offset:{io + 2048*s + 512}")
            g(f"ds_read_b128 v[{b+4}:{b+7}], v{vKA+s} offset:{io}")
        for s in range(5): rd(s)
        for s in range(8):
            g(f"s_waitcnt lgkmcnt({min(4, 7 - s) * 3})")
            mfma(g, acc, fr + 8*s, fr + 8*s + 4, None if (k == 0 and s == 0) else acc)
            if s + 5 < 8: rd(s + 5)
    if emuq: g.L = g.L[:nq0] + emu16(g.L[nq0:])
    g.ts(2)
    g.nonce_issue()
    g(f"s_and_b32 s{sT0}, s{sW4}, 1")
    g(f"s_lshl_b32 s{sT1}, s{sRT}, 1")
    g(f"s_add_u32 s{sT1}, s{sT1}, s{sT0}")
    g(f"s_lshl_b32 s{sT1}, s{sT1}, 5")
    g(f"s_lshr_b32 s{sT2}, s{sCT}, 1")
    g(f"s_add_u32 s{sT1}, s{sT1}, s{sT2}")
    g(f"s_and_b32 s{sT2}, s{sCT}, 1")
    g(f"s_lshl_b32 s{sT2}, s{sT2}, 1")
    g(f"s_lshr_b32 s{sT3}, s{sW4}, 1")
    g(f"s_add_u32 s{sT2}, s{sT2}, s{sT3}")
    g(f"s_lshl_b32 s{sBASE0}, s{sT1}, 13")
    g(f"s_lshl_b32 s{sT3}, s{sT2}, 10")
    g(f"s_add_u32 s{sBASE0}, s{sBASE0}, s{sT3}")
    g("v_and_b32 v24, 15, v0")
    g("v_lshlrev_b32 v24, 4, v24")
    g("v_lshrrev_b32 v25, 5, v0")
    g("v_lshl_add_u32 v24, v25, 8, v24")
    g("v_bfe_u32 v25, v0, 4, 1")
    g("v_lshl_add_u32 v24, v25, 12, v24")
    g(f"s_mul_i32 s{sBASE1}, s{sT1}, {FS}")
    g(f"s_lshl_b32 s{sT3}, s{sT2}, 3")
    g(f"s_add_u32 s{sBASE1}, s{sBASE1}, s{sT3}")
    g(f"s_add_u32 s{sBASE1}, s{sBASE1}, {F1:#x}")
    g(f"s_mov_b32 s{sT0}, {f2u(C_SCALE):#x}")
    for u in range(16):
        g(f"v_mul_f32 v{acc+u}, s{sT0}, v{acc+u}")
    for u in range(8):
        g(f"v_cvt_pk_bf16_f32 v{16+u}, v{acc+2*u}, v{acc+2*u+1}")
    g(f"buffer_store_dwordx4 v[16:19], v24, s[{sWS}:{sWS+3}], s{sBASE0} offen sc1")
    g(f"buffer_store_dwordx4 v[20:23], v24, s[{sWS}:{sWS+3}], s{sBASE0} offen offset:512 sc1")
    att_setup(g)
    g(f"s_lshl_b32 s{sT2}, s{sGH}, 2")
    g(f"s_add_u32 s{sT2}, s{sT2}, s{sW4}")
    g(f"s_lshl_b32 s{sBASE0}, s{sT2}, 13")
    g(f"s_mul_i32 s{sT2}, s{sT2}, {FS}")
    g(f"s_add_u32 s{sT2}, s{sT2}, {F1:#x}")
    g.nonce_finish()
    g("s_waitcnt vmcnt(0)")
    g.flag(sBASE1)
    g("s_barrier")
    g.ts(3)
    g.spoll4(sT2)
    g.ts(4)
    for s in range(8):
        if s == 4: g(f"s_add_u32 s{sBASE0}, s{sBASE0}, 4096")
        g(f"buffer_load_dwordx4 v[{vQ+4*s}:{vQ+4*s+3}], v{vLANE16}, s[{sWS}:{sWS+3}], s{sBASE0} offen offset:{1024*(s&3)} {qf}")
    g("s_barrier")
    if cprio: g(f"s_setprio {cprio}")
    g("s_barrier")
    n0 = len(g.L)
    att_loop(g, dict(nks=NKS, tail=ptail, **attO))
    if nosum: g.L = g.L[:n0] + [l for l in g.L[n0:] if f'v[{vONE}:{vONE+3}]' not in l or 'v[219' in l]
    def stamp6():
        g.ts(6)
        if g.debug and g.debug not in (7, 9):
            g("s_memtime s[100:101]")
            g("s_waitcnt lgkmcnt(0)")
            g(f"s_sub_u32 s{sTS+15}, s100, s{sTS+15}")
        if cprio: g("s_setprio 0")
    if not ptail: stamp6()
    Pl = vP + 8
    def pv(p):
        if p == 0: g("s_waitcnt lgkmcnt(8)")
        if p == 2: g("s_waitcnt lgkmcnt(0)")
        for sl in range(4*p, 4*p + 4): g(g.pmf(Pl, sl))
    if ptail:
        pv(0); g(g.m16(vLS, vONE, Pl, vLS)); g(g.m16(vLS+4, vONE, Pl+4, vLS+4)); pv(1)
    LSC = 98304 if NKS == 4 else 65536
    sh_own, sh_w4, sh_fi, sh_sp = ((15, 13, 12, 10), (13, 11, 10, 15), (15, 11, 10, 13))[polay]
    vEG, vEL = 246, 247
    g(f"s_lshl_b32 s{sBASE0}, s{sGH}, 17")
    g(f"s_lshl_b32 s{sT0}, s{sW4}, {sh_w4}")
    g(f"s_add_u32 s{sBASE0}, s{sBASE0}, s{sT0}")
    g(f"s_lshl_b32 s{sT0}, s{sKQ}, {sh_sp}")
    g(f"s_add_u32 s{sBASE0}, s{sBASE0}, s{sT0}")
    g(f"s_add_u32 s{sBASE0}, s{sBASE0}, {PO:#x}")
    g(f"v_and_b32 v{vT3}, 15, v0")
    g(f"v_bfe_u32 v{vT4}, v0, 4, 1")
    g(f"v_lshl_add_u32 v{vT3}, v{vT4}, 5, v{vT3}")
    g(f"v_lshlrev_b32 v{vT3}, 4, v{vT3}")
    g(f"v_lshrrev_b32 v{vEL}, 5, v0")
    g(f"v_lshl_add_u32 v{vEG}, v{vEL}, {sh_fi}, v{vT3}")
    g(f"v_lshl_add_u32 v{vEL}, v{vEL}, 10, v{vT3}")
    g(f"s_lshl_b32 s{sT3}, s{sW4}, 11")
    g(f"s_add_u32 s{sT3}, s{sT3}, {LSC}")
    g(f"v_add_u32 v{vEL}, s{sT3}, v{vEL}")
    if ptail: pv(2)
    for o in range(4):
        if ptail and o == 2: stamp6()
        for hf in range(2):
            src = vO + 32*hf + 8*o; dst = vKR + 8*o + 4*hf
            for u in range(4):
                g(f"v_cvt_pk_bf16_f32 v{dst+u}, v{src+2*u}, v{src+2*u+1}")
        if ptail and o == 0: pv(3)
        lo = g.newlab("LOC"); nx = g.newlab("NXT")
        dst = vKR + 8*o
        g(f"s_cmp_eq_u32 s{sKQ}, {o}")
        g(f"s_cbranch_scc1 {lo}")
        g(f"s_add_u32 s{sT0}, s{sBASE0}, {o << sh_own:#x}")
        g(f"buffer_store_dwordx4 v[{dst}:{dst+3}], v{vEG}, s[{sWS}:{sWS+3}], s{sT0} offen {wf}")
        g(f"buffer_store_dwordx4 v[{dst+4}:{dst+7}], v{vEG}, s[{sWS}:{sWS+3}], s{sT0} offen offset:256 {wf}")
        g(f"s_branch {nx}")
        g.lab(lo)
        g(f"ds_write_b128 v{vEL}, v[{dst}:{dst+3}]")
        g(f"ds_write_b128 v{vEL}, v[{dst+4}:{dst+7}] offset:256")
        g.lab(nx)
        if o == 1:
            g(f"s_lshl_b32 s{sT1}, s{sGH}, 2")
            g(f"s_add_u32 s{sT1}, s{sT1}, s{sW4}")
            g(f"s_lshl_b32 s{sT2}, s{sT1}, 10")
            g(f"s_lshl_b32 s{sT3}, s{sKQ}, 8")
            g(f"s_add_u32 s{sT2}, s{sT2}, s{sT3}")
            g(f"s_add_u32 s{sT2}, s{sT2}, {ST:#x}")
            g(f"v_cmp_ne_u32 vcc, 0, v{vT4}")
            g(f"v_and_b32 v{vA0}, 31, v0")
            g(f"v_lshlrev_b32 v{vA0}, 3, v{vA0}")
            g(f"v_cndmask_b32 v{vT0}, v{vNEG}, v{vNEG+4}, vcc")
            g(f"v_cndmask_b32 v{vT1}, v{vLS}, v{vLS+4}, vcc")
            g(f"v_sub_f32 v{vT0}, 0, v{vT0}")
            g(f"s_lshl_b32 s{sT3}, s{sW4}, 8")
            g(f"s_add_u32 s{sT3}, s{sT3}, {LSC + 8192}")
            g(f"v_add_u32 v{vA2}, s{sT3}, v{vA0}")
            g(f"buffer_store_dwordx2 v[{vT0}:{vT1}], v{vA0}, s[{sWS}:{sWS+3}], s{sT2} offen {wf}")
            g(f"ds_write_b64 v{vA2}, v[{vT0}:{vT1}]")
    if 9 in bplan: g("s_barrier")

    g.lab("L_BACK")
    sBB, sHP = sCT, sK0
    g(f"s_and_b32 s{sBB}, s{sWAVE}, 1")
    g(f"s_lshr_b32 s{sHP}, s{sWAVE}, 1")
    g(f"s_sub_u32 s{sT0}, s{sHP}, s{sRT}")
    g(f"s_and_b32 s{sT0}, s{sT0}, 3")
    if NKS == 4:
        g(f"s_sub_u32 s{sT2}, s{sT0}, 1")
        g(f"s_cmp_eq_u32 s{sT0}, 0")
        g(f"s_cselect_b32 s{sT2}, 4, s{sT2}")
    else:
        g(f"s_sub_u32 s{sT2}, s{sT0}, 2")
        g(f"s_add_u32 s{sT3}, s{sT0}, 3")
        g(f"s_cmp_lt_u32 s{sT0}, 2")
        g(f"s_cselect_b32 s{sT2}, s{sT3}, s{sT2}")
    g(f"s_lshl_b32 s{sT2}, s{sT2}, 15")
    g("v_lshrrev_b32 v4, 5, v0")
    g("v_bfe_u32 v5, v0, 2, 2")
    g("v_lshl_add_u32 v6, v4, 2, v5")
    g("v_lshlrev_b32 v6, 7, v6")
    g("v_and_b32 v7, 1, v0")
    g("v_lshl_add_u32 v6, v7, 3, v6")
    g(f"v_add_u32 v6, s{sT2}, v6")
    g("v_bfe_u32 v7, v0, 1, 1")
    g("v_bfe_u32 v8, v0, 4, 1")
    g("v_lshl_add_u32 v7, v8, 1, v7")
    g("v_lshlrev_b32 v5, 1, v5")
    g("v_and_b32 v5, 4, v5")
    g("v_xor_b32 v7, v7, v5")
    g(f"v_lshl_add_u32 v{vKA}, v7, 4, v6")
    g("v_xor_b32 v7, 4, v7")
    g(f"v_lshl_add_u32 v{vKA+1}, v7, 4, v6")
    g(f"s_lshl_b32 s{sT1}, s{sGH}, 2")
    g(f"s_add_u32 s{sT1}, s{sT1}, s{sW4}")
    g(f"s_lshl_b32 s{sBASE1}, s{sT1}, 10")
    g(f"s_add_u32 s{sBASE1}, s{sBASE1}, {ST:#x}")
    g(f"s_lshl_b32 s{sBASE0}, s{sGH}, 17")
    g(f"s_lshl_b32 s{sT0}, s{sKQ}, {sh_own}")
    g(f"s_add_u32 s{sBASE0}, s{sBASE0}, s{sT0}")
    g(f"s_lshl_b32 s{sT0}, s{sW4}, {sh_w4}")
    g(f"s_add_u32 s{sBASE0}, s{sBASE0}, s{sT0}")
    g(f"s_lshl_b32 s{sT0}, s{sROLE}, {sh_fi}")
    g(f"s_add_u32 s{sBASE0}, s{sBASE0}, s{sT0}")
    g(f"s_add_u32 s{sBASE0}, s{sBASE0}, {PO:#x}")
    g(f"v_and_b32 v{vA0}, 31, v0")
    g(f"v_lshlrev_b32 v{vA0}, 3, v{vA0}")
    g(f"s_lshl_b32 s{sT0}, s{sW4}, 11")
    g(f"s_lshl_b32 s{sT2}, s{sROLE}, 10")
    g(f"s_add_u32 s{sT0}, s{sT0}, s{sT2}")
    g(f"s_add_u32 s{sT0}, s{sT0}, {LSC}")
    g(f"v_add_u32 v{vA1}, s{sT0}, v{vLANE16}")
    g(f"s_lshl_b32 s{sT0}, s{sW4}, 8")
    g(f"s_add_u32 s{sT0}, s{sT0}, {LSC + 8192}")
    g(f"v_add_u32 v{vA2}, s{sT0}, v{vA0}")
    g(f"s_mul_i32 s{sT2}, s{sGH}, {FS}")
    g(f"s_add_u32 s{sT2}, s{sT2}, {F2:#x}")
    g(f"s_lshl_b32 s{sT3}, s{sKQ}, 3")
    g(f"s_add_u32 s{sT3}, s{sT3}, s{sT2}")
    g("s_waitcnt vmcnt(0) lgkmcnt(0)")
    g.ts(7)
    g("s_barrier")
    g.ts(7, 4)
    vB = 112
    def bread():
        cnt = 0
        for n in range(16):
            for nt in range(2):
                b = vB + (n*2+nt)*4
                row = 32*(n >> 1) + 8*(n & 1)
                g(f"ds_read_b64_tr_b16 v[{b}:{b+1}], v{vKA+nt} offset:{128*row}")
                g(f"ds_read_b64_tr_b16 v[{b+2}:{b+3}], v{vKA+nt} offset:{128*(row+16)}")
                cnt += 2
                if cnt % 8 == 0: g("s_waitcnt lgkmcnt(5)")
        g("s_waitcnt lgkmcnt(0)")
    g(f"ds_read_b64 v[16:17], v{vA2}")
    g(f"ds_read_b128 v[48:51], v{vA1}")
    g(f"s_cmp_lg_u32 s{sWAVE}, {pw2}")
    g("s_cbranch_scc1 L_NOF2")
    g.flag(sT3)
    if pfirst:
        g.vpoll4(sT2, vp) if vp else g.spoll4(sT2)
        g("s_branch L_NOP2")
    g.lab("L_NOF2")
    bread()
    if not pfirst:
        g(f"s_cmp_lg_u32 s{sWAVE}, {pw2}")
        g("s_cbranch_scc1 L_NOP2")
        g.vpoll4(sT2, vp) if vp else g.spoll4(sT2)
    g.lab("L_NOP2")
    g("s_barrier")
    g.ts(8); g.ts(8, 4)
    for e in range(1, 4):
        g(f"s_add_u32 s{sT0}, s{sKQ}, {e}")
        g(f"s_and_b32 s{sT0}, s{sT0}, 3")
        g(f"s_lshl_b32 s{sT2}, s{sT0}, 8")
        g(f"s_add_u32 s{sT2}, s{sT2}, s{sBASE1}")
        g(f"buffer_load_dwordx2 v[{16+2*e}:{17+2*e}], v{vA0}, s[{sWS}:{sWS+3}], s{sT2} offen {rf}")
    for e in range(1, 4):
        g(f"s_add_u32 s{sT0}, s{sKQ}, {e}")
        g(f"s_and_b32 s{sT0}, s{sT0}, 3")
        g(f"s_lshl_b32 s{sT2}, s{sT0}, {sh_sp}")
        g(f"s_add_u32 s{sT2}, s{sT2}, s{sBASE0}")
        g(f"buffer_load_dwordx4 v[{48+4*e}:{51+4*e}], v{vLANE16}, s[{sWS}:{sWS+3}], s{sT2} offen {rf}")
    g(f"s_lshl_b32 s{sT0}, s{sT1}, 13")
    g(f"s_lshl_b32 s{sT2}, s{sKQ}, 11")
    g(f"s_add_u32 s{sT0}, s{sT0}, s{sT2}")
    g(f"s_lshl_b32 s{sT2}, s{sROLE}, 10")
    g(f"s_add_u32 s{sT0}, s{sT0}, s{sT2}")
    g(f"s_add_u32 s{sT1}, s{sT0}, {OF:#x}")
    g(f"s_lshl_b32 s{sT0}, s{sRT}, 1")
    g(f"s_add_u32 s{sT0}, s{sT0}, s{sBB}")
    g(f"s_lshl_b32 s{sT0}, s{sT0}, 2")
    g(f"s_add_u32 s{sT0}, s{sT0}, s{sOH}")
    g(f"s_lshl_b32 s{sBASE0}, s{sT0}, 16")
    g(f"s_lshl_b32 s{sT2}, s{sHP}, 14")
    g(f"s_add_u32 s{sBASE0}, s{sBASE0}, s{sT2}")
    g(f"s_add_u32 s{sBASE0}, s{sBASE0}, {OF:#x}")
    g(f"s_mul_i32 s{sT2}, s{sGH}, {16*FS}")
    g(f"s_lshl_b32 s{sT3}, s{sKQ}, 3")
    g(f"s_add_u32 s{sT2}, s{sT2}, s{sT3}")
    g(f"s_add_u32 s{sT2}, s{sT2}, {F3:#x}")
    g(f"v_mul_u32_u24 v{vA3}, {FS}, v0")
    g(f"v_add_u32 v{vA3}, s{sT2}, v{vA3}")
    g(f"s_lshl_b32 s{sT0}, s{sRT}, 3")
    g(f"s_add_u32 s{sT0}, s{sT0}, s{sOH}")
    g(f"s_lshl_b32 s{sT0}, s{sT0}, 5")
    g(f"s_add_u32 s{sT0}, s{sT0}, s{sN0}")
    g(f"s_mul_i32 s{sBASE1}, s{sT0}, {FS}")
    g(f"s_add_u32 s{sBASE1}, s{sBASE1}, {F3:#x}")
    if pfirst:
        g(f"s_cmp_lg_u32 s{sWAVE}, {pw2}")
        g("s_cbranch_scc1 L_NOB")
        bread()
        g.lab("L_NOB")
    for u in range(4):
        g(f"v_lshlrev_b32 v{32+2*u}, 16, v{48+u}")
        g(f"v_and_b32 v{33+2*u}, 0xffff0000, v{48+u}")
    g("s_waitcnt vmcnt(3)")
    g.ts(9, 4)
    g("v_max3_f32 v24, v16, v18, v20")
    g("v_max_f32 v24, v22, v24")
    for s in range(4): g(f"v_sub_f32 v{16+2*s}, v{16+2*s}, v24")
    for s in range(4): g(f"v_exp_f32 v{16+2*s}, v{16+2*s}")
    g("s_nop 0")
    g("v_mul_f32 v24, v16, v17")
    g("v_fmac_f32 v24, v18, v19")
    g("v_fmac_f32 v24, v20, v21")
    g("v_fmac_f32 v24, v22, v23")
    g("v_rcp_f32 v24, v24")
    g("s_nop 0")
    for s in range(4): g(f"v_mul_f32 v{16+2*s}, v{16+2*s}, v24")
    for c in range(8): g(f"v_mul_f32 v{32+c}, v{32+c}, v16")
    if debug == 4:
        g("s_waitcnt vmcnt(0)"); g.ts(10, 4)
    for s in range(1, 4):
        g(f"s_waitcnt vmcnt({3 - s})")
        for u in range(4):
            src = 48 + 4*s + u
            g(f"v_lshlrev_b32 v28, 16, v{src}")
            g(f"v_and_b32 v29, 0xffff0000, v{src}")
            g(f"v_fmac_f32 v{32+2*u}, v28, v{16+2*s}")
            g(f"v_fmac_f32 v{33+2*u}, v29, v{16+2*s}")
    for u in range(4):
        g(f"v_cvt_pk_bf16_f32 v{40+u}, v{32+2*u}, v{33+2*u}")
    g.ts(11, 4)
    g(f"buffer_store_dwordx4 v[40:43], v{vLANE16}, s[{sWS}:{sWS+3}], s{sT1} offen {wf}")
    g("s_waitcnt vmcnt(0)")
    g.ts(12, 4)
    g("s_barrier")
    g.ts(13, 4)
    g.ts(9)
    g(f"s_cmp_lg_u32 s{sWAVE}, 4")
    g("s_cbranch_scc1 L_NOP3")
    g("s_mov_b64 exec, 0xffff")
    g(f"buffer_store_dwordx2 v[{vNON}:{vNON+1}], v{vA3}, s[{sWS}:{sWS+3}], 0 offen sc1")
    g("s_mov_b64 exec, -1")
    if not f3wave: g.spollN(sBASE1, (0, 16*FS, 128*FS, 144*FS))
    g.lab("L_NOP3")
    g(f"s_lshl_b32 s{sT0}, s{sWAVE}, 13")
    g(f"v_add_u32 v{vA0}, s{sT0}, v{vLANE16}")
    g(f"s_lshl_b32 s{sT0}, s{sBB}, 13")
    g(f"s_lshl_b32 s{sT1}, s{sHP}, 11")
    g(f"s_add_u32 s{sT0}, s{sT0}, s{sT1}")
    g(f"v_add_u32 v{vA1}, s{sT0}, v{vLANE16}")
    if aprio:
        g(f"s_xor_b32 s{sT0}, s{sN0}, s{sROLE}")
        g(f"s_bitcmp1_b32 s{sT0}, 0")
        g("s_cbranch_scc0 L_NOPRIO")
        g("s_setprio 3")
        g.lab("L_NOPRIO")
    if f3wave:
        g(f"s_mul_i32 s{sT0}, s{sBB}, {128*FS}")
        g(f"s_mul_i32 s{sT1}, s{sROLE}, {16*FS}")
        g(f"s_add_u32 s{sBASE1}, s{sBASE1}, s{sT0}")
        g(f"s_add_u32 s{sBASE1}, s{sBASE1}, s{sT1}")
        g.vpoll4(sBASE1, vp) if vp else g.spoll4(sBASE1)
    else:
        g("s_barrier")
    g.ts(10)
    vA = 16
    if apf:
        g(f"s_and_b32 s{sT0}, s{sN0}, 7")
        g(f"s_lshl_b32 s{sT0}, s{sT0}, 11")
        g(f"s_add_u32 s{sT0}, s{sT0}, s{sBASE0}")
        g(f"buffer_load_dwordx4 v[4:7], v{vLANE16}, s[{sWS}:{sWS+3}], s{sT0} offen {rf}")
        g(f"buffer_load_dwordx4 v[4:7], v{vLANE16}, s[{sWS}:{sWS+3}], s{sT0} offen offset:1024 {rf}")
    for n in range(16):
        if n and n % 4 == 0: g(f"s_add_u32 s{sBASE0}, s{sBASE0}, 4096")
        g(f"buffer_load_dwordx4 v[{vA+4*n}:{vA+4*n+3}], v{vLANE16}, s[{sWS}:{sWS+3}], s{sBASE0} offen offset:{1024*(n&3)} {rf}")
    g(f"s_lshl_b32 s{sT2}, s{sBB}, 1")
    g(f"s_lshr_b32 s{sT3}, s{sHP}, 1")
    g(f"s_add_u32 s{sT2}, s{sT2}, s{sT3}")
    g(f"s_lshl_b32 s{sT0}, s{sRT}, 4")
    g(f"s_add_u32 s{sT0}, s{sT0}, s{sN0}")
    g(f"s_lshl_b32 s{sT0}, s{sT0}, 2")
    g(f"s_add_u32 s{sT0}, s{sT0}, s{sT2}")
    g(f"s_lshl_b32 s{sT0}, s{sT0}, 1")
    g(f"s_and_b32 s{sT1}, s{sHP}, 1")
    g(f"s_add_u32 s{sT0}, s{sT0}, s{sT1}")
    g(f"s_lshl_b32 s{sBASE0}, s{sT0}, 14")
    g(f"s_add_u32 s{sBASE0}, s{sBASE0}, {OP:#x}")
    g(f"s_mul_i32 s{sBASE1}, s{sT0}, {FS}")
    g(f"s_add_u32 s{sBASE1}, s{sBASE1}, {F4:#x}")
    g(f"s_lshl_b32 s{sT3}, s{sOH}, 3")
    g(f"s_add_u32 s{sT3}, s{sT3}, s{sBASE1}")
    vD = 80
    for n in range(16):
        g(f"s_waitcnt vmcnt({15-n})")
        for nt in range(2):
            mfma(g, vD+16*nt, vB + (n*2+nt)*4, vA+4*n, None if n == 0 else vD+16*nt)
    g.ts(11)
    g(f"v_mov_b32 v51, s{sN}")
    g(f"v_mov_b32 v55, s{sN}")
    g(f"v_mov_b32 v58, 0")
    g(f"v_mov_b32 v59, s{sN}")
    g("v_and_b32 v24, 31, v0")
    g("v_lshrrev_b32 v25, 5, v0")
    g("v_lshlrev_b32 v24, 11, v24")
    g(f"v_lshl_add_u32 v{vA2}, v25, 3, v24")
    g("s_nop 2")
    for q in range(8):
        g(f"ds_write_b128 v{vA0}, v[{vD+4*q}:{vD+4*q+3}] offset:{1024*q}")
    g("s_waitcnt lgkmcnt(0)")
    g("s_barrier")
    for hp2 in range(4):
        for e in range(2):
            g(f"ds_read_b128 v[{16+8*hp2+4*e}:{19+8*hp2+4*e}], v{vA1} offset:{16384*hp2 + 1024*e}")
    res = [48, 49, 50, 52, 53, 54, 56, 57]
    g("s_waitcnt lgkmcnt(4)")
    for c in range(8): g(f"v_add_f32 v{16+c}, v{16+c}, v{24+c}")
    g("s_waitcnt lgkmcnt(0)")
    for c in range(8): g(f"v_add_f32 v{32+c}, v{32+c}, v{40+c}")
    for c in range(8): g(f"v_add_f32 v{res[c]}, v{16+c}, v{32+c}")
    g.ts(12)
    g(f"s_cmp_eq_u32 s{sT2}, s{sOH}")
    g("s_cbranch_scc1 L_OWN")
    g(f"s_lshl_b32 s{sT0}, s{sOH}, 12")
    g(f"s_add_u32 s{sT0}, s{sT0}, s{sBASE0}")
    for j in range(3):
        g(f"buffer_store_dwordx4 v[{48+4*j}:{51+4*j}], v{vLANE16}, s[{sWS}:{sWS+3}], s{sT0} offen offset:{1024*j} {wf}")
    if ophint: g.flag(sT3)
    g("s_branch L_FIN")
    g.lab("L_OWN")
    if ophint: g.flag(sT3)
    g(f"s_lshl_b32 s{sT2}, s{sRT}, 1")
    g(f"s_add_u32 s{sT2}, s{sT2}, s{sBB}")
    g(f"s_lshl_b32 s{sT2}, s{sT2}, 16")
    g(f"s_lshl_b32 s{sT1}, s{sN0}, 7")
    g(f"s_add_u32 s{sT2}, s{sT2}, s{sT1}")
    g(f"s_lshl_b32 s{sT1}, s{sHP}, 5")
    g(f"s_add_u32 s{sT2}, s{sT2}, s{sT1}")
    if ophint: g.vpoll4(sBASE1, vp) if vp else g.spoll4(sBASE1)
    g.ts(13)
    g(f"s_mov_b32 s{sCNT}, 0")
    g.lab("L_OPL")
    for e in range(1, 4):
        g(f"s_add_u32 s{sT0}, s{sOH}, {e}")
        g(f"s_and_b32 s{sT0}, s{sT0}, 3")
        g(f"s_lshl_b32 s{sT0}, s{sT0}, 12")
        g(f"s_add_u32 s{sT0}, s{sT0}, s{sBASE0}")
        for j in range(3):
            r = 60 + 12*(e-1) + 4*j
            g(f"buffer_load_dwordx4 v[{r}:{r+3}], v{vLANE16}, s[{sWS}:{sWS+3}], s{sT0} offen offset:{1024*j} {rf}")
    g(f"s_add_u32 s{sCNT}, s{sCNT}, 1")
    g("s_waitcnt vmcnt(0)")
    tags = [63 + 4*k for k in range(9)]
    g(f"v_min3_u32 v16, v{tags[0]}, v{tags[1]}, v{tags[2]}")
    g(f"v_max3_u32 v17, v{tags[0]}, v{tags[1]}, v{tags[2]}")
    for k in (3, 5, 7):
        g(f"v_min3_u32 v16, v{tags[k]}, v{tags[k+1]}, v16")
        g(f"v_max3_u32 v17, v{tags[k]}, v{tags[k+1]}, v17")
    g(f"v_xor_b32 v16, s{sN}, v16")
    g(f"v_xor_b32 v17, s{sN}, v17")
    g("v_or_b32 v16, v16, v17")
    g("v_cmp_ne_u32 vcc, 0, v16")
    g("s_cbranch_vccz L_OPD")
    g(f"s_cmp_lt_u32 s{sCNT}, {g.limit:#x}")
    g("s_cbranch_scc1 L_OPL")
    g.lab("L_OPD")
    for e in range(3):
        for c in range(8):
            g(f"v_add_f32 v{res[c]}, v{res[c]}, v{res[c] + 12*(e+1)}")
    for u in range(4):
        g(f"v_cvt_pk_bf16_f32 v{16+u}, v{res[2*u]}, v{res[2*u+1]}")
    g(f"buffer_store_dwordx2 v[16:17], v{vA2}, s[{sOUT}:{sOUT+3}], s{sT2} offen {outflag}")
    g(f"buffer_store_dwordx2 v[18:19], v{vA2}, s[{sOUT}:{sOUT+3}], s{sT2} offen offset:16 {outflag}")
    g.lab("L_FIN")
    if span:
        g("s_sub_u32 s100, s2, 128")
        g("s_cmp_ge_u32 s100, 2")
        g("s_cbranch_scc1 L_END")
        g(f"s_cmp_lg_u32 s{sWAVE}, 0")
        g("s_cbranch_scc1 L_END")
        g("s_waitcnt vmcnt(0)")
        g.ts(14)
        g.srd(sDBG, 28, 256)
        g("s_sub_u32 s100, s2, 128")
        g("s_mul_i32 s100, s100, 28")
        g("s_add_u32 s100, s100, 8")
        g("v_mov_b32 v17, s100")
        g("s_mov_b64 exec, 1")
        for k, n in enumerate((0, 2, 5, 6, 8, 10, 14)):
            g(f"s_sub_u32 s101, s{sTS+n}, s{sN}")
            g(f"v_mov_b32 v{18+k}, s101")
            g(f"buffer_store_dword v{18+k}, v17, s[{sDBG}:{sDBG+3}], 0 offen offset:{4*k}")
        g("s_branch L_END")
    if debug:
        g("s_waitcnt vmcnt(0)")
        g.ts(14)
        g(f"s_lshl_b32 s{sT0}, s2, 3")
        g(f"s_add_u32 s{sT0}, s{sT0}, s{sWAVE}")
        g(f"s_lshl_b32 s{sT0}, s{sT0}, 6")
        g(f"s_add_u32 s{sT0}, s{sT0}, {TSB:#x}")
        g(f"v_mov_b32 v{vA3}, s{sT0}")
        g("s_mov_b64 exec, 1")
        for n in range(16):
            g(f"v_mov_b32 v{16+n}, s{sTS+n}")
            g(f"buffer_store_dword v{16+n}, v{vA3}, s[{sWS}:{sWS+3}], 0 offen offset:{4*n}")
    g.lab("L_END")
    g("s_endpgm")
    rare_path(g)
    g.lab("L_CODE_END")
    hdr = f"""; Fused Q-projection + sliding-window GQA attention + output projection (generated by gen/gen3.py)
; @launch grid=(256,1,1) block=(512,1,1) lds=163840
.amdgcn_target "amdgcn-amd-amdhsa--gfx950"
.text
.globl {NAME}
.p2align 8
.type {NAME},@function
{NAME}:
"""
    ftr = f"""
.section .rodata,"a"
.p2align 6
.amdhsa_kernel {NAME}
  .amdhsa_next_free_vgpr 256
  .amdhsa_next_free_sgpr 102
  .amdhsa_accum_offset 256
  .amdhsa_group_segment_fixed_size 0
  .amdhsa_kernarg_size 64
  .amdhsa_user_sgpr_count 2
  .amdhsa_user_sgpr_kernarg_segment_ptr 1
  .amdhsa_system_sgpr_workgroup_id_x 1
.end_amdhsa_kernel
"""
    return hdr + "\n".join(g.L) + ftr

if __name__ == "__main__":
    import argparse
    ap = argparse.ArgumentParser()
    ap.add_argument("-o", default="standalone__sliding_block_cached__sampling.s")
    ap.add_argument("--debug", type=int, default=0)
    ap.add_argument("--la", type=int, default=2)
    ap.add_argument("--cprio", type=int, default=1)
    ap.add_argument("--norot", action="store_true")
    ap.add_argument("--xnt", action="store_true")
    ap.add_argument("--nocodepf", action="store_true")
    ap.add_argument("--kw", default="")
    a = ap.parse_args()
    kw = eval("dict(" + a.kw + ")")
    open(a.o, "w").write(gen(debug=a.debug, LA=a.la, cprio=a.cprio, rot=not a.norot, xnt=a.xnt, codepf=not a.nocodepf, **kw))
```

```python
import struct, math, sys

NAME = "standalone__sliding_block_cached__sampling_kernel"
C_SCALE = math.log2(math.e) / math.sqrt(128.0)
def f2u(x): return struct.unpack("<I", struct.pack("<f", x))[0]
THR = 10.0

QF   = 0x0000000
OF   = 0x0200000
PO   = 0x0400000
ST   = 0x0C00000
FS   = 1152
F1   = 0x2000000
F2   = 0x2200000
F3   = 0x2300000
F4   = 0x2800000
OP   = 0x0E00000
TSB  = 0x1600000
WS_BYTES = 268435456

sXCD, sI, sWAVE, sW4, sROLE = 3, 4, 5, 6, 7
sT0, sT1, sT2, sT3 = 8, 9, 10, 11
sCNT, sLW1K, sG, sKQ = 12, 13, 14, 15
sX, sK, sV, sWQ, sWO, sOUT, sDBG, sWS = 32, 36, 40, 44, 48, 52, 56, 60
sBASE0, sBASE1, sCT, sRT = 64, 65, 66, 67
sHQ, sKV = 68, 69
sN = 70
sPA = 72
sK0 = 74
sGH = 75
sEX = 76
sRET = 78
sPD = 16
sTS = 80
sN0, sOH, sRP = 96, 97, 98
sTHR = 99

vLANE16 = 1
vKA, vVA = 2, 10
aKA, aVA = 2, 6
vT0, vT1 = 14, 15
vKR, vVR, vQ, vO, vS, vP, vNEG, vLS, vONE = 16, 48, 80, 112, 176, 208, 224, 232, 240
vT3, vT4, vT5 = 244, 245, 246
vTM, vT2 = 248, 249
vNON = 250
vA0, vA1, vA2, vA3 = 252, 253, 254, 255

class G:
    psleep = 0
    def __init__(self, debug=False, limit=1 << 21):
        self.L = []; self.debug = debug; self.nlab = 0; self.limit = limit
    def __call__(self, s): self.L.append("  " + s)
    def lab(self, s): self.L.append(s + ":")
    def newlab(self, p="L"):
        self.nlab += 1; return f"{p}_{self.nlab}"
    def ts(self, n, lvl=1):
        if self.debug == 9 and n not in (0, 14): return
        if self.debug == 7:
            if n not in (0, 5, 6, 14) or lvl != 1: return
            if n in (5, 6):
                self("s_memtime s[100:101]")
                self("s_waitcnt lgkmcnt(0)")
                self(f"s_mov_b32 s{sTS + 6 + n}, s100")
        if self.debug == 8 and (n not in (0, 2, 5, 6, 14) or lvl != 1): return
        if self.debug == 8 and n in (0, 2, 14):
            self("s_memtime s[100:101]")
            self("s_waitcnt lgkmcnt(0)")
            self(f"s_mov_b32 s{sTS + {0: 10, 2: 11, 14: 12}[n]}, s100")
        if self.debug >= 2 and lvl == 1 and 7 <= n <= 13: return
        if lvl >= 2 and self.debug != lvl: return
        if self.debug:
            self(f"s_memrealtime s[100:101]")
            self("s_waitcnt lgkmcnt(0)")
            self(f"s_mov_b32 s{sTS+n}, s100")
    def srd(self, d, p, nbytes):
        self(f"s_mov_b32 s{d}, s{p}")
        self(f"s_and_b32 s{d+1}, s{p+1}, 0xffff")
        self(f"s_mov_b32 s{d+2}, {nbytes:#x}")
        self(f"s_mov_b32 s{d+3}, 0x20000")
    def srd_ws(self, off):
        if not off:
            return self.srd(sWS, 30, WS_BYTES)
        self(f"s_add_u32 s{sWS}, s30, {off:#x}")
        self(f"s_addc_u32 s{sWS+1}, s31, 0")
        self(f"s_and_b32 s{sWS+1}, s{sWS+1}, 0xffff")
        self(f"s_mov_b32 s{sWS+2}, {WS_BYTES - off:#x}")
        self(f"s_mov_b32 s{sWS+3}, 0x20000")
    def dma(self, voff, srd, sbase, soff_const, m0base, m0_const, flags=""):
        self(f"s_add_u32 m0, s{m0base}, {m0_const:#x}")
        self(f"s_add_u32 s{sT0}, s{sbase}, {soff_const:#x}")
        self(f"buffer_load_dwordx4 v{voff}, s[{srd}:{srd+3}], s{sT0} offen {flags} lds".replace("  ", " "))
    def spoll4(self, soff):
        l = self.newlab("POLL"); d = self.newlab("POLLD")
        self(f"s_add_u32 s{sPA}, s{sWS}, s{soff}")
        self(f"s_addc_u32 s{sPA+1}, s{sWS+1}, 0")
        self(f"s_mov_b32 s{sCNT}, 0")
        self.lab(l)
        self(f"s_load_dwordx8 s[{sPD}:{sPD+7}], s[{sPA}:{sPA+1}], 0 glc")
        self(f"s_add_u32 s{sCNT}, s{sCNT}, 1")
        self(f"s_cmp_ge_u32 s{sCNT}, {self.limit:#x}")
        self("s_waitcnt lgkmcnt(0)")
        self(f"s_cbranch_scc1 {d}")
        r = l
        if self.psleep: r = self.newlab("POLLS")
        for q in range(4):
            self(f"s_cmp_eq_u64 s[{sPD+2*q}:{sPD+2*q+1}], s[{sN}:{sN+1}]")
            self(f"s_cbranch_scc0 {r}")
        if self.psleep:
            self(f"s_branch {d}")
            self.lab(r)
            self(f"s_sleep {self.psleep}")
            self(f"s_branch {l}")
        self.lab(d)
    def vpoll4(self, soff, flags):
        l = self.newlab("POLL"); d = self.newlab("POLLD")
        self("v_and_b32 v10, 3, v0")
        self("v_lshlrev_b32 v10, 3, v10")
        self(f"s_mov_b32 s{sCNT}, 0")
        self.lab(l)
        self(f"buffer_load_dwordx2 v[12:13], v10, s[{sWS}:{sWS+3}], s{soff} offen {flags}")
        self(f"s_add_u32 s{sCNT}, s{sCNT}, 1")
        self("s_waitcnt vmcnt(0)")
        self(f"v_cmp_ne_u64 vcc, s[{sN}:{sN+1}], v[12:13]")
        self(f"s_cbranch_vccz {d}")
        if self.psleep: self(f"s_sleep {self.psleep}")
        self(f"s_cmp_lt_u32 s{sCNT}, {self.limit:#x}")
        self(f"s_cbranch_scc1 {l}")
        self.lab(d)
    def spoll4x2(self, soff):
        l = self.newlab("POLL"); d = self.newlab("POLLD")
        self(f"s_add_u32 s{sPA}, s{sWS}, s{soff}")
        self(f"s_addc_u32 s{sPA+1}, s{sWS+1}, 0")
        self(f"s_mov_b32 s{sCNT}, 0")
        self.lab(l)
        self(f"s_load_dwordx8 s[16:23], s[{sPA}:{sPA+1}], 0x80 glc")
        self(f"s_add_u32 s{sCNT}, s{sCNT}, 1")
        self(f"s_and_b32 s32, s{sCNT}, 3")
        self(f"s_cmp_lg_u32 s32, 0")
        n = self.newlab("POLLF")
        self(f"s_cbranch_scc1 {n}")
        self("s_waitcnt lgkmcnt(0)")
        self(f"s_load_dwordx8 s[16:23], s[{sPA}:{sPA+1}], 0 glc")
        self.lab(n)
        self(f"s_cmp_ge_u32 s{sCNT}, {self.limit:#x}")
        self("s_waitcnt lgkmcnt(0)")
        self(f"s_cbranch_scc1 {d}")
        for q in range(4):
            self(f"s_cmp_eq_u64 s[{16+2*q}:{17+2*q}], s[{sN}:{sN+1}]")
            self(f"s_cbranch_scc0 {l}")
        self.lab(d)
    def flag2(self, saddr):
        self(f"v_mov_b32 v{vA3}, s{saddr}")
        self(f"s_mov_b64 s[{sEX}:{sEX+1}], exec")
        self("s_mov_b64 exec, 1")
        self(f"buffer_store_dwordx2 v[{vNON}:{vNON+1}], v{vA3}, s[{sWS}:{sWS+3}], 0 offen offset:128")
        self(f"buffer_store_dwordx2 v[{vNON}:{vNON+1}], v{vA3}, s[{sWS}:{sWS+3}], 0 offen sc1")
        self(f"s_mov_b64 exec, s[{sEX}:{sEX+1}]")
    def spollN(self, soff, deltas):
        l = self.newlab("POLL"); d = self.newlab("POLLD")
        regs = [16, 24, 32, 40][:len(deltas)]
        self(f"s_add_u32 s{sPA}, s{sWS}, s{soff}")
        self(f"s_addc_u32 s{sPA+1}, s{sWS+1}, 0")
        self(f"s_mov_b32 s{sCNT}, 0")
        self.lab(l)
        for r, dl in zip(regs, deltas):
            self(f"s_load_dwordx8 s[{r}:{r+7}], s[{sPA}:{sPA+1}], {dl:#x} glc")
        self(f"s_add_u32 s{sCNT}, s{sCNT}, 1")
        self(f"s_cmp_ge_u32 s{sCNT}, {self.limit:#x}")
        self("s_waitcnt lgkmcnt(0)")
        self(f"s_cbranch_scc1 {d}")
        for r in regs:
            for q in range(4):
                self(f"s_cmp_eq_u64 s[{r+2*q}:{r+2*q+1}], s[{sN}:{sN+1}]")
                self(f"s_cbranch_scc0 {l}")
        self.lab(d)
    def flag(self, saddr):
        self(f"v_mov_b32 v{vA3}, s{saddr}")
        self(f"s_mov_b64 s[{sEX}:{sEX+1}], exec")
        self("s_mov_b64 exec, 1")
        self(f"buffer_store_dwordx2 v[{vNON}:{vNON+1}], v{vA3}, s[{sWS}:{sWS+3}], 0 offen sc1")
        self(f"s_mov_b64 exec, s[{sEX}:{sEX+1}]")
    def nonce_issue(self, glc=""):
        self(f"s_load_dwordx2 s[{sN}:{sN+1}], s[28:29], 0{glc}")
    def nonce_finish(self):
        l = self.newlab("NON"); d = self.newlab("NOND")
        self(f"s_mov_b32 s{sCNT}, 0")
        self.lab(l)
        self("s_waitcnt lgkmcnt(0)")
        self(f"s_cmp_lg_u32 s{sN}, 0")
        self(f"s_cbranch_scc1 {d}")
        self(f"s_add_u32 s{sCNT}, s{sCNT}, 1")
        self(f"s_cmp_ge_u32 s{sCNT}, {self.limit:#x}")
        self(f"s_cbranch_scc1 {d}")
        self("s_sleep 8")
        self.nonce_issue(" glc")
        self(f"s_branch {l}")
        self.lab(d)
        self(f"v_mov_b32 v{vNON}, s{sN}")
        self(f"v_mov_b32 v{vNON+1}, s{sN+1}")

def mfma(g, d, a, b, c):
    cs = "0" if c is None else f"v[{c}:{c+15}]"
    g(f"v_mfma_f32_32x32x16_bf16 v[{d}:{d+15}], v[{a}:{a+3}], v[{b}:{b+3}], {cs}")
def mfma16(g, d, a, b, c):
    cs = "0" if c is None else f"v[{c}:{c+3}]"
    g(f"v_mfma_f32_16x16x32_bf16 v[{d}:{d+3}], v[{a}:{a+3}], v[{b}:{b+3}], {cs}")

def att_setup(g):
    g("v_and_b32 v32, 15, v0")
    g("v_lshrrev_b32 v33, 4, v0")
    g("v_xor_b32 v34, v32, v33")
    g("v_lshlrev_b32 v35, 8, v32")
    for s in range(4):
        g(f"v_xor_b32 v36, {4*s}, v34")
        g(f"v_lshl_add_u32 v{aKA+s}, v36, 4, v35")
    g("v_lshrrev_b32 v36, 2, v32")
    g("v_lshl_add_u32 v36, v33, 2, v36")
    g("v_and_b32 v37, 7, v36")
    g("v_lshlrev_b32 v37, 1, v37")
    g("v_bfe_u32 v38, v0, 1, 1")
    g("v_xor_b32 v37, v37, v38")
    g("v_lshlrev_b32 v36, 8, v36")
    g("v_and_b32 v38, 1, v0")
    g("v_lshl_add_u32 v36, v38, 3, v36")
    g("v_add_u32 v36, 16384, v36")
    for dt in range(8):
        g(f"v_xor_b32 v38, {2*dt}, v37")
        g(f"v_lshl_add_u32 v{aVA+dt}, v38, 4, v36")
    for u in range(4): g(f"v_mov_b32 v{vONE+u}, 0x3f803f80")

BIAS = 9.0
vOR = 252
def rowmax(S, hf, dst, tmp):
    b = S + 8*hf
    return [[f"v_max3_f32 v{dst}, v{b}, v{b+1}, v{b+2}", f"v_max3_f32 v{tmp}, v{b+3}, v{b+4}, v{b+5}"],
            [f"v_max3_f32 v{dst}, v{b+6}, v{b+7}, v{dst}", f"v_max_f32 v{dst}, v{dst}, v{tmp}", f"v_mov_b32 v{tmp}, v{dst}"],
            ["s_nop 1", f"v_permlane16_swap_b32 v{dst}, v{tmp}", "s_nop 1", f"v_max_f32 v{dst}, v{dst}, v{tmp}", f"v_mov_b32 v{tmp}, v{dst}"],
            ["s_nop 1", f"v_permlane32_swap_b32 v{dst}, v{tmp}", "s_nop 1", f"v_max_f32 v{dst}, v{dst}, v{tmp}"]]

def att_loop(g, O=None):
    O = {**dict(eslots=(0, 2, 4, 6, 8, 10, 12, 14, 16, 17, 19, 21, 23, 25, 26, 27), m16s=(18, 26), vslots=tuple(range(16)), kslots=(17, 19, 21, 23, 25, 27, 29, 31), cdel=1), **(O or {})}
    NKS = O.get("nks", 4)
    g.stubs = []
    kcur = [0]; vcur = [0]
    def kbase(t):
        slot = (t // 2) % NKS
        want = (slot >> 1) * 65536
        r = []
        if want != kcur[0]:
            r.append(f"s_mov_b32 s{sT0}, {(want - kcur[0]) & 0xffffffff:#x}")
            for x in range(aKA, aKA+4): r.append(f"v_add_u32 v{x}, s{sT0}, v{x}")
            kcur[0] = want
        return (slot & 1) * 32768 + (t & 1) * 8192, r
    def vbase(t):
        slot = (t // 2) % NKS
        want = (slot >> 1) * 65536
        r = []
        if want != vcur[0]:
            r.append(f"s_mov_b32 s{sT1}, {(want - vcur[0]) & 0xffffffff:#x}")
            for x in range(aVA, aVA+8): r.append(f"v_add_u32 v{x}, s{sT1}, v{x}")
            vcur[0] = want
        return (slot & 1) * 32768 + (t & 1) * 8192, r
    def krd(off, n, base=vKR):
        return f"ds_read_b128 v[{base+4*n}:{base+4*n+3}], v{aKA+(n&3)} offset:{off + 4096*(n>>2)}"
    def vrd(off, x):
        dt, jj = x >> 1, x & 1
        b = vVR + 4*dt + 2*jj
        return f"ds_read_b64_tr_b16 v[{b}:{b+1}], v{aVA+dt} offset:{off + 4096*jj}"
    def em(l):
        for x in l: g(x)
    m16 = lambda d, a, b, c: f"v_mfma_f32_16x16x32_bf16 v[{d}:{d+3}], v[{a}:{a+3}], v[{b}:{b+3}], " + ("0" if c is None else f"v[{c}:{c+3}]")
    def smf(S, kb, sl, first):
        n, hf = sl >> 1, sl & 1
        kt, s = n >> 2, n & 3
        if O.get("qkord") == "B":
            kt, hf, s = sl & 1, (sl >> 1) & 1, sl >> 2
            n = 4*kt + s
        d = S + 8*hf + 4*kt
        return m16(d, kb + 4*n, vQ + 16*hf + 4*s, (first(hf) if s == 0 else d))
    def pmf(P, sl, init=False):
        dt, hf = sl >> 1, sl & 1
        d = vO + 32*hf + 4*dt
        return m16(d, vVR + 4*dt, P + 4*hf, None if init else d)
    g.pmf = pmf; g.m16 = m16
    o, _ = kbase(0)
    for n in range(8): g(krd(o, n, vVR))
    o1, _ = kbase(1)
    for n in range(7): g(krd(o1, n))
    g("s_waitcnt vmcnt(0)")
    g.ts(5)
    if g.debug and g.debug not in (7, 9):
        g("s_memtime s[100:101]")
        g("s_waitcnt lgkmcnt(0)")
        g(f"s_mov_b32 s{sTS+15}, s100")
    g(f"s_waitcnt lgkmcnt(7)")
    for sl in range(16):
        g(smf(vS, vVR, sl, lambda hf: None))
        if sl == 0: g(krd(o1, 7))
    g(f"s_mov_b32 s{sT0}, {f2u(BIAS):#x}")
    NT = 16
    tmp = [(vT0, vT1), (vTM, vT2), (vT3, vT4)]
    O0 = O
    for t in range(0, NT):
        O = {**O0, **O0["alt"]} if t in O0.get("alt_t", ()) else O0
        Sc = vS + 16*(t & 1); Sn = vS + 16*((t+1) & 1)
        Pc = vP + 8*(t & 1); Pp = vP + 8*((t-1) & 1)
        doS = t + 1 < NT; doPV = t >= 1; doK = t + 2 < NT
        pre = [[] for _ in range(32)]; M = [[] for _ in range(32)]; D = [[] for _ in range(32)]; V = [[] for _ in range(32)]
        if t == 15:
            vo, bump = vbase(15)
            assert not bump
            pre[0].append("s_waitcnt lgkmcnt(8)")
            pre[8].append("s_waitcnt lgkmcnt(6)")
            for sl in range(16):
                M[sl].append(pmf(Pp, sl))
                if sl & 1: D[sl] += [vrd(vo, sl - 1), vrd(vo, sl)]
            M[2].append(m16(vLS, vONE, Pp, vLS)); M[10].append(m16(vLS+4, vONE, Pp+4, vLS+4))
            if not O.get("tail"):
                pre[16].append("s_waitcnt lgkmcnt(8)"); pre[24].append("s_waitcnt lgkmcnt(0)")
                for sl in range(16): M[16+sl].append(pmf(Pc, sl))
                M[18].append(m16(vLS, vONE, Pc, vLS)); M[26].append(m16(vLS+4, vONE, Pc+4, vLS+4))
        elif doPV:
            vo, bump = vbase(t-1)
            pre[0] += bump
            for x in range(16): D[O["vslots"][x]].append(vrd(vo, x))
            for sl in range(16):
                s2 = sl
                if O.get("pvord") == "B" and t < 14: s2 = 2*(sl & 3) + 8*(sl >> 3) + ((sl >> 2) & 1)
                M[16+sl].append(pmf(Pp, s2, t == 1))
            M[O["m16s"][0]].append(m16(vLS, vONE, Pp, None if t == 1 else vLS))
            M[O["m16s"][1]].append(m16(vLS+4, vONE, Pp+4, None if t == 1 else vLS+4))
            pre[16].append("s_waitcnt lgkmcnt(8)")
            nk = sum(1 for x in O["kslots"] if x < 24)
            pre[24].append(f"s_waitcnt lgkmcnt({nk if doK else 6})")
        if t < 15:
            nv = sum(1 for x in O["vslots"] if x < 8)
            pre[8].append(f"s_waitcnt lgkmcnt({min(6, nv) if doPV else 0})")
        if doS:
            pre[0].append("s_waitcnt lgkmcnt(0)" if O.get("qkord") == "B" else "s_waitcnt lgkmcnt(4)")
            for sl in range(16): M[sl].append(smf(Sn, vKR, sl, (lambda hf: None) if t == 0 else (lambda hf: vNEG + 4*hf)))
        if t % 2 == 0 and t <= 14:
            if t == 14: D[16].append("s_waitcnt lgkmcnt(0)")
            if t >= 2 and g.debug == 2:
                D[16] += ["s_memrealtime s[100:101]", "s_waitcnt lgkmcnt(0)", f"s_mov_b32 s{sTS+6+t//2}, s100"]
            if g.debug == 7 and t in (2, 6, 10, 14):
                k = (t + 2) // 4
                D[16] += ["s_memrealtime s[100:101]", "s_memtime s[98:99]", "s_waitcnt lgkmcnt(0)", f"s_mov_b32 s{sTS+k}, s100", f"s_mov_b32 s{sTS+6+k}, s98"]
            D[16].append("s_barrier")
        if t == 14:
            vo, bump = vbase(14)
            D[16] += bump
            for sl in range(1, 16, 2): D[16+sl] += [vrd(vo, sl - 1), vrd(vo, sl)]
        if doK:
            ko, bump = kbase(t+2)
            D[16] += bump
            for n in range(8): D[O["kslots"][n]].append(krd(ko, n))
        if t == 0:
            r0 = rowmax(vS, 0, vTM, vT2); r1 = rowmax(vS, 1, vT3, vT4)
            V[2] += ["s_nop 3"]
            for k in range(4):
                V[3 + 2*k] += r0[k]; V[4 + 2*k] += r1[k]
            V[11] += [f"v_add_f32 v{vTM}, s{sT0}, v{vTM}", f"v_add_f32 v{vT3}, s{sT0}, v{vT3}"]
            V[12] += [f"v_sub_f32 v{vNEG+u}, 0, v{vTM}" for u in range(4)]
            V[13] += [f"v_sub_f32 v{vNEG+4+u}, 0, v{vT3}" for u in range(4)]
            slots = [14, 14, 15, 15] + [16 + k for k in range(12)]
        elif t == 15:
            slots = [0, 0, 1, 2, 3, 3, 4, 5, 6, 6, 7, 8, 9, 9, 10, 11]
        else:
            slots = list(O["eslots"])
        cdel = O["cdel"]
        for e in range(16):
            T = tmp[(e >> 1) % 3][e & 1]
            if t <= 1:
                V[slots[e]].append(f"v_add_f32 v{Sc+e}, v{Sc+e}, v{vNEG + 4*(e >> 3)}")
            V[slots[e]].append(f"v_exp_f32 v{T}, v{Sc+e}")
        last = 0
        for u in range(8):
            sl = slots[2*u+1] + cdel
            assert u + 3 > 7 or slots[2*u+6] >= sl
            a, b = tmp[u % 3]
            V[sl] = [f"v_cvt_pk_bf16_f32 v{Pc+u}, v{a}, v{b}"] + V[sl]
            if O.get("addsum"):
                V[sl] = V[sl][:1] + [f"v_add_f32 v{vLS+4*(u>>2)}, v{vLS+4*(u>>2)}, v{a}"] + V[sl][1:]
                V[min(sl + 1, 31)] = [f"v_add_f32 v{vLS+4*(u>>2)+1}, v{vLS+4*(u>>2)+1}, v{b}"] + V[min(sl + 1, 31)]
            if u & 1 and t > 0:
                orr = f"v_or_b32 v{vOR}, v{Pc}, v{Pc+1}" if u == 1 else f"v_or3_b32 v{vOR}, v{Pc+u-1}, v{Pc+u}, v{vOR}"
                V[min(sl + 1, 31)].append(orr)
                last = min(sl + 1, 31)
        endsl = 15 if t == 15 else 31
        if t > 0:
            cs = min(last + 1, endsl)
            V[cs].append(f"v_and_b32 v{vOR}, 0x40004000, v{vOR}")
            V[min(cs + 1, endsl)].append(f"v_cmp_ne_u32 vcc, 0, v{vOR}")
        for sl in range(32):
            plain = all(x.startswith("ds_read") for x in D[sl])
            em(pre[sl]); em(M[sl])
            if O.get("vfirst") and plain and M[sl] and 1 <= t <= 13:
                em(V[sl]); em(D[sl])
            else:
                em(D[sl])
                if not M[sl] and not D[sl] and V[sl]: g("s_nop 0")
                em(V[sl])
            if t > 0 and sl == endsl:
                st = g.newlab("RS"); bk = g.newlab("RB")
                g(f"s_cbranch_vccnz {st}")
                g.lab(bk)
                g.stubs.append((st, bk, t & 1))

def emu16(body):
    import re
    cnt = {}; firsts = {}; nb = []
    for l in body:
        m = re.match(r"\s*v_mfma_f32_32x32x16_bf16 v\[(\d+):\d+\], (v\[\d+:\d+\]), (v\[\d+:\d+\]), (.*)", l)
        if not m:
            nb.append(l); continue
        d = int(m.group(1)); c = m.group(4).strip()
        if c == "0" or int(re.match(r"v\[(\d+)", c).group(1)) != d:
            cnt[d] = 0; firsts[d] = c
        k = cnt.get(d, 0); cnt[d] = k + 1
        for q in (2*(k % 2), 2*(k % 2) + 1):
            cc = f"v[{d+4*q}:{d+4*q+3}]"
            if k < 2 and d in firsts:
                f = firsts[d]
                if f == "0": cc = "0"
                else:
                    cb = int(re.match(r"v\[(\d+)", f).group(1)); cc = f"v[{cb+4*q}:{cb+4*q+3}]"
            nb.append(f"  v_mfma_f32_16x16x32_bf16 v[{d+4*q}:{d+4*q+3}], {m.group(2)}, {m.group(3)}, {cc}")
        if k == 1: firsts.pop(d, None)
    out = []; i = 0
    while i < len(nb):
        if i + 1 < len(nb) and "16x16x32" in nb[i] and "16x16x32" in nb[i+1] and "v[240:243]" not in nb[i] and "v[240:243]" not in nb[i+1]:
            out.append(nb[i]); second = nb[i+1]; i += 2
            rest = []
            while i < len(nb) and not re.search(r"mfma|waitcnt|barrier|:$|branch", nb[i]):
                rest.append(nb[i]); i += 1
            a = re.search(r"\], (v\[\d+:\d+\])", second).group(1)
            lo = int(re.match(r"v\[(\d+)", a).group(1))
            def hits(l):
                m = re.match(r"\s*ds_read\w+ v\[(\d+):", l)
                return m and lo <= int(m.group(1)) <= lo + 3
            free = [l for l in rest if not hits(l)]; late = [l for l in rest if hits(l)]
            h = min((len(rest) + 1) // 2, len(free))
            out += free[:h] + [second] + late + free[h:]
        else:
            out.append(nb[i]); i += 1
    return out

def rare_path(g, O=None):
    for st, bk, par in g.stubs:
        g.lab(st)
        g(f"s_call_b64 s[{sRET}:{sRET+1}], L_RARE{par}")
        g(f"s_branch {bk}")
    for par in range(2):
        g.lab(f"L_RARE{par}")
        Sc = vS + 16*par; Sn = vS + 16*(par ^ 1); Pc = vP + 8*par
        g("s_nop 15")
        for hf in range(2):
            for grp in rowmax(Sc, hf, vTM, vT2):
                for x in grp: g(x)
            g(f"v_add_f32 v{vTM}, {f2u(BIAS):#x}, v{vTM}")
            g(f"v_max_f32 v{vTM}, 0, v{vTM}")
            g(f"v_ceil_f32 v{vTM}, v{vTM}")
            g(f"v_sub_f32 v{vT2}, 0, v{vTM}")
            g(f"v_exp_f32 v{vT2}, v{vT2}")
            for u in range(8): g(f"v_sub_f32 v{Sc+8*hf+u}, v{Sc+8*hf+u}, v{vTM}")
            for u in range(8): g(f"v_sub_f32 v{Sn+8*hf+u}, v{Sn+8*hf+u}, v{vTM}")
            for u in range(4): g(f"v_sub_f32 v{vNEG+4*hf+u}, v{vNEG+4*hf+u}, v{vTM}")
            for u in range(32): g(f"v_mul_f32 v{vO+32*hf+u}, v{vO+32*hf+u}, v{vT2}")
            for u in range(4): g(f"v_mul_f32 v{vLS+4*hf+u}, v{vLS+4*hf+u}, v{vT2}")
        for u in range(8):
            g(f"v_exp_f32 v{vT0}, v{Sc+2*u}")
            g(f"v_exp_f32 v{vT1}, v{Sc+2*u+1}")
            g("s_nop 0")
            g(f"v_cvt_pk_bf16_f32 v{Pc+u}, v{vT0}, v{vT1}")
        g("s_nop 1")
        g(f"s_setpc_b64 s[{sRET}:{sRET+1}]")

DENSE = {'eslots': [1, 3, 5, 7, 11, 11, 12, 13, 16, 17, 19, 21, 22, 24, 25, 26], 'm16s': [16, 31], 'vslots': [0, 0, 2, 2, 4, 4, 6, 6, 8, 9, 10, 10, 12, 12, 13, 14], 'kslots': [17, 18, 20, 22, 27, 28, 29, 30], 'cdel': 1}
MED = {'eslots': [1, 3, 5, 7, 9, 11, 13, 13, 17, 18, 19, 21, 22, 25, 25, 26], 'm16s': [18, 26], 'vslots': [0, 0, 2, 2, 4, 4, 6, 6, 8, 8, 10, 10, 11, 12, 14, 14], 'kslots': [17, 18, 20, 22, 24, 26, 28, 30], 'cdel': 1}
def gen(debug=False, LA=2, cprio=1, rot=True, xnt=False, codepf=True, early={5: 1, 6: 2}, nq1=1, bflag='', pfflag='', kvflag='nt', wqflag='', span=False, jplan={}, emuq=False, nosum=False, psleep=0, emu=False, attO=dict(alt=dict(vfirst=True), alt_t=range(1,16,2)), kvflag1='', wsoff=0, ptail=True, pfirst=True, kvmap='rr', polay=0, pretouch=True, NKS=5, vp='sc0 sc1', wf='sc1', rf='sc0 sc1', qf='sc1', ophint=True, f2fast=False, apf=False, f3wave=True, aprio=False, pffront={}, outflag='', pw2=0, pfplan={5: 8}, bplan={7: (0, 1), 8: (2, 3)}):
    g = G(debug=debug)
    g.psleep = psleep
    qslot = lambda k: 1 + k % 4
    g("s_cmp_ge_u32 s2, 256")
    g("s_cbranch_scc1 L_END")
    g("s_load_dwordx16 s[16:31], s[0:1], 0")
    g(f"s_and_b32 s{sXCD}, s2, 7")
    g(f"s_lshr_b32 s{sI}, s2, 3")
    g("v_lshrrev_b32 v1, 6, v0")
    g("v_and_b32 v0, 63, v0")
    g(f"v_readfirstlane_b32 s{sWAVE}, v1")
    g(f"v_lshlrev_b32 v{vLANE16}, 4, v0")
    g(f"s_and_b32 s{sT0}, s{sI}, 7")
    g(f"s_lshl_b32 s{sCT}, s{sXCD}, 3")
    g(f"s_add_u32 s{sCT}, s{sCT}, s{sT0}")
    g(f"s_lshr_b32 s{sRT}, s{sI}, 3")
    g(f"s_lshl_b32 s{sK0}, s{sRT}, 1")
    g(f"s_add_u32 s{sK0}, s{sK0}, s{sT0}")
    if not rot: g(f"s_mov_b32 s{sK0}, 0")
    g(f"s_lshl_b32 s{sG}, s{sXCD}, 2")
    g(f"s_add_u32 s{sG}, s{sG}, s{sRT}")
    g(f"s_and_b32 s{sKQ}, s{sI}, 3")
    g(f"s_bfe_u32 s{sHQ}, s{sI}, 0x10002")
    g(f"s_lshl_b32 s{sGH}, s{sG}, 1")
    g(f"s_add_u32 s{sGH}, s{sGH}, s{sHQ}")
    g(f"s_and_b32 s{sW4}, s{sWAVE}, 3")
    g(f"s_lshr_b32 s{sROLE}, s{sWAVE}, 2")
    g(f"s_lshl_b32 s{sLW1K}, s{sW4}, 10")
    g(f"s_lshr_b32 s{sOH}, s{sXCD}, 1")
    g(f"s_and_b32 s{sN0}, s{sXCD}, 1")
    g(f"s_lshl_b32 s{sN0}, s{sN0}, 3")
    g(f"s_add_u32 s{sN0}, s{sN0}, s{sT0}")
    g(f"s_cmp_eq_u32 s{sROLE}, 0")
    g("s_cbranch_scc1 L_CWAVE")

    vXO, vWQO, vKO, vVO, vWOO = 16, 17, 18, 19, 20
    g("v_lshrrev_b32 v21, 4, v0")
    g(f"s_lshl_b32 s{sT1}, s{sW4}, 2")
    g(f"v_add_u32 v22, s{sT1}, v21")
    g("v_and_b32 v23, 15, v0")
    g("v_xor_b32 v24, v23, v22")
    g("v_lshlrev_b32 v24, 4, v24")
    g(f"v_lshl_add_u32 v{vXO}, v22, 11, v24")
    g("v_lshrrev_b32 v25, 3, v0")
    g("v_and_b32 v26, 7, v0")
    g("v_lshlrev_b32 v27, 1, v25")
    g("v_and_b32 v27, 4, v27")
    g("v_xor_b32 v26, v26, v27")
    g("v_lshlrev_b32 v26, 4, v26")
    g(f"v_lshl_add_u32 v{vWQO}, v25, 13, v26")
    g(f"s_lshl_b32 s{sBASE0}, s{sRT}, 17")
    g(f"s_lshl_b32 s{sBASE1}, s{sCT}, 7")
    g(f"s_lshl_b32 s{sT1}, s{sW4}, 16")
    g(f"s_add_u32 s{sBASE1}, s{sBASE1}, s{sT1}")
    g(f"s_mov_b32 s{sWQ+2}, {1024*4096*2:#x}")
    g(f"s_mov_b32 s{sWQ+3}, 0x20000")
    g(f"s_mov_b32 s{sX+2}, {8*32*1024*2:#x}")
    g(f"s_mov_b32 s{sX+3}, 0x20000")
    g("s_waitcnt lgkmcnt(0)")
    g(f"s_mov_b32 s{sWQ}, s22")
    g(f"s_and_b32 s{sWQ+1}, s23, 0xffff")
    g(f"s_mov_b32 s{sX}, s16")
    g(f"s_and_b32 s{sX+1}, s17, 0xffff")
    Q = []
    def need(*tags):
        last = max(i for i, x in enumerate(Q) if x in tags)
        g(f"s_waitcnt vmcnt({len(Q) - 1 - last})")
    def stage(k):
        slot = qslot(k) * 32768
        g(f"s_add_u32 s{sT1}, s{sK0}, {k}")
        g(f"s_and_b32 s{sT1}, s{sT1}, 7")
        g(f"s_lshl_b32 s{sT2}, s{sT1}, 20")
        g(f"s_add_u32 s{sT2}, s{sT2}, s{sBASE1}")
        g(f"s_lshl_b32 s{sT3}, s{sT1}, 8")
        g(f"s_add_u32 s{sT3}, s{sT3}, s{sBASE0}")
        for m in range(4):
            g.dma(vWQO, sWQ, sT2, 32*m*8192, sLW1K, slot + 16384 + 4096*m, wqflag)
            g.dma(vXO, sX, sT3, m*16*2048, sLW1K, slot + 4096*m, "nt" if xnt else "")
            Q.extend([f"S{k}"] * 2)
    def kvf(s):
        if kvmap == "blk": return kvflag if (s >> 1) & 1 else kvflag1
        if kvmap == "alt": return kvflag if s & 1 else kvflag1
        return kvflag
    def chunk(s):
        if kvmap == "contig":
            g(f"s_lshl_b32 s{sT1}, s{sKQ}, 17")
            g(f"s_add_u32 s{sT1}, s{sT1}, {s*16384}")
        elif kvmap == "rr":
            g(f"s_lshl_b32 s{sT1}, s{sKQ}, 14")
            g(f"s_add_u32 s{sT1}, s{sT1}, {s*65536}")
        elif kvmap in ("rrg", "rrx", "rri"):
            src = {"rrg": sG, "rrx": sXCD, "rri": sRT}[kvmap]
            if kvmap == "rri":
                g(f"s_lshl_b32 s{sT1}, s{src}, 1")
                g(f"s_add_u32 s{sT1}, s{sT1}, {s}")
            else:
                g(f"s_add_u32 s{sT1}, s{src}, {s}")
            g(f"s_and_b32 s{sT1}, s{sT1}, 7")
            g(f"s_lshl_b32 s{sT1}, s{sT1}, 2")
            g(f"s_add_u32 s{sT1}, s{sT1}, s{sKQ}")
            g(f"s_lshl_b32 s{sT1}, s{sT1}, 14")
        elif kvmap in ("blk", "alt"):
            g(f"s_lshl_b32 s{sT1}, s{sHQ}, {17 if kvmap == 'blk' else 16}")
            g(f"s_xor_b32 s{sT1}, s{sT1}, {s*65536}")
            g(f"s_lshl_b32 s{sT2}, s{sKQ}, 14")
            g(f"s_add_u32 s{sT1}, s{sT1}, s{sT2}")
        elif kvmap == "rr2":
            g(f"s_lshl_b32 s{sT1}, s{sKQ}, 15")
            g(f"s_add_u32 s{sT1}, s{sT1}, {(s >> 1)*131072 + (s & 1)*16384}")
        elif kvmap == "rot":
            g(f"s_add_u32 s{sT1}, s{sKQ}, {s >> 1}")
            g(f"s_and_b32 s{sT1}, s{sT1}, 3")
            g(f"s_lshl_b32 s{sT1}, s{sT1}, 2")
            g(f"s_add_u32 s{sT1}, s{sT1}, s{sKQ}")
            g(f"s_lshl_b32 s{sT1}, s{sT1}, 15")
            if s & 1: g(f"s_add_u32 s{sT1}, s{sT1}, 16384")
        elif kvmap == "rot2":
            g(f"s_add_u32 s{sT1}, s{sKQ}, {s & 3}")
            g(f"s_and_b32 s{sT1}, s{sT1}, 3")
            g(f"s_lshl_b32 s{sT1}, s{sT1}, 2")
            g(f"s_add_u32 s{sT1}, s{sT1}, s{sKQ}")
            g(f"s_lshl_b32 s{sT1}, s{sT1}, 15")
            if s >> 2: g(f"s_add_u32 s{sT1}, s{sT1}, 16384")
        g(f"s_add_u32 s{sT1}, s{sT1}, s{sKV}")
    def kpart(s):
        chunk(s)
        for m in range(4):
            g.dma(vKO, sK, sT1, 16*m*256, sLW1K, (s % NKS)*32768 + 4096*m, kvf(s))
            Q.append(f"K{s}")
    def vpart(s):
        chunk(s)
        for m in range(4):
            g.dma(vVO, sV, sT1, 16*m*256, sLW1K, (s % NKS)*32768 + 16384 + 4096*m, kvf(s))
            Q.append(f"V{s}")
    def part(tag):
        (kpart if tag[0] == "K" else vpart)(int(tag[1]))
    for k in range(LA): stage(k)
    g.ts(0)
    g.srd(sK, 18, 8*4*8192*128*2)
    g.srd(sV, 20, 8*4*8192*128*2)
    g.srd(sWO, 24, 4096*1024*2)
    g.srd(sOUT, 26, 8*32*1024*2)
    g.srd_ws(wsoff)
    g(f"v_lshl_add_u32 v{vKO}, v22, 8, v24")
    g("v_and_b32 v28, 7, v22")
    g("v_lshlrev_b32 v28, 1, v28")
    g("v_xor_b32 v28, v23, v28")
    g("v_lshlrev_b32 v28, 4, v28")
    g(f"v_lshl_add_u32 v{vVO}, v22, 8, v28")
    g(f"v_lshl_add_u32 v{vWOO}, v25, 11, v26")
    g(f"s_lshl_b32 s{sKV}, s{sG}, 21")
    g(f"s_add_u32 s{sKV}, s{sKV}, {6144*256:#x}")
    sPF = sCT
    g(f"s_lshl_b32 s{sPF}, s{sOH}, 21")
    g(f"s_lshl_b32 s{sT1}, s{sW4}, 14")
    g(f"s_add_u32 s{sPF}, s{sPF}, s{sT1}")
    g(f"s_lshl_b32 s{sT1}, s{sI}, 16")
    g(f"s_add_u32 s{sPF}, s{sPF}, s{sT1}")
    g(f"s_and_b32 s{sT1}, s{sXCD}, 1")
    g(f"s_lshl_b32 s{sT1}, s{sT1}, 10")
    g(f"s_add_u32 s{sPF}, s{sPF}, s{sT1}")
    npf = [0]
    def wopf(n):
        for _ in range(n):
            g(f"s_add_u32 s{sT0}, s{sPF}, {npf[0]*2048:#x}")
            g(f"buffer_load_dwordx4 v[32:35], v{vLANE16}, s[{sWO}:{sWO+3}], s{sT0} offen {pfflag}")
            Q.append("PF"); npf[0] += 1
    if pretouch:
        def touch(expr_lines, base):
            for l in expr_lines: g(l)
            g(f"s_mul_i32 s{sT1}, s{sT1}, {FS}")
            g(f"s_add_u32 s{sT1}, s{sT1}, {base:#x}")
            g(f"s_add_u32 s{sPA}, s{sWS}, s{sT1}")
            g(f"s_addc_u32 s{sPA+1}, s{sWS+1}, 0")
            g(f"s_load_dword s{sRET}, s[{sPA}:{sPA+1}], 0 glc")
        touch([f"s_lshl_b32 s{sT1}, s{sGH}, 2", f"s_add_u32 s{sT1}, s{sT1}, s{sW4}"], F1)
        touch([f"s_mov_b32 s{sT1}, s{sGH}"], F2)
        touch([f"s_lshl_b32 s{sT1}, s{sRT}, 3", f"s_add_u32 s{sT1}, s{sT1}, s{sOH}", f"s_lshl_b32 s{sT1}, s{sT1}, 5", f"s_add_u32 s{sT1}, s{sT1}, s{sN0}",
               f"s_and_b32 s{sT2}, s{sW4}, 1", f"s_lshl_b32 s{sT2}, s{sT2}, 7", f"s_add_u32 s{sT1}, s{sT1}, s{sT2}",
               f"s_lshr_b32 s{sT2}, s{sW4}, 1", f"s_lshl_b32 s{sT2}, s{sT2}, 4", f"s_add_u32 s{sT1}, s{sT1}, s{sT2}"], F3)
        touch([f"s_lshl_b32 s{sT1}, s{sRT}, 4", f"s_add_u32 s{sT1}, s{sT1}, s{sN0}", f"s_lshl_b32 s{sT1}, s{sT1}, 2", f"s_add_u32 s{sT1}, s{sT1}, s{sOH}",
               f"s_lshl_b32 s{sT1}, s{sT1}, 1", f"s_and_b32 s{sT2}, s{sW4}, 1", f"s_add_u32 s{sT1}, s{sT1}, s{sT2}"], F4)
    order = ["K0", "K1", "V0"] + [x for s_ in range(1, 8) for x in ([f"K{s_+1}"] if s_ < 7 else []) + [f"V{s_}"]]
    todo = list(order)
    def issue(n):
        for _ in range(n):
            if todo: part(todo.pop(0))
    sJ = 24
    if jplan:
        g(f"s_cmp_eq_u32 s{sHQ}, 0")
        g(f"s_cselect_b32 s{sJ}, s{sK}, s{sV}")
        g(f"s_cselect_b32 s{sJ+1}, s{sK+1}, s{sV+1}")
        g(f"s_mov_b32 s{sJ+2}, {8*4*8192*128*2:#x}")
        g(f"s_mov_b32 s{sJ+3}, 0x20000")
    nj = [0]
    def junk(n):
        for _ in range(n):
            g(f"s_sub_u32 s{sT1}, {nj[0] + 1}, s{sHQ}")
            g(f"s_lshl_b32 s{sT1}, s{sT1}, 2")
            g(f"s_add_u32 s{sT1}, s{sT1}, s{sKQ}")
            g(f"s_lshl_b32 s{sT1}, s{sT1}, 2")
            g(f"s_add_u32 s{sT1}, s{sT1}, s{sW4}")
            g(f"s_lshl_b32 s{sT1}, s{sT1}, 12")
            g(f"s_add_u32 s{sT1}, s{sT1}, s{sKV}")
            for m in range(4):
                g(f"buffer_load_dwordx4 v[36:39], v{vLANE16}, s[{sJ}:{sJ+3}], s{sT1} offen offset:{1024*m}")
                Q.append("J")
            nj[0] += 1
    for k in range(8):
        need(f"S{k}")
        if k >= 1: g.ts(6 + k, 5)
        g("s_barrier")
        if k == 0: g.ts(1)
        if k + LA < 8: stage(k + LA)
        wopf(pffront.get(k, 0))
        issue(early.get(k, 0))
        junk(jplan.get(k, 0))
    g.ts(2)
    g.nonce_issue()
    g(f"s_lshl_b32 s{sBASE0}, s{sOH}, 21")
    g(f"s_lshl_b32 s{sT1}, s{sW4}, 14")
    g(f"s_add_u32 s{sBASE0}, s{sBASE0}, s{sT1}")
    g(f"s_lshl_b32 s{sT1}, s{sN0}, 7")
    g(f"s_add_u32 s{sBASE0}, s{sBASE0}, s{sT1}")
    def bpart(pos):
        slot = ([4, 0, 1, 2] if NKS == 4 else [3, 4, 0, 1])[pos]
        g(f"s_add_u32 s{sT1}, s{sRT}, {pos}")
        g(f"s_and_b32 s{sT1}, s{sT1}, 3")
        g(f"s_lshl_b32 s{sT1}, s{sT1}, 19")
        g(f"s_add_u32 s{sT1}, s{sT1}, s{sBASE0}")
        for m in range(8):
            g.dma(vWOO, sWO, sT1, 32*m*2048, sLW1K, slot*32768 + 4096*m, bflag)
            Q.append(f"B{pos}")
    g.nonce_finish()
    g("s_barrier")
    g.ts(3)
    issue(nq1)
    junk(jplan.get(8, 0))
    g("s_barrier")
    g.ts(4)
    while len(order) - len(todo) < 3: issue(1)
    need("K0")
    g("s_barrier")
    g.ts(5)
    for s in range(0, 8):
        la = s + 1 + (NKS - 4)
        lim = order.index(f"V{la}") + 1 if la <= 7 else len(order)
        while len(order) - len(todo) < lim: issue(1)
        wopf(pfplan.get(s, 0))
        for pos in bplan.get(s, ()): bpart(pos)
        if s < 7: need(f"K{s+1}", f"V{s}")
        else: need("V7")
        if s >= 1: g.ts(6 + s, 2)
        g("s_barrier")
    g.ts(11, 3)
    for pos in bplan.get(8, ()): bpart(pos)
    if 9 in bplan:
        g("s_barrier")
        wopf(pfplan.get(9, 0))
        for pos in bplan[9]: bpart(pos)
    g.ts(6)
    if g.debug == 3:
        g("s_waitcnt vmcnt(16)"); g.ts(12, 3)
        g("s_waitcnt vmcnt(0)"); g.ts(13, 3)
    g("s_branch L_BACK")

    g.lab("L_CWAVE")
    g("s_waitcnt lgkmcnt(0)")
    g.srd_ws(wsoff)
    g.srd(sDBG, 28, 256)
    g(f"s_or_b32 s{sT0}, s2, s{sWAVE}")
    g(f"s_cmp_lg_u32 s{sT0}, 0")
    g("s_cbranch_scc1 L_NOPUB")
    g(f"s_memrealtime s[{sN}:{sN+1}]")
    g("s_waitcnt lgkmcnt(0)")
    g(f"s_or_b32 s{sN}, s{sN}, 1")
    g(f"s_xor_b32 s{sN+1}, s{sN+1}, 0x5bd1e995")
    g(f"v_mov_b32 v{vNON}, s{sN}")
    g(f"v_mov_b32 v{vNON+1}, s{sN+1}")
    g(f"v_mov_b32 v{vA3}, 0")
    g(f"buffer_store_dwordx2 v[{vNON}:{vNON+1}], v{vA3}, s[{sDBG}:{sDBG+3}], 0 offen sc1")
    g.lab("L_NOPUB")
    if codepf:
        g(f"s_cmp_lg_u32 s{sWAVE}, 1")
        g("s_cbranch_scc1 L_NOPF")
        g(f"s_getpc_b64 s[{sPA}:{sPA+1}]")
        g.lab("L_PC")
        g(f"s_lshl_b32 s{sT0}, s{sI}, 10")
        g(f"s_min_u32 s{sT0}, s{sT0}, L_CODE_END-L_PC-1024")
        g(f"v_add_u32 v{vA0}, s{sT0}, v{vLANE16}")
        g(f"global_load_dwordx4 v[{vS}:{vS+3}], v{vA0}, s[{sPA}:{sPA+1}]")
        g.lab("L_NOPF")
    g.ts(0)
    g.srd(sOUT, 26, 8*32*1024*2)
    g(f"s_and_b32 s{sT0}, s{sW4}, 1")
    g(f"s_lshl_b32 s{sT0}, s{sT0}, 13")
    g("v_and_b32 v20, 15, v0")
    g("v_lshrrev_b32 v21, 4, v0")
    g("v_xor_b32 v22, v20, v21")
    g(f"v_lshlrev_b32 v23, 8, v20")
    g(f"v_add_u32 v23, s{sT0}, v23")
    for s in range(4):
        g(f"v_xor_b32 v24, {4*s}, v22")
        g(f"v_lshl_add_u32 v{vKA+s}, v24, 4, v23")
    g("v_lshrrev_b32 v22, 2, v20")
    g("v_lshl_add_u32 v23, v21, 3, v22")
    g("v_lshlrev_b32 v23, 7, v23")
    g("v_and_b32 v24, 3, v0")
    g(f"s_lshr_b32 s{sT0}, s{sW4}, 1")
    g(f"s_lshl_b32 s{sT0}, s{sT0}, 2")
    g(f"v_add_u32 v24, s{sT0}, v24")
    g("v_lshlrev_b32 v26, 1, v22")
    g("v_and_b32 v26, 4, v26")
    g("v_xor_b32 v24, v24, v26")
    g("v_lshl_add_u32 v23, v24, 4, v23")
    g(f"v_add_u32 v{vVA}, 16384, v23")
    nq0 = len(g.L)
    acc = vO
    fr = 16
    cur = [0]
    def setbase(regs, want):
        if want != cur[0]:
            g(f"s_mov_b32 s{sT0}, {(want - cur[0]) & 0xffffffff:#x}")
            for r in regs: g(f"v_add_u32 v{r}, s{sT0}, v{r}")
            cur[0] = want
    for k in range(8):
        slot = qslot(k)
        setbase(list(range(vKA, vKA+4)) + [vVA], (slot >> 1) * 65536)
        io = (slot & 1) * 32768
        if k >= 1: g.ts(6 + k, 5)
        g("s_barrier")
        if k == 0: g.ts(1)
        def rd(s):
            b = fr + 16*s
            for nt in range(2):
                g(f"ds_read_b64_tr_b16 v[{b+4*nt}:{b+4*nt+1}], v{vVA} offset:{io + 4096*s + 8*nt}")
                g(f"ds_read_b64_tr_b16 v[{b+4*nt+2}:{b+4*nt+3}], v{vVA} offset:{io + 4096*s + 512 + 8*nt}")
                g(f"ds_read_b128 v[{b+8+4*nt}:{b+11+4*nt}], v{vKA+s} offset:{io + 4096*nt}")
        rd(0); rd(1)
        for s in range(4):
            b = fr + 16*s
            g(f"s_waitcnt lgkmcnt({6 if s < 3 else 0})")
            first = (k == 0 and s == 0)
            mfma16(g, acc, b, b+8, None if first else acc)
            if s + 2 < 4: rd(s + 2)
            mfma16(g, acc+8, b, b+12, None if first else acc+8)
            mfma16(g, acc+4, b+4, b+8, None if first else acc+4)
            mfma16(g, acc+12, b+4, b+12, None if first else acc+12)
    if emuq: g.L = g.L[:nq0] + emu16(g.L[nq0:])
    g.ts(2)
    g.nonce_issue()
    g(f"s_and_b32 s{sT0}, s{sW4}, 1")
    g(f"s_lshl_b32 s{sT1}, s{sRT}, 1")
    g(f"s_add_u32 s{sT1}, s{sT1}, s{sT0}")
    g(f"s_lshl_b32 s{sT1}, s{sT1}, 5")
    g(f"s_lshr_b32 s{sT2}, s{sCT}, 1")
    g(f"s_add_u32 s{sT1}, s{sT1}, s{sT2}")
    g(f"s_and_b32 s{sT2}, s{sCT}, 1")
    g(f"s_lshl_b32 s{sT2}, s{sT2}, 1")
    g(f"s_lshr_b32 s{sT3}, s{sW4}, 1")
    g(f"s_add_u32 s{sT2}, s{sT2}, s{sT3}")
    g(f"s_lshl_b32 s{sBASE0}, s{sT1}, 13")
    g(f"s_lshl_b32 s{sT3}, s{sT2}, 10")
    g(f"s_add_u32 s{sBASE0}, s{sBASE0}, s{sT3}")
    g(f"s_add_u32 s{sKV}, s{sBASE0}, 4096")
    g(f"s_mul_i32 s{sBASE1}, s{sT1}, {FS}")
    g(f"s_lshl_b32 s{sT3}, s{sT2}, 3")
    g(f"s_add_u32 s{sBASE1}, s{sBASE1}, s{sT3}")
    g(f"s_add_u32 s{sBASE1}, s{sBASE1}, {F1:#x}")
    g(f"s_mov_b32 s{sT0}, {f2u(C_SCALE):#x}")
    for u in range(16):
        g(f"v_mul_f32 v{acc+u}, s{sT0}, v{acc+u}")
    for u in range(8):
        g(f"v_cvt_pk_bf16_f32 v{16+u}, v{acc+2*u}, v{acc+2*u+1}")
    g(f"buffer_store_dwordx4 v[16:19], v{vLANE16}, s[{sWS}:{sWS+3}], s{sBASE0} offen sc1")
    g(f"buffer_store_dwordx4 v[20:23], v{vLANE16}, s[{sWS}:{sWS+3}], s{sKV} offen sc1")
    att_setup(g)
    g(f"s_lshl_b32 s{sT2}, s{sGH}, 2")
    g(f"s_add_u32 s{sT2}, s{sT2}, s{sW4}")
    g(f"s_lshl_b32 s{sBASE0}, s{sT2}, 13")
    g(f"s_mul_i32 s{sT2}, s{sT2}, {FS}")
    g(f"s_add_u32 s{sT2}, s{sT2}, {F1:#x}")
    g.nonce_finish()
    g("s_waitcnt vmcnt(0)")
    g.flag(sBASE1)
    g("s_barrier")
    g.ts(3)
    g.spoll4(sT2)
    g.ts(4)
    for s in range(8):
        if s == 4: g(f"s_add_u32 s{sBASE0}, s{sBASE0}, 4096")
        g(f"buffer_load_dwordx4 v[{vQ+4*s}:{vQ+4*s+3}], v{vLANE16}, s[{sWS}:{sWS+3}], s{sBASE0} offen offset:{1024*(s&3)} {qf}")
    g("s_barrier")
    if cprio: g(f"s_setprio {cprio}")
    g("s_barrier")
    n0 = len(g.L)
    att_loop(g, dict(nks=NKS, tail=ptail, **attO))
    if nosum: g.L = g.L[:n0] + [l for l in g.L[n0:] if f'v[{vONE}:{vONE+3}]' not in l or 'v[219' in l]
    def stamp6():
        g.ts(6)
        if g.debug and g.debug not in (7, 9):
            g("s_memtime s[100:101]")
            g("s_waitcnt lgkmcnt(0)")
            g(f"s_sub_u32 s{sTS+15}, s100, s{sTS+15}")
        if cprio: g("s_setprio 0")
    if not ptail: stamp6()
    Pl = vP + 8
    def pv(p):
        if p == 0: g("s_waitcnt lgkmcnt(8)")
        if p == 2: g("s_waitcnt lgkmcnt(0)")
        for sl in range(4*p, 4*p + 4): g(g.pmf(Pl, sl))
    if ptail:
        pv(0); g(g.m16(vLS, vONE, Pl, vLS)); g(g.m16(vLS+4, vONE, Pl+4, vLS+4)); pv(1)
    LSC = 98304 if NKS == 4 else 65536
    sh_own, sh_w4, sh_fi, sh_sp = ((15, 13, 12, 10), (13, 11, 10, 15), (15, 11, 10, 13))[polay]
    vEG, vEL = 246, 247
    g(f"s_lshl_b32 s{sBASE0}, s{sGH}, 17")
    g(f"s_lshl_b32 s{sT0}, s{sW4}, {sh_w4}")
    g(f"s_add_u32 s{sBASE0}, s{sBASE0}, s{sT0}")
    g(f"s_lshl_b32 s{sT0}, s{sKQ}, {sh_sp}")
    g(f"s_add_u32 s{sBASE0}, s{sBASE0}, s{sT0}")
    g(f"s_add_u32 s{sBASE0}, s{sBASE0}, {PO:#x}")
    g(f"v_and_b32 v{vT3}, 15, v0")
    g(f"v_bfe_u32 v{vT4}, v0, 4, 1")
    g(f"v_lshl_add_u32 v{vT3}, v{vT4}, 5, v{vT3}")
    g(f"v_lshlrev_b32 v{vT3}, 4, v{vT3}")
    g(f"v_lshrrev_b32 v{vEL}, 5, v0")
    g(f"v_lshl_add_u32 v{vEG}, v{vEL}, {sh_fi}, v{vT3}")
    g(f"v_lshl_add_u32 v{vEL}, v{vEL}, 10, v{vT3}")
    g(f"s_lshl_b32 s{sT3}, s{sW4}, 11")
    g(f"s_add_u32 s{sT3}, s{sT3}, {LSC}")
    g(f"v_add_u32 v{vEL}, s{sT3}, v{vEL}")
    if ptail: pv(2)
    for o in range(4):
        if ptail and o == 2: stamp6()
        for hf in range(2):
            src = vO + 32*hf + 8*o; dst = vKR + 8*o + 4*hf
            for u in range(4):
                g(f"v_cvt_pk_bf16_f32 v{dst+u}, v{src+2*u}, v{src+2*u+1}")
        if ptail and o == 0: pv(3)
        lo = g.newlab("LOC"); nx = g.newlab("NXT")
        dst = vKR + 8*o
        g(f"s_cmp_eq_u32 s{sKQ}, {o}")
        g(f"s_cbranch_scc1 {lo}")
        g(f"s_add_u32 s{sT0}, s{sBASE0}, {o << sh_own:#x}")
        g(f"buffer_store_dwordx4 v[{dst}:{dst+3}], v{vEG}, s[{sWS}:{sWS+3}], s{sT0} offen {wf}")
        g(f"buffer_store_dwordx4 v[{dst+4}:{dst+7}], v{vEG}, s[{sWS}:{sWS+3}], s{sT0} offen offset:256 {wf}")
        g(f"s_branch {nx}")
        g.lab(lo)
        g(f"ds_write_b128 v{vEL}, v[{dst}:{dst+3}]")
        g(f"ds_write_b128 v{vEL}, v[{dst+4}:{dst+7}] offset:256")
        g.lab(nx)
        if o == 1:
            g(f"s_lshl_b32 s{sT1}, s{sGH}, 2")
            g(f"s_add_u32 s{sT1}, s{sT1}, s{sW4}")
            g(f"s_lshl_b32 s{sT2}, s{sT1}, 10")
            g(f"s_lshl_b32 s{sT3}, s{sKQ}, 8")
            g(f"s_add_u32 s{sT2}, s{sT2}, s{sT3}")
            g(f"s_add_u32 s{sT2}, s{sT2}, {ST:#x}")
            g(f"v_cmp_ne_u32 vcc, 0, v{vT4}")
            g(f"v_and_b32 v{vA0}, 31, v0")
            g(f"v_lshlrev_b32 v{vA0}, 3, v{vA0}")
            g(f"v_cndmask_b32 v{vT0}, v{vNEG}, v{vNEG+4}, vcc")
            g(f"v_cndmask_b32 v{vT1}, v{vLS}, v{vLS+4}, vcc")
            g(f"v_sub_f32 v{vT0}, 0, v{vT0}")
            g(f"s_lshl_b32 s{sT3}, s{sW4}, 8")
            g(f"s_add_u32 s{sT3}, s{sT3}, {LSC + 8192}")
            g(f"v_add_u32 v{vA2}, s{sT3}, v{vA0}")
            g(f"buffer_store_dwordx2 v[{vT0}:{vT1}], v{vA0}, s[{sWS}:{sWS+3}], s{sT2} offen {wf}")
            g(f"ds_write_b64 v{vA2}, v[{vT0}:{vT1}]")
    if 9 in bplan: g("s_barrier")

    g.lab("L_BACK")
    sBB, sHP = sCT, sK0
    g(f"s_and_b32 s{sBB}, s{sWAVE}, 1")
    g(f"s_lshr_b32 s{sHP}, s{sWAVE}, 1")
    g(f"s_sub_u32 s{sT0}, s{sHP}, s{sRT}")
    g(f"s_and_b32 s{sT0}, s{sT0}, 3")
    if NKS == 4:
        g(f"s_sub_u32 s{sT2}, s{sT0}, 1")
        g(f"s_cmp_eq_u32 s{sT0}, 0")
        g(f"s_cselect_b32 s{sT2}, 4, s{sT2}")
    else:
        g(f"s_sub_u32 s{sT2}, s{sT0}, 2")
        g(f"s_add_u32 s{sT3}, s{sT0}, 3")
        g(f"s_cmp_lt_u32 s{sT0}, 2")
        g(f"s_cselect_b32 s{sT2}, s{sT3}, s{sT2}")
    g(f"s_lshl_b32 s{sT2}, s{sT2}, 15")
    g("v_lshrrev_b32 v4, 5, v0")
    g("v_bfe_u32 v5, v0, 2, 2")
    g("v_lshl_add_u32 v6, v4, 2, v5")
    g("v_lshlrev_b32 v6, 7, v6")
    g("v_and_b32 v7, 1, v0")
    g("v_lshl_add_u32 v6, v7, 3, v6")
    g(f"v_add_u32 v6, s{sT2}, v6")
    g("v_bfe_u32 v7, v0, 1, 1")
    g("v_bfe_u32 v8, v0, 4, 1")
    g("v_lshl_add_u32 v7, v8, 1, v7")
    g("v_lshlrev_b32 v5, 1, v5")
    g("v_and_b32 v5, 4, v5")
    g("v_xor_b32 v7, v7, v5")
    g(f"v_lshl_add_u32 v{vKA}, v7, 4, v6")
    g("v_xor_b32 v7, 4, v7")
    g(f"v_lshl_add_u32 v{vKA+1}, v7, 4, v6")
    g(f"s_lshl_b32 s{sT1}, s{sGH}, 2")
    g(f"s_add_u32 s{sT1}, s{sT1}, s{sW4}")
    g(f"s_lshl_b32 s{sBASE1}, s{sT1}, 10")
    g(f"s_add_u32 s{sBASE1}, s{sBASE1}, {ST:#x}")
    g(f"s_lshl_b32 s{sBASE0}, s{sGH}, 17")
    g(f"s_lshl_b32 s{sT0}, s{sKQ}, {sh_own}")
    g(f"s_add_u32 s{sBASE0}, s{sBASE0}, s{sT0}")
    g(f"s_lshl_b32 s{sT0}, s{sW4}, {sh_w4}")
    g(f"s_add_u32 s{sBASE0}, s{sBASE0}, s{sT0}")
    g(f"s_lshl_b32 s{sT0}, s{sROLE}, {sh_fi}")
    g(f"s_add_u32 s{sBASE0}, s{sBASE0}, s{sT0}")
    g(f"s_add_u32 s{sBASE0}, s{sBASE0}, {PO:#x}")
    g(f"v_and_b32 v{vA0}, 31, v0")
    g(f"v_lshlrev_b32 v{vA0}, 3, v{vA0}")
    g(f"s_lshl_b32 s{sT0}, s{sW4}, 11")
    g(f"s_lshl_b32 s{sT2}, s{sROLE}, 10")
    g(f"s_add_u32 s{sT0}, s{sT0}, s{sT2}")
    g(f"s_add_u32 s{sT0}, s{sT0}, {LSC}")
    g(f"v_add_u32 v{vA1}, s{sT0}, v{vLANE16}")
    g(f"s_lshl_b32 s{sT0}, s{sW4}, 8")
    g(f"s_add_u32 s{sT0}, s{sT0}, {LSC + 8192}")
    g(f"v_add_u32 v{vA2}, s{sT0}, v{vA0}")
    g(f"s_mul_i32 s{sT2}, s{sGH}, {FS}")
    g(f"s_add_u32 s{sT2}, s{sT2}, {F2:#x}")
    g(f"s_lshl_b32 s{sT3}, s{sKQ}, 3")
    g(f"s_add_u32 s{sT3}, s{sT3}, s{sT2}")
    g("s_waitcnt vmcnt(0) lgkmcnt(0)")
    g.ts(7)
    g("s_barrier")
    g.ts(7, 4)
    vB = 112
    def bread():
        cnt = 0
        for n in range(16):
            for nt in range(2):
                b = vB + (n*2+nt)*4
                row = 32*(n >> 1) + 8*(n & 1)
                g(f"ds_read_b64_tr_b16 v[{b}:{b+1}], v{vKA+nt} offset:{128*row}")
                g(f"ds_read_b64_tr_b16 v[{b+2}:{b+3}], v{vKA+nt} offset:{128*(row+16)}")
                cnt += 2
                if cnt % 8 == 0: g("s_waitcnt lgkmcnt(5)")
        g("s_waitcnt lgkmcnt(0)")
    g(f"ds_read_b64 v[16:17], v{vA2}")
    g(f"ds_read_b128 v[48:51], v{vA1}")
    g(f"s_cmp_lg_u32 s{sWAVE}, {pw2}")
    g("s_cbranch_scc1 L_NOF2")
    g.flag(sT3)
    if pfirst:
        g.vpoll4(sT2, vp) if vp else g.spoll4(sT2)
        g("s_branch L_NOP2")
    g.lab("L_NOF2")
    bread()
    if not pfirst:
        g(f"s_cmp_lg_u32 s{sWAVE}, {pw2}")
        g("s_cbranch_scc1 L_NOP2")
        g.vpoll4(sT2, vp) if vp else g.spoll4(sT2)
    g.lab("L_NOP2")
    g("s_barrier")
    g.ts(8); g.ts(8, 4)
    for e in range(1, 4):
        g(f"s_add_u32 s{sT0}, s{sKQ}, {e}")
        g(f"s_and_b32 s{sT0}, s{sT0}, 3")
        g(f"s_lshl_b32 s{sT2}, s{sT0}, 8")
        g(f"s_add_u32 s{sT2}, s{sT2}, s{sBASE1}")
        g(f"buffer_load_dwordx2 v[{16+2*e}:{17+2*e}], v{vA0}, s[{sWS}:{sWS+3}], s{sT2} offen {rf}")
    for e in range(1, 4):
        g(f"s_add_u32 s{sT0}, s{sKQ}, {e}")
        g(f"s_and_b32 s{sT0}, s{sT0}, 3")
        g(f"s_lshl_b32 s{sT2}, s{sT0}, {sh_sp}")
        g(f"s_add_u32 s{sT2}, s{sT2}, s{sBASE0}")
        g(f"buffer_load_dwordx4 v[{48+4*e}:{51+4*e}], v{vLANE16}, s[{sWS}:{sWS+3}], s{sT2} offen {rf}")
    g(f"s_lshl_b32 s{sT0}, s{sT1}, 13")
    g(f"s_lshl_b32 s{sT2}, s{sKQ}, 11")
    g(f"s_add_u32 s{sT0}, s{sT0}, s{sT2}")
    g(f"s_lshl_b32 s{sT2}, s{sROLE}, 10")
    g(f"s_add_u32 s{sT0}, s{sT0}, s{sT2}")
    g(f"s_add_u32 s{sT1}, s{sT0}, {OF:#x}")
    g(f"s_lshl_b32 s{sT0}, s{sRT}, 1")
    g(f"s_add_u32 s{sT0}, s{sT0}, s{sBB}")
    g(f"s_lshl_b32 s{sT0}, s{sT0}, 2")
    g(f"s_add_u32 s{sT0}, s{sT0}, s{sOH}")
    g(f"s_lshl_b32 s{sBASE0}, s{sT0}, 16")
    g(f"s_lshl_b32 s{sT2}, s{sHP}, 14")
    g(f"s_add_u32 s{sBASE0}, s{sBASE0}, s{sT2}")
    g(f"s_add_u32 s{sBASE0}, s{sBASE0}, {OF:#x}")
    g(f"s_mul_i32 s{sT2}, s{sGH}, {16*FS}")
    g(f"s_lshl_b32 s{sT3}, s{sKQ}, 3")
    g(f"s_add_u32 s{sT2}, s{sT2}, s{sT3}")
    g(f"s_add_u32 s{sT2}, s{sT2}, {F3:#x}")
    g(f"v_mul_u32_u24 v{vA3}, {FS}, v0")
    g(f"v_add_u32 v{vA3}, s{sT2}, v{vA3}")
    g(f"s_lshl_b32 s{sT0}, s{sRT}, 3")
    g(f"s_add_u32 s{sT0}, s{sT0}, s{sOH}")
    g(f"s_lshl_b32 s{sT0}, s{sT0}, 5")
    g(f"s_add_u32 s{sT0}, s{sT0}, s{sN0}")
    g(f"s_mul_i32 s{sBASE1}, s{sT0}, {FS}")
    g(f"s_add_u32 s{sBASE1}, s{sBASE1}, {F3:#x}")
    if pfirst:
        g(f"s_cmp_lg_u32 s{sWAVE}, {pw2}")
        g("s_cbranch_scc1 L_NOB")
        bread()
        g.lab("L_NOB")
    for u in range(4):
        g(f"v_lshlrev_b32 v{32+2*u}, 16, v{48+u}")
        g(f"v_and_b32 v{33+2*u}, 0xffff0000, v{48+u}")
    g("s_waitcnt vmcnt(3)")
    g.ts(9, 4)
    g("v_max3_f32 v24, v16, v18, v20")
    g("v_max_f32 v24, v22, v24")
    for s in range(4): g(f"v_sub_f32 v{16+2*s}, v{16+2*s}, v24")
    for s in range(4): g(f"v_exp_f32 v{16+2*s}, v{16+2*s}")
    g("s_nop 0")
    g("v_mul_f32 v24, v16, v17")
    g("v_fmac_f32 v24, v18, v19")
    g("v_fmac_f32 v24, v20, v21")
    g("v_fmac_f32 v24, v22, v23")
    g("v_rcp_f32 v24, v24")
    g("s_nop 0")
    for s in range(4): g(f"v_mul_f32 v{16+2*s}, v{16+2*s}, v24")
    for c in range(8): g(f"v_mul_f32 v{32+c}, v{32+c}, v16")
    if debug == 4:
        g("s_waitcnt vmcnt(0)"); g.ts(10, 4)
    for s in range(1, 4):
        g(f"s_waitcnt vmcnt({3 - s})")
        for u in range(4):
            src = 48 + 4*s + u
            g(f"v_lshlrev_b32 v28, 16, v{src}")
            g(f"v_and_b32 v29, 0xffff0000, v{src}")
            g(f"v_fmac_f32 v{32+2*u}, v28, v{16+2*s}")
            g(f"v_fmac_f32 v{33+2*u}, v29, v{16+2*s}")
    for u in range(4):
        g(f"v_cvt_pk_bf16_f32 v{40+u}, v{32+2*u}, v{33+2*u}")
    g.ts(11, 4)
    g(f"buffer_store_dwordx4 v[40:43], v{vLANE16}, s[{sWS}:{sWS+3}], s{sT1} offen {wf}")
    g("s_waitcnt vmcnt(0)")
    g.ts(12, 4)
    g("s_barrier")
    g.ts(13, 4)
    g.ts(9)
    g(f"s_cmp_lg_u32 s{sWAVE}, 4")
    g("s_cbranch_scc1 L_NOP3")
    g("s_mov_b64 exec, 0xffff")
    g(f"buffer_store_dwordx2 v[{vNON}:{vNON+1}], v{vA3}, s[{sWS}:{sWS+3}], 0 offen sc1")
    g("s_mov_b64 exec, -1")
    if not f3wave: g.spollN(sBASE1, (0, 16*FS, 128*FS, 144*FS))
    g.lab("L_NOP3")
    g(f"s_lshl_b32 s{sT0}, s{sWAVE}, 13")
    g(f"v_add_u32 v{vA0}, s{sT0}, v{vLANE16}")
    g(f"s_lshl_b32 s{sT0}, s{sBB}, 13")
    g(f"s_lshl_b32 s{sT1}, s{sHP}, 11")
    g(f"s_add_u32 s{sT0}, s{sT0}, s{sT1}")
    g(f"v_add_u32 v{vA1}, s{sT0}, v{vLANE16}")
    if aprio:
        g(f"s_xor_b32 s{sT0}, s{sN0}, s{sROLE}")
        g(f"s_bitcmp1_b32 s{sT0}, 0")
        g("s_cbranch_scc0 L_NOPRIO")
        g("s_setprio 3")
        g.lab("L_NOPRIO")
    if f3wave:
        g(f"s_mul_i32 s{sT0}, s{sBB}, {128*FS}")
        g(f"s_mul_i32 s{sT1}, s{sROLE}, {16*FS}")
        g(f"s_add_u32 s{sBASE1}, s{sBASE1}, s{sT0}")
        g(f"s_add_u32 s{sBASE1}, s{sBASE1}, s{sT1}")
        g.vpoll4(sBASE1, vp) if vp else g.spoll4(sBASE1)
    else:
        g("s_barrier")
    g.ts(10)
    vA = 16
    if apf:
        g(f"s_and_b32 s{sT0}, s{sN0}, 7")
        g(f"s_lshl_b32 s{sT0}, s{sT0}, 11")
        g(f"s_add_u32 s{sT0}, s{sT0}, s{sBASE0}")
        g(f"buffer_load_dwordx4 v[4:7], v{vLANE16}, s[{sWS}:{sWS+3}], s{sT0} offen {rf}")
        g(f"buffer_load_dwordx4 v[4:7], v{vLANE16}, s[{sWS}:{sWS+3}], s{sT0} offen offset:1024 {rf}")
    for n in range(16):
        if n and n % 4 == 0: g(f"s_add_u32 s{sBASE0}, s{sBASE0}, 4096")
        g(f"buffer_load_dwordx4 v[{vA+4*n}:{vA+4*n+3}], v{vLANE16}, s[{sWS}:{sWS+3}], s{sBASE0} offen offset:{1024*(n&3)} {rf}")
    g(f"s_lshl_b32 s{sT2}, s{sBB}, 1")
    g(f"s_lshr_b32 s{sT3}, s{sHP}, 1")
    g(f"s_add_u32 s{sT2}, s{sT2}, s{sT3}")
    g(f"s_lshl_b32 s{sT0}, s{sRT}, 4")
    g(f"s_add_u32 s{sT0}, s{sT0}, s{sN0}")
    g(f"s_lshl_b32 s{sT0}, s{sT0}, 2")
    g(f"s_add_u32 s{sT0}, s{sT0}, s{sT2}")
    g(f"s_lshl_b32 s{sT0}, s{sT0}, 1")
    g(f"s_and_b32 s{sT1}, s{sHP}, 1")
    g(f"s_add_u32 s{sT0}, s{sT0}, s{sT1}")
    g(f"s_lshl_b32 s{sBASE0}, s{sT0}, 14")
    g(f"s_add_u32 s{sBASE0}, s{sBASE0}, {OP:#x}")
    g(f"s_mul_i32 s{sBASE1}, s{sT0}, {FS}")
    g(f"s_add_u32 s{sBASE1}, s{sBASE1}, {F4:#x}")
    g(f"s_lshl_b32 s{sT3}, s{sOH}, 3")
    g(f"s_add_u32 s{sT3}, s{sT3}, s{sBASE1}")
    vD = 80
    for n in range(16):
        g(f"s_waitcnt vmcnt({15-n})")
        for nt in range(2):
            mfma(g, vD+16*nt, vB + (n*2+nt)*4, vA+4*n, None if n == 0 else vD+16*nt)
    g.ts(11)
    g(f"v_mov_b32 v51, s{sN}")
    g(f"v_mov_b32 v55, s{sN}")
    g(f"v_mov_b32 v58, 0")
    g(f"v_mov_b32 v59, s{sN}")
    g("v_and_b32 v24, 31, v0")
    g("v_lshrrev_b32 v25, 5, v0")
    g("v_lshlrev_b32 v24, 11, v24")
    g(f"v_lshl_add_u32 v{vA2}, v25, 3, v24")
    g("s_nop 2")
    for q in range(8):
        g(f"ds_write_b128 v{vA0}, v[{vD+4*q}:{vD+4*q+3}] offset:{1024*q}")
    g("s_waitcnt lgkmcnt(0)")
    g("s_barrier")
    for hp2 in range(4):
        for e in range(2):
            g(f"ds_read_b128 v[{16+8*hp2+4*e}:{19+8*hp2+4*e}], v{vA1} offset:{16384*hp2 + 1024*e}")
    res = [48, 49, 50, 52, 53, 54, 56, 57]
    g("s_waitcnt lgkmcnt(4)")
    for c in range(8): g(f"v_add_f32 v{16+c}, v{16+c}, v{24+c}")
    g("s_waitcnt lgkmcnt(0)")
    for c in range(8): g(f"v_add_f32 v{32+c}, v{32+c}, v{40+c}")
    for c in range(8): g(f"v_add_f32 v{res[c]}, v{16+c}, v{32+c}")
    g.ts(12)
    g(f"s_cmp_eq_u32 s{sT2}, s{sOH}")
    g("s_cbranch_scc1 L_OWN")
    g(f"s_lshl_b32 s{sT0}, s{sOH}, 12")
    g(f"s_add_u32 s{sT0}, s{sT0}, s{sBASE0}")
    for j in range(3):
        g(f"buffer_store_dwordx4 v[{48+4*j}:{51+4*j}], v{vLANE16}, s[{sWS}:{sWS+3}], s{sT0} offen offset:{1024*j} {wf}")
    if ophint: g.flag(sT3)
    g("s_branch L_FIN")
    g.lab("L_OWN")
    if ophint: g.flag(sT3)
    g(f"s_lshl_b32 s{sT2}, s{sRT}, 1")
    g(f"s_add_u32 s{sT2}, s{sT2}, s{sBB}")
    g(f"s_lshl_b32 s{sT2}, s{sT2}, 16")
    g(f"s_lshl_b32 s{sT1}, s{sN0}, 7")
    g(f"s_add_u32 s{sT2}, s{sT2}, s{sT1}")
    g(f"s_lshl_b32 s{sT1}, s{sHP}, 5")
    g(f"s_add_u32 s{sT2}, s{sT2}, s{sT1}")
    if ophint: g.vpoll4(sBASE1, vp) if vp else g.spoll4(sBASE1)
    g.ts(13)
    g(f"s_mov_b32 s{sCNT}, 0")
    g.lab("L_OPL")
    for e in range(1, 4):
        g(f"s_add_u32 s{sT0}, s{sOH}, {e}")
        g(f"s_and_b32 s{sT0}, s{sT0}, 3")
        g(f"s_lshl_b32 s{sT0}, s{sT0}, 12")
        g(f"s_add_u32 s{sT0}, s{sT0}, s{sBASE0}")
        for j in range(3):
            r = 60 + 12*(e-1) + 4*j
            g(f"buffer_load_dwordx4 v[{r}:{r+3}], v{vLANE16}, s[{sWS}:{sWS+3}], s{sT0} offen offset:{1024*j} {rf}")
    g(f"s_add_u32 s{sCNT}, s{sCNT}, 1")
    g("s_waitcnt vmcnt(0)")
    tags = [63 + 4*k for k in range(9)]
    g(f"v_min3_u32 v16, v{tags[0]}, v{tags[1]}, v{tags[2]}")
    g(f"v_max3_u32 v17, v{tags[0]}, v{tags[1]}, v{tags[2]}")
    for k in (3, 5, 7):
        g(f"v_min3_u32 v16, v{tags[k]}, v{tags[k+1]}, v16")
        g(f"v_max3_u32 v17, v{tags[k]}, v{tags[k+1]}, v17")
    g(f"v_xor_b32 v16, s{sN}, v16")
    g(f"v_xor_b32 v17, s{sN}, v17")
    g("v_or_b32 v16, v16, v17")
    g("v_cmp_ne_u32 vcc, 0, v16")
    g("s_cbranch_vccz L_OPD")
    g(f"s_cmp_lt_u32 s{sCNT}, {g.limit:#x}")
    g("s_cbranch_scc1 L_OPL")
    g.lab("L_OPD")
    for e in range(3):
        for c in range(8):
            g(f"v_add_f32 v{res[c]}, v{res[c]}, v{res[c] + 12*(e+1)}")
    for u in range(4):
        g(f"v_cvt_pk_bf16_f32 v{16+u}, v{res[2*u]}, v{res[2*u+1]}")
    g(f"buffer_store_dwordx2 v[16:17], v{vA2}, s[{sOUT}:{sOUT+3}], s{sT2} offen {outflag}")
    g(f"buffer_store_dwordx2 v[18:19], v{vA2}, s[{sOUT}:{sOUT+3}], s{sT2} offen offset:16 {outflag}")
    g.lab("L_FIN")
    if span:
        g("s_sub_u32 s100, s2, 128")
        g("s_cmp_ge_u32 s100, 2")
        g("s_cbranch_scc1 L_END")
        g(f"s_cmp_lg_u32 s{sWAVE}, 0")
        g("s_cbranch_scc1 L_END")
        g("s_waitcnt vmcnt(0)")
        g.ts(14)
        g.srd(sDBG, 28, 256)
        g("s_sub_u32 s100, s2, 128")
        g("s_mul_i32 s100, s100, 28")
        g("s_add_u32 s100, s100, 8")
        g("v_mov_b32 v17, s100")
        g("s_mov_b64 exec, 1")
        for k, n in enumerate((0, 2, 5, 6, 8, 10, 14)):
            g(f"s_sub_u32 s101, s{sTS+n}, s{sN}")
            g(f"v_mov_b32 v{18+k}, s101")
            g(f"buffer_store_dword v{18+k}, v17, s[{sDBG}:{sDBG+3}], 0 offen offset:{4*k}")
        g("s_branch L_END")
    if debug:
        g("s_waitcnt vmcnt(0)")
        g.ts(14)
        g(f"s_lshl_b32 s{sT0}, s2, 3")
        g(f"s_add_u32 s{sT0}, s{sT0}, s{sWAVE}")
        g(f"s_lshl_b32 s{sT0}, s{sT0}, 6")
        g(f"s_add_u32 s{sT0}, s{sT0}, {TSB:#x}")
        g(f"v_mov_b32 v{vA3}, s{sT0}")
        g("s_mov_b64 exec, 1")
        for n in range(16):
            g(f"v_mov_b32 v{16+n}, s{sTS+n}")
            g(f"buffer_store_dword v{16+n}, v{vA3}, s[{sWS}:{sWS+3}], 0 offen offset:{4*n}")
    g.lab("L_END")
    g("s_endpgm")
    rare_path(g)
    g.lab("L_CODE_END")
    hdr = f"""; Fused Q-projection + sliding-window GQA attention + output projection (generated by gen/gen3.py)
; @launch grid=(256,1,1) block=(512,1,1) lds=163840
.amdgcn_target "amdgcn-amd-amdhsa--gfx950"
.text
.globl {NAME}
.p2align 8
.type {NAME},@function
{NAME}:
"""
    ftr = f"""
.section .rodata,"a"
.p2align 6
.amdhsa_kernel {NAME}
  .amdhsa_next_free_vgpr 256
  .amdhsa_next_free_sgpr 102
  .amdhsa_accum_offset 256
  .amdhsa_group_segment_fixed_size 0
  .amdhsa_kernarg_size 64
  .amdhsa_user_sgpr_count 2
  .amdhsa_user_sgpr_kernarg_segment_ptr 1
  .amdhsa_system_sgpr_workgroup_id_x 1
.end_amdhsa_kernel
"""
    return hdr + "\n".join(g.L) + ftr

if __name__ == "__main__":
    import argparse
    ap = argparse.ArgumentParser()
    ap.add_argument("-o", default="standalone__sliding_block_cached__sampling.s")
    ap.add_argument("--debug", type=int, default=0)
    ap.add_argument("--la", type=int, default=2)
    ap.add_argument("--cprio", type=int, default=1)
    ap.add_argument("--norot", action="store_true")
    ap.add_argument("--xnt", action="store_true")
    ap.add_argument("--nocodepf", action="store_true")
    ap.add_argument("--kw", default="")
    a = ap.parse_args()
    kw = eval("dict(" + a.kw + ")")
    open(a.o, "w").write(gen(debug=a.debug, LA=a.la, cprio=a.cprio, rot=not a.norot, xnt=a.xnt, codepf=not a.nocodepf, **kw))
```

```python
import struct, math, sys

NAME = "standalone__sliding_block_cached__sampling_kernel"
C_SCALE = math.log2(math.e) / math.sqrt(128.0)
def f2u(x): return struct.unpack("<I", struct.pack("<f", x))[0]
THR = 10.0

QF   = 0x0000000
OF   = 0x0200000
PO   = 0x0400000
ST   = 0x0C00000
FS   = 1152
F1   = 0x2000000
F2   = 0x2200000
F3   = 0x2300000
F4   = 0x2800000
OP   = 0x0E00000
TSB  = 0x1600000
WS_BYTES = 268435456

sXCD, sI, sWAVE, sW4, sROLE = 3, 4, 5, 6, 7
sT0, sT1, sT2, sT3 = 8, 9, 10, 11
sCNT, sLW1K, sG, sKQ = 12, 13, 14, 15
sX, sK, sV, sWQ, sWO, sOUT, sDBG, sWS = 32, 36, 40, 44, 48, 52, 56, 60
sBASE0, sBASE1, sCT, sRT = 64, 65, 66, 67
sHQ, sKV = 68, 69
sN = 70
sPA = 72
sK0 = 74
sGH = 75
sEX = 76
sRET = 78
sPD = 16
sTS = 80
sN0, sOH, sRP = 96, 97, 98
sTHR = 99

vLANE16 = 1
vKA, vVA = 2, 10
aKA, aVA = 2, 6
vT0, vT1 = 14, 15
vKR, vVR, vQ, vO, vS, vP, vNEG, vLS, vONE = 16, 48, 80, 112, 176, 208, 224, 232, 240
vT3, vT4, vT5 = 244, 245, 246
vTM, vT2 = 248, 249
vNON = 250
vA0, vA1, vA2, vA3 = 252, 253, 254, 255

class G:
    psleep = 0
    def __init__(self, debug=False, limit=1 << 21):
        self.L = []; self.debug = debug; self.nlab = 0; self.limit = limit
    def __call__(self, s): self.L.append("  " + s)
    def lab(self, s): self.L.append(s + ":")
    def newlab(self, p="L"):
        self.nlab += 1; return f"{p}_{self.nlab}"
    def ts(self, n, lvl=1):
        if self.debug == 9 and n not in (0, 14): return
        if self.debug == 7:
            if n not in (0, 5, 6, 14) or lvl != 1: return
            if n in (5, 6):
                self("s_memtime s[100:101]")
                self("s_waitcnt lgkmcnt(0)")
                self(f"s_mov_b32 s{sTS + 6 + n}, s100")
        if self.debug == 8 and (n not in (0, 2, 5, 6, 14) or lvl != 1): return
        if self.debug == 8 and n in (0, 2, 14):
            self("s_memtime s[100:101]")
            self("s_waitcnt lgkmcnt(0)")
            self(f"s_mov_b32 s{sTS + {0: 10, 2: 11, 14: 12}[n]}, s100")
        if self.debug >= 2 and lvl == 1 and 7 <= n <= 13: return
        if lvl >= 2 and self.debug != lvl: return
        if self.debug:
            self(f"s_memrealtime s[100:101]")
            self("s_waitcnt lgkmcnt(0)")
            self(f"s_mov_b32 s{sTS+n}, s100")
    def srd(self, d, p, nbytes):
        self(f"s_mov_b32 s{d}, s{p}")
        self(f"s_and_b32 s{d+1}, s{p+1}, 0xffff")
        self(f"s_mov_b32 s{d+2}, {nbytes:#x}")
        self(f"s_mov_b32 s{d+3}, 0x20000")
    def srd_ws(self, off):
        if not off:
            return self.srd(sWS, 30, WS_BYTES)
        self(f"s_add_u32 s{sWS}, s30, {off:#x}")
        self(f"s_addc_u32 s{sWS+1}, s31, 0")
        self(f"s_and_b32 s{sWS+1}, s{sWS+1}, 0xffff")
        self(f"s_mov_b32 s{sWS+2}, {WS_BYTES - off:#x}")
        self(f"s_mov_b32 s{sWS+3}, 0x20000")
    def dma(self, voff, srd, sbase, soff_const, m0base, m0_const, flags=""):
        self(f"s_add_u32 m0, s{m0base}, {m0_const:#x}")
        self(f"s_add_u32 s{sT0}, s{sbase}, {soff_const:#x}")
        self(f"buffer_load_dwordx4 v{voff}, s[{srd}:{srd+3}], s{sT0} offen {flags} lds".replace("  ", " "))
    def spoll4(self, soff):
        l = self.newlab("POLL"); d = self.newlab("POLLD")
        self(f"s_add_u32 s{sPA}, s{sWS}, s{soff}")
        self(f"s_addc_u32 s{sPA+1}, s{sWS+1}, 0")
        self(f"s_mov_b32 s{sCNT}, 0")
        self.lab(l)
        self(f"s_load_dwordx8 s[{sPD}:{sPD+7}], s[{sPA}:{sPA+1}], 0 glc")
        self(f"s_add_u32 s{sCNT}, s{sCNT}, 1")
        self(f"s_cmp_ge_u32 s{sCNT}, {self.limit:#x}")
        self("s_waitcnt lgkmcnt(0)")
        self(f"s_cbranch_scc1 {d}")
        r = l
        if self.psleep: r = self.newlab("POLLS")
        for q in range(4):
            self(f"s_cmp_eq_u64 s[{sPD+2*q}:{sPD+2*q+1}], s[{sN}:{sN+1}]")
            self(f"s_cbranch_scc0 {r}")
        if self.psleep:
            self(f"s_branch {d}")
            self.lab(r)
            self(f"s_sleep {self.psleep}")
            self(f"s_branch {l}")
        self.lab(d)
    pdepth = 1
    def vpoll4(self, soff, flags):
        l = self.newlab("POLL"); d = self.newlab("POLLD")
        if flags == "atomic":
            self("v_and_b32 v244, 3, v0")
            self("v_lshlrev_b32 v244, 3, v244")
            self(f"s_mov_b32 s{sCNT}, 0")
            self("s_mov_b64 exec, 15")
            self.lab(l)
            self("v_mov_b32 v246, 0")
            self("v_mov_b32 v247, 0")
            self(f"buffer_atomic_or_x2 v[246:247], v244, s[{sWS}:{sWS+3}], s{soff} offen sc0 sc1")
            self(f"s_add_u32 s{sCNT}, s{sCNT}, 1")
            self("s_waitcnt vmcnt(0)")
            self(f"v_cmp_ne_u64 vcc, s[{sN}:{sN+1}], v[246:247]")
            self(f"s_cbranch_vccz {d}")
            self(f"s_cmp_lt_u32 s{sCNT}, {self.limit:#x}")
            self(f"s_cbranch_scc1 {l}")
            self.lab(d)
            self("s_mov_b64 exec, -1")
            return
        n = self.pdepth
        self("v_and_b32 v10, 3, v0")
        self("v_lshlrev_b32 v10, 3, v10")
        self(f"s_mov_b32 s{sCNT}, 0")
        ld = lambda k: self(f"buffer_load_dwordx2 v[{240+2*k}:{241+2*k}], v10, s[{sWS}:{sWS+3}], s{soff} offen {flags}")
        for k in range(n - 1):
            ld(k)
            self(f"s_sleep {self.pgap}")
        self.lab(l)
        for k in range(n):
            ld((k + n - 1) % n)
            self(f"s_waitcnt vmcnt({n - 1})")
            self(f"v_cmp_ne_u64 vcc, s[{sN}:{sN+1}], v[{240+2*k}:{241+2*k}]")
            self(f"s_cbranch_vccz {d}")
        if self.psleep: self(f"s_sleep {self.psleep}")
        self(f"s_add_u32 s{sCNT}, s{sCNT}, 1")
        self(f"s_cmp_lt_u32 s{sCNT}, {self.limit:#x}")
        self(f"s_cbranch_scc1 {l}")
        self.lab(d)
    def spoll4x2(self, soff):
        l = self.newlab("POLL"); d = self.newlab("POLLD")
        self(f"s_add_u32 s{sPA}, s{sWS}, s{soff}")
        self(f"s_addc_u32 s{sPA+1}, s{sWS+1}, 0")
        self(f"s_mov_b32 s{sCNT}, 0")
        self.lab(l)
        self(f"s_load_dwordx8 s[16:23], s[{sPA}:{sPA+1}], 0x80 glc")
        self(f"s_add_u32 s{sCNT}, s{sCNT}, 1")
        self(f"s_and_b32 s32, s{sCNT}, 3")
        self(f"s_cmp_lg_u32 s32, 0")
        n = self.newlab("POLLF")
        self(f"s_cbranch_scc1 {n}")
        self("s_waitcnt lgkmcnt(0)")
        self(f"s_load_dwordx8 s[16:23], s[{sPA}:{sPA+1}], 0 glc")
        self.lab(n)
        self(f"s_cmp_ge_u32 s{sCNT}, {self.limit:#x}")
        self("s_waitcnt lgkmcnt(0)")
        self(f"s_cbranch_scc1 {d}")
        for q in range(4):
            self(f"s_cmp_eq_u64 s[{16+2*q}:{17+2*q}], s[{sN}:{sN+1}]")
            self(f"s_cbranch_scc0 {l}")
        self.lab(d)
    def flag2(self, saddr):
        self(f"v_mov_b32 v{vA3}, s{saddr}")
        self(f"s_mov_b64 s[{sEX}:{sEX+1}], exec")
        self("s_mov_b64 exec, 1")
        self(f"buffer_store_dwordx2 v[{vNON}:{vNON+1}], v{vA3}, s[{sWS}:{sWS+3}], 0 offen offset:128")
        self(f"buffer_store_dwordx2 v[{vNON}:{vNON+1}], v{vA3}, s[{sWS}:{sWS+3}], 0 offen sc1")
        self(f"s_mov_b64 exec, s[{sEX}:{sEX+1}]")
    def spollN(self, soff, deltas):
        l = self.newlab("POLL"); d = self.newlab("POLLD")
        regs = [16, 24, 32, 40][:len(deltas)]
        self(f"s_add_u32 s{sPA}, s{sWS}, s{soff}")
        self(f"s_addc_u32 s{sPA+1}, s{sWS+1}, 0")
        self(f"s_mov_b32 s{sCNT}, 0")
        self.lab(l)
        for r, dl in zip(regs, deltas):
            self(f"s_load_dwordx8 s[{r}:{r+7}], s[{sPA}:{sPA+1}], {dl:#x} glc")
        self(f"s_add_u32 s{sCNT}, s{sCNT}, 1")
        self(f"s_cmp_ge_u32 s{sCNT}, {self.limit:#x}")
        self("s_waitcnt lgkmcnt(0)")
        self(f"s_cbranch_scc1 {d}")
        for r in regs:
            for q in range(4):
                self(f"s_cmp_eq_u64 s[{r+2*q}:{r+2*q+1}], s[{sN}:{sN+1}]")
                self(f"s_cbranch_scc0 {l}")
        self.lab(d)
    def flag(self, saddr):
        self(f"v_mov_b32 v{vA3}, s{saddr}")
        self(f"s_mov_b64 s[{sEX}:{sEX+1}], exec")
        self("s_mov_b64 exec, 1")
        self(f"buffer_store_dwordx2 v[{vNON}:{vNON+1}], v{vA3}, s[{sWS}:{sWS+3}], 0 offen sc1")
        self(f"s_mov_b64 exec, s[{sEX}:{sEX+1}]")
    def nonce_issue(self, glc=""):
        self(f"s_load_dwordx2 s[{sN}:{sN+1}], s[28:29], 0{glc}")
    def nonce_finish(self):
        l = self.newlab("NON"); d = self.newlab("NOND")
        self(f"s_mov_b32 s{sCNT}, 0")
        self.lab(l)
        self("s_waitcnt lgkmcnt(0)")
        self(f"s_cmp_lg_u32 s{sN}, 0")
        self(f"s_cbranch_scc1 {d}")
        self(f"s_add_u32 s{sCNT}, s{sCNT}, 1")
        self(f"s_cmp_ge_u32 s{sCNT}, {self.limit:#x}")
        self(f"s_cbranch_scc1 {d}")
        self("s_sleep 8")
        self.nonce_issue(" glc")
        self(f"s_branch {l}")
        self.lab(d)
        self(f"v_mov_b32 v{vNON}, s{sN}")
        self(f"v_mov_b32 v{vNON+1}, s{sN+1}")

def mfma(g, d, a, b, c):
    cs = "0" if c is None else f"v[{c}:{c+15}]"
    g(f"v_mfma_f32_32x32x16_bf16 v[{d}:{d+15}], v[{a}:{a+3}], v[{b}:{b+3}], {cs}")
def mfma16(g, d, a, b, c):
    cs = "0" if c is None else f"v[{c}:{c+3}]"
    g(f"v_mfma_f32_16x16x32_bf16 v[{d}:{d+3}], v[{a}:{a+3}], v[{b}:{b+3}], {cs}")

def att_setup(g):
    g("v_and_b32 v32, 15, v0")
    g("v_lshrrev_b32 v33, 4, v0")
    g("v_xor_b32 v34, v32, v33")
    g("v_lshlrev_b32 v35, 8, v32")
    for s in range(4):
        g(f"v_xor_b32 v36, {4*s}, v34")
        g(f"v_lshl_add_u32 v{aKA+s}, v36, 4, v35")
    g("v_lshrrev_b32 v36, 2, v32")
    g("v_lshl_add_u32 v36, v33, 2, v36")
    g("v_and_b32 v37, 7, v36")
    g("v_lshlrev_b32 v37, 1, v37")
    g("v_bfe_u32 v38, v0, 1, 1")
    g("v_xor_b32 v37, v37, v38")
    g("v_lshlrev_b32 v36, 8, v36")
    g("v_and_b32 v38, 1, v0")
    g("v_lshl_add_u32 v36, v38, 3, v36")
    g("v_add_u32 v36, 16384, v36")
    for dt in range(8):
        g(f"v_xor_b32 v38, {2*dt}, v37")
        g(f"v_lshl_add_u32 v{aVA+dt}, v38, 4, v36")
    for u in range(4): g(f"v_mov_b32 v{vONE+u}, 0x3f803f80")

BIAS = 9.0
vOR = 252
def rowmax(S, hf, dst, tmp):
    b = S + 8*hf
    return [[f"v_max3_f32 v{dst}, v{b}, v{b+1}, v{b+2}", f"v_max3_f32 v{tmp}, v{b+3}, v{b+4}, v{b+5}"],
            [f"v_max3_f32 v{dst}, v{b+6}, v{b+7}, v{dst}", f"v_max_f32 v{dst}, v{dst}, v{tmp}", f"v_mov_b32 v{tmp}, v{dst}"],
            ["s_nop 1", f"v_permlane16_swap_b32 v{dst}, v{tmp}", "s_nop 1", f"v_max_f32 v{dst}, v{dst}, v{tmp}", f"v_mov_b32 v{tmp}, v{dst}"],
            ["s_nop 1", f"v_permlane32_swap_b32 v{dst}, v{tmp}", "s_nop 1", f"v_max_f32 v{dst}, v{dst}, v{tmp}"]]

def att_loop(g, O=None):
    O = {**dict(eslots=(0, 2, 4, 6, 8, 10, 12, 14, 16, 17, 19, 21, 23, 25, 26, 27), m16s=(18, 26), vslots=tuple(range(16)), kslots=(17, 19, 21, 23, 25, 27, 29, 31), cdel=1), **(O or {})}
    NKS = O.get("nks", 4)
    g.stubs = []
    kcur = [0]; vcur = [0]
    def kbase(t):
        slot = (t // 2) % NKS
        want = (slot >> 1) * 65536
        r = []
        if want != kcur[0]:
            r.append(f"s_mov_b32 s{sT0}, {(want - kcur[0]) & 0xffffffff:#x}")
            for x in range(aKA, aKA+4): r.append(f"v_add_u32 v{x}, s{sT0}, v{x}")
            kcur[0] = want
        return (slot & 1) * 32768 + (t & 1) * 8192, r
    def vbase(t):
        slot = (t // 2) % NKS
        want = (slot >> 1) * 65536
        r = []
        if want != vcur[0]:
            r.append(f"s_mov_b32 s{sT1}, {(want - vcur[0]) & 0xffffffff:#x}")
            for x in range(aVA, aVA+8): r.append(f"v_add_u32 v{x}, s{sT1}, v{x}")
            vcur[0] = want
        return (slot & 1) * 32768 + (t & 1) * 8192, r
    def krd(off, n, base=vKR):
        return f"ds_read_b128 v[{base+4*n}:{base+4*n+3}], v{aKA+(n&3)} offset:{off + 4096*(n>>2)}"
    def vrd(off, x):
        dt, jj = x >> 1, x & 1
        b = vVR + 4*dt + 2*jj
        return f"ds_read_b64_tr_b16 v[{b}:{b+1}], v{aVA+dt} offset:{off + 4096*jj}"
    def em(l):
        for x in l: g(x)
    m16 = lambda d, a, b, c: f"v_mfma_f32_16x16x32_bf16 v[{d}:{d+3}], v[{a}:{a+3}], v[{b}:{b+3}], " + ("0" if c is None else f"v[{c}:{c+3}]")
    def smf(S, kb, sl, first):
        n, hf = sl >> 1, sl & 1
        kt, s = n >> 2, n & 3
        if O.get("qkord") == "B":
            kt, hf, s = sl & 1, (sl >> 1) & 1, sl >> 2
            n = 4*kt + s
        d = S + 8*hf + 4*kt
        return m16(d, kb + 4*n, vQ + 16*hf + 4*s, (first(hf) if s == 0 else d))
    def pmf(P, sl, init=False):
        dt, hf = sl >> 1, sl & 1
        d = vO + 32*hf + 4*dt
        return m16(d, vVR + 4*dt, P + 4*hf, None if init else d)
    g.pmf = pmf; g.m16 = m16
    o, _ = kbase(0)
    for n in range(8): g(krd(o, n, vVR))
    o1, _ = kbase(1)
    for n in range(7): g(krd(o1, n))
    g("s_waitcnt vmcnt(0)")
    g.ts(5)
    if g.debug and g.debug not in (7, 9):
        g("s_memtime s[100:101]")
        g("s_waitcnt lgkmcnt(0)")
        g(f"s_mov_b32 s{sTS+15}, s100")
    g(f"s_waitcnt lgkmcnt(7)")
    for sl in range(16):
        g(smf(vS, vVR, sl, lambda hf: None))
        if sl == 0: g(krd(o1, 7))
    g(f"s_mov_b32 s{sT0}, {f2u(BIAS):#x}")
    NT = 16
    tmp = [(vT0, vT1), (vTM, vT2), (vT3, vT4)]
    O0 = O
    for t in range(0, NT):
        O = {**O0, **O0["alt"]} if t in O0.get("alt_t", ()) else O0
        Sc = vS + 16*(t & 1); Sn = vS + 16*((t+1) & 1)
        Pc = vP + 8*(t & 1); Pp = vP + 8*((t-1) & 1)
        doS = t + 1 < NT; doPV = t >= 1; doK = t + 2 < NT
        pre = [[] for _ in range(32)]; M = [[] for _ in range(32)]; D = [[] for _ in range(32)]; V = [[] for _ in range(32)]
        if t == 15:
            vo, bump = vbase(15)
            assert not bump
            pre[0].append("s_waitcnt lgkmcnt(8)")
            pre[8].append("s_waitcnt lgkmcnt(6)")
            for sl in range(16):
                M[sl].append(pmf(Pp, sl))
                if sl & 1: D[sl] += [vrd(vo, sl - 1), vrd(vo, sl)]
            M[2].append(m16(vLS, vONE, Pp, vLS)); M[10].append(m16(vLS+4, vONE, Pp+4, vLS+4))
            if not O.get("tail"):
                pre[16].append("s_waitcnt lgkmcnt(8)"); pre[24].append("s_waitcnt lgkmcnt(0)")
                for sl in range(16): M[16+sl].append(pmf(Pc, sl))
                M[18].append(m16(vLS, vONE, Pc, vLS)); M[26].append(m16(vLS+4, vONE, Pc+4, vLS+4))
        elif doPV:
            vo, bump = vbase(t-1)
            pre[0] += bump
            for x in range(16): D[O["vslots"][x]].append(vrd(vo, x))
            for sl in range(16):
                s2 = sl
                if O.get("pvord") == "B" and t < 14: s2 = 2*(sl & 3) + 8*(sl >> 3) + ((sl >> 2) & 1)
                M[16+sl].append(pmf(Pp, s2, t == 1))
            M[O["m16s"][0]].append(m16(vLS, vONE, Pp, None if t == 1 else vLS))
            M[O["m16s"][1]].append(m16(vLS+4, vONE, Pp+4, None if t == 1 else vLS+4))
            pre[16].append("s_waitcnt lgkmcnt(8)")
            nk = sum(1 for x in O["kslots"] if x < 24)
            pre[24].append(f"s_waitcnt lgkmcnt({nk if doK else 6})")
        if t < 15:
            nv = sum(1 for x in O["vslots"] if x < 8)
            pre[8].append(f"s_waitcnt lgkmcnt({min(6, nv) if doPV else 0})")
        if doS:
            pre[0].append("s_waitcnt lgkmcnt(0)" if O.get("qkord") == "B" else "s_waitcnt lgkmcnt(4)")
            for sl in range(16): M[sl].append(smf(Sn, vKR, sl, (lambda hf: None) if t == 0 else (lambda hf: vNEG + 4*hf)))
        if t % 2 == 0 and t <= 14:
            if t == 14: D[16].append("s_waitcnt lgkmcnt(0)")
            if t >= 2 and g.debug == 2:
                D[16] += ["s_memrealtime s[100:101]", "s_waitcnt lgkmcnt(0)", f"s_mov_b32 s{sTS+6+t//2}, s100"]
            if g.debug == 7 and t in (2, 6, 10, 14):
                k = (t + 2) // 4
                D[16] += ["s_memrealtime s[100:101]", "s_memtime s[98:99]", "s_waitcnt lgkmcnt(0)", f"s_mov_b32 s{sTS+k}, s100", f"s_mov_b32 s{sTS+6+k}, s98"]
            D[16].append("s_barrier")
        if t == 14:
            vo, bump = vbase(14)
            D[16] += bump
            for sl in range(1, 16, 2): D[16+sl] += [vrd(vo, sl - 1), vrd(vo, sl)]
        if doK:
            ko, bump = kbase(t+2)
            D[16] += bump
            for n in range(8): D[O["kslots"][n]].append(krd(ko, n))
        if t == 0:
            r0 = rowmax(vS, 0, vTM, vT2); r1 = rowmax(vS, 1, vT3, vT4)
            V[2] += ["s_nop 3"]
            for k in range(4):
                V[3 + 2*k] += r0[k]; V[4 + 2*k] += r1[k]
            V[11] += [f"v_add_f32 v{vTM}, s{sT0}, v{vTM}", f"v_add_f32 v{vT3}, s{sT0}, v{vT3}"]
            V[12] += [f"v_sub_f32 v{vNEG+u}, 0, v{vTM}" for u in range(4)]
            V[13] += [f"v_sub_f32 v{vNEG+4+u}, 0, v{vT3}" for u in range(4)]
            slots = [14, 14, 15, 15] + [16 + k for k in range(12)]
        elif t == 15:
            slots = [0, 0, 1, 2, 3, 3, 4, 5, 6, 6, 7, 8, 9, 9, 10, 11]
        else:
            slots = list(O["eslots"])
        cdel = O["cdel"]
        for e in range(16):
            T = tmp[(e >> 1) % 3][e & 1]
            if t <= 1:
                V[slots[e]].append(f"v_add_f32 v{Sc+e}, v{Sc+e}, v{vNEG + 4*(e >> 3)}")
            V[slots[e]].append(f"v_exp_f32 v{T}, v{Sc+e}")
        last = 0
        for u in range(8):
            sl = slots[2*u+1] + cdel
            assert u + 3 > 7 or slots[2*u+6] >= sl
            a, b = tmp[u % 3]
            V[sl] = [f"v_cvt_pk_bf16_f32 v{Pc+u}, v{a}, v{b}"] + V[sl]
            if O.get("addsum"):
                V[sl] = V[sl][:1] + [f"v_add_f32 v{vLS+4*(u>>2)}, v{vLS+4*(u>>2)}, v{a}"] + V[sl][1:]
                V[min(sl + 1, 31)] = [f"v_add_f32 v{vLS+4*(u>>2)+1}, v{vLS+4*(u>>2)+1}, v{b}"] + V[min(sl + 1, 31)]
            if u & 1 and t > 0:
                orr = f"v_or_b32 v{vOR}, v{Pc}, v{Pc+1}" if u == 1 else f"v_or3_b32 v{vOR}, v{Pc+u-1}, v{Pc+u}, v{vOR}"
                V[min(sl + 1, 31)].append(orr)
                last = min(sl + 1, 31)
        endsl = 15 if t == 15 else 31
        if t > 0:
            cs = min(last + 1, endsl)
            V[cs].append(f"v_and_b32 v{vOR}, 0x40004000, v{vOR}")
            V[min(cs + 1, endsl)].append(f"v_cmp_ne_u32 vcc, 0, v{vOR}")
        for sl in range(32):
            plain = all(x.startswith("ds_read") for x in D[sl])
            em(pre[sl]); em(M[sl])
            if O.get("vfirst") and plain and M[sl] and 1 <= t <= 13:
                em(V[sl]); em(D[sl])
            else:
                em(D[sl])
                if not M[sl] and not D[sl] and V[sl]: g("s_nop 0")
                em(V[sl])
            if t > 0 and sl == endsl:
                st = g.newlab("RS"); bk = g.newlab("RB")
                g(f"s_cbranch_vccnz {st}")
                g.lab(bk)
                g.stubs.append((st, bk, t & 1))

def emu16(body):
    import re
    cnt = {}; firsts = {}; nb = []
    for l in body:
        m = re.match(r"\s*v_mfma_f32_32x32x16_bf16 v\[(\d+):\d+\], (v\[\d+:\d+\]), (v\[\d+:\d+\]), (.*)", l)
        if not m:
            nb.append(l); continue
        d = int(m.group(1)); c = m.group(4).strip()
        if c == "0" or int(re.match(r"v\[(\d+)", c).group(1)) != d:
            cnt[d] = 0; firsts[d] = c
        k = cnt.get(d, 0); cnt[d] = k + 1
        for q in (2*(k % 2), 2*(k % 2) + 1):
            cc = f"v[{d+4*q}:{d+4*q+3}]"
            if k < 2 and d in firsts:
                f = firsts[d]
                if f == "0": cc = "0"
                else:
                    cb = int(re.match(r"v\[(\d+)", f).group(1)); cc = f"v[{cb+4*q}:{cb+4*q+3}]"
            nb.append(f"  v_mfma_f32_16x16x32_bf16 v[{d+4*q}:{d+4*q+3}], {m.group(2)}, {m.group(3)}, {cc}")
        if k == 1: firsts.pop(d, None)
    out = []; i = 0
    while i < len(nb):
        if i + 1 < len(nb) and "16x16x32" in nb[i] and "16x16x32" in nb[i+1] and "v[240:243]" not in nb[i] and "v[240:243]" not in nb[i+1]:
            out.append(nb[i]); second = nb[i+1]; i += 2
            rest = []
            while i < len(nb) and not re.search(r"mfma|waitcnt|barrier|:$|branch", nb[i]):
                rest.append(nb[i]); i += 1
            a = re.search(r"\], (v\[\d+:\d+\])", second).group(1)
            lo = int(re.match(r"v\[(\d+)", a).group(1))
            def hits(l):
                m = re.match(r"\s*ds_read\w+ v\[(\d+):", l)
                return m and lo <= int(m.group(1)) <= lo + 3
            free = [l for l in rest if not hits(l)]; late = [l for l in rest if hits(l)]
            h = min((len(rest) + 1) // 2, len(free))
            out += free[:h] + [second] + late + free[h:]
        else:
            out.append(nb[i]); i += 1
    return out

def rare_path(g, O=None):
    for st, bk, par in g.stubs:
        g.lab(st)
        g(f"s_call_b64 s[{sRET}:{sRET+1}], L_RARE{par}")
        g(f"s_branch {bk}")
    for par in range(2):
        g.lab(f"L_RARE{par}")
        Sc = vS + 16*par; Sn = vS + 16*(par ^ 1); Pc = vP + 8*par
        g("s_nop 15")
        for hf in range(2):
            for grp in rowmax(Sc, hf, vTM, vT2):
                for x in grp: g(x)
            g(f"v_add_f32 v{vTM}, {f2u(BIAS):#x}, v{vTM}")
            g(f"v_max_f32 v{vTM}, 0, v{vTM}")
            g(f"v_ceil_f32 v{vTM}, v{vTM}")
            g(f"v_sub_f32 v{vT2}, 0, v{vTM}")
            g(f"v_exp_f32 v{vT2}, v{vT2}")
            for u in range(8): g(f"v_sub_f32 v{Sc+8*hf+u}, v{Sc+8*hf+u}, v{vTM}")
            for u in range(8): g(f"v_sub_f32 v{Sn+8*hf+u}, v{Sn+8*hf+u}, v{vTM}")
            for u in range(4): g(f"v_sub_f32 v{vNEG+4*hf+u}, v{vNEG+4*hf+u}, v{vTM}")
            for u in range(32): g(f"v_mul_f32 v{vO+32*hf+u}, v{vO+32*hf+u}, v{vT2}")
            for u in range(4): g(f"v_mul_f32 v{vLS+4*hf+u}, v{vLS+4*hf+u}, v{vT2}")
        for u in range(8):
            g(f"v_exp_f32 v{vT0}, v{Sc+2*u}")
            g(f"v_exp_f32 v{vT1}, v{Sc+2*u+1}")
            g("s_nop 0")
            g(f"v_cvt_pk_bf16_f32 v{Pc+u}, v{vT0}, v{vT1}")
        g("s_nop 1")
        g(f"s_setpc_b64 s[{sRET}:{sRET+1}]")

DENSE = {'eslots': [1, 3, 5, 7, 11, 11, 12, 13, 16, 17, 19, 21, 22, 24, 25, 26], 'm16s': [16, 31], 'vslots': [0, 0, 2, 2, 4, 4, 6, 6, 8, 9, 10, 10, 12, 12, 13, 14], 'kslots': [17, 18, 20, 22, 27, 28, 29, 30], 'cdel': 1}
MED = {'eslots': [1, 3, 5, 7, 9, 11, 13, 13, 17, 18, 19, 21, 22, 25, 25, 26], 'm16s': [18, 26], 'vslots': [0, 0, 2, 2, 4, 4, 6, 6, 8, 8, 10, 10, 11, 12, 14, 14], 'kslots': [17, 18, 20, 22, 24, 26, 28, 30], 'cdel': 1}
def gen(debug=False, LA=2, cprio=1, rot=True, xnt=False, codepf=True, early={5: 1, 6: 2}, nq1=1, bflag='', pfflag='', kvflag='nt', wqflag='', span=False, pdepth=1, pgap=2, jplan={}, emuq=False, nosum=False, psleep=0, emu=False, attO=dict(alt=dict(vfirst=True), alt_t=range(1,16,2)), kvflag1='', wsoff=0, ptail=True, pfirst=True, kvmap='rr', polay=0, pretouch=True, NKS=5, vp='atomic', f1atomic=False, wf='sc1', rf='sc0 sc1', qf='sc1', ophint=True, f2fast=False, apf=False, f3wave=True, aprio=False, pffront={}, outflag='', pw2=0, pfplan={5: 8}, bplan={7: (0, 1), 8: (2, 3)}):
    g = G(debug=debug)
    g.psleep = psleep; g.pdepth = pdepth; g.pgap = pgap
    qslot = lambda k: 1 + k % 4
    g("s_cmp_ge_u32 s2, 256")
    g("s_cbranch_scc1 L_END")
    g("s_load_dwordx16 s[16:31], s[0:1], 0")
    g(f"s_and_b32 s{sXCD}, s2, 7")
    g(f"s_lshr_b32 s{sI}, s2, 3")
    g("v_lshrrev_b32 v1, 6, v0")
    g("v_and_b32 v0, 63, v0")
    g(f"v_readfirstlane_b32 s{sWAVE}, v1")
    g(f"v_lshlrev_b32 v{vLANE16}, 4, v0")
    g(f"s_and_b32 s{sT0}, s{sI}, 7")
    g(f"s_lshl_b32 s{sCT}, s{sXCD}, 3")
    g(f"s_add_u32 s{sCT}, s{sCT}, s{sT0}")
    g(f"s_lshr_b32 s{sRT}, s{sI}, 3")
    g(f"s_lshl_b32 s{sK0}, s{sRT}, 1")
    g(f"s_add_u32 s{sK0}, s{sK0}, s{sT0}")
    if not rot: g(f"s_mov_b32 s{sK0}, 0")
    g(f"s_lshl_b32 s{sG}, s{sXCD}, 2")
    g(f"s_add_u32 s{sG}, s{sG}, s{sRT}")
    g(f"s_and_b32 s{sKQ}, s{sI}, 3")
    g(f"s_bfe_u32 s{sHQ}, s{sI}, 0x10002")
    g(f"s_lshl_b32 s{sGH}, s{sG}, 1")
    g(f"s_add_u32 s{sGH}, s{sGH}, s{sHQ}")
    g(f"s_and_b32 s{sW4}, s{sWAVE}, 3")
    g(f"s_lshr_b32 s{sROLE}, s{sWAVE}, 2")
    g(f"s_lshl_b32 s{sLW1K}, s{sW4}, 10")
    g(f"s_lshr_b32 s{sOH}, s{sXCD}, 1")
    g(f"s_and_b32 s{sN0}, s{sXCD}, 1")
    g(f"s_lshl_b32 s{sN0}, s{sN0}, 3")
    g(f"s_add_u32 s{sN0}, s{sN0}, s{sT0}")
    g(f"s_cmp_eq_u32 s{sROLE}, 0")
    g("s_cbranch_scc1 L_CWAVE")

    vXO, vWQO, vKO, vVO, vWOO = 16, 17, 18, 19, 20
    g("v_lshrrev_b32 v21, 4, v0")
    g(f"s_lshl_b32 s{sT1}, s{sW4}, 2")
    g(f"v_add_u32 v22, s{sT1}, v21")
    g("v_and_b32 v23, 15, v0")
    g("v_xor_b32 v24, v23, v22")
    g("v_lshlrev_b32 v24, 4, v24")
    g(f"v_lshl_add_u32 v{vXO}, v22, 11, v24")
    g("v_lshrrev_b32 v25, 3, v0")
    g("v_and_b32 v26, 7, v0")
    g("v_lshlrev_b32 v27, 1, v25")
    g("v_and_b32 v27, 4, v27")
    g("v_xor_b32 v26, v26, v27")
    g("v_lshlrev_b32 v26, 4, v26")
    g(f"v_lshl_add_u32 v{vWQO}, v25, 13, v26")
    g(f"s_lshl_b32 s{sBASE0}, s{sRT}, 17")
    g(f"s_lshl_b32 s{sBASE1}, s{sCT}, 7")
    g(f"s_lshl_b32 s{sT1}, s{sW4}, 16")
    g(f"s_add_u32 s{sBASE1}, s{sBASE1}, s{sT1}")
    g(f"s_mov_b32 s{sWQ+2}, {1024*4096*2:#x}")
    g(f"s_mov_b32 s{sWQ+3}, 0x20000")
    g(f"s_mov_b32 s{sX+2}, {8*32*1024*2:#x}")
    g(f"s_mov_b32 s{sX+3}, 0x20000")
    g("s_waitcnt lgkmcnt(0)")
    g(f"s_mov_b32 s{sWQ}, s22")
    g(f"s_and_b32 s{sWQ+1}, s23, 0xffff")
    g(f"s_mov_b32 s{sX}, s16")
    g(f"s_and_b32 s{sX+1}, s17, 0xffff")
    Q = []
    def need(*tags):
        last = max(i for i, x in enumerate(Q) if x in tags)
        g(f"s_waitcnt vmcnt({len(Q) - 1 - last})")
    def stage(k):
        slot = qslot(k) * 32768
        g(f"s_add_u32 s{sT1}, s{sK0}, {k}")
        g(f"s_and_b32 s{sT1}, s{sT1}, 7")
        g(f"s_lshl_b32 s{sT2}, s{sT1}, 20")
        g(f"s_add_u32 s{sT2}, s{sT2}, s{sBASE1}")
        g(f"s_lshl_b32 s{sT3}, s{sT1}, 8")
        g(f"s_add_u32 s{sT3}, s{sT3}, s{sBASE0}")
        for m in range(4):
            g.dma(vWQO, sWQ, sT2, 32*m*8192, sLW1K, slot + 16384 + 4096*m, wqflag)
            g.dma(vXO, sX, sT3, m*16*2048, sLW1K, slot + 4096*m, "nt" if xnt else "")
            Q.extend([f"S{k}"] * 2)
    def kvf(s):
        if kvmap == "blk": return kvflag if (s >> 1) & 1 else kvflag1
        if kvmap == "alt": return kvflag if s & 1 else kvflag1
        return kvflag
    def chunk(s):
        if kvmap == "contig":
            g(f"s_lshl_b32 s{sT1}, s{sKQ}, 17")
            g(f"s_add_u32 s{sT1}, s{sT1}, {s*16384}")
        elif kvmap == "rr":
            g(f"s_lshl_b32 s{sT1}, s{sKQ}, 14")
            g(f"s_add_u32 s{sT1}, s{sT1}, {s*65536}")
        elif kvmap in ("rrg", "rrx", "rri"):
            src = {"rrg": sG, "rrx": sXCD, "rri": sRT}[kvmap]
            if kvmap == "rri":
                g(f"s_lshl_b32 s{sT1}, s{src}, 1")
                g(f"s_add_u32 s{sT1}, s{sT1}, {s}")
            else:
                g(f"s_add_u32 s{sT1}, s{src}, {s}")
            g(f"s_and_b32 s{sT1}, s{sT1}, 7")
            g(f"s_lshl_b32 s{sT1}, s{sT1}, 2")
            g(f"s_add_u32 s{sT1}, s{sT1}, s{sKQ}")
            g(f"s_lshl_b32 s{sT1}, s{sT1}, 14")
        elif kvmap in ("blk", "alt"):
            g(f"s_lshl_b32 s{sT1}, s{sHQ}, {17 if kvmap == 'blk' else 16}")
            g(f"s_xor_b32 s{sT1}, s{sT1}, {s*65536}")
            g(f"s_lshl_b32 s{sT2}, s{sKQ}, 14")
            g(f"s_add_u32 s{sT1}, s{sT1}, s{sT2}")
        elif kvmap == "rr2":
            g(f"s_lshl_b32 s{sT1}, s{sKQ}, 15")
            g(f"s_add_u32 s{sT1}, s{sT1}, {(s >> 1)*131072 + (s & 1)*16384}")
        elif kvmap == "rot":
            g(f"s_add_u32 s{sT1}, s{sKQ}, {s >> 1}")
            g(f"s_and_b32 s{sT1}, s{sT1}, 3")
            g(f"s_lshl_b32 s{sT1}, s{sT1}, 2")
            g(f"s_add_u32 s{sT1}, s{sT1}, s{sKQ}")
            g(f"s_lshl_b32 s{sT1}, s{sT1}, 15")
            if s & 1: g(f"s_add_u32 s{sT1}, s{sT1}, 16384")
        elif kvmap == "rot2":
            g(f"s_add_u32 s{sT1}, s{sKQ}, {s & 3}")
            g(f"s_and_b32 s{sT1}, s{sT1}, 3")
            g(f"s_lshl_b32 s{sT1}, s{sT1}, 2")
            g(f"s_add_u32 s{sT1}, s{sT1}, s{sKQ}")
            g(f"s_lshl_b32 s{sT1}, s{sT1}, 15")
            if s >> 2: g(f"s_add_u32 s{sT1}, s{sT1}, 16384")
        g(f"s_add_u32 s{sT1}, s{sT1}, s{sKV}")
    def kpart(s):
        chunk(s)
        for m in range(4):
            g.dma(vKO, sK, sT1, 16*m*256, sLW1K, (s % NKS)*32768 + 4096*m, kvf(s))
            Q.append(f"K{s}")
    def vpart(s):
        chunk(s)
        for m in range(4):
            g.dma(vVO, sV, sT1, 16*m*256, sLW1K, (s % NKS)*32768 + 16384 + 4096*m, kvf(s))
            Q.append(f"V{s}")
    def part(tag):
        (kpart if tag[0] == "K" else vpart)(int(tag[1]))
    for k in range(LA): stage(k)
    g.ts(0)
    g.srd(sK, 18, 8*4*8192*128*2)
    g.srd(sV, 20, 8*4*8192*128*2)
    g.srd(sWO, 24, 4096*1024*2)
    g.srd(sOUT, 26, 8*32*1024*2)
    g.srd_ws(wsoff)
    g(f"v_lshl_add_u32 v{vKO}, v22, 8, v24")
    g("v_and_b32 v28, 7, v22")
    g("v_lshlrev_b32 v28, 1, v28")
    g("v_xor_b32 v28, v23, v28")
    g("v_lshlrev_b32 v28, 4, v28")
    g(f"v_lshl_add_u32 v{vVO}, v22, 8, v28")
    g(f"v_lshl_add_u32 v{vWOO}, v25, 11, v26")
    g(f"s_lshl_b32 s{sKV}, s{sG}, 21")
    g(f"s_add_u32 s{sKV}, s{sKV}, {6144*256:#x}")
    sPF = sCT
    g(f"s_lshl_b32 s{sPF}, s{sOH}, 21")
    g(f"s_lshl_b32 s{sT1}, s{sW4}, 14")
    g(f"s_add_u32 s{sPF}, s{sPF}, s{sT1}")
    g(f"s_lshl_b32 s{sT1}, s{sI}, 16")
    g(f"s_add_u32 s{sPF}, s{sPF}, s{sT1}")
    g(f"s_and_b32 s{sT1}, s{sXCD}, 1")
    g(f"s_lshl_b32 s{sT1}, s{sT1}, 10")
    g(f"s_add_u32 s{sPF}, s{sPF}, s{sT1}")
    npf = [0]
    def wopf(n):
        for _ in range(n):
            g(f"s_add_u32 s{sT0}, s{sPF}, {npf[0]*2048:#x}")
            g(f"buffer_load_dwordx4 v[32:35], v{vLANE16}, s[{sWO}:{sWO+3}], s{sT0} offen {pfflag}")
            Q.append("PF"); npf[0] += 1
    if pretouch:
        g("v_mov_b32 v40, 0")
        def touch(expr_lines, base):
            for l in expr_lines: g(l)
            g(f"s_mul_i32 s{sT1}, s{sT1}, {FS}")
            g(f"s_add_u32 s{sT1}, s{sT1}, {base:#x}")
            if pretouch == "atomic":
                g("s_mov_b64 exec, 1")
                g(f"buffer_atomic_or v40, v40, s[{sWS}:{sWS+3}], s{sT1} offen offset:32 sc1")
                g("s_mov_b64 exec, -1")
                Q.append("T")
                return
            g(f"s_add_u32 s{sPA}, s{sWS}, s{sT1}")
            g(f"s_addc_u32 s{sPA+1}, s{sWS+1}, 0")
            g(f"s_load_dword s{sRET}, s[{sPA}:{sPA+1}], 0 glc")
        touch([f"s_lshl_b32 s{sT1}, s{sGH}, 2", f"s_add_u32 s{sT1}, s{sT1}, s{sW4}"], F1)
        touch([f"s_mov_b32 s{sT1}, s{sGH}"], F2)
        touch([f"s_lshl_b32 s{sT1}, s{sRT}, 3", f"s_add_u32 s{sT1}, s{sT1}, s{sOH}", f"s_lshl_b32 s{sT1}, s{sT1}, 5", f"s_add_u32 s{sT1}, s{sT1}, s{sN0}",
               f"s_and_b32 s{sT2}, s{sW4}, 1", f"s_lshl_b32 s{sT2}, s{sT2}, 7", f"s_add_u32 s{sT1}, s{sT1}, s{sT2}",
               f"s_lshr_b32 s{sT2}, s{sW4}, 1", f"s_lshl_b32 s{sT2}, s{sT2}, 4", f"s_add_u32 s{sT1}, s{sT1}, s{sT2}"], F3)
        touch([f"s_lshl_b32 s{sT1}, s{sRT}, 4", f"s_add_u32 s{sT1}, s{sT1}, s{sN0}", f"s_lshl_b32 s{sT1}, s{sT1}, 2", f"s_add_u32 s{sT1}, s{sT1}, s{sOH}",
               f"s_lshl_b32 s{sT1}, s{sT1}, 1", f"s_and_b32 s{sT2}, s{sW4}, 1", f"s_add_u32 s{sT1}, s{sT1}, s{sT2}"], F4)
    order = ["K0", "K1", "V0"] + [x for s_ in range(1, 8) for x in ([f"K{s_+1}"] if s_ < 7 else []) + [f"V{s_}"]]
    todo = list(order)
    def issue(n):
        for _ in range(n):
            if todo: part(todo.pop(0))
    sJ = 24
    if jplan:
        g(f"s_cmp_eq_u32 s{sHQ}, 0")
        g(f"s_cselect_b32 s{sJ}, s{sK}, s{sV}")
        g(f"s_cselect_b32 s{sJ+1}, s{sK+1}, s{sV+1}")
        g(f"s_mov_b32 s{sJ+2}, {8*4*8192*128*2:#x}")
        g(f"s_mov_b32 s{sJ+3}, 0x20000")
    nj = [0]
    def junk(n):
        for _ in range(n):
            g(f"s_sub_u32 s{sT1}, {nj[0] + 1}, s{sHQ}")
            g(f"s_lshl_b32 s{sT1}, s{sT1}, 2")
            g(f"s_add_u32 s{sT1}, s{sT1}, s{sKQ}")
            g(f"s_lshl_b32 s{sT1}, s{sT1}, 2")
            g(f"s_add_u32 s{sT1}, s{sT1}, s{sW4}")
            g(f"s_lshl_b32 s{sT1}, s{sT1}, 12")
            g(f"s_add_u32 s{sT1}, s{sT1}, s{sKV}")
            for m in range(4):
                g(f"buffer_load_dwordx4 v[36:39], v{vLANE16}, s[{sJ}:{sJ+3}], s{sT1} offen offset:{1024*m}")
                Q.append("J")
            nj[0] += 1
    for k in range(8):
        need(f"S{k}")
        if k >= 1: g.ts(6 + k, 5)
        g("s_barrier")
        if k == 0: g.ts(1)
        if k + LA < 8: stage(k + LA)
        wopf(pffront.get(k, 0))
        issue(early.get(k, 0))
        junk(jplan.get(k, 0))
    g.ts(2)
    g.nonce_issue()
    g(f"s_lshl_b32 s{sBASE0}, s{sOH}, 21")
    g(f"s_lshl_b32 s{sT1}, s{sW4}, 14")
    g(f"s_add_u32 s{sBASE0}, s{sBASE0}, s{sT1}")
    g(f"s_lshl_b32 s{sT1}, s{sN0}, 7")
    g(f"s_add_u32 s{sBASE0}, s{sBASE0}, s{sT1}")
    def bpart(pos):
        slot = ([4, 0, 1, 2] if NKS == 4 else [3, 4, 0, 1])[pos]
        g(f"s_add_u32 s{sT1}, s{sRT}, {pos}")
        g(f"s_and_b32 s{sT1}, s{sT1}, 3")
        g(f"s_lshl_b32 s{sT1}, s{sT1}, 19")
        g(f"s_add_u32 s{sT1}, s{sT1}, s{sBASE0}")
        for m in range(8):
            g.dma(vWOO, sWO, sT1, 32*m*2048, sLW1K, slot*32768 + 4096*m, bflag)
            Q.append(f"B{pos}")
    g.nonce_finish()
    g("s_barrier")
    g.ts(3)
    issue(nq1)
    junk(jplan.get(8, 0))
    g("s_barrier")
    g.ts(4)
    while len(order) - len(todo) < 3: issue(1)
    need("K0")
    g("s_barrier")
    g.ts(5)
    for s in range(0, 8):
        la = s + 1 + (NKS - 4)
        lim = order.index(f"V{la}") + 1 if la <= 7 else len(order)
        while len(order) - len(todo) < lim: issue(1)
        wopf(pfplan.get(s, 0))
        for pos in bplan.get(s, ()): bpart(pos)
        if s < 7: need(f"K{s+1}", f"V{s}")
        else: need("V7")
        if s >= 1: g.ts(6 + s, 2)
        g("s_barrier")
    g.ts(11, 3)
    for pos in bplan.get(8, ()): bpart(pos)
    if 9 in bplan:
        g("s_barrier")
        wopf(pfplan.get(9, 0))
        for pos in bplan[9]: bpart(pos)
    g.ts(6)
    if g.debug == 3:
        g("s_waitcnt vmcnt(16)"); g.ts(12, 3)
        g("s_waitcnt vmcnt(0)"); g.ts(13, 3)
    g("s_branch L_BACK")

    g.lab("L_CWAVE")
    g("s_waitcnt lgkmcnt(0)")
    g.srd_ws(wsoff)
    g.srd(sDBG, 28, 256)
    g(f"s_or_b32 s{sT0}, s2, s{sWAVE}")
    g(f"s_cmp_lg_u32 s{sT0}, 0")
    g("s_cbranch_scc1 L_NOPUB")
    g(f"s_memrealtime s[{sN}:{sN+1}]")
    g("s_waitcnt lgkmcnt(0)")
    g(f"s_or_b32 s{sN}, s{sN}, 1")
    g(f"s_xor_b32 s{sN+1}, s{sN+1}, 0x5bd1e995")
    g(f"v_mov_b32 v{vNON}, s{sN}")
    g(f"v_mov_b32 v{vNON+1}, s{sN+1}")
    g(f"v_mov_b32 v{vA3}, 0")
    g(f"buffer_store_dwordx2 v[{vNON}:{vNON+1}], v{vA3}, s[{sDBG}:{sDBG+3}], 0 offen sc1")
    g.lab("L_NOPUB")
    if codepf:
        g(f"s_cmp_lg_u32 s{sWAVE}, 1")
        g("s_cbranch_scc1 L_NOPF")
        g(f"s_getpc_b64 s[{sPA}:{sPA+1}]")
        g.lab("L_PC")
        g(f"s_lshl_b32 s{sT0}, s{sI}, 10")
        g(f"s_min_u32 s{sT0}, s{sT0}, L_CODE_END-L_PC-1024")
        g(f"v_add_u32 v{vA0}, s{sT0}, v{vLANE16}")
        g(f"global_load_dwordx4 v[{vS}:{vS+3}], v{vA0}, s[{sPA}:{sPA+1}]")
        g.lab("L_NOPF")
    g.ts(0)
    g.srd(sOUT, 26, 8*32*1024*2)
    g(f"s_and_b32 s{sT0}, s{sW4}, 1")
    g(f"s_lshl_b32 s{sT0}, s{sT0}, 13")
    g("v_and_b32 v20, 15, v0")
    g("v_lshrrev_b32 v21, 4, v0")
    g("v_xor_b32 v22, v20, v21")
    g(f"v_lshlrev_b32 v23, 8, v20")
    g(f"v_add_u32 v23, s{sT0}, v23")
    for s in range(4):
        g(f"v_xor_b32 v24, {4*s}, v22")
        g(f"v_lshl_add_u32 v{vKA+s}, v24, 4, v23")
    g("v_lshrrev_b32 v22, 2, v20")
    g("v_lshl_add_u32 v23, v21, 3, v22")
    g("v_lshlrev_b32 v23, 7, v23")
    g("v_and_b32 v24, 3, v0")
    g(f"s_lshr_b32 s{sT0}, s{sW4}, 1")
    g(f"s_lshl_b32 s{sT0}, s{sT0}, 2")
    g(f"v_add_u32 v24, s{sT0}, v24")
    g("v_lshlrev_b32 v26, 1, v22")
    g("v_and_b32 v26, 4, v26")
    g("v_xor_b32 v24, v24, v26")
    g("v_lshl_add_u32 v23, v24, 4, v23")
    g(f"v_add_u32 v{vVA}, 16384, v23")
    nq0 = len(g.L)
    acc = vO
    fr = 16
    cur = [0]
    def setbase(regs, want):
        if want != cur[0]:
            g(f"s_mov_b32 s{sT0}, {(want - cur[0]) & 0xffffffff:#x}")
            for r in regs: g(f"v_add_u32 v{r}, s{sT0}, v{r}")
            cur[0] = want
    for k in range(8):
        slot = qslot(k)
        setbase(list(range(vKA, vKA+4)) + [vVA], (slot >> 1) * 65536)
        io = (slot & 1) * 32768
        if k >= 1: g.ts(6 + k, 5)
        g("s_barrier")
        if k == 0: g.ts(1)
        def rd(s):
            b = fr + 16*s
            for nt in range(2):
                g(f"ds_read_b64_tr_b16 v[{b+4*nt}:{b+4*nt+1}], v{vVA} offset:{io + 4096*s + 8*nt}")
                g(f"ds_read_b64_tr_b16 v[{b+4*nt+2}:{b+4*nt+3}], v{vVA} offset:{io + 4096*s + 512 + 8*nt}")
                g(f"ds_read_b128 v[{b+8+4*nt}:{b+11+4*nt}], v{vKA+s} offset:{io + 4096*nt}")
        rd(0); rd(1)
        for s in range(4):
            b = fr + 16*s
            g(f"s_waitcnt lgkmcnt({6 if s < 3 else 0})")
            first = (k == 0 and s == 0)
            mfma16(g, acc, b, b+8, None if first else acc)
            if s + 2 < 4: rd(s + 2)
            mfma16(g, acc+8, b, b+12, None if first else acc+8)
            mfma16(g, acc+4, b+4, b+8, None if first else acc+4)
            mfma16(g, acc+12, b+4, b+12, None if first else acc+12)
    if emuq: g.L = g.L[:nq0] + emu16(g.L[nq0:])
    g.ts(2)
    g.nonce_issue()
    g(f"s_and_b32 s{sT0}, s{sW4}, 1")
    g(f"s_lshl_b32 s{sT1}, s{sRT}, 1")
    g(f"s_add_u32 s{sT1}, s{sT1}, s{sT0}")
    g(f"s_lshl_b32 s{sT1}, s{sT1}, 5")
    g(f"s_lshr_b32 s{sT2}, s{sCT}, 1")
    g(f"s_add_u32 s{sT1}, s{sT1}, s{sT2}")
    g(f"s_and_b32 s{sT2}, s{sCT}, 1")
    g(f"s_lshl_b32 s{sT2}, s{sT2}, 1")
    g(f"s_lshr_b32 s{sT3}, s{sW4}, 1")
    g(f"s_add_u32 s{sT2}, s{sT2}, s{sT3}")
    g(f"s_lshl_b32 s{sBASE0}, s{sT1}, 13")
    g(f"s_lshl_b32 s{sT3}, s{sT2}, 10")
    g(f"s_add_u32 s{sBASE0}, s{sBASE0}, s{sT3}")
    g(f"s_add_u32 s{sKV}, s{sBASE0}, 4096")
    g(f"s_mul_i32 s{sBASE1}, s{sT1}, {FS}")
    g(f"s_lshl_b32 s{sT3}, s{sT2}, 3")
    g(f"s_add_u32 s{sBASE1}, s{sBASE1}, s{sT3}")
    g(f"s_add_u32 s{sBASE1}, s{sBASE1}, {F1:#x}")
    g(f"s_mov_b32 s{sT0}, {f2u(C_SCALE):#x}")
    for u in range(16):
        g(f"v_mul_f32 v{acc+u}, s{sT0}, v{acc+u}")
    for u in range(8):
        g(f"v_cvt_pk_bf16_f32 v{16+u}, v{acc+2*u}, v{acc+2*u+1}")
    g(f"buffer_store_dwordx4 v[16:19], v{vLANE16}, s[{sWS}:{sWS+3}], s{sBASE0} offen sc1")
    g(f"buffer_store_dwordx4 v[20:23], v{vLANE16}, s[{sWS}:{sWS+3}], s{sKV} offen sc1")
    att_setup(g)
    g(f"s_lshl_b32 s{sT2}, s{sGH}, 2")
    g(f"s_add_u32 s{sT2}, s{sT2}, s{sW4}")
    g(f"s_lshl_b32 s{sBASE0}, s{sT2}, 13")
    g(f"s_mul_i32 s{sT2}, s{sT2}, {FS}")
    g(f"s_add_u32 s{sT2}, s{sT2}, {F1:#x}")
    g.nonce_finish()
    g("s_waitcnt vmcnt(0)")
    g.flag(sBASE1)
    g("s_barrier")
    g.ts(3)
    g.vpoll4(sT2, "atomic") if f1atomic else g.spoll4(sT2)
    g.ts(4)
    for s in range(8):
        if s == 4: g(f"s_add_u32 s{sBASE0}, s{sBASE0}, 4096")
        g(f"buffer_load_dwordx4 v[{vQ+4*s}:{vQ+4*s+3}], v{vLANE16}, s[{sWS}:{sWS+3}], s{sBASE0} offen offset:{1024*(s&3)} {qf}")
    g("s_barrier")
    if cprio: g(f"s_setprio {cprio}")
    g("s_barrier")
    n0 = len(g.L)
    att_loop(g, dict(nks=NKS, tail=ptail, **attO))
    if nosum: g.L = g.L[:n0] + [l for l in g.L[n0:] if f'v[{vONE}:{vONE+3}]' not in l or 'v[219' in l]
    def stamp6():
        g.ts(6)
        if g.debug and g.debug not in (7, 9):
            g("s_memtime s[100:101]")
            g("s_waitcnt lgkmcnt(0)")
            g(f"s_sub_u32 s{sTS+15}, s100, s{sTS+15}")
        if cprio: g("s_setprio 0")
    if not ptail: stamp6()
    Pl = vP + 8
    def pv(p):
        if p == 0: g("s_waitcnt lgkmcnt(8)")
        if p == 2: g("s_waitcnt lgkmcnt(0)")
        for sl in range(4*p, 4*p + 4): g(g.pmf(Pl, sl))
    if ptail:
        pv(0); g(g.m16(vLS, vONE, Pl, vLS)); g(g.m16(vLS+4, vONE, Pl+4, vLS+4)); pv(1)
    LSC = 98304 if NKS == 4 else 65536
    sh_own, sh_w4, sh_fi, sh_sp = ((15, 13, 12, 10), (13, 11, 10, 15), (15, 11, 10, 13))[polay]
    vEG, vEL = 246, 247
    g(f"s_lshl_b32 s{sBASE0}, s{sGH}, 17")
    g(f"s_lshl_b32 s{sT0}, s{sW4}, {sh_w4}")
    g(f"s_add_u32 s{sBASE0}, s{sBASE0}, s{sT0}")
    g(f"s_lshl_b32 s{sT0}, s{sKQ}, {sh_sp}")
    g(f"s_add_u32 s{sBASE0}, s{sBASE0}, s{sT0}")
    g(f"s_add_u32 s{sBASE0}, s{sBASE0}, {PO:#x}")
    g(f"v_and_b32 v{vT3}, 15, v0")
    g(f"v_bfe_u32 v{vT4}, v0, 4, 1")
    g(f"v_lshl_add_u32 v{vT3}, v{vT4}, 5, v{vT3}")
    g(f"v_lshlrev_b32 v{vT3}, 4, v{vT3}")
    g(f"v_lshrrev_b32 v{vEL}, 5, v0")
    g(f"v_lshl_add_u32 v{vEG}, v{vEL}, {sh_fi}, v{vT3}")
    g(f"v_lshl_add_u32 v{vEL}, v{vEL}, 10, v{vT3}")
    g(f"s_lshl_b32 s{sT3}, s{sW4}, 11")
    g(f"s_add_u32 s{sT3}, s{sT3}, {LSC}")
    g(f"v_add_u32 v{vEL}, s{sT3}, v{vEL}")
    if ptail: pv(2)
    for o in range(4):
        if ptail and o == 2: stamp6()
        for hf in range(2):
            src = vO + 32*hf + 8*o; dst = vKR + 8*o + 4*hf
            for u in range(4):
                g(f"v_cvt_pk_bf16_f32 v{dst+u}, v{src+2*u}, v{src+2*u+1}")
        if ptail and o == 0: pv(3)
        lo = g.newlab("LOC"); nx = g.newlab("NXT")
        dst = vKR + 8*o
        g(f"s_cmp_eq_u32 s{sKQ}, {o}")
        g(f"s_cbranch_scc1 {lo}")
        g(f"s_add_u32 s{sT0}, s{sBASE0}, {o << sh_own:#x}")
        g(f"buffer_store_dwordx4 v[{dst}:{dst+3}], v{vEG}, s[{sWS}:{sWS+3}], s{sT0} offen {wf}")
        g(f"buffer_store_dwordx4 v[{dst+4}:{dst+7}], v{vEG}, s[{sWS}:{sWS+3}], s{sT0} offen offset:256 {wf}")
        g(f"s_branch {nx}")
        g.lab(lo)
        g(f"ds_write_b128 v{vEL}, v[{dst}:{dst+3}]")
        g(f"ds_write_b128 v{vEL}, v[{dst+4}:{dst+7}] offset:256")
        g.lab(nx)
        if o == 1:
            g(f"s_lshl_b32 s{sT1}, s{sGH}, 2")
            g(f"s_add_u32 s{sT1}, s{sT1}, s{sW4}")
            g(f"s_lshl_b32 s{sT2}, s{sT1}, 10")
            g(f"s_lshl_b32 s{sT3}, s{sKQ}, 8")
            g(f"s_add_u32 s{sT2}, s{sT2}, s{sT3}")
            g(f"s_add_u32 s{sT2}, s{sT2}, {ST:#x}")
            g(f"v_cmp_ne_u32 vcc, 0, v{vT4}")
            g(f"v_and_b32 v{vA0}, 31, v0")
            g(f"v_lshlrev_b32 v{vA0}, 3, v{vA0}")
            g(f"v_cndmask_b32 v{vT0}, v{vNEG}, v{vNEG+4}, vcc")
            g(f"v_cndmask_b32 v{vT1}, v{vLS}, v{vLS+4}, vcc")
            g(f"v_sub_f32 v{vT0}, 0, v{vT0}")
            g(f"s_lshl_b32 s{sT3}, s{sW4}, 8")
            g(f"s_add_u32 s{sT3}, s{sT3}, {LSC + 8192}")
            g(f"v_add_u32 v{vA2}, s{sT3}, v{vA0}")
            g(f"buffer_store_dwordx2 v[{vT0}:{vT1}], v{vA0}, s[{sWS}:{sWS+3}], s{sT2} offen {wf}")
            g(f"ds_write_b64 v{vA2}, v[{vT0}:{vT1}]")
    if 9 in bplan: g("s_barrier")

    g.lab("L_BACK")
    sBB, sHP = sCT, sK0
    g(f"s_and_b32 s{sBB}, s{sWAVE}, 1")
    g(f"s_lshr_b32 s{sHP}, s{sWAVE}, 1")
    g(f"s_sub_u32 s{sT0}, s{sHP}, s{sRT}")
    g(f"s_and_b32 s{sT0}, s{sT0}, 3")
    if NKS == 4:
        g(f"s_sub_u32 s{sT2}, s{sT0}, 1")
        g(f"s_cmp_eq_u32 s{sT0}, 0")
        g(f"s_cselect_b32 s{sT2}, 4, s{sT2}")
    else:
        g(f"s_sub_u32 s{sT2}, s{sT0}, 2")
        g(f"s_add_u32 s{sT3}, s{sT0}, 3")
        g(f"s_cmp_lt_u32 s{sT0}, 2")
        g(f"s_cselect_b32 s{sT2}, s{sT3}, s{sT2}")
    g(f"s_lshl_b32 s{sT2}, s{sT2}, 15")
    g("v_lshrrev_b32 v4, 5, v0")
    g("v_bfe_u32 v5, v0, 2, 2")
    g("v_lshl_add_u32 v6, v4, 2, v5")
    g("v_lshlrev_b32 v6, 7, v6")
    g("v_and_b32 v7, 1, v0")
    g("v_lshl_add_u32 v6, v7, 3, v6")
    g(f"v_add_u32 v6, s{sT2}, v6")
    g("v_bfe_u32 v7, v0, 1, 1")
    g("v_bfe_u32 v8, v0, 4, 1")
    g("v_lshl_add_u32 v7, v8, 1, v7")
    g("v_lshlrev_b32 v5, 1, v5")
    g("v_and_b32 v5, 4, v5")
    g("v_xor_b32 v7, v7, v5")
    g(f"v_lshl_add_u32 v{vKA}, v7, 4, v6")
    g("v_xor_b32 v7, 4, v7")
    g(f"v_lshl_add_u32 v{vKA+1}, v7, 4, v6")
    g(f"s_lshl_b32 s{sT1}, s{sGH}, 2")
    g(f"s_add_u32 s{sT1}, s{sT1}, s{sW4}")
    g(f"s_lshl_b32 s{sBASE1}, s{sT1}, 10")
    g(f"s_add_u32 s{sBASE1}, s{sBASE1}, {ST:#x}")
    g(f"s_lshl_b32 s{sBASE0}, s{sGH}, 17")
    g(f"s_lshl_b32 s{sT0}, s{sKQ}, {sh_own}")
    g(f"s_add_u32 s{sBASE0}, s{sBASE0}, s{sT0}")
    g(f"s_lshl_b32 s{sT0}, s{sW4}, {sh_w4}")
    g(f"s_add_u32 s{sBASE0}, s{sBASE0}, s{sT0}")
    g(f"s_lshl_b32 s{sT0}, s{sROLE}, {sh_fi}")
    g(f"s_add_u32 s{sBASE0}, s{sBASE0}, s{sT0}")
    g(f"s_add_u32 s{sBASE0}, s{sBASE0}, {PO:#x}")
    g(f"v_and_b32 v{vA0}, 31, v0")
    g(f"v_lshlrev_b32 v{vA0}, 3, v{vA0}")
    g(f"s_lshl_b32 s{sT0}, s{sW4}, 11")
    g(f"s_lshl_b32 s{sT2}, s{sROLE}, 10")
    g(f"s_add_u32 s{sT0}, s{sT0}, s{sT2}")
    g(f"s_add_u32 s{sT0}, s{sT0}, {LSC}")
    g(f"v_add_u32 v{vA1}, s{sT0}, v{vLANE16}")
    g(f"s_lshl_b32 s{sT0}, s{sW4}, 8")
    g(f"s_add_u32 s{sT0}, s{sT0}, {LSC + 8192}")
    g(f"v_add_u32 v{vA2}, s{sT0}, v{vA0}")
    g(f"s_mul_i32 s{sT2}, s{sGH}, {FS}")
    g(f"s_add_u32 s{sT2}, s{sT2}, {F2:#x}")
    g(f"s_lshl_b32 s{sT3}, s{sKQ}, 3")
    g(f"s_add_u32 s{sT3}, s{sT3}, s{sT2}")
    g("s_waitcnt vmcnt(0) lgkmcnt(0)")
    g.ts(7)
    g("s_barrier")
    g.ts(7, 4)
    vB = 112
    def bread():
        cnt = 0
        for n in range(16):
            for nt in range(2):
                b = vB + (n*2+nt)*4
                row = 32*(n >> 1) + 8*(n & 1)
                g(f"ds_read_b64_tr_b16 v[{b}:{b+1}], v{vKA+nt} offset:{128*row}")
                g(f"ds_read_b64_tr_b16 v[{b+2}:{b+3}], v{vKA+nt} offset:{128*(row+16)}")
                cnt += 2
                if cnt % 8 == 0: g("s_waitcnt lgkmcnt(5)")
        g("s_waitcnt lgkmcnt(0)")
    g(f"ds_read_b64 v[16:17], v{vA2}")
    g(f"ds_read_b128 v[48:51], v{vA1}")
    g(f"s_cmp_lg_u32 s{sWAVE}, {pw2}")
    g("s_cbranch_scc1 L_NOF2")
    g.flag(sT3)
    if pfirst:
        g.vpoll4(sT2, vp) if vp else g.spoll4(sT2)
        g("s_branch L_NOP2")
    g.lab("L_NOF2")
    bread()
    if not pfirst:
        g(f"s_cmp_lg_u32 s{sWAVE}, {pw2}")
        g("s_cbranch_scc1 L_NOP2")
        g.vpoll4(sT2, vp) if vp else g.spoll4(sT2)
    g.lab("L_NOP2")
    g("s_barrier")
    g.ts(8); g.ts(8, 4)
    for e in range(1, 4):
        g(f"s_add_u32 s{sT0}, s{sKQ}, {e}")
        g(f"s_and_b32 s{sT0}, s{sT0}, 3")
        g(f"s_lshl_b32 s{sT2}, s{sT0}, 8")
        g(f"s_add_u32 s{sT2}, s{sT2}, s{sBASE1}")
        g(f"buffer_load_dwordx2 v[{16+2*e}:{17+2*e}], v{vA0}, s[{sWS}:{sWS+3}], s{sT2} offen {rf}")
    for e in range(1, 4):
        g(f"s_add_u32 s{sT0}, s{sKQ}, {e}")
        g(f"s_and_b32 s{sT0}, s{sT0}, 3")
        g(f"s_lshl_b32 s{sT2}, s{sT0}, {sh_sp}")
        g(f"s_add_u32 s{sT2}, s{sT2}, s{sBASE0}")
        g(f"buffer_load_dwordx4 v[{48+4*e}:{51+4*e}], v{vLANE16}, s[{sWS}:{sWS+3}], s{sT2} offen {rf}")
    g(f"s_lshl_b32 s{sT0}, s{sT1}, 13")
    g(f"s_lshl_b32 s{sT2}, s{sKQ}, 11")
    g(f"s_add_u32 s{sT0}, s{sT0}, s{sT2}")
    g(f"s_lshl_b32 s{sT2}, s{sROLE}, 10")
    g(f"s_add_u32 s{sT0}, s{sT0}, s{sT2}")
    g(f"s_add_u32 s{sT1}, s{sT0}, {OF:#x}")
    g(f"s_lshl_b32 s{sT0}, s{sRT}, 1")
    g(f"s_add_u32 s{sT0}, s{sT0}, s{sBB}")
    g(f"s_lshl_b32 s{sT0}, s{sT0}, 2")
    g(f"s_add_u32 s{sT0}, s{sT0}, s{sOH}")
    g(f"s_lshl_b32 s{sBASE0}, s{sT0}, 16")
    g(f"s_lshl_b32 s{sT2}, s{sHP}, 14")
    g(f"s_add_u32 s{sBASE0}, s{sBASE0}, s{sT2}")
    g(f"s_add_u32 s{sBASE0}, s{sBASE0}, {OF:#x}")
    g(f"s_mul_i32 s{sT2}, s{sGH}, {16*FS}")
    g(f"s_lshl_b32 s{sT3}, s{sKQ}, 3")
    g(f"s_add_u32 s{sT2}, s{sT2}, s{sT3}")
    g(f"s_add_u32 s{sT2}, s{sT2}, {F3:#x}")
    g(f"v_mul_u32_u24 v{vA3}, {FS}, v0")
    g(f"v_add_u32 v{vA3}, s{sT2}, v{vA3}")
    g(f"s_lshl_b32 s{sT0}, s{sRT}, 3")
    g(f"s_add_u32 s{sT0}, s{sT0}, s{sOH}")
    g(f"s_lshl_b32 s{sT0}, s{sT0}, 5")
    g(f"s_add_u32 s{sT0}, s{sT0}, s{sN0}")
    g(f"s_mul_i32 s{sBASE1}, s{sT0}, {FS}")
    g(f"s_add_u32 s{sBASE1}, s{sBASE1}, {F3:#x}")
    if pfirst:
        g(f"s_cmp_lg_u32 s{sWAVE}, {pw2}")
        g("s_cbranch_scc1 L_NOB")
        bread()
        g.lab("L_NOB")
    for u in range(4):
        g(f"v_lshlrev_b32 v{32+2*u}, 16, v{48+u}")
        g(f"v_and_b32 v{33+2*u}, 0xffff0000, v{48+u}")
    g("s_waitcnt vmcnt(3)")
    g.ts(9, 4)
    g("v_max3_f32 v24, v16, v18, v20")
    g("v_max_f32 v24, v22, v24")
    for s in range(4): g(f"v_sub_f32 v{16+2*s}, v{16+2*s}, v24")
    for s in range(4): g(f"v_exp_f32 v{16+2*s}, v{16+2*s}")
    g("s_nop 0")
    g("v_mul_f32 v24, v16, v17")
    g("v_fmac_f32 v24, v18, v19")
    g("v_fmac_f32 v24, v20, v21")
    g("v_fmac_f32 v24, v22, v23")
    g("v_rcp_f32 v24, v24")
    g("s_nop 0")
    for s in range(4): g(f"v_mul_f32 v{16+2*s}, v{16+2*s}, v24")
    for c in range(8): g(f"v_mul_f32 v{32+c}, v{32+c}, v16")
    if debug == 4:
        g("s_waitcnt vmcnt(0)"); g.ts(10, 4)
    for s in range(1, 4):
        g(f"s_waitcnt vmcnt({3 - s})")
        for u in range(4):
            src = 48 + 4*s + u
            g(f"v_lshlrev_b32 v28, 16, v{src}")
            g(f"v_and_b32 v29, 0xffff0000, v{src}")
            g(f"v_fmac_f32 v{32+2*u}, v28, v{16+2*s}")
            g(f"v_fmac_f32 v{33+2*u}, v29, v{16+2*s}")
    for u in range(4):
        g(f"v_cvt_pk_bf16_f32 v{40+u}, v{32+2*u}, v{33+2*u}")
    g.ts(11, 4)
    g(f"buffer_store_dwordx4 v[40:43], v{vLANE16}, s[{sWS}:{sWS+3}], s{sT1} offen {wf}")
    g("s_waitcnt vmcnt(0)")
    g.ts(12, 4)
    g("s_barrier")
    g.ts(13, 4)
    g.ts(9)
    g(f"s_cmp_lg_u32 s{sWAVE}, 4")
    g("s_cbranch_scc1 L_NOP3")
    g("s_mov_b64 exec, 0xffff")
    g(f"buffer_store_dwordx2 v[{vNON}:{vNON+1}], v{vA3}, s[{sWS}:{sWS+3}], 0 offen sc1")
    g("s_mov_b64 exec, -1")
    if not f3wave: g.spollN(sBASE1, (0, 16*FS, 128*FS, 144*FS))
    g.lab("L_NOP3")
    g(f"s_lshl_b32 s{sT0}, s{sWAVE}, 13")
    g(f"v_add_u32 v{vA0}, s{sT0}, v{vLANE16}")
    g(f"s_lshl_b32 s{sT0}, s{sBB}, 13")
    g(f"s_lshl_b32 s{sT1}, s{sHP}, 11")
    g(f"s_add_u32 s{sT0}, s{sT0}, s{sT1}")
    g(f"v_add_u32 v{vA1}, s{sT0}, v{vLANE16}")
    if aprio:
        g(f"s_xor_b32 s{sT0}, s{sN0}, s{sROLE}")
        g(f"s_bitcmp1_b32 s{sT0}, 0")
        g("s_cbranch_scc0 L_NOPRIO")
        g("s_setprio 3")
        g.lab("L_NOPRIO")
    if f3wave:
        g(f"s_mul_i32 s{sT0}, s{sBB}, {128*FS}")
        g(f"s_mul_i32 s{sT1}, s{sROLE}, {16*FS}")
        g(f"s_add_u32 s{sBASE1}, s{sBASE1}, s{sT0}")
        g(f"s_add_u32 s{sBASE1}, s{sBASE1}, s{sT1}")
        g.vpoll4(sBASE1, vp) if vp else g.spoll4(sBASE1)
    else:
        g("s_barrier")
    g.ts(10)
    vA = 16
    if apf:
        g(f"s_and_b32 s{sT0}, s{sN0}, 7")
        g(f"s_lshl_b32 s{sT0}, s{sT0}, 11")
        g(f"s_add_u32 s{sT0}, s{sT0}, s{sBASE0}")
        g(f"buffer_load_dwordx4 v[4:7], v{vLANE16}, s[{sWS}:{sWS+3}], s{sT0} offen {rf}")
        g(f"buffer_load_dwordx4 v[4:7], v{vLANE16}, s[{sWS}:{sWS+3}], s{sT0} offen offset:1024 {rf}")
    for n in range(16):
        if n and n % 4 == 0: g(f"s_add_u32 s{sBASE0}, s{sBASE0}, 4096")
        g(f"buffer_load_dwordx4 v[{vA+4*n}:{vA+4*n+3}], v{vLANE16}, s[{sWS}:{sWS+3}], s{sBASE0} offen offset:{1024*(n&3)} {rf}")
    g(f"s_lshl_b32 s{sT2}, s{sBB}, 1")
    g(f"s_lshr_b32 s{sT3}, s{sHP}, 1")
    g(f"s_add_u32 s{sT2}, s{sT2}, s{sT3}")
    g(f"s_lshl_b32 s{sT0}, s{sRT}, 4")
    g(f"s_add_u32 s{sT0}, s{sT0}, s{sN0}")
    g(f"s_lshl_b32 s{sT0}, s{sT0}, 2")
    g(f"s_add_u32 s{sT0}, s{sT0}, s{sT2}")
    g(f"s_lshl_b32 s{sT0}, s{sT0}, 1")
    g(f"s_and_b32 s{sT1}, s{sHP}, 1")
    g(f"s_add_u32 s{sT0}, s{sT0}, s{sT1}")
    g(f"s_lshl_b32 s{sBASE0}, s{sT0}, 14")
    g(f"s_add_u32 s{sBASE0}, s{sBASE0}, {OP:#x}")
    g(f"s_mul_i32 s{sBASE1}, s{sT0}, {FS}")
    g(f"s_add_u32 s{sBASE1}, s{sBASE1}, {F4:#x}")
    g(f"s_lshl_b32 s{sT3}, s{sOH}, 3")
    g(f"s_add_u32 s{sT3}, s{sT3}, s{sBASE1}")
    vD = 80
    for n in range(16):
        g(f"s_waitcnt vmcnt({15-n})")
        for nt in range(2):
            mfma(g, vD+16*nt, vB + (n*2+nt)*4, vA+4*n, None if n == 0 else vD+16*nt)
    g.ts(11)
    g(f"v_mov_b32 v51, s{sN}")
    g(f"v_mov_b32 v55, s{sN}")
    g(f"v_mov_b32 v58, 0")
    g(f"v_mov_b32 v59, s{sN}")
    g("v_and_b32 v24, 31, v0")
    g("v_lshrrev_b32 v25, 5, v0")
    g("v_lshlrev_b32 v24, 11, v24")
    g(f"v_lshl_add_u32 v{vA2}, v25, 3, v24")
    g("s_nop 2")
    for q in range(8):
        g(f"ds_write_b128 v{vA0}, v[{vD+4*q}:{vD+4*q+3}] offset:{1024*q}")
    g("s_waitcnt lgkmcnt(0)")
    g("s_barrier")
    for hp2 in range(4):
        for e in range(2):
            g(f"ds_read_b128 v[{16+8*hp2+4*e}:{19+8*hp2+4*e}], v{vA1} offset:{16384*hp2 + 1024*e}")
    res = [48, 49, 50, 52, 53, 54, 56, 57]
    g("s_waitcnt lgkmcnt(4)")
    for c in range(8): g(f"v_add_f32 v{16+c}, v{16+c}, v{24+c}")
    g("s_waitcnt lgkmcnt(0)")
    for c in range(8): g(f"v_add_f32 v{32+c}, v{32+c}, v{40+c}")
    for c in range(8): g(f"v_add_f32 v{res[c]}, v{16+c}, v{32+c}")
    g.ts(12)
    g(f"s_cmp_eq_u32 s{sT2}, s{sOH}")
    g("s_cbranch_scc1 L_OWN")
    g(f"s_lshl_b32 s{sT0}, s{sOH}, 12")
    g(f"s_add_u32 s{sT0}, s{sT0}, s{sBASE0}")
    for j in range(3):
        g(f"buffer_store_dwordx4 v[{48+4*j}:{51+4*j}], v{vLANE16}, s[{sWS}:{sWS+3}], s{sT0} offen offset:{1024*j} {wf}")
    if ophint: g.flag(sT3)
    g("s_branch L_FIN")
    g.lab("L_OWN")
    if ophint: g.flag(sT3)
    g(f"s_lshl_b32 s{sT2}, s{sRT}, 1")
    g(f"s_add_u32 s{sT2}, s{sT2}, s{sBB}")
    g(f"s_lshl_b32 s{sT2}, s{sT2}, 16")
    g(f"s_lshl_b32 s{sT1}, s{sN0}, 7")
    g(f"s_add_u32 s{sT2}, s{sT2}, s{sT1}")
    g(f"s_lshl_b32 s{sT1}, s{sHP}, 5")
    g(f"s_add_u32 s{sT2}, s{sT2}, s{sT1}")
    if ophint: g.vpoll4(sBASE1, vp) if vp else g.spoll4(sBASE1)
    g.ts(13)
    g(f"s_mov_b32 s{sCNT}, 0")
    g.lab("L_OPL")
    for e in range(1, 4):
        g(f"s_add_u32 s{sT0}, s{sOH}, {e}")
        g(f"s_and_b32 s{sT0}, s{sT0}, 3")
        g(f"s_lshl_b32 s{sT0}, s{sT0}, 12")
        g(f"s_add_u32 s{sT0}, s{sT0}, s{sBASE0}")
        for j in range(3):
            r = 60 + 12*(e-1) + 4*j
            g(f"buffer_load_dwordx4 v[{r}:{r+3}], v{vLANE16}, s[{sWS}:{sWS+3}], s{sT0} offen offset:{1024*j} {rf}")
    g(f"s_add_u32 s{sCNT}, s{sCNT}, 1")
    g("s_waitcnt vmcnt(0)")
    tags = [63 + 4*k for k in range(9)]
    g(f"v_min3_u32 v16, v{tags[0]}, v{tags[1]}, v{tags[2]}")
    g(f"v_max3_u32 v17, v{tags[0]}, v{tags[1]}, v{tags[2]}")
    for k in (3, 5, 7):
        g(f"v_min3_u32 v16, v{tags[k]}, v{tags[k+1]}, v16")
        g(f"v_max3_u32 v17, v{tags[k]}, v{tags[k+1]}, v17")
    g(f"v_xor_b32 v16, s{sN}, v16")
    g(f"v_xor_b32 v17, s{sN}, v17")
    g("v_or_b32 v16, v16, v17")
    g("v_cmp_ne_u32 vcc, 0, v16")
    g("s_cbranch_vccz L_OPD")
    g(f"s_cmp_lt_u32 s{sCNT}, {g.limit:#x}")
    g("s_cbranch_scc1 L_OPL")
    g.lab("L_OPD")
    for e in range(3):
        for c in range(8):
            g(f"v_add_f32 v{res[c]}, v{res[c]}, v{res[c] + 12*(e+1)}")
    for u in range(4):
        g(f"v_cvt_pk_bf16_f32 v{16+u}, v{res[2*u]}, v{res[2*u+1]}")
    g(f"buffer_store_dwordx2 v[16:17], v{vA2}, s[{sOUT}:{sOUT+3}], s{sT2} offen {outflag}")
    g(f"buffer_store_dwordx2 v[18:19], v{vA2}, s[{sOUT}:{sOUT+3}], s{sT2} offen offset:16 {outflag}")
    g.lab("L_FIN")
    if span:
        g("s_sub_u32 s100, s2, 128")
        g("s_cmp_ge_u32 s100, 2")
        g("s_cbranch_scc1 L_END")
        g(f"s_cmp_lg_u32 s{sWAVE}, 0")
        g("s_cbranch_scc1 L_END")
        g("s_waitcnt vmcnt(0)")
        g.ts(14)
        g.srd(sDBG, 28, 256)
        g("s_sub_u32 s100, s2, 128")
        g("s_mul_i32 s100, s100, 28")
        g("s_add_u32 s100, s100, 8")
        g("v_mov_b32 v17, s100")
        g("s_mov_b64 exec, 1")
        for k, n in enumerate((0, 2, 5, 6, 8, 10, 14)):
            g(f"s_sub_u32 s101, s{sTS+n}, s{sN}")
            g(f"v_mov_b32 v{18+k}, s101")
            g(f"buffer_store_dword v{18+k}, v17, s[{sDBG}:{sDBG+3}], 0 offen offset:{4*k}")
        g("s_branch L_END")
    if debug:
        g("s_waitcnt vmcnt(0)")
        g.ts(14)
        g(f"s_lshl_b32 s{sT0}, s2, 3")
        g(f"s_add_u32 s{sT0}, s{sT0}, s{sWAVE}")
        g(f"s_lshl_b32 s{sT0}, s{sT0}, 6")
        g(f"s_add_u32 s{sT0}, s{sT0}, {TSB:#x}")
        g(f"v_mov_b32 v{vA3}, s{sT0}")
        g("s_mov_b64 exec, 1")
        for n in range(16):
            g(f"v_mov_b32 v{16+n}, s{sTS+n}")
            g(f"buffer_store_dword v{16+n}, v{vA3}, s[{sWS}:{sWS+3}], 0 offen offset:{4*n}")
    g.lab("L_END")
    g("s_endpgm")
    rare_path(g)
    g.lab("L_CODE_END")
    hdr = f"""; Fused Q-projection + sliding-window GQA attention + output projection (generated by gen/gen3.py)
; @launch grid=(256,1,1) block=(512,1,1) lds=163840
.amdgcn_target "amdgcn-amd-amdhsa--gfx950"
.text
.globl {NAME}
.p2align 8
.type {NAME},@function
{NAME}:
"""
    ftr = f"""
.section .rodata,"a"
.p2align 6
.amdhsa_kernel {NAME}
  .amdhsa_next_free_vgpr 256
  .amdhsa_next_free_sgpr 102
  .amdhsa_accum_offset 256
  .amdhsa_group_segment_fixed_size 0
  .amdhsa_kernarg_size 64
  .amdhsa_user_sgpr_count 2
  .amdhsa_user_sgpr_kernarg_segment_ptr 1
  .amdhsa_system_sgpr_workgroup_id_x 1
.end_amdhsa_kernel
"""
    return hdr + "\n".join(g.L) + ftr

if __name__ == "__main__":
    import argparse
    ap = argparse.ArgumentParser()
    ap.add_argument("-o", default="standalone__sliding_block_cached__sampling.s")
    ap.add_argument("--debug", type=int, default=0)
    ap.add_argument("--la", type=int, default=2)
    ap.add_argument("--cprio", type=int, default=1)
    ap.add_argument("--norot", action="store_true")
    ap.add_argument("--xnt", action="store_true")
    ap.add_argument("--nocodepf", action="store_true")
    ap.add_argument("--kw", default="")
    a = ap.parse_args()
    kw = eval("dict(" + a.kw + ")")
    open(a.o, "w").write(gen(debug=a.debug, LA=a.la, cprio=a.cprio, rot=not a.norot, xnt=a.xnt, codepf=not a.nocodepf, **kw))
```

```python
import struct, math, sys

NAME = "standalone__sliding_block_cached__sampling_kernel"
C_SCALE = math.log2(math.e) / math.sqrt(128.0)
def f2u(x): return struct.unpack("<I", struct.pack("<f", x))[0]
THR = 10.0

QF   = 0x0000000
OF   = 0x0200000
PO   = 0x0400000
ST   = 0x0C00000
FS   = 1152
F1   = 0x2000000
F2   = 0x2200000
F3   = 0x2300000
F4   = 0x2800000
OP   = 0x0E00000
TSB  = 0x1600000
WS_BYTES = 268435456

sXCD, sI, sWAVE, sW4, sROLE = 3, 4, 5, 6, 7
sT0, sT1, sT2, sT3 = 8, 9, 10, 11
sCNT, sLW1K, sG, sKQ = 12, 13, 14, 15
sX, sK, sV, sWQ, sWO, sOUT, sDBG, sWS = 32, 36, 40, 44, 48, 52, 56, 60
sBASE0, sBASE1, sCT, sRT = 64, 65, 66, 67
sHQ, sKV = 68, 69
sN = 70
sPA = 72
sK0 = 74
sGH = 75
sEX = 76
sRET = 78
sPD = 16
sTS = 80
sN0, sOH, sRP = 96, 97, 98
sTHR = 99

vLANE16 = 1
vKA, vVA = 2, 10
aKA, aVA = 2, 6
vT0, vT1 = 14, 15
vKR, vVR, vQ, vO, vS, vP, vNEG, vLS, vONE = 16, 48, 80, 112, 176, 208, 224, 232, 240
vT3, vT4, vT5 = 244, 245, 246
vTM, vT2 = 248, 249
vNON = 250
vA0, vA1, vA2, vA3 = 252, 253, 254, 255

class G:
    psleep = 0
    def __init__(self, debug=False, limit=1 << 21):
        self.L = []; self.debug = debug; self.nlab = 0; self.limit = limit
    def __call__(self, s): self.L.append("  " + s)
    def lab(self, s): self.L.append(s + ":")
    def newlab(self, p="L"):
        self.nlab += 1; return f"{p}_{self.nlab}"
    def ts(self, n, lvl=1):
        if self.debug == 9 and n not in (0, 14): return
        if self.debug == 7:
            if n not in (0, 5, 6, 14) or lvl != 1: return
            if n in (5, 6):
                self("s_memtime s[100:101]")
                self("s_waitcnt lgkmcnt(0)")
                self(f"s_mov_b32 s{sTS + 6 + n}, s100")
        if self.debug == 8 and (n not in (0, 2, 5, 6, 14) or lvl != 1): return
        if self.debug == 8 and n in (0, 2, 14):
            self("s_memtime s[100:101]")
            self("s_waitcnt lgkmcnt(0)")
            self(f"s_mov_b32 s{sTS + {0: 10, 2: 11, 14: 12}[n]}, s100")
        if self.debug >= 2 and lvl == 1 and 7 <= n <= 13: return
        if lvl >= 2 and self.debug != lvl: return
        if self.debug:
            self(f"s_memrealtime s[100:101]")
            self("s_waitcnt lgkmcnt(0)")
            self(f"s_mov_b32 s{sTS+n}, s100")
    def srd(self, d, p, nbytes):
        self(f"s_mov_b32 s{d}, s{p}")
        self(f"s_and_b32 s{d+1}, s{p+1}, 0xffff")
        self(f"s_mov_b32 s{d+2}, {nbytes:#x}")
        self(f"s_mov_b32 s{d+3}, 0x20000")
    def srd_ws(self, off):
        if not off:
            return self.srd(sWS, 30, WS_BYTES)
        self(f"s_add_u32 s{sWS}, s30, {off:#x}")
        self(f"s_addc_u32 s{sWS+1}, s31, 0")
        self(f"s_and_b32 s{sWS+1}, s{sWS+1}, 0xffff")
        self(f"s_mov_b32 s{sWS+2}, {WS_BYTES - off:#x}")
        self(f"s_mov_b32 s{sWS+3}, 0x20000")
    def dma(self, voff, srd, sbase, soff_const, m0base, m0_const, flags=""):
        self(f"s_add_u32 m0, s{m0base}, {m0_const:#x}")
        self(f"s_add_u32 s{sT0}, s{sbase}, {soff_const:#x}")
        self(f"buffer_load_dwordx4 v{voff}, s[{srd}:{srd+3}], s{sT0} offen {flags} lds".replace("  ", " "))
    def spoll4(self, soff):
        l = self.newlab("POLL"); d = self.newlab("POLLD")
        self(f"s_add_u32 s{sPA}, s{sWS}, s{soff}")
        self(f"s_addc_u32 s{sPA+1}, s{sWS+1}, 0")
        self(f"s_mov_b32 s{sCNT}, 0")
        self.lab(l)
        self(f"s_load_dwordx8 s[{sPD}:{sPD+7}], s[{sPA}:{sPA+1}], 0 glc")
        self(f"s_add_u32 s{sCNT}, s{sCNT}, 1")
        self(f"s_cmp_ge_u32 s{sCNT}, {self.limit:#x}")
        self("s_waitcnt lgkmcnt(0)")
        self(f"s_cbranch_scc1 {d}")
        r = l
        if self.psleep: r = self.newlab("POLLS")
        for q in range(4):
            self(f"s_cmp_eq_u64 s[{sPD+2*q}:{sPD+2*q+1}], s[{sN}:{sN+1}]")
            self(f"s_cbranch_scc0 {r}")
        if self.psleep:
            self(f"s_branch {d}")
            self.lab(r)
            self(f"s_sleep {self.psleep}")
            self(f"s_branch {l}")
        self.lab(d)
    pdepth = 1
    def vpoll4(self, soff, flags):
        l = self.newlab("POLL"); d = self.newlab("POLLD")
        if flags == "atomic":
            self("v_and_b32 v244, 3, v0")
            self("v_lshlrev_b32 v244, 3, v244")
            self(f"s_mov_b32 s{sCNT}, 0")
            self("s_mov_b64 exec, 15")
            self.lab(l)
            self("v_mov_b32 v246, 0")
            self("v_mov_b32 v247, 0")
            self(f"buffer_atomic_or_x2 v[246:247], v244, s[{sWS}:{sWS+3}], s{soff} offen sc0 sc1")
            self(f"s_add_u32 s{sCNT}, s{sCNT}, 1")
            self("s_waitcnt vmcnt(0)")
            self(f"v_cmp_ne_u64 vcc, s[{sN}:{sN+1}], v[246:247]")
            self(f"s_cbranch_vccz {d}")
            self(f"s_cmp_lt_u32 s{sCNT}, {self.limit:#x}")
            self(f"s_cbranch_scc1 {l}")
            self.lab(d)
            self("s_mov_b64 exec, -1")
            return
        n = self.pdepth
        self("v_and_b32 v10, 3, v0")
        self("v_lshlrev_b32 v10, 3, v10")
        self(f"s_mov_b32 s{sCNT}, 0")
        ld = lambda k: self(f"buffer_load_dwordx2 v[{240+2*k}:{241+2*k}], v10, s[{sWS}:{sWS+3}], s{soff} offen {flags}")
        for k in range(n - 1):
            ld(k)
            self(f"s_sleep {self.pgap}")
        self.lab(l)
        for k in range(n):
            ld((k + n - 1) % n)
            self(f"s_waitcnt vmcnt({n - 1})")
            self(f"v_cmp_ne_u64 vcc, s[{sN}:{sN+1}], v[{240+2*k}:{241+2*k}]")
            self(f"s_cbranch_vccz {d}")
        if self.psleep: self(f"s_sleep {self.psleep}")
        self(f"s_add_u32 s{sCNT}, s{sCNT}, 1")
        self(f"s_cmp_lt_u32 s{sCNT}, {self.limit:#x}")
        self(f"s_cbranch_scc1 {l}")
        self.lab(d)
    def spoll4x2(self, soff):
        l = self.newlab("POLL"); d = self.newlab("POLLD")
        self(f"s_add_u32 s{sPA}, s{sWS}, s{soff}")
        self(f"s_addc_u32 s{sPA+1}, s{sWS+1}, 0")
        self(f"s_mov_b32 s{sCNT}, 0")
        self.lab(l)
        self(f"s_load_dwordx8 s[16:23], s[{sPA}:{sPA+1}], 0x80 glc")
        self(f"s_add_u32 s{sCNT}, s{sCNT}, 1")
        self(f"s_and_b32 s32, s{sCNT}, 3")
        self(f"s_cmp_lg_u32 s32, 0")
        n = self.newlab("POLLF")
        self(f"s_cbranch_scc1 {n}")
        self("s_waitcnt lgkmcnt(0)")
        self(f"s_load_dwordx8 s[16:23], s[{sPA}:{sPA+1}], 0 glc")
        self.lab(n)
        self(f"s_cmp_ge_u32 s{sCNT}, {self.limit:#x}")
        self("s_waitcnt lgkmcnt(0)")
        self(f"s_cbranch_scc1 {d}")
        for q in range(4):
            self(f"s_cmp_eq_u64 s[{16+2*q}:{17+2*q}], s[{sN}:{sN+1}]")
            self(f"s_cbranch_scc0 {l}")
        self.lab(d)
    def flag2(self, saddr):
        self(f"v_mov_b32 v{vA3}, s{saddr}")
        self(f"s_mov_b64 s[{sEX}:{sEX+1}], exec")
        self("s_mov_b64 exec, 1")
        self(f"buffer_store_dwordx2 v[{vNON}:{vNON+1}], v{vA3}, s[{sWS}:{sWS+3}], 0 offen offset:128")
        self(f"buffer_store_dwordx2 v[{vNON}:{vNON+1}], v{vA3}, s[{sWS}:{sWS+3}], 0 offen sc1")
        self(f"s_mov_b64 exec, s[{sEX}:{sEX+1}]")
    def spollN(self, soff, deltas):
        l = self.newlab("POLL"); d = self.newlab("POLLD")
        regs = [16, 24, 32, 40][:len(deltas)]
        self(f"s_add_u32 s{sPA}, s{sWS}, s{soff}")
        self(f"s_addc_u32 s{sPA+1}, s{sWS+1}, 0")
        self(f"s_mov_b32 s{sCNT}, 0")
        self.lab(l)
        for r, dl in zip(regs, deltas):
            self(f"s_load_dwordx8 s[{r}:{r+7}], s[{sPA}:{sPA+1}], {dl:#x} glc")
        self(f"s_add_u32 s{sCNT}, s{sCNT}, 1")
        self(f"s_cmp_ge_u32 s{sCNT}, {self.limit:#x}")
        self("s_waitcnt lgkmcnt(0)")
        self(f"s_cbranch_scc1 {d}")
        for r in regs:
            for q in range(4):
                self(f"s_cmp_eq_u64 s[{r+2*q}:{r+2*q+1}], s[{sN}:{sN+1}]")
                self(f"s_cbranch_scc0 {l}")
        self.lab(d)
    def flag(self, saddr):
        self(f"v_mov_b32 v{vA3}, s{saddr}")
        self(f"s_mov_b64 s[{sEX}:{sEX+1}], exec")
        self("s_mov_b64 exec, 1")
        self(f"buffer_store_dwordx2 v[{vNON}:{vNON+1}], v{vA3}, s[{sWS}:{sWS+3}], 0 offen sc1")
        self(f"s_mov_b64 exec, s[{sEX}:{sEX+1}]")
    def nonce_issue(self, glc=""):
        self(f"s_load_dwordx2 s[{sN}:{sN+1}], s[28:29], 0{glc}")
    def nonce_finish(self):
        l = self.newlab("NON"); d = self.newlab("NOND")
        self(f"s_mov_b32 s{sCNT}, 0")
        self.lab(l)
        self("s_waitcnt lgkmcnt(0)")
        self(f"s_cmp_lg_u32 s{sN}, 0")
        self(f"s_cbranch_scc1 {d}")
        self(f"s_add_u32 s{sCNT}, s{sCNT}, 1")
        self(f"s_cmp_ge_u32 s{sCNT}, {self.limit:#x}")
        self(f"s_cbranch_scc1 {d}")
        self("s_sleep 8")
        self.nonce_issue(" glc")
        self(f"s_branch {l}")
        self.lab(d)
        self(f"v_mov_b32 v{vNON}, s{sN}")
        self(f"v_mov_b32 v{vNON+1}, s{sN+1}")

def mfma(g, d, a, b, c):
    cs = "0" if c is None else f"v[{c}:{c+15}]"
    g(f"v_mfma_f32_32x32x16_bf16 v[{d}:{d+15}], v[{a}:{a+3}], v[{b}:{b+3}], {cs}")
def mfma16(g, d, a, b, c):
    cs = "0" if c is None else f"v[{c}:{c+3}]"
    g(f"v_mfma_f32_16x16x32_bf16 v[{d}:{d+3}], v[{a}:{a+3}], v[{b}:{b+3}], {cs}")

def att_setup(g):
    g("v_and_b32 v32, 15, v0")
    g("v_lshrrev_b32 v33, 4, v0")
    g("v_xor_b32 v34, v32, v33")
    g("v_lshlrev_b32 v35, 8, v32")
    for s in range(4):
        g(f"v_xor_b32 v36, {4*s}, v34")
        g(f"v_lshl_add_u32 v{aKA+s}, v36, 4, v35")
    g("v_lshrrev_b32 v36, 2, v32")
    g("v_lshl_add_u32 v36, v33, 2, v36")
    g("v_and_b32 v37, 7, v36")
    g("v_lshlrev_b32 v37, 1, v37")
    g("v_bfe_u32 v38, v0, 1, 1")
    g("v_xor_b32 v37, v37, v38")
    g("v_lshlrev_b32 v36, 8, v36")
    g("v_and_b32 v38, 1, v0")
    g("v_lshl_add_u32 v36, v38, 3, v36")
    g("v_add_u32 v36, 16384, v36")
    for dt in range(8):
        g(f"v_xor_b32 v38, {2*dt}, v37")
        g(f"v_lshl_add_u32 v{aVA+dt}, v38, 4, v36")
    for u in range(4): g(f"v_mov_b32 v{vONE+u}, 0x3f803f80")

BIAS = 9.0
vOR = 252
def rowmax(S, hf, dst, tmp):
    b = S + 8*hf
    return [[f"v_max3_f32 v{dst}, v{b}, v{b+1}, v{b+2}", f"v_max3_f32 v{tmp}, v{b+3}, v{b+4}, v{b+5}"],
            [f"v_max3_f32 v{dst}, v{b+6}, v{b+7}, v{dst}", f"v_max_f32 v{dst}, v{dst}, v{tmp}", f"v_mov_b32 v{tmp}, v{dst}"],
            ["s_nop 1", f"v_permlane16_swap_b32 v{dst}, v{tmp}", "s_nop 1", f"v_max_f32 v{dst}, v{dst}, v{tmp}", f"v_mov_b32 v{tmp}, v{dst}"],
            ["s_nop 1", f"v_permlane32_swap_b32 v{dst}, v{tmp}", "s_nop 1", f"v_max_f32 v{dst}, v{dst}, v{tmp}"]]

def att_loop(g, O=None):
    O = {**dict(eslots=(0, 2, 4, 6, 8, 10, 12, 14, 16, 17, 19, 21, 23, 25, 26, 27), m16s=(18, 26), vslots=tuple(range(16)), kslots=(17, 19, 21, 23, 25, 27, 29, 31), cdel=1), **(O or {})}
    NKS = O.get("nks", 4)
    g.stubs = []
    kcur = [0]; vcur = [0]
    def kbase(t):
        slot = (t // 2) % NKS
        want = (slot >> 1) * 65536
        r = []
        if want != kcur[0]:
            r.append(f"s_mov_b32 s{sT0}, {(want - kcur[0]) & 0xffffffff:#x}")
            for x in range(aKA, aKA+4): r.append(f"v_add_u32 v{x}, s{sT0}, v{x}")
            kcur[0] = want
        return (slot & 1) * 32768 + (t & 1) * 8192, r
    def vbase(t):
        slot = (t // 2) % NKS
        want = (slot >> 1) * 65536
        r = []
        if want != vcur[0]:
            r.append(f"s_mov_b32 s{sT1}, {(want - vcur[0]) & 0xffffffff:#x}")
            for x in range(aVA, aVA+8): r.append(f"v_add_u32 v{x}, s{sT1}, v{x}")
            vcur[0] = want
        return (slot & 1) * 32768 + (t & 1) * 8192, r
    def krd(off, n, base=vKR):
        return f"ds_read_b128 v[{base+4*n}:{base+4*n+3}], v{aKA+(n&3)} offset:{off + 4096*(n>>2)}"
    def vrd(off, x):
        dt, jj = x >> 1, x & 1
        b = vVR + 4*dt + 2*jj
        return f"ds_read_b64_tr_b16 v[{b}:{b+1}], v{aVA+dt} offset:{off + 4096*jj}"
    def em(l):
        for x in l: g(x)
    m16 = lambda d, a, b, c: f"v_mfma_f32_16x16x32_bf16 v[{d}:{d+3}], v[{a}:{a+3}], v[{b}:{b+3}], " + ("0" if c is None else f"v[{c}:{c+3}]")
    def smf(S, kb, sl, first):
        n, hf = sl >> 1, sl & 1
        kt, s = n >> 2, n & 3
        if O.get("qkord") == "B":
            kt, hf, s = sl & 1, (sl >> 1) & 1, sl >> 2
            n = 4*kt + s
        d = S + 8*hf + 4*kt
        return m16(d, kb + 4*n, vQ + 16*hf + 4*s, (first(hf) if s == 0 else d))
    def pmf(P, sl, init=False):
        dt, hf = sl >> 1, sl & 1
        d = vO + 32*hf + 4*dt
        return m16(d, vVR + 4*dt, P + 4*hf, None if init else d)
    g.pmf = pmf; g.m16 = m16
    o, _ = kbase(0)
    for n in range(8): g(krd(o, n, vVR))
    o1, _ = kbase(1)
    for n in range(7): g(krd(o1, n))
    g("s_waitcnt vmcnt(0)")
    g.ts(5)
    if g.debug and g.debug not in (7, 9):
        g("s_memtime s[100:101]")
        g("s_waitcnt lgkmcnt(0)")
        g(f"s_mov_b32 s{sTS+15}, s100")
    g(f"s_waitcnt lgkmcnt(7)")
    for sl in range(16):
        g(smf(vS, vVR, sl, lambda hf: None))
        if sl == 0: g(krd(o1, 7))
    g(f"s_mov_b32 s{sT0}, {f2u(BIAS):#x}")
    NT = 16
    tmp = [(vT0, vT1), (vTM, vT2), (vT3, vT4)]
    O0 = O
    for t in range(0, NT):
        O = {**O0, **O0["alt"]} if t in O0.get("alt_t", ()) else O0
        Sc = vS + 16*(t & 1); Sn = vS + 16*((t+1) & 1)
        Pc = vP + 8*(t & 1); Pp = vP + 8*((t-1) & 1)
        doS = t + 1 < NT; doPV = t >= 1; doK = t + 2 < NT
        pre = [[] for _ in range(32)]; M = [[] for _ in range(32)]; D = [[] for _ in range(32)]; V = [[] for _ in range(32)]
        if t == 15:
            vo, bump = vbase(15)
            assert not bump
            pre[0].append("s_waitcnt lgkmcnt(8)")
            pre[8].append("s_waitcnt lgkmcnt(6)")
            for sl in range(16):
                M[sl].append(pmf(Pp, sl))
                if sl & 1: D[sl] += [vrd(vo, sl - 1), vrd(vo, sl)]
            M[2].append(m16(vLS, vONE, Pp, vLS)); M[10].append(m16(vLS+4, vONE, Pp+4, vLS+4))
            if not O.get("tail"):
                pre[16].append("s_waitcnt lgkmcnt(8)"); pre[24].append("s_waitcnt lgkmcnt(0)")
                for sl in range(16): M[16+sl].append(pmf(Pc, sl))
                M[18].append(m16(vLS, vONE, Pc, vLS)); M[26].append(m16(vLS+4, vONE, Pc+4, vLS+4))
        elif doPV:
            vo, bump = vbase(t-1)
            pre[0] += bump
            for x in range(16): D[O["vslots"][x]].append(vrd(vo, x))
            for sl in range(16):
                s2 = sl
                if O.get("pvord") == "B" and t < 14: s2 = 2*(sl & 3) + 8*(sl >> 3) + ((sl >> 2) & 1)
                M[16+sl].append(pmf(Pp, s2, t == 1))
            M[O["m16s"][0]].append(m16(vLS, vONE, Pp, None if t == 1 else vLS))
            M[O["m16s"][1]].append(m16(vLS+4, vONE, Pp+4, None if t == 1 else vLS+4))
            pre[16].append("s_waitcnt lgkmcnt(8)")
            nk = sum(1 for x in O["kslots"] if x < 24)
            pre[24].append(f"s_waitcnt lgkmcnt({nk if doK else 6})")
        if t < 15:
            nv = sum(1 for x in O["vslots"] if x < 8)
            pre[8].append(f"s_waitcnt lgkmcnt({min(6, nv) if doPV else 0})")
        if doS:
            pre[0].append("s_waitcnt lgkmcnt(0)" if O.get("qkord") == "B" else "s_waitcnt lgkmcnt(4)")
            for sl in range(16): M[sl].append(smf(Sn, vKR, sl, (lambda hf: None) if t == 0 else (lambda hf: vNEG + 4*hf)))
        if t % 2 == 0 and t <= 14:
            if t == 14: D[16].append("s_waitcnt lgkmcnt(0)")
            if t >= 2 and g.debug == 2:
                D[16] += ["s_memrealtime s[100:101]", "s_waitcnt lgkmcnt(0)", f"s_mov_b32 s{sTS+6+t//2}, s100"]
            if g.debug == 7 and t in (2, 6, 10, 14):
                k = (t + 2) // 4
                D[16] += ["s_memrealtime s[100:101]", "s_memtime s[98:99]", "s_waitcnt lgkmcnt(0)", f"s_mov_b32 s{sTS+k}, s100", f"s_mov_b32 s{sTS+6+k}, s98"]
            D[16].append("s_barrier")
        if t == 14:
            vo, bump = vbase(14)
            D[16] += bump
            for sl in range(1, 16, 2): D[16+sl] += [vrd(vo, sl - 1), vrd(vo, sl)]
        if doK:
            ko, bump = kbase(t+2)
            D[16] += bump
            for n in range(8): D[O["kslots"][n]].append(krd(ko, n))
        if t == 0:
            r0 = rowmax(vS, 0, vTM, vT2); r1 = rowmax(vS, 1, vT3, vT4)
            V[2] += ["s_nop 3"]
            for k in range(4):
                V[3 + 2*k] += r0[k]; V[4 + 2*k] += r1[k]
            V[11] += [f"v_add_f32 v{vTM}, s{sT0}, v{vTM}", f"v_add_f32 v{vT3}, s{sT0}, v{vT3}"]
            V[12] += [f"v_sub_f32 v{vNEG+u}, 0, v{vTM}" for u in range(4)]
            V[13] += [f"v_sub_f32 v{vNEG+4+u}, 0, v{vT3}" for u in range(4)]
            slots = [14, 14, 15, 15] + [16 + k for k in range(12)]
        elif t == 15:
            slots = [0, 0, 1, 2, 3, 3, 4, 5, 6, 6, 7, 8, 9, 9, 10, 11]
        else:
            slots = list(O["eslots"])
        cdel = O["cdel"]
        for e in range(16):
            T = tmp[(e >> 1) % 3][e & 1]
            if t <= 1:
                V[slots[e]].append(f"v_add_f32 v{Sc+e}, v{Sc+e}, v{vNEG + 4*(e >> 3)}")
            V[slots[e]].append(f"v_exp_f32 v{T}, v{Sc+e}")
        last = 0
        for u in range(8):
            sl = slots[2*u+1] + cdel
            assert u + 3 > 7 or slots[2*u+6] >= sl
            a, b = tmp[u % 3]
            V[sl] = [f"v_cvt_pk_bf16_f32 v{Pc+u}, v{a}, v{b}"] + V[sl]
            if O.get("addsum"):
                V[sl] = V[sl][:1] + [f"v_add_f32 v{vLS+4*(u>>2)}, v{vLS+4*(u>>2)}, v{a}"] + V[sl][1:]
                V[min(sl + 1, 31)] = [f"v_add_f32 v{vLS+4*(u>>2)+1}, v{vLS+4*(u>>2)+1}, v{b}"] + V[min(sl + 1, 31)]
            if u & 1 and t > 0:
                orr = f"v_or_b32 v{vOR}, v{Pc}, v{Pc+1}" if u == 1 else f"v_or3_b32 v{vOR}, v{Pc+u-1}, v{Pc+u}, v{vOR}"
                V[min(sl + 1, 31)].append(orr)
                last = min(sl + 1, 31)
        endsl = 15 if t == 15 else 31
        if t > 0:
            cs = min(last + 1, endsl)
            V[cs].append(f"v_and_b32 v{vOR}, 0x40004000, v{vOR}")
            V[min(cs + 1, endsl)].append(f"v_cmp_ne_u32 vcc, 0, v{vOR}")
        for sl in range(32):
            plain = all(x.startswith("ds_read") for x in D[sl])
            em(pre[sl]); em(M[sl])
            if O.get("vfirst") and plain and M[sl] and 1 <= t <= 13:
                em(V[sl]); em(D[sl])
            else:
                em(D[sl])
                if not M[sl] and not D[sl] and V[sl]: g("s_nop 0")
                em(V[sl])
            if t > 0 and sl == endsl:
                st = g.newlab("RS"); bk = g.newlab("RB")
                g(f"s_cbranch_vccnz {st}")
                g.lab(bk)
                g.stubs.append((st, bk, t & 1))

def emu16(body):
    import re
    cnt = {}; firsts = {}; nb = []
    for l in body:
        m = re.match(r"\s*v_mfma_f32_32x32x16_bf16 v\[(\d+):\d+\], (v\[\d+:\d+\]), (v\[\d+:\d+\]), (.*)", l)
        if not m:
            nb.append(l); continue
        d = int(m.group(1)); c = m.group(4).strip()
        if c == "0" or int(re.match(r"v\[(\d+)", c).group(1)) != d:
            cnt[d] = 0; firsts[d] = c
        k = cnt.get(d, 0); cnt[d] = k + 1
        for q in (2*(k % 2), 2*(k % 2) + 1):
            cc = f"v[{d+4*q}:{d+4*q+3}]"
            if k < 2 and d in firsts:
                f = firsts[d]
                if f == "0": cc = "0"
                else:
                    cb = int(re.match(r"v\[(\d+)", f).group(1)); cc = f"v[{cb+4*q}:{cb+4*q+3}]"
            nb.append(f"  v_mfma_f32_16x16x32_bf16 v[{d+4*q}:{d+4*q+3}], {m.group(2)}, {m.group(3)}, {cc}")
        if k == 1: firsts.pop(d, None)
    out = []; i = 0
    while i < len(nb):
        if i + 1 < len(nb) and "16x16x32" in nb[i] and "16x16x32" in nb[i+1] and "v[240:243]" not in nb[i] and "v[240:243]" not in nb[i+1]:
            out.append(nb[i]); second = nb[i+1]; i += 2
            rest = []
            while i < len(nb) and not re.search(r"mfma|waitcnt|barrier|:$|branch", nb[i]):
                rest.append(nb[i]); i += 1
            a = re.search(r"\], (v\[\d+:\d+\])", second).group(1)
            lo = int(re.match(r"v\[(\d+)", a).group(1))
            def hits(l):
                m = re.match(r"\s*ds_read\w+ v\[(\d+):", l)
                return m and lo <= int(m.group(1)) <= lo + 3
            free = [l for l in rest if not hits(l)]; late = [l for l in rest if hits(l)]
            h = min((len(rest) + 1) // 2, len(free))
            out += free[:h] + [second] + late + free[h:]
        else:
            out.append(nb[i]); i += 1
    return out

def rare_path(g, O=None):
    for st, bk, par in g.stubs:
        g.lab(st)
        g(f"s_call_b64 s[{sRET}:{sRET+1}], L_RARE{par}")
        g(f"s_branch {bk}")
    for par in range(2):
        g.lab(f"L_RARE{par}")
        Sc = vS + 16*par; Sn = vS + 16*(par ^ 1); Pc = vP + 8*par
        g("s_nop 15")
        for hf in range(2):
            for grp in rowmax(Sc, hf, vTM, vT2):
                for x in grp: g(x)
            g(f"v_add_f32 v{vTM}, {f2u(BIAS):#x}, v{vTM}")
            g(f"v_max_f32 v{vTM}, 0, v{vTM}")
            g(f"v_ceil_f32 v{vTM}, v{vTM}")
            g(f"v_sub_f32 v{vT2}, 0, v{vTM}")
            g(f"v_exp_f32 v{vT2}, v{vT2}")
            for u in range(8): g(f"v_sub_f32 v{Sc+8*hf+u}, v{Sc+8*hf+u}, v{vTM}")
            for u in range(8): g(f"v_sub_f32 v{Sn+8*hf+u}, v{Sn+8*hf+u}, v{vTM}")
            for u in range(4): g(f"v_sub_f32 v{vNEG+4*hf+u}, v{vNEG+4*hf+u}, v{vTM}")
            for u in range(32): g(f"v_mul_f32 v{vO+32*hf+u}, v{vO+32*hf+u}, v{vT2}")
            for u in range(4): g(f"v_mul_f32 v{vLS+4*hf+u}, v{vLS+4*hf+u}, v{vT2}")
        for u in range(8):
            g(f"v_exp_f32 v{vT0}, v{Sc+2*u}")
            g(f"v_exp_f32 v{vT1}, v{Sc+2*u+1}")
            g("s_nop 0")
            g(f"v_cvt_pk_bf16_f32 v{Pc+u}, v{vT0}, v{vT1}")
        g("s_nop 1")
        g(f"s_setpc_b64 s[{sRET}:{sRET+1}]")

DENSE = {'eslots': [1, 3, 5, 7, 11, 11, 12, 13, 16, 17, 19, 21, 22, 24, 25, 26], 'm16s': [16, 31], 'vslots': [0, 0, 2, 2, 4, 4, 6, 6, 8, 9, 10, 10, 12, 12, 13, 14], 'kslots': [17, 18, 20, 22, 27, 28, 29, 30], 'cdel': 1}
MED = {'eslots': [1, 3, 5, 7, 9, 11, 13, 13, 17, 18, 19, 21, 22, 25, 25, 26], 'm16s': [18, 26], 'vslots': [0, 0, 2, 2, 4, 4, 6, 6, 8, 8, 10, 10, 11, 12, 14, 14], 'kslots': [17, 18, 20, 22, 24, 26, 28, 30], 'cdel': 1}
def gen(debug=False, LA=2, cprio=1, rot=True, xnt=False, codepf=True, early={5: 1, 6: 2}, nq1=1, bflag='', pfflag='', kvflag='nt', wqflag='', span=False, pdepth=1, pgap=2, jplan={}, emuq=False, nosum=False, psleep=0, emu=False, attO=dict(alt=dict(vfirst=True), alt_t=range(1,16,2)), kvflag1='', wsoff=0, ptail=True, pfirst=True, kvmap='rr', polay=0, pretouch=True, NKS=5, vp='atomic', f1atomic=False, wf='sc1', rf='sc0 sc1', qf='sc1', ophint=True, f2fast=False, apf=False, f3wave=True, aprio=False, pffront={}, outflag='', pw2=0, pfplan={5: 8}, bplan={7: (0, 1), 8: (2, 3)}):
    g = G(debug=debug)
    g.psleep = psleep; g.pdepth = pdepth; g.pgap = pgap
    qslot = lambda k: 1 + k % 4
    g("s_cmp_ge_u32 s2, 256")
    g("s_cbranch_scc1 L_END")
    g("s_load_dwordx16 s[16:31], s[0:1], 0")
    g(f"s_and_b32 s{sXCD}, s2, 7")
    g(f"s_lshr_b32 s{sI}, s2, 3")
    g("v_lshrrev_b32 v1, 6, v0")
    g("v_and_b32 v0, 63, v0")
    g(f"v_readfirstlane_b32 s{sWAVE}, v1")
    g(f"v_lshlrev_b32 v{vLANE16}, 4, v0")
    g(f"s_and_b32 s{sT0}, s{sI}, 7")
    g(f"s_lshl_b32 s{sCT}, s{sXCD}, 3")
    g(f"s_add_u32 s{sCT}, s{sCT}, s{sT0}")
    g(f"s_lshr_b32 s{sRT}, s{sI}, 3")
    g(f"s_lshl_b32 s{sK0}, s{sRT}, 1")
    g(f"s_add_u32 s{sK0}, s{sK0}, s{sT0}")
    if not rot: g(f"s_mov_b32 s{sK0}, 0")
    g(f"s_lshl_b32 s{sG}, s{sXCD}, 2")
    g(f"s_add_u32 s{sG}, s{sG}, s{sRT}")
    g(f"s_and_b32 s{sKQ}, s{sI}, 3")
    g(f"s_bfe_u32 s{sHQ}, s{sI}, 0x10002")
    g(f"s_lshl_b32 s{sGH}, s{sG}, 1")
    g(f"s_add_u32 s{sGH}, s{sGH}, s{sHQ}")
    g(f"s_and_b32 s{sW4}, s{sWAVE}, 3")
    g(f"s_lshr_b32 s{sROLE}, s{sWAVE}, 2")
    g(f"s_lshl_b32 s{sLW1K}, s{sW4}, 10")
    g(f"s_lshr_b32 s{sOH}, s{sXCD}, 1")
    g(f"s_and_b32 s{sN0}, s{sXCD}, 1")
    g(f"s_lshl_b32 s{sN0}, s{sN0}, 3")
    g(f"s_add_u32 s{sN0}, s{sN0}, s{sT0}")
    g(f"s_cmp_eq_u32 s{sROLE}, 0")
    g("s_cbranch_scc1 L_CWAVE")

    vXO, vWQO, vKO, vVO, vWOO = 16, 17, 18, 19, 20
    g("v_lshrrev_b32 v21, 4, v0")
    g(f"s_lshl_b32 s{sT1}, s{sW4}, 2")
    g(f"v_add_u32 v22, s{sT1}, v21")
    g("v_and_b32 v23, 15, v0")
    g("v_xor_b32 v24, v23, v22")
    g("v_lshlrev_b32 v24, 4, v24")
    g(f"v_lshl_add_u32 v{vXO}, v22, 11, v24")
    g("v_lshrrev_b32 v25, 3, v0")
    g("v_and_b32 v26, 7, v0")
    g("v_lshlrev_b32 v27, 1, v25")
    g("v_and_b32 v27, 4, v27")
    g("v_xor_b32 v26, v26, v27")
    g("v_lshlrev_b32 v26, 4, v26")
    g(f"v_lshl_add_u32 v{vWQO}, v25, 13, v26")
    g(f"s_lshl_b32 s{sBASE0}, s{sRT}, 17")
    g(f"s_lshl_b32 s{sBASE1}, s{sCT}, 7")
    g(f"s_lshl_b32 s{sT1}, s{sW4}, 16")
    g(f"s_add_u32 s{sBASE1}, s{sBASE1}, s{sT1}")
    g(f"s_mov_b32 s{sWQ+2}, {1024*4096*2:#x}")
    g(f"s_mov_b32 s{sWQ+3}, 0x20000")
    g(f"s_mov_b32 s{sX+2}, {8*32*1024*2:#x}")
    g(f"s_mov_b32 s{sX+3}, 0x20000")
    g("s_waitcnt lgkmcnt(0)")
    g(f"s_mov_b32 s{sWQ}, s22")
    g(f"s_and_b32 s{sWQ+1}, s23, 0xffff")
    g(f"s_mov_b32 s{sX}, s16")
    g(f"s_and_b32 s{sX+1}, s17, 0xffff")
    Q = []
    def need(*tags):
        last = max(i for i, x in enumerate(Q) if x in tags)
        g(f"s_waitcnt vmcnt({len(Q) - 1 - last})")
    def stage(k):
        slot = qslot(k) * 32768
        g(f"s_add_u32 s{sT1}, s{sK0}, {k}")
        g(f"s_and_b32 s{sT1}, s{sT1}, 7")
        g(f"s_lshl_b32 s{sT2}, s{sT1}, 20")
        g(f"s_add_u32 s{sT2}, s{sT2}, s{sBASE1}")
        g(f"s_lshl_b32 s{sT3}, s{sT1}, 8")
        g(f"s_add_u32 s{sT3}, s{sT3}, s{sBASE0}")
        for m in range(4):
            g.dma(vWQO, sWQ, sT2, 32*m*8192, sLW1K, slot + 16384 + 4096*m, wqflag)
            g.dma(vXO, sX, sT3, m*16*2048, sLW1K, slot + 4096*m, "nt" if xnt else "")
            Q.extend([f"S{k}"] * 2)
    def kvf(s):
        if kvmap == "blk": return kvflag if (s >> 1) & 1 else kvflag1
        if kvmap == "alt": return kvflag if s & 1 else kvflag1
        return kvflag
    def chunk(s):
        if kvmap == "contig":
            g(f"s_lshl_b32 s{sT1}, s{sKQ}, 17")
            g(f"s_add_u32 s{sT1}, s{sT1}, {s*16384}")
        elif kvmap == "rr":
            g(f"s_lshl_b32 s{sT1}, s{sKQ}, 14")
            g(f"s_add_u32 s{sT1}, s{sT1}, {s*65536}")
        elif kvmap in ("rrg", "rrx", "rri"):
            src = {"rrg": sG, "rrx": sXCD, "rri": sRT}[kvmap]
            if kvmap == "rri":
                g(f"s_lshl_b32 s{sT1}, s{src}, 1")
                g(f"s_add_u32 s{sT1}, s{sT1}, {s}")
            else:
                g(f"s_add_u32 s{sT1}, s{src}, {s}")
            g(f"s_and_b32 s{sT1}, s{sT1}, 7")
            g(f"s_lshl_b32 s{sT1}, s{sT1}, 2")
            g(f"s_add_u32 s{sT1}, s{sT1}, s{sKQ}")
            g(f"s_lshl_b32 s{sT1}, s{sT1}, 14")
        elif kvmap in ("blk", "alt"):
            g(f"s_lshl_b32 s{sT1}, s{sHQ}, {17 if kvmap == 'blk' else 16}")
            g(f"s_xor_b32 s{sT1}, s{sT1}, {s*65536}")
            g(f"s_lshl_b32 s{sT2}, s{sKQ}, 14")
            g(f"s_add_u32 s{sT1}, s{sT1}, s{sT2}")
        elif kvmap == "rr2":
            g(f"s_lshl_b32 s{sT1}, s{sKQ}, 15")
            g(f"s_add_u32 s{sT1}, s{sT1}, {(s >> 1)*131072 + (s & 1)*16384}")
        elif kvmap == "rot":
            g(f"s_add_u32 s{sT1}, s{sKQ}, {s >> 1}")
            g(f"s_and_b32 s{sT1}, s{sT1}, 3")
            g(f"s_lshl_b32 s{sT1}, s{sT1}, 2")
            g(f"s_add_u32 s{sT1}, s{sT1}, s{sKQ}")
            g(f"s_lshl_b32 s{sT1}, s{sT1}, 15")
            if s & 1: g(f"s_add_u32 s{sT1}, s{sT1}, 16384")
        elif kvmap == "rot2":
            g(f"s_add_u32 s{sT1}, s{sKQ}, {s & 3}")
            g(f"s_and_b32 s{sT1}, s{sT1}, 3")
            g(f"s_lshl_b32 s{sT1}, s{sT1}, 2")
            g(f"s_add_u32 s{sT1}, s{sT1}, s{sKQ}")
            g(f"s_lshl_b32 s{sT1}, s{sT1}, 15")
            if s >> 2: g(f"s_add_u32 s{sT1}, s{sT1}, 16384")
        g(f"s_add_u32 s{sT1}, s{sT1}, s{sKV}")
    def kpart(s):
        chunk(s)
        for m in range(4):
            g.dma(vKO, sK, sT1, 16*m*256, sLW1K, (s % NKS)*32768 + 4096*m, kvf(s))
            Q.append(f"K{s}")
    def vpart(s):
        chunk(s)
        for m in range(4):
            g.dma(vVO, sV, sT1, 16*m*256, sLW1K, (s % NKS)*32768 + 16384 + 4096*m, kvf(s))
            Q.append(f"V{s}")
    def part(tag):
        (kpart if tag[0] == "K" else vpart)(int(tag[1]))
    for k in range(LA): stage(k)
    g.ts(0)
    g.srd(sK, 18, 8*4*8192*128*2)
    g.srd(sV, 20, 8*4*8192*128*2)
    g.srd(sWO, 24, 4096*1024*2)
    g.srd(sOUT, 26, 8*32*1024*2)
    g.srd_ws(wsoff)
    g(f"v_lshl_add_u32 v{vKO}, v22, 8, v24")
    g("v_and_b32 v28, 7, v22")
    g("v_lshlrev_b32 v28, 1, v28")
    g("v_xor_b32 v28, v23, v28")
    g("v_lshlrev_b32 v28, 4, v28")
    g(f"v_lshl_add_u32 v{vVO}, v22, 8, v28")
    g(f"v_lshl_add_u32 v{vWOO}, v25, 11, v26")
    g(f"s_lshl_b32 s{sKV}, s{sG}, 21")
    g(f"s_add_u32 s{sKV}, s{sKV}, {6144*256:#x}")
    sPF = sCT
    g(f"s_lshl_b32 s{sPF}, s{sOH}, 21")
    g(f"s_lshl_b32 s{sT1}, s{sW4}, 14")
    g(f"s_add_u32 s{sPF}, s{sPF}, s{sT1}")
    g(f"s_lshl_b32 s{sT1}, s{sI}, 16")
    g(f"s_add_u32 s{sPF}, s{sPF}, s{sT1}")
    g(f"s_and_b32 s{sT1}, s{sXCD}, 1")
    g(f"s_lshl_b32 s{sT1}, s{sT1}, 10")
    g(f"s_add_u32 s{sPF}, s{sPF}, s{sT1}")
    npf = [0]
    def wopf(n):
        for _ in range(n):
            g(f"s_add_u32 s{sT0}, s{sPF}, {npf[0]*2048:#x}")
            g(f"buffer_load_dwordx4 v[32:35], v{vLANE16}, s[{sWO}:{sWO+3}], s{sT0} offen {pfflag}")
            Q.append("PF"); npf[0] += 1
    if pretouch:
        g("v_mov_b32 v40, 0")
        def touch(expr_lines, base):
            for l in expr_lines: g(l)
            g(f"s_mul_i32 s{sT1}, s{sT1}, {FS}")
            g(f"s_add_u32 s{sT1}, s{sT1}, {base:#x}")
            if pretouch == "atomic":
                g("s_mov_b64 exec, 1")
                g(f"buffer_atomic_or v40, v40, s[{sWS}:{sWS+3}], s{sT1} offen offset:32 sc1")
                g("s_mov_b64 exec, -1")
                Q.append("T")
                return
            g(f"s_add_u32 s{sPA}, s{sWS}, s{sT1}")
            g(f"s_addc_u32 s{sPA+1}, s{sWS+1}, 0")
            g(f"s_load_dword s{sRET}, s[{sPA}:{sPA+1}], 0 glc")
        touch([f"s_lshl_b32 s{sT1}, s{sGH}, 2", f"s_add_u32 s{sT1}, s{sT1}, s{sW4}"], F1)
        touch([f"s_mov_b32 s{sT1}, s{sGH}"], F2)
        touch([f"s_lshl_b32 s{sT1}, s{sRT}, 3", f"s_add_u32 s{sT1}, s{sT1}, s{sOH}", f"s_lshl_b32 s{sT1}, s{sT1}, 5", f"s_add_u32 s{sT1}, s{sT1}, s{sN0}",
               f"s_and_b32 s{sT2}, s{sW4}, 1", f"s_lshl_b32 s{sT2}, s{sT2}, 7", f"s_add_u32 s{sT1}, s{sT1}, s{sT2}",
               f"s_lshr_b32 s{sT2}, s{sW4}, 1", f"s_lshl_b32 s{sT2}, s{sT2}, 4", f"s_add_u32 s{sT1}, s{sT1}, s{sT2}"], F3)
        touch([f"s_lshl_b32 s{sT1}, s{sRT}, 4", f"s_add_u32 s{sT1}, s{sT1}, s{sN0}", f"s_lshl_b32 s{sT1}, s{sT1}, 2", f"s_add_u32 s{sT1}, s{sT1}, s{sOH}",
               f"s_lshl_b32 s{sT1}, s{sT1}, 1", f"s_and_b32 s{sT2}, s{sW4}, 1", f"s_add_u32 s{sT1}, s{sT1}, s{sT2}"], F4)
    order = ["K0", "K1", "V0"] + [x for s_ in range(1, 8) for x in ([f"K{s_+1}"] if s_ < 7 else []) + [f"V{s_}"]]
    todo = list(order)
    def issue(n):
        for _ in range(n):
            if todo: part(todo.pop(0))
    sJ = 24
    if jplan:
        g(f"s_cmp_eq_u32 s{sHQ}, 0")
        g(f"s_cselect_b32 s{sJ}, s{sK}, s{sV}")
        g(f"s_cselect_b32 s{sJ+1}, s{sK+1}, s{sV+1}")
        g(f"s_mov_b32 s{sJ+2}, {8*4*8192*128*2:#x}")
        g(f"s_mov_b32 s{sJ+3}, 0x20000")
    nj = [0]
    def junk(n):
        for _ in range(n):
            g(f"s_sub_u32 s{sT1}, {nj[0] + 1}, s{sHQ}")
            g(f"s_lshl_b32 s{sT1}, s{sT1}, 2")
            g(f"s_add_u32 s{sT1}, s{sT1}, s{sKQ}")
            g(f"s_lshl_b32 s{sT1}, s{sT1}, 2")
            g(f"s_add_u32 s{sT1}, s{sT1}, s{sW4}")
            g(f"s_lshl_b32 s{sT1}, s{sT1}, 12")
            g(f"s_add_u32 s{sT1}, s{sT1}, s{sKV}")
            for m in range(4):
                g(f"buffer_load_dwordx4 v[36:39], v{vLANE16}, s[{sJ}:{sJ+3}], s{sT1} offen offset:{1024*m}")
                Q.append("J")
            nj[0] += 1
    for k in range(8):
        need(f"S{k}")
        if k >= 1: g.ts(6 + k, 5)
        g("s_barrier")
        if k == 0: g.ts(1)
        if k + LA < 8: stage(k + LA)
        wopf(pffront.get(k, 0))
        issue(early.get(k, 0))
        junk(jplan.get(k, 0))
    g.ts(2)
    g.nonce_issue()
    g(f"s_lshl_b32 s{sBASE0}, s{sOH}, 21")
    g(f"s_lshl_b32 s{sT1}, s{sW4}, 14")
    g(f"s_add_u32 s{sBASE0}, s{sBASE0}, s{sT1}")
    g(f"s_lshl_b32 s{sT1}, s{sN0}, 7")
    g(f"s_add_u32 s{sBASE0}, s{sBASE0}, s{sT1}")
    def bpart(pos):
        slot = ([4, 0, 1, 2] if NKS == 4 else [3, 4, 0, 1])[pos]
        g(f"s_add_u32 s{sT1}, s{sRT}, {pos}")
        g(f"s_and_b32 s{sT1}, s{sT1}, 3")
        g(f"s_lshl_b32 s{sT1}, s{sT1}, 19")
        g(f"s_add_u32 s{sT1}, s{sT1}, s{sBASE0}")
        for m in range(8):
            g.dma(vWOO, sWO, sT1, 32*m*2048, sLW1K, slot*32768 + 4096*m, bflag)
            Q.append(f"B{pos}")
    g.nonce_finish()
    g("s_barrier")
    g.ts(3)
    issue(nq1)
    junk(jplan.get(8, 0))
    g("s_barrier")
    g.ts(4)
    while len(order) - len(todo) < 3: issue(1)
    need("K0")
    g("s_barrier")
    g.ts(5)
    for s in range(0, 8):
        la = s + 1 + (NKS - 4)
        lim = order.index(f"V{la}") + 1 if la <= 7 else len(order)
        while len(order) - len(todo) < lim: issue(1)
        wopf(pfplan.get(s, 0))
        for pos in bplan.get(s, ()): bpart(pos)
        if s < 7: need(f"K{s+1}", f"V{s}")
        else: need("V7")
        if s >= 1: g.ts(6 + s, 2)
        g("s_barrier")
    g.ts(11, 3)
    for pos in bplan.get(8, ()): bpart(pos)
    if 9 in bplan:
        g("s_barrier")
        wopf(pfplan.get(9, 0))
        for pos in bplan[9]: bpart(pos)
    g.ts(6)
    if g.debug == 3:
        g("s_waitcnt vmcnt(16)"); g.ts(12, 3)
        g("s_waitcnt vmcnt(0)"); g.ts(13, 3)
    g("s_branch L_BACK")

    g.lab("L_CWAVE")
    g("s_waitcnt lgkmcnt(0)")
    g.srd_ws(wsoff)
    g.srd(sDBG, 28, 256)
    g(f"s_or_b32 s{sT0}, s2, s{sWAVE}")
    g(f"s_cmp_lg_u32 s{sT0}, 0")
    g("s_cbranch_scc1 L_NOPUB")
    g(f"s_memrealtime s[{sN}:{sN+1}]")
    g("s_waitcnt lgkmcnt(0)")
    g(f"s_or_b32 s{sN}, s{sN}, 1")
    g(f"s_xor_b32 s{sN+1}, s{sN+1}, 0x5bd1e995")
    g(f"v_mov_b32 v{vNON}, s{sN}")
    g(f"v_mov_b32 v{vNON+1}, s{sN+1}")
    g(f"v_mov_b32 v{vA3}, 0")
    g(f"buffer_store_dwordx2 v[{vNON}:{vNON+1}], v{vA3}, s[{sDBG}:{sDBG+3}], 0 offen sc1")
    g.lab("L_NOPUB")
    if codepf:
        g(f"s_cmp_lg_u32 s{sWAVE}, 1")
        g("s_cbranch_scc1 L_NOPF")
        g(f"s_getpc_b64 s[{sPA}:{sPA+1}]")
        g.lab("L_PC")
        g(f"s_sub_u32 s{sPA}, s{sPA}, L_PC-{NAME}")
        g(f"s_subb_u32 s{sPA+1}, s{sPA+1}, 0")
        g(f"s_lshl_b32 s{sT0}, s{sI}, 10")
        g(f"s_min_u32 s{sT0}, s{sT0}, L_CODE_END-{NAME}-1024")
        g(f"v_add_u32 v{vA0}, s{sT0}, v{vLANE16}")
        g(f"global_load_dwordx4 v[{vS}:{vS+3}], v{vA0}, s[{sPA}:{sPA+1}]")
        g.lab("L_NOPF")
    g.ts(0)
    g.srd(sOUT, 26, 8*32*1024*2)
    g(f"s_and_b32 s{sT0}, s{sW4}, 1")
    g(f"s_lshl_b32 s{sT0}, s{sT0}, 13")
    g("v_and_b32 v20, 15, v0")
    g("v_lshrrev_b32 v21, 4, v0")
    g("v_xor_b32 v22, v20, v21")
    g(f"v_lshlrev_b32 v23, 8, v20")
    g(f"v_add_u32 v23, s{sT0}, v23")
    for s in range(4):
        g(f"v_xor_b32 v24, {4*s}, v22")
        g(f"v_lshl_add_u32 v{vKA+s}, v24, 4, v23")
    g("v_lshrrev_b32 v22, 2, v20")
    g("v_lshl_add_u32 v23, v21, 3, v22")
    g("v_lshlrev_b32 v23, 7, v23")
    g("v_and_b32 v24, 3, v0")
    g(f"s_lshr_b32 s{sT0}, s{sW4}, 1")
    g(f"s_lshl_b32 s{sT0}, s{sT0}, 2")
    g(f"v_add_u32 v24, s{sT0}, v24")
    g("v_lshlrev_b32 v26, 1, v22")
    g("v_and_b32 v26, 4, v26")
    g("v_xor_b32 v24, v24, v26")
    g("v_lshl_add_u32 v23, v24, 4, v23")
    g(f"v_add_u32 v{vVA}, 16384, v23")
    nq0 = len(g.L)
    acc = vO
    fr = 16
    cur = [0]
    def setbase(regs, want):
        if want != cur[0]:
            g(f"s_mov_b32 s{sT0}, {(want - cur[0]) & 0xffffffff:#x}")
            for r in regs: g(f"v_add_u32 v{r}, s{sT0}, v{r}")
            cur[0] = want
    for k in range(8):
        slot = qslot(k)
        setbase(list(range(vKA, vKA+4)) + [vVA], (slot >> 1) * 65536)
        io = (slot & 1) * 32768
        if k >= 1: g.ts(6 + k, 5)
        g("s_barrier")
        if k == 0: g.ts(1)
        def rd(s):
            b = fr + 16*s
            for nt in range(2):
                g(f"ds_read_b64_tr_b16 v[{b+4*nt}:{b+4*nt+1}], v{vVA} offset:{io + 4096*s + 8*nt}")
                g(f"ds_read_b64_tr_b16 v[{b+4*nt+2}:{b+4*nt+3}], v{vVA} offset:{io + 4096*s + 512 + 8*nt}")
                g(f"ds_read_b128 v[{b+8+4*nt}:{b+11+4*nt}], v{vKA+s} offset:{io + 4096*nt}")
        rd(0); rd(1)
        for s in range(4):
            b = fr + 16*s
            g(f"s_waitcnt lgkmcnt({6 if s < 3 else 0})")
            first = (k == 0 and s == 0)
            mfma16(g, acc, b, b+8, None if first else acc)
            if s + 2 < 4: rd(s + 2)
            mfma16(g, acc+8, b, b+12, None if first else acc+8)
            mfma16(g, acc+4, b+4, b+8, None if first else acc+4)
            mfma16(g, acc+12, b+4, b+12, None if first else acc+12)
    if emuq: g.L = g.L[:nq0] + emu16(g.L[nq0:])
    g.ts(2)
    g.nonce_issue()
    g(f"s_and_b32 s{sT0}, s{sW4}, 1")
    g(f"s_lshl_b32 s{sT1}, s{sRT}, 1")
    g(f"s_add_u32 s{sT1}, s{sT1}, s{sT0}")
    g(f"s_lshl_b32 s{sT1}, s{sT1}, 5")
    g(f"s_lshr_b32 s{sT2}, s{sCT}, 1")
    g(f"s_add_u32 s{sT1}, s{sT1}, s{sT2}")
    g(f"s_and_b32 s{sT2}, s{sCT}, 1")
    g(f"s_lshl_b32 s{sT2}, s{sT2}, 1")
    g(f"s_lshr_b32 s{sT3}, s{sW4}, 1")
    g(f"s_add_u32 s{sT2}, s{sT2}, s{sT3}")
    g(f"s_lshl_b32 s{sBASE0}, s{sT1}, 13")
    g(f"s_lshl_b32 s{sT3}, s{sT2}, 10")
    g(f"s_add_u32 s{sBASE0}, s{sBASE0}, s{sT3}")
    g(f"s_add_u32 s{sKV}, s{sBASE0}, 4096")
    g(f"s_mul_i32 s{sBASE1}, s{sT1}, {FS}")
    g(f"s_lshl_b32 s{sT3}, s{sT2}, 3")
    g(f"s_add_u32 s{sBASE1}, s{sBASE1}, s{sT3}")
    g(f"s_add_u32 s{sBASE1}, s{sBASE1}, {F1:#x}")
    g(f"s_mov_b32 s{sT0}, {f2u(C_SCALE):#x}")
    for u in range(16):
        g(f"v_mul_f32 v{acc+u}, s{sT0}, v{acc+u}")
    for u in range(8):
        g(f"v_cvt_pk_bf16_f32 v{16+u}, v{acc+2*u}, v{acc+2*u+1}")
    g(f"buffer_store_dwordx4 v[16:19], v{vLANE16}, s[{sWS}:{sWS+3}], s{sBASE0} offen sc1")
    g(f"buffer_store_dwordx4 v[20:23], v{vLANE16}, s[{sWS}:{sWS+3}], s{sKV} offen sc1")
    att_setup(g)
    g(f"s_lshl_b32 s{sT2}, s{sGH}, 2")
    g(f"s_add_u32 s{sT2}, s{sT2}, s{sW4}")
    g(f"s_lshl_b32 s{sBASE0}, s{sT2}, 13")
    g(f"s_mul_i32 s{sT2}, s{sT2}, {FS}")
    g(f"s_add_u32 s{sT2}, s{sT2}, {F1:#x}")
    g.nonce_finish()
    g("s_waitcnt vmcnt(0)")
    g.flag(sBASE1)
    g("s_barrier")
    g.ts(3)
    g.vpoll4(sT2, "atomic") if f1atomic else g.spoll4(sT2)
    g.ts(4)
    for s in range(8):
        if s == 4: g(f"s_add_u32 s{sBASE0}, s{sBASE0}, 4096")
        g(f"buffer_load_dwordx4 v[{vQ+4*s}:{vQ+4*s+3}], v{vLANE16}, s[{sWS}:{sWS+3}], s{sBASE0} offen offset:{1024*(s&3)} {qf}")
    g("s_barrier")
    if cprio: g(f"s_setprio {cprio}")
    g("s_barrier")
    n0 = len(g.L)
    att_loop(g, dict(nks=NKS, tail=ptail, **attO))
    if nosum: g.L = g.L[:n0] + [l for l in g.L[n0:] if f'v[{vONE}:{vONE+3}]' not in l or 'v[219' in l]
    def stamp6():
        g.ts(6)
        if g.debug and g.debug not in (7, 9):
            g("s_memtime s[100:101]")
            g("s_waitcnt lgkmcnt(0)")
            g(f"s_sub_u32 s{sTS+15}, s100, s{sTS+15}")
        if cprio: g("s_setprio 0")
    if not ptail: stamp6()
    Pl = vP + 8
    def pv(p):
        if p == 0: g("s_waitcnt lgkmcnt(8)")
        if p == 2: g("s_waitcnt lgkmcnt(0)")
        for sl in range(4*p, 4*p + 4): g(g.pmf(Pl, sl))
    if ptail:
        pv(0); g(g.m16(vLS, vONE, Pl, vLS)); g(g.m16(vLS+4, vONE, Pl+4, vLS+4)); pv(1)
    LSC = 98304 if NKS == 4 else 65536
    sh_own, sh_w4, sh_fi, sh_sp = ((15, 13, 12, 10), (13, 11, 10, 15), (15, 11, 10, 13))[polay]
    vEG, vEL = 246, 247
    g(f"s_lshl_b32 s{sBASE0}, s{sGH}, 17")
    g(f"s_lshl_b32 s{sT0}, s{sW4}, {sh_w4}")
    g(f"s_add_u32 s{sBASE0}, s{sBASE0}, s{sT0}")
    g(f"s_lshl_b32 s{sT0}, s{sKQ}, {sh_sp}")
    g(f"s_add_u32 s{sBASE0}, s{sBASE0}, s{sT0}")
    g(f"s_add_u32 s{sBASE0}, s{sBASE0}, {PO:#x}")
    g(f"v_and_b32 v{vT3}, 15, v0")
    g(f"v_bfe_u32 v{vT4}, v0, 4, 1")
    g(f"v_lshl_add_u32 v{vT3}, v{vT4}, 5, v{vT3}")
    g(f"v_lshlrev_b32 v{vT3}, 4, v{vT3}")
    g(f"v_lshrrev_b32 v{vEL}, 5, v0")
    g(f"v_lshl_add_u32 v{vEG}, v{vEL}, {sh_fi}, v{vT3}")
    g(f"v_lshl_add_u32 v{vEL}, v{vEL}, 10, v{vT3}")
    g(f"s_lshl_b32 s{sT3}, s{sW4}, 11")
    g(f"s_add_u32 s{sT3}, s{sT3}, {LSC}")
    g(f"v_add_u32 v{vEL}, s{sT3}, v{vEL}")
    if ptail: pv(2)
    for o in range(4):
        if ptail and o == 2: stamp6()
        for hf in range(2):
            src = vO + 32*hf + 8*o; dst = vKR + 8*o + 4*hf
            for u in range(4):
                g(f"v_cvt_pk_bf16_f32 v{dst+u}, v{src+2*u}, v{src+2*u+1}")
        if ptail and o == 0: pv(3)
        lo = g.newlab("LOC"); nx = g.newlab("NXT")
        dst = vKR + 8*o
        g(f"s_cmp_eq_u32 s{sKQ}, {o}")
        g(f"s_cbranch_scc1 {lo}")
        g(f"s_add_u32 s{sT0}, s{sBASE0}, {o << sh_own:#x}")
        g(f"buffer_store_dwordx4 v[{dst}:{dst+3}], v{vEG}, s[{sWS}:{sWS+3}], s{sT0} offen {wf}")
        g(f"buffer_store_dwordx4 v[{dst+4}:{dst+7}], v{vEG}, s[{sWS}:{sWS+3}], s{sT0} offen offset:256 {wf}")
        g(f"s_branch {nx}")
        g.lab(lo)
        g(f"ds_write_b128 v{vEL}, v[{dst}:{dst+3}]")
        g(f"ds_write_b128 v{vEL}, v[{dst+4}:{dst+7}] offset:256")
        g.lab(nx)
        if o == 1:
            g(f"s_lshl_b32 s{sT1}, s{sGH}, 2")
            g(f"s_add_u32 s{sT1}, s{sT1}, s{sW4}")
            g(f"s_lshl_b32 s{sT2}, s{sT1}, 10")
            g(f"s_lshl_b32 s{sT3}, s{sKQ}, 8")
            g(f"s_add_u32 s{sT2}, s{sT2}, s{sT3}")
            g(f"s_add_u32 s{sT2}, s{sT2}, {ST:#x}")
            g(f"v_cmp_ne_u32 vcc, 0, v{vT4}")
            g(f"v_and_b32 v{vA0}, 31, v0")
            g(f"v_lshlrev_b32 v{vA0}, 3, v{vA0}")
            g(f"v_cndmask_b32 v{vT0}, v{vNEG}, v{vNEG+4}, vcc")
            g(f"v_cndmask_b32 v{vT1}, v{vLS}, v{vLS+4}, vcc")
            g(f"v_sub_f32 v{vT0}, 0, v{vT0}")
            g(f"s_lshl_b32 s{sT3}, s{sW4}, 8")
            g(f"s_add_u32 s{sT3}, s{sT3}, {LSC + 8192}")
            g(f"v_add_u32 v{vA2}, s{sT3}, v{vA0}")
            g(f"buffer_store_dwordx2 v[{vT0}:{vT1}], v{vA0}, s[{sWS}:{sWS+3}], s{sT2} offen {wf}")
            g(f"ds_write_b64 v{vA2}, v[{vT0}:{vT1}]")
    if 9 in bplan: g("s_barrier")

    g.lab("L_BACK")
    sBB, sHP = sCT, sK0
    g(f"s_and_b32 s{sBB}, s{sWAVE}, 1")
    g(f"s_lshr_b32 s{sHP}, s{sWAVE}, 1")
    g(f"s_sub_u32 s{sT0}, s{sHP}, s{sRT}")
    g(f"s_and_b32 s{sT0}, s{sT0}, 3")
    if NKS == 4:
        g(f"s_sub_u32 s{sT2}, s{sT0}, 1")
        g(f"s_cmp_eq_u32 s{sT0}, 0")
        g(f"s_cselect_b32 s{sT2}, 4, s{sT2}")
    else:
        g(f"s_sub_u32 s{sT2}, s{sT0}, 2")
        g(f"s_add_u32 s{sT3}, s{sT0}, 3")
        g(f"s_cmp_lt_u32 s{sT0}, 2")
        g(f"s_cselect_b32 s{sT2}, s{sT3}, s{sT2}")
    g(f"s_lshl_b32 s{sT2}, s{sT2}, 15")
    g("v_lshrrev_b32 v4, 5, v0")
    g("v_bfe_u32 v5, v0, 2, 2")
    g("v_lshl_add_u32 v6, v4, 2, v5")
    g("v_lshlrev_b32 v6, 7, v6")
    g("v_and_b32 v7, 1, v0")
    g("v_lshl_add_u32 v6, v7, 3, v6")
    g(f"v_add_u32 v6, s{sT2}, v6")
    g("v_bfe_u32 v7, v0, 1, 1")
    g("v_bfe_u32 v8, v0, 4, 1")
    g("v_lshl_add_u32 v7, v8, 1, v7")
    g("v_lshlrev_b32 v5, 1, v5")
    g("v_and_b32 v5, 4, v5")
    g("v_xor_b32 v7, v7, v5")
    g(f"v_lshl_add_u32 v{vKA}, v7, 4, v6")
    g("v_xor_b32 v7, 4, v7")
    g(f"v_lshl_add_u32 v{vKA+1}, v7, 4, v6")
    g(f"s_lshl_b32 s{sT1}, s{sGH}, 2")
    g(f"s_add_u32 s{sT1}, s{sT1}, s{sW4}")
    g(f"s_lshl_b32 s{sBASE1}, s{sT1}, 10")
    g(f"s_add_u32 s{sBASE1}, s{sBASE1}, {ST:#x}")
    g(f"s_lshl_b32 s{sBASE0}, s{sGH}, 17")
    g(f"s_lshl_b32 s{sT0}, s{sKQ}, {sh_own}")
    g(f"s_add_u32 s{sBASE0}, s{sBASE0}, s{sT0}")
    g(f"s_lshl_b32 s{sT0}, s{sW4}, {sh_w4}")
    g(f"s_add_u32 s{sBASE0}, s{sBASE0}, s{sT0}")
    g(f"s_lshl_b32 s{sT0}, s{sROLE}, {sh_fi}")
    g(f"s_add_u32 s{sBASE0}, s{sBASE0}, s{sT0}")
    g(f"s_add_u32 s{sBASE0}, s{sBASE0}, {PO:#x}")
    g(f"v_and_b32 v{vA0}, 31, v0")
    g(f"v_lshlrev_b32 v{vA0}, 3, v{vA0}")
    g(f"s_lshl_b32 s{sT0}, s{sW4}, 11")
    g(f"s_lshl_b32 s{sT2}, s{sROLE}, 10")
    g(f"s_add_u32 s{sT0}, s{sT0}, s{sT2}")
    g(f"s_add_u32 s{sT0}, s{sT0}, {LSC}")
    g(f"v_add_u32 v{vA1}, s{sT0}, v{vLANE16}")
    g(f"s_lshl_b32 s{sT0}, s{sW4}, 8")
    g(f"s_add_u32 s{sT0}, s{sT0}, {LSC + 8192}")
    g(f"v_add_u32 v{vA2}, s{sT0}, v{vA0}")
    g(f"s_mul_i32 s{sT2}, s{sGH}, {FS}")
    g(f"s_add_u32 s{sT2}, s{sT2}, {F2:#x}")
    g(f"s_lshl_b32 s{sT3}, s{sKQ}, 3")
    g(f"s_add_u32 s{sT3}, s{sT3}, s{sT2}")
    g("s_waitcnt vmcnt(0) lgkmcnt(0)")
    g.ts(7)
    g("s_barrier")
    g.ts(7, 4)
    vB = 112
    def bread():
        cnt = 0
        for n in range(16):
            for nt in range(2):
                b = vB + (n*2+nt)*4
                row = 32*(n >> 1) + 8*(n & 1)
                g(f"ds_read_b64_tr_b16 v[{b}:{b+1}], v{vKA+nt} offset:{128*row}")
                g(f"ds_read_b64_tr_b16 v[{b+2}:{b+3}], v{vKA+nt} offset:{128*(row+16)}")
                cnt += 2
                if cnt % 8 == 0: g("s_waitcnt lgkmcnt(5)")
        g("s_waitcnt lgkmcnt(0)")
    g(f"ds_read_b64 v[16:17], v{vA2}")
    g(f"ds_read_b128 v[48:51], v{vA1}")
    g(f"s_cmp_lg_u32 s{sWAVE}, {pw2}")
    g("s_cbranch_scc1 L_NOF2")
    g.flag(sT3)
    if pfirst:
        g.vpoll4(sT2, vp) if vp else g.spoll4(sT2)
        g("s_branch L_NOP2")
    g.lab("L_NOF2")
    bread()
    if not pfirst:
        g(f"s_cmp_lg_u32 s{sWAVE}, {pw2}")
        g("s_cbranch_scc1 L_NOP2")
        g.vpoll4(sT2, vp) if vp else g.spoll4(sT2)
    g.lab("L_NOP2")
    g("s_barrier")
    g.ts(8); g.ts(8, 4)
    for e in range(1, 4):
        g(f"s_add_u32 s{sT0}, s{sKQ}, {e}")
        g(f"s_and_b32 s{sT0}, s{sT0}, 3")
        g(f"s_lshl_b32 s{sT2}, s{sT0}, 8")
        g(f"s_add_u32 s{sT2}, s{sT2}, s{sBASE1}")
        g(f"buffer_load_dwordx2 v[{16+2*e}:{17+2*e}], v{vA0}, s[{sWS}:{sWS+3}], s{sT2} offen {rf}")
    for e in range(1, 4):
        g(f"s_add_u32 s{sT0}, s{sKQ}, {e}")
        g(f"s_and_b32 s{sT0}, s{sT0}, 3")
        g(f"s_lshl_b32 s{sT2}, s{sT0}, {sh_sp}")
        g(f"s_add_u32 s{sT2}, s{sT2}, s{sBASE0}")
        g(f"buffer_load_dwordx4 v[{48+4*e}:{51+4*e}], v{vLANE16}, s[{sWS}:{sWS+3}], s{sT2} offen {rf}")
    g(f"s_lshl_b32 s{sT0}, s{sT1}, 13")
    g(f"s_lshl_b32 s{sT2}, s{sKQ}, 11")
    g(f"s_add_u32 s{sT0}, s{sT0}, s{sT2}")
    g(f"s_lshl_b32 s{sT2}, s{sROLE}, 10")
    g(f"s_add_u32 s{sT0}, s{sT0}, s{sT2}")
    g(f"s_add_u32 s{sT1}, s{sT0}, {OF:#x}")
    g(f"s_lshl_b32 s{sT0}, s{sRT}, 1")
    g(f"s_add_u32 s{sT0}, s{sT0}, s{sBB}")
    g(f"s_lshl_b32 s{sT0}, s{sT0}, 2")
    g(f"s_add_u32 s{sT0}, s{sT0}, s{sOH}")
    g(f"s_lshl_b32 s{sBASE0}, s{sT0}, 16")
    g(f"s_lshl_b32 s{sT2}, s{sHP}, 14")
    g(f"s_add_u32 s{sBASE0}, s{sBASE0}, s{sT2}")
    g(f"s_add_u32 s{sBASE0}, s{sBASE0}, {OF:#x}")
    g(f"s_mul_i32 s{sT2}, s{sGH}, {16*FS}")
    g(f"s_lshl_b32 s{sT3}, s{sKQ}, 3")
    g(f"s_add_u32 s{sT2}, s{sT2}, s{sT3}")
    g(f"s_add_u32 s{sT2}, s{sT2}, {F3:#x}")
    g(f"v_mul_u32_u24 v{vA3}, {FS}, v0")
    g(f"v_add_u32 v{vA3}, s{sT2}, v{vA3}")
    g(f"s_lshl_b32 s{sT0}, s{sRT}, 3")
    g(f"s_add_u32 s{sT0}, s{sT0}, s{sOH}")
    g(f"s_lshl_b32 s{sT0}, s{sT0}, 5")
    g(f"s_add_u32 s{sT0}, s{sT0}, s{sN0}")
    g(f"s_mul_i32 s{sBASE1}, s{sT0}, {FS}")
    g(f"s_add_u32 s{sBASE1}, s{sBASE1}, {F3:#x}")
    if pfirst:
        g(f"s_cmp_lg_u32 s{sWAVE}, {pw2}")
        g("s_cbranch_scc1 L_NOB")
        bread()
        g.lab("L_NOB")
    for u in range(4):
        g(f"v_lshlrev_b32 v{32+2*u}, 16, v{48+u}")
        g(f"v_and_b32 v{33+2*u}, 0xffff0000, v{48+u}")
    g("s_waitcnt vmcnt(3)")
    g.ts(9, 4)
    g("v_max3_f32 v24, v16, v18, v20")
    g("v_max_f32 v24, v22, v24")
    for s in range(4): g(f"v_sub_f32 v{16+2*s}, v{16+2*s}, v24")
    for s in range(4): g(f"v_exp_f32 v{16+2*s}, v{16+2*s}")
    g("s_nop 0")
    g("v_mul_f32 v24, v16, v17")
    g("v_fmac_f32 v24, v18, v19")
    g("v_fmac_f32 v24, v20, v21")
    g("v_fmac_f32 v24, v22, v23")
    g("v_rcp_f32 v24, v24")
    g("s_nop 0")
    for s in range(4): g(f"v_mul_f32 v{16+2*s}, v{16+2*s}, v24")
    for c in range(8): g(f"v_mul_f32 v{32+c}, v{32+c}, v16")
    if debug == 4:
        g("s_waitcnt vmcnt(0)"); g.ts(10, 4)
    for s in range(1, 4):
        g(f"s_waitcnt vmcnt({3 - s})")
        for u in range(4):
            src = 48 + 4*s + u
            g(f"v_lshlrev_b32 v28, 16, v{src}")
            g(f"v_and_b32 v29, 0xffff0000, v{src}")
            g(f"v_fmac_f32 v{32+2*u}, v28, v{16+2*s}")
            g(f"v_fmac_f32 v{33+2*u}, v29, v{16+2*s}")
    for u in range(4):
        g(f"v_cvt_pk_bf16_f32 v{40+u}, v{32+2*u}, v{33+2*u}")
    g.ts(11, 4)
    g(f"buffer_store_dwordx4 v[40:43], v{vLANE16}, s[{sWS}:{sWS+3}], s{sT1} offen {wf}")
    g("s_waitcnt vmcnt(0)")
    g.ts(12, 4)
    g("s_barrier")
    g.ts(13, 4)
    g.ts(9)
    g(f"s_cmp_lg_u32 s{sWAVE}, 4")
    g("s_cbranch_scc1 L_NOP3")
    g("s_mov_b64 exec, 0xffff")
    g(f"buffer_store_dwordx2 v[{vNON}:{vNON+1}], v{vA3}, s[{sWS}:{sWS+3}], 0 offen sc1")
    g("s_mov_b64 exec, -1")
    if not f3wave: g.spollN(sBASE1, (0, 16*FS, 128*FS, 144*FS))
    g.lab("L_NOP3")
    g(f"s_lshl_b32 s{sT0}, s{sWAVE}, 13")
    g(f"v_add_u32 v{vA0}, s{sT0}, v{vLANE16}")
    g(f"s_lshl_b32 s{sT0}, s{sBB}, 13")
    g(f"s_lshl_b32 s{sT1}, s{sHP}, 11")
    g(f"s_add_u32 s{sT0}, s{sT0}, s{sT1}")
    g(f"v_add_u32 v{vA1}, s{sT0}, v{vLANE16}")
    if aprio:
        g(f"s_xor_b32 s{sT0}, s{sN0}, s{sROLE}")
        g(f"s_bitcmp1_b32 s{sT0}, 0")
        g("s_cbranch_scc0 L_NOPRIO")
        g("s_setprio 3")
        g.lab("L_NOPRIO")
    if f3wave:
        g(f"s_mul_i32 s{sT0}, s{sBB}, {128*FS}")
        g(f"s_mul_i32 s{sT1}, s{sROLE}, {16*FS}")
        g(f"s_add_u32 s{sBASE1}, s{sBASE1}, s{sT0}")
        g(f"s_add_u32 s{sBASE1}, s{sBASE1}, s{sT1}")
        g.vpoll4(sBASE1, vp) if vp else g.spoll4(sBASE1)
    else:
        g("s_barrier")
    g.ts(10)
    vA = 16
    if apf:
        g(f"s_and_b32 s{sT0}, s{sN0}, 7")
        g(f"s_lshl_b32 s{sT0}, s{sT0}, 11")
        g(f"s_add_u32 s{sT0}, s{sT0}, s{sBASE0}")
        g(f"buffer_load_dwordx4 v[4:7], v{vLANE16}, s[{sWS}:{sWS+3}], s{sT0} offen {rf}")
        g(f"buffer_load_dwordx4 v[4:7], v{vLANE16}, s[{sWS}:{sWS+3}], s{sT0} offen offset:1024 {rf}")
    for n in range(16):
        if n and n % 4 == 0: g(f"s_add_u32 s{sBASE0}, s{sBASE0}, 4096")
        g(f"buffer_load_dwordx4 v[{vA+4*n}:{vA+4*n+3}], v{vLANE16}, s[{sWS}:{sWS+3}], s{sBASE0} offen offset:{1024*(n&3)} {rf}")
    g(f"s_lshl_b32 s{sT2}, s{sBB}, 1")
    g(f"s_lshr_b32 s{sT3}, s{sHP}, 1")
    g(f"s_add_u32 s{sT2}, s{sT2}, s{sT3}")
    g(f"s_lshl_b32 s{sT0}, s{sRT}, 4")
    g(f"s_add_u32 s{sT0}, s{sT0}, s{sN0}")
    g(f"s_lshl_b32 s{sT0}, s{sT0}, 2")
    g(f"s_add_u32 s{sT0}, s{sT0}, s{sT2}")
    g(f"s_lshl_b32 s{sT0}, s{sT0}, 1")
    g(f"s_and_b32 s{sT1}, s{sHP}, 1")
    g(f"s_add_u32 s{sT0}, s{sT0}, s{sT1}")
    g(f"s_lshl_b32 s{sBASE0}, s{sT0}, 14")
    g(f"s_add_u32 s{sBASE0}, s{sBASE0}, {OP:#x}")
    g(f"s_mul_i32 s{sBASE1}, s{sT0}, {FS}")
    g(f"s_add_u32 s{sBASE1}, s{sBASE1}, {F4:#x}")
    g(f"s_lshl_b32 s{sT3}, s{sOH}, 3")
    g(f"s_add_u32 s{sT3}, s{sT3}, s{sBASE1}")
    vD = 80
    for n in range(16):
        g(f"s_waitcnt vmcnt({15-n})")
        for nt in range(2):
            mfma(g, vD+16*nt, vB + (n*2+nt)*4, vA+4*n, None if n == 0 else vD+16*nt)
    g.ts(11)
    g(f"v_mov_b32 v51, s{sN}")
    g(f"v_mov_b32 v55, s{sN}")
    g(f"v_mov_b32 v58, 0")
    g(f"v_mov_b32 v59, s{sN}")
    g("v_and_b32 v24, 31, v0")
    g("v_lshrrev_b32 v25, 5, v0")
    g("v_lshlrev_b32 v24, 11, v24")
    g(f"v_lshl_add_u32 v{vA2}, v25, 3, v24")
    g("s_nop 2")
    for q in range(8):
        g(f"ds_write_b128 v{vA0}, v[{vD+4*q}:{vD+4*q+3}] offset:{1024*q}")
    g("s_waitcnt lgkmcnt(0)")
    g("s_barrier")
    for hp2 in range(4):
        for e in range(2):
            g(f"ds_read_b128 v[{16+8*hp2+4*e}:{19+8*hp2+4*e}], v{vA1} offset:{16384*hp2 + 1024*e}")
    res = [48, 49, 50, 52, 53, 54, 56, 57]
    g("s_waitcnt lgkmcnt(4)")
    for c in range(8): g(f"v_add_f32 v{16+c}, v{16+c}, v{24+c}")
    g("s_waitcnt lgkmcnt(0)")
    for c in range(8): g(f"v_add_f32 v{32+c}, v{32+c}, v{40+c}")
    for c in range(8): g(f"v_add_f32 v{res[c]}, v{16+c}, v{32+c}")
    g.ts(12)
    g(f"s_cmp_eq_u32 s{sT2}, s{sOH}")
    g("s_cbranch_scc1 L_OWN")
    g(f"s_lshl_b32 s{sT0}, s{sOH}, 12")
    g(f"s_add_u32 s{sT0}, s{sT0}, s{sBASE0}")
    for j in range(3):
        g(f"buffer_store_dwordx4 v[{48+4*j}:{51+4*j}], v{vLANE16}, s[{sWS}:{sWS+3}], s{sT0} offen offset:{1024*j} {wf}")
    if ophint: g.flag(sT3)
    g("s_branch L_FIN")
    g.lab("L_OWN")
    if ophint: g.flag(sT3)
    g(f"s_lshl_b32 s{sT2}, s{sRT}, 1")
    g(f"s_add_u32 s{sT2}, s{sT2}, s{sBB}")
    g(f"s_lshl_b32 s{sT2}, s{sT2}, 16")
    g(f"s_lshl_b32 s{sT1}, s{sN0}, 7")
    g(f"s_add_u32 s{sT2}, s{sT2}, s{sT1}")
    g(f"s_lshl_b32 s{sT1}, s{sHP}, 5")
    g(f"s_add_u32 s{sT2}, s{sT2}, s{sT1}")
    if ophint: g.vpoll4(sBASE1, vp) if vp else g.spoll4(sBASE1)
    g.ts(13)
    g(f"s_mov_b32 s{sCNT}, 0")
    g.lab("L_OPL")
    for e in range(1, 4):
        g(f"s_add_u32 s{sT0}, s{sOH}, {e}")
        g(f"s_and_b32 s{sT0}, s{sT0}, 3")
        g(f"s_lshl_b32 s{sT0}, s{sT0}, 12")
        g(f"s_add_u32 s{sT0}, s{sT0}, s{sBASE0}")
        for j in range(3):
            r = 60 + 12*(e-1) + 4*j
            g(f"buffer_load_dwordx4 v[{r}:{r+3}], v{vLANE16}, s[{sWS}:{sWS+3}], s{sT0} offen offset:{1024*j} {rf}")
    g(f"s_add_u32 s{sCNT}, s{sCNT}, 1")
    g("s_waitcnt vmcnt(0)")
    tags = [63 + 4*k for k in range(9)]
    g(f"v_min3_u32 v16, v{tags[0]}, v{tags[1]}, v{tags[2]}")
    g(f"v_max3_u32 v17, v{tags[0]}, v{tags[1]}, v{tags[2]}")
    for k in (3, 5, 7):
        g(f"v_min3_u32 v16, v{tags[k]}, v{tags[k+1]}, v16")
        g(f"v_max3_u32 v17, v{tags[k]}, v{tags[k+1]}, v17")
    g(f"v_xor_b32 v16, s{sN}, v16")
    g(f"v_xor_b32 v17, s{sN}, v17")
    g("v_or_b32 v16, v16, v17")
    g("v_cmp_ne_u32 vcc, 0, v16")
    g("s_cbranch_vccz L_OPD")
    g(f"s_cmp_lt_u32 s{sCNT}, {g.limit:#x}")
    g("s_cbranch_scc1 L_OPL")
    g.lab("L_OPD")
    for e in range(3):
        for c in range(8):
            g(f"v_add_f32 v{res[c]}, v{res[c]}, v{res[c] + 12*(e+1)}")
    for u in range(4):
        g(f"v_cvt_pk_bf16_f32 v{16+u}, v{res[2*u]}, v{res[2*u+1]}")
    g(f"buffer_store_dwordx2 v[16:17], v{vA2}, s[{sOUT}:{sOUT+3}], s{sT2} offen {outflag}")
    g(f"buffer_store_dwordx2 v[18:19], v{vA2}, s[{sOUT}:{sOUT+3}], s{sT2} offen offset:16 {outflag}")
    g.lab("L_FIN")
    if span:
        g("s_sub_u32 s100, s2, 128")
        g("s_cmp_ge_u32 s100, 2")
        g("s_cbranch_scc1 L_END")
        g(f"s_cmp_lg_u32 s{sWAVE}, 0")
        g("s_cbranch_scc1 L_END")
        g("s_waitcnt vmcnt(0)")
        g.ts(14)
        g.srd(sDBG, 28, 256)
        g("s_sub_u32 s100, s2, 128")
        g("s_mul_i32 s100, s100, 28")
        g("s_add_u32 s100, s100, 8")
        g("v_mov_b32 v17, s100")
        g("s_mov_b64 exec, 1")
        for k, n in enumerate((0, 2, 5, 6, 8, 10, 14)):
            g(f"s_sub_u32 s101, s{sTS+n}, s{sN}")
            g(f"v_mov_b32 v{18+k}, s101")
            g(f"buffer_store_dword v{18+k}, v17, s[{sDBG}:{sDBG+3}], 0 offen offset:{4*k}")
        g("s_branch L_END")
    if debug:
        g("s_waitcnt vmcnt(0)")
        g.ts(14)
        g(f"s_lshl_b32 s{sT0}, s2, 3")
        g(f"s_add_u32 s{sT0}, s{sT0}, s{sWAVE}")
        g(f"s_lshl_b32 s{sT0}, s{sT0}, 6")
        g(f"s_add_u32 s{sT0}, s{sT0}, {TSB:#x}")
        g(f"v_mov_b32 v{vA3}, s{sT0}")
        g("s_mov_b64 exec, 1")
        for n in range(16):
            g(f"v_mov_b32 v{16+n}, s{sTS+n}")
            g(f"buffer_store_dword v{16+n}, v{vA3}, s[{sWS}:{sWS+3}], 0 offen offset:{4*n}")
    g.lab("L_END")
    g("s_endpgm")
    rare_path(g)
    g.lab("L_CODE_END")
    hdr = f"""; Fused Q-projection + sliding-window GQA attention + output projection (generated by gen/gen3.py)
; @launch grid=(256,1,1) block=(512,1,1) lds=163840
.amdgcn_target "amdgcn-amd-amdhsa--gfx950"
.text
.globl {NAME}
.p2align 8
.type {NAME},@function
{NAME}:
"""
    ftr = f"""
.section .rodata,"a"
.p2align 6
.amdhsa_kernel {NAME}
  .amdhsa_next_free_vgpr 256
  .amdhsa_next_free_sgpr 102
  .amdhsa_accum_offset 256
  .amdhsa_group_segment_fixed_size 0
  .amdhsa_kernarg_size 64
  .amdhsa_user_sgpr_count 2
  .amdhsa_user_sgpr_kernarg_segment_ptr 1
  .amdhsa_system_sgpr_workgroup_id_x 1
.end_amdhsa_kernel
"""
    return hdr + "\n".join(g.L) + ftr

if __name__ == "__main__":
    import argparse
    ap = argparse.ArgumentParser()
    ap.add_argument("-o", default="standalone__sliding_block_cached__sampling.s")
    ap.add_argument("--debug", type=int, default=0)
    ap.add_argument("--la", type=int, default=2)
    ap.add_argument("--cprio", type=int, default=1)
    ap.add_argument("--norot", action="store_true")
    ap.add_argument("--xnt", action="store_true")
    ap.add_argument("--nocodepf", action="store_true")
    ap.add_argument("--kw", default="")
    a = ap.parse_args()
    kw = eval("dict(" + a.kw + ")")
    open(a.o, "w").write(gen(debug=a.debug, LA=a.la, cprio=a.cprio, rot=not a.norot, xnt=a.xnt, codepf=not a.nocodepf, **kw))
```
